```python
import torch

def _softmax(x, axis=-1):
    return torch.softmax(x, dim=axis)
def _gelu(x):
    return torch.nn.functional.gelu(x, approximate="tanh")
def _silu(x):
    return torch.nn.functional.silu(x)
def _sigmoid(x):
    return torch.sigmoid(x)
def _layernorm(x, axis=-1, eps=1e-5):
    m = x.mean(dim=axis, keepdim=True)
    v = x.var(dim=axis, keepdim=True, unbiased=False)
    return (x - m) / torch.sqrt(v + eps)
def _scatter_add(tgt, idx, src, axis=0):
    return tgt.clone().index_add_(axis, idx, src)
def _segment_sum(src, seg, n):
    out = torch.zeros((n,) + src.shape[1:], dtype=src.dtype)
    return out.index_add_(0, seg, src)
def _pad(x, pw):
    flat = tuple(v for pair in reversed(pw) for v in pair)
    return torch.nn.functional.pad(x, flat)

kernel_name = 'concat_heads__sliding_local_dilated__mha_block__prompt'

def setup_inputs():

    _w = (lambda a: (lambda t: t.to(torch.bfloat16) if t.is_floating_point() else t)(torch.as_tensor(a)))
    def _A_setup():
        B, S, D = 1, 2048, 448
        return {
            "x": _w((lambda *s: torch.randn(*s, dtype=torch.bfloat16) * 0.4)(B, S, D)),
            "wqkv": _w((lambda *s: torch.randn(*s, dtype=torch.bfloat16) * 0.8)(D, 3 * D)),
            "wo": _w((lambda *s: torch.randn(*s, dtype=torch.bfloat16) * 0.1)(D, D)),
        }
    _A_in = _A_setup()

    def _B_setup():
        B, S, D, H = 1, 2048, 448, 16
        return {
            "x": _w((lambda *s: torch.randn(*s, dtype=torch.bfloat16) * 0.2)(B, S, D)),
            "wqkv": _w((lambda *s: torch.randn(*s, dtype=torch.bfloat16) * 0.8)(D, 3 * D)),
            "wo": _w((lambda *s: torch.randn(*s, dtype=torch.bfloat16) * 0.2)(D, D)),
        }
    _B_in = _B_setup()

    return {
        "A_x": _A_in["x"],
        "A_wqkv": _A_in["wqkv"],
        "A_wo": _A_in["wo"],
        "B_x": _B_in["x"],
        "B_wqkv": _B_in["wqkv"],
        "B_wo": _B_in["wo"],
    }

def reference(A_x, A_wqkv, A_wo, B_x, B_wqkv, B_wo):
    def _A_ref(x, wqkv, wo):
        B, S, D = x.shape
        H = 16; Dh = D // H
        W, dil = 8, 2
        qkv = (lambda x, *d: x.permute(*d))((x @ wqkv).reshape(B, S, 3, H, Dh), 2, 0, 3, 1, 4)
        q, k, v = qkv[0], qkv[1], qkv[2]
        scale = Dh ** -0.5
        pos = torch.arange(S)
        off = torch.arange(W) * dil
        idx = pos[:, None] - off[None, :]
        mask = idx >= 0
        idx_c = torch.where(mask, idx, 0).reshape(-1)
        kg = k[:, :, idx_c, :].reshape(B, H, S, W, Dh)
        vg = v[:, :, idx_c, :].reshape(B, H, S, W, Dh)
        logits = torch.einsum("bhsd,bhswd->bhsw", q, kg) * scale
        logits = torch.where(mask[None, None, :, :], logits, -1e9)
        attn = _softmax(logits, axis=-1)
        o = torch.einsum("bhsw,bhswd->bhsd", attn, vg)
        return (lambda x, *d: x.permute(*d))(o, 0, 2, 1, 3).reshape(B, S, D) @ wo

    def _B_ref(x, wqkv, wo):
        B, S, D = x.shape
        H = 16
        Dh = D // H
        qkv = (lambda x, *d: x.permute(*d))((x @ wqkv).reshape(B, S, 3, H, Dh), 2, 0, 3, 1, 4)
        q, k, v = qkv[0], qkv[1], qkv[2]
        scores = torch.einsum("bhqd,bhkd->bhqk", q, k) * (Dh ** -0.5)
        p = _softmax(scores, axis=-1)
        o = torch.einsum("bhqk,bhkd->bhqd", p, v)
        return (lambda x, *d: x.permute(*d))(o, 0, 2, 1, 3).reshape(B, S, D) @ wo

    a = _A_ref(A_x, A_wqkv, A_wo)
    b = _B_ref(B_x, B_wqkv, B_wo)
    return torch.concatenate([a, b], axis=-1)
```

```python
import sys, math
NAME = "concat_heads__sliding_local_dilated__mha_block__prompt"

class Asm:
    def __init__(self):
        self.lines = []
    def __call__(self, s):
        for l in s.strip("\n").split("\n"):
            l = l.strip()
            if not l: continue
            self.lines.append(l if l.endswith(":") else "    " + l)
    def text(self):
        return "\n".join(self.lines) + "\n"

def vr(a, n):
    return f"v[{a}:{a+n-1}]"
def sr(a, n):
    return f"s[{a}:{a+n-1}]"

QK_SZ = 64 * 56 * 512
VP_SZ = 16 * 64 * 2048
OP_SZ = 64 * 16 * 2048
BR_SZ = 0x800000
QU_OFF = 0
KU_OFF = 0x200000
VP_OFF = 0x400000
OP_OFF = 0x600000
WS_USED = 2 * BR_SZ
X_BYTES = 2048 * 448 * 2
W_BYTES = 448 * 1344 * 2
WO_BYTES = 448 * 448 * 2
OUT_BYTES = 2048 * 896 * 2
CSCALE = (28 ** -0.5) * math.log2(math.e)
import struct
def f32bits(x): return struct.unpack("<I", struct.pack("<f", x))[0]

def srd(a, d, lo, hi, nbytes):
    a(f"s_mov_b32 s{d}, s{lo}\n s_and_b32 s{d+1}, s{hi}, 0xffff\n s_mov_b32 s{d+2}, {hex(nbytes)}\n s_mov_b32 s{d+3}, 0x20000")

def kernel_head(a, name):
    a.lines.append(f".globl {name}\n.p2align 8\n.type {name},@function\n{name}:")

def kernel_desc(name, vgpr, sgpr=96):
    acc = (vgpr + 3) // 4 * 4
    return f""".p2align 6
.amdhsa_kernel {name}
  .amdhsa_next_free_vgpr {vgpr}
  .amdhsa_next_free_sgpr {sgpr}
  .amdhsa_accum_offset {acc}
  .amdhsa_group_segment_fixed_size 0
  .amdhsa_kernarg_size 72
  .amdhsa_user_sgpr_count 2
  .amdhsa_user_sgpr_kernarg_segment_ptr 1
  .amdhsa_system_sgpr_workgroup_id_x 1
.end_amdhsa_kernel
"""

def gen_k1(a):
    kernel_head(a, "qkv_kernel")
    SLOT = 40960
    sB, sRB, sCG, sW, sCH = 20, 21, 22, 23, 24
    sX, sWt, sWS = 8, 12, 16
    sXo, sW0, sW1, sW2, sM = 25, 26, 27, 28, 29
    a(f"""
    s_cmp_ge_u32 s2, 224
    s_cbranch_scc1 K1_done
    s_load_dwordx4 s[32:35], s[0:1], 0
    s_load_dwordx4 s[36:39], s[0:1], 24
    s_load_dwordx2 s[40:41], s[0:1], 64
    v_lshrrev_b32 v1, 6, v0
    v_and_b32 v0, 63, v0
    s_and_b32 s3, s2, 7
    v_readfirstlane_b32 s{sW}, v1
    s_lshr_b32 s4, s2, 3
    s_lshr_b32 s{sB}, s3, 2
    s_and_b32 s3, s3, 3
    s_lshl_b32 s3, s3, 2
    s_and_b32 s5, s4, 3
    s_add_u32 s{sRB}, s3, s5
    s_lshr_b32 s{sCG}, s4, 2
    s_lshl_b32 s5, s5, 1
    s_add_u32 s{sCH}, s{sCG}, s5
    s_cmp_ge_u32 s{sCH}, 7
    s_cselect_b32 s5, 7, 0
    s_sub_u32 s{sCH}, s{sCH}, s5
    """)
    vX0, vX1, vWs = 2, 3, 4
    a(f"""
    v_lshrrev_b32 v5, 3, v0
    v_and_b32 v6, 7, v0
    v_lshrrev_b32 v7, 4, v0
    s_lshl_b32 s3, s{sRB}, 7
    s_lshl_b32 s4, s{sW}, 4
    s_add_u32 s3, s3, s4
    v_add_u32 v8, s3, v5
    v_mul_u32_u24 v8, 896, v8
    v_xor_b32 v9, v6, v7
    v_lshlrev_b32 v9, 4, v9
    v_add_u32 v{vX0}, v8, v9
    v_add_u32 v{vX1}, {8*896}, v{vX0}
    v_xor_b32 v{vX1}, 64, v{vX1}
    s_lshl_b32 s4, s{sW}, 3
    v_add_u32 v8, s4, v5
    v_mul_u32_u24 v8, 2688, v8
    v_and_b32 v9, 1, v7
    v_lshlrev_b32 v9, 2, v9
    v_xor_b32 v9, v9, v6
    v_lshlrev_b32 v9, 4, v9
    v_add_u32 v8, v8, v9
    s_lshl_b32 s4, s{sCG}, 7
    v_add_u32 v{vWs}, s4, v8
    s_waitcnt lgkmcnt(0)
    s_cmp_eq_u32 s{sB}, 0
    s_cselect_b32 s32, s32, s36
    s_cselect_b32 s33, s33, s37
    s_cselect_b32 s34, s34, s38
    s_cselect_b32 s35, s35, s39
    """)
    srd(a, sX, 32, 33, X_BYTES)
    srd(a, sWt, 34, 35, W_BYTES)
    srd(a, sWS, 40, 41, WS_USED)
    a(f"s_lshl_b32 s30, s{sW}, 11\n s_lshl_b32 s31, s{sW}, 10")
    def dma(slot):
        base = slot * SLOT
        a(f"""
        s_lshl_b32 s{sXo}, s{sCH}, 7
        s_mul_i32 s{sW0}, s{sCH}, {64*2688}
        s_add_u32 m0, s30, {base}
        s_add_u32 s{sW1}, s{sW0}, 896
        buffer_load_dwordx4 v{vX0}, {sr(sX,4)}, s{sXo} offen lds
        s_add_u32 m0, s30, {base+1024}
        s_add_u32 s{sW2}, s{sW0}, 1792
        buffer_load_dwordx4 v{vX1}, {sr(sX,4)}, s{sXo} offen lds
        s_add_u32 m0, s31, {base+16384}
        s_add_u32 s{sCH}, s{sCH}, 1
        buffer_load_dwordx4 v{vWs}, {sr(sWt,4)}, s{sW0} offen lds
        s_add_u32 m0, s31, {base+16384+8192}
        s_cmp_eq_u32 s{sCH}, 7
        buffer_load_dwordx4 v{vWs}, {sr(sWt,4)}, s{sW1} offen lds
        s_cselect_b32 s{sCH}, 0, s{sCH}
        s_add_u32 m0, s31, {base+16384+16384}
        s_nop 0
        buffer_load_dwordx4 v{vWs}, {sr(sWt,4)}, s{sW2} offen lds
        """)
    for s in range(4):
        dma(s)
    vXA = 10
    vWA = 18
    a(f"""
    s_and_b32 s3, s{sW}, 3
    s_lshr_b32 s4, s{sW}, 2
    v_and_b32 v5, 31, v0
    v_lshrrev_b32 v6, 5, v0
    v_lshrrev_b32 v7, 1, v5
    v_and_b32 v7, 7, v7
    v_xor_b32 v7, v7, v6
    v_lshlrev_b32 v7, 4, v7
    s_lshl_b32 s5, s3, 12
    v_lshlrev_b32 v8, 7, v5
    v_add_u32 v8, s5, v8
    v_add_u32 v{vXA}, v8, v7
    v_xor_b32 v{vXA+1}, 32, v{vXA}
    v_xor_b32 v{vXA+2}, 64, v{vXA}
    v_xor_b32 v{vXA+3}, 96, v{vXA}
    """)
    for i in range(4):
        a(f"v_add_u32 v{vXA+4+i}, {2*SLOT}, v{vXA+i}")
    a(f"""
    v_lshrrev_b32 v7, 2, v0
    v_and_b32 v7, 3, v7
    v_lshlrev_b32 v8, 3, v6
    v_add_u32 v8, v8, v7
    v_lshlrev_b32 v8, 7, v8
    v_lshrrev_b32 v7, 1, v7
    v_xor_b32 v7, s4, v7
    v_lshlrev_b32 v7, 6, v7
    v_add_u32 v8, v8, v7
    v_and_b32 v7, 16, v0
    v_lshlrev_b32 v7, 1, v7
    v_add_u32 v8, v8, v7
    v_and_b32 v7, 3, v0
    v_lshlrev_b32 v7, 3, v7
    v_add_u32 v{vWA}, v8, v7
    """)
    for i in range(1, 4):
        a(f"v_add_u32 v{vWA+i}, {i*SLOT}, v{vWA}")
    accQ, accK, accV = 32, 48, 64
    F = [80, 96]
    for i in range(48):
        a(f"v_mov_b32 v{accQ+i}, 0")
    def reads(slot, ks, buf):
        f = F[buf]
        xa = vXA + ks + (4 if slot >= 2 else 0)
        a(f"ds_read_b128 {vr(f,4)}, v{xa} offset:{(slot%2)*SLOT}")
        for p in range(3):
            for j in range(2):
                a(f"ds_read_b64_tr_b16 {vr(f+4+4*p+2*j,2)}, v{vWA+slot} offset:{16384+p*8192+ks*2048+j*512}")
    def mfmas(buf):
        f = F[buf]
        a(f"v_mfma_f32_32x32x16_bf16 {vr(accQ,16)}, {vr(f+4,4)}, {vr(f,4)}, {vr(accQ,16)}")
        a(f"v_mfma_f32_32x32x16_bf16 {vr(accK,16)}, {vr(f+8,4)}, {vr(f,4)}, {vr(accK,16)}")
        a(f"v_mfma_f32_32x32x16_bf16 {vr(accV,16)}, {vr(f,4)}, {vr(f+12,4)}, {vr(accV,16)}")
    a("s_waitcnt vmcnt(15)\n s_barrier")
    reads(0, 0, 0)
    for s in range(7):
        slot = s % 4
        for ks in range(3):
            reads(slot, ks + 1, (ks + 1) % 2)
            a("s_waitcnt lgkmcnt(7)")
            mfmas(ks % 2)
        a("s_waitcnt lgkmcnt(0)")
        if s < 6:
            a(f"s_waitcnt vmcnt({min(10, 5*(5-s))})\n s_barrier")
            reads((s + 1) % 4, 0, 0)
            if s + 4 <= 6:
                dma(slot)
        mfmas(1)
    a(f"""
    s_lshl_b32 s5, s{sRB}, 2
    s_add_u32 s5, s5, s3
    s_lshl_b32 s6, s{sCG}, 1
    s_add_u32 s6, s6, s4
    s_mul_i32 s7, s5, {56*512}
    s_lshl_b32 s25, s6, 11
    s_add_u32 s7, s7, s25
    s_lshl_b32 s26, s{sB}, 23
    s_add_u32 s7, s7, s26
    s_add_u32 s27, s7, {KU_OFF}
    v_lshlrev_b32 v2, 4, v0
    s_lshl_b32 s6, s6, 5
    v_and_b32 v5, 31, v0
    v_add_u32 v5, s6, v5
    v_mul_u32_u24 v7, 2341, v5
    v_lshrrev_b32 v7, 16, v7
    v_mul_u32_u24 v8, 28, v7
    v_sub_u32 v8, v5, v8
    v_lshlrev_b32 v7, 17, v7
    v_lshlrev_b32 v8, 4, v8
    v_add_u32 v7, v7, v8
    v_lshlrev_b32 v8, 9, v6
    v_add_u32 v3, v7, v8
    s_lshl_b32 s28, s5, 11
    s_add_u32 s28, s28, s26
    s_add_u32 s28, s28, {VP_OFF}
    s_mov_b32 s29, {hex(f32bits(CSCALE))}
    """)
    P = 80
    for i in range(16):
        a(f"v_mul_f32 v{accQ+i}, s29, v{accQ+i}")
    for (acc, pb) in ((accQ, P), (accK, P + 8), (accV, P + 16)):
        for i in range(8):
            a(f"v_cvt_pk_bf16_f32 v{pb+i}, v{acc+2*i}, v{acc+2*i+1}")
    for pb in (P, P + 8):
        for g in (0, 4):
            a(f"v_permlane32_swap_b32 v{pb+g}, v{pb+g+2}")
            a(f"v_permlane32_swap_b32 v{pb+g+1}, v{pb+g+3}")
    a(f"""
    buffer_store_dwordx4 {vr(P+16,4)}, v3, {sr(sWS,4)}, s28 offen
    buffer_store_dwordx4 {vr(P+20,4)}, v3, {sr(sWS,4)}, s28 offen offset:1024
    buffer_store_dwordx4 {vr(P,4)}, v2, {sr(sWS,4)}, s7 offen
    buffer_store_dwordx4 {vr(P+4,4)}, v2, {sr(sWS,4)}, s7 offen offset:1024
    buffer_store_dwordx4 {vr(P+8,4)}, v2, {sr(sWS,4)}, s27 offen
    buffer_store_dwordx4 {vr(P+12,4)}, v2, {sr(sWS,4)}, s27 offen offset:1024
    K1_done:
    s_endpgm
    """)
    return kernel_desc("qkv_kernel", 112)

DELTA = 24.0
def gen_k2(a):
    kernel_head(a, "attn_kernel")
    SLOT = 32768
    sH, sQB, sW, sQT, sKH = 20, 21, 22, 23, 24
    sWS = 16
    sKo, sVo, sTile, sM = 25, 26, 27, 28
    sKb, sVb = 29, 30
    sVm = 32
    sS = 31
    sOdd = 34
    a(f"""
    s_cmp_ge_u32 s2, 256
    s_cbranch_scc1 K2_done
    s_load_dwordx2 s[40:41], s[0:1], 64
    v_lshrrev_b32 v1, 6, v0
    v_and_b32 v0, 63, v0
    s_and_b32 s3, s2, 7
    v_readfirstlane_b32 s{sW}, v1
    s_lshr_b32 s4, s2, 3
    s_and_b32 s5, s3, 3
    s_lshl_b32 s5, s5, 2
    s_and_b32 s6, s4, 3
    s_add_u32 s{sQB}, s5, s6
    s_lshr_b32 s5, s3, 2
    s_lshl_b32 s5, s5, 3
    s_lshr_b32 s7, s4, 2
    s_add_u32 s{sH}, s5, s7
    s_and_b32 s{sQT}, s{sW}, 3
    s_lshr_b32 s{sKH}, s{sW}, 2
    s_lshl_b32 s{sTile}, s6, 4
    s_add_u32 s{sTile}, s{sTile}, s{sW}
    s_mul_i32 s5, s{sH}, 7
    s_lshr_b32 s5, s5, 1
    s_lshl_b32 s35, s5, 9
    s_add_u32 s{sKb}, s35, {BR_SZ + KU_OFF}
    s_lshl_b32 s36, s{sH}, 17
    s_add_u32 s{sVb}, s36, {BR_SZ + VP_OFF}
    s_and_b32 s{sOdd}, s{sH}, 1
    s_mov_b32 s{sVm}, 0x0fffffff
    s_mov_b32 s{sVm+1}, 0x0fffffff
    s_lshl_b32 s{sM}, s{sW}, 11
    v_lshlrev_b32 v2, 4, v0
    s_waitcnt lgkmcnt(0)
    """)
    srd(a, sWS, 40, 41, WS_USED)
    vL16 = 2
    def dma(slot_expr_sgpr=None, slot=None):
        if slot is not None:
            a(f"s_add_u32 s37, s{sM}, {slot*SLOT}")
        else:
            a(f"s_add_u32 s37, s{sM}, s{slot_expr_sgpr}")
        a(f"""
        s_mul_i32 s{sKo}, s{sTile}, {56*512}
        s_mov_b32 m0, s37
        s_add_u32 s{sKo}, s{sKo}, s{sKb}
        s_lshl_b32 s{sVo}, s{sTile}, 11
        buffer_load_dwordx4 v{vL16}, {sr(sWS,4)}, s{sKo} offen lds
        s_add_u32 s{sVo}, s{sVo}, s{sVb}
        buffer_load_dwordx4 v{vL16}, {sr(sWS,4)}, s{sKo} offen offset:1024 lds
        s_add_u32 m0, s37, 16384
        s_mov_b64 exec, {sr(sVm,2)}
        s_add_u32 s{sTile}, s{sTile}, 8
        buffer_load_dwordx4 v{vL16}, {sr(sWS,4)}, s{sVo} offen lds
        s_and_b32 s{sTile}, s{sTile}, 63
        buffer_load_dwordx4 v{vL16}, {sr(sWS,4)}, s{sVo} offen offset:1024 lds
        s_mov_b64 exec, -1
        """)
    Q = 4
    NM = 12
    S = [28, 44]
    P = 60
    O = 68
    K = 84
    V = 92
    vCur, vNxt = 100, 101
    T = 102
    a(f"""
    s_lshl_b32 s5, s{sQB}, 2
    s_add_u32 s38, s5, s{sQT}
    s_mul_i32 s5, s38, {56*512}
    s_add_u32 s39, s5, s35
    s_add_u32 s5, s39, {BR_SZ + QU_OFF}
    buffer_load_dwordx4 {vr(Q,4)}, v{vL16}, {sr(sWS,4)}, s5 offen
    buffer_load_dwordx4 {vr(Q+4,4)}, v{vL16}, {sr(sWS,4)}, s5 offen offset:1024
    """)
    for s in range(3):
        dma(slot=s)
    a(f"""
    v_and_b32 v{T}, 31, v0
    v_cmp_eq_u32 vcc, 28, v{T}
    v_mov_b32 v{T+1}, 0x3f803f80
    s_add_u32 s5, s{sM}, 16384
    v_cndmask_b32 v{T+2}, 0, v{T+1}, vcc
    v_add_u32 v{T+1}, s5, v{vL16}
    v_mov_b32 v{T+3}, v{T+2}
    v_mov_b32 v{T+4}, v{T+2}
    v_mov_b32 v{T+5}, v{T+2}
    v_add_u32 v{T}, {2*SLOT}, v{T+1}
    s_not_b64 exec, {sr(sVm,2)}
    ds_write_b128 v{T+1}, {vr(T+2,4)}
    ds_write_b128 v{T+1}, {vr(T+2,4)} offset:1024
    ds_write_b128 v{T+1}, {vr(T+2,4)} offset:{SLOT}
    ds_write_b128 v{T+1}, {vr(T+2,4)} offset:{SLOT+1024}
    ds_write_b128 v{T}, {vr(T+2,4)}
    ds_write_b128 v{T}, {vr(T+2,4)} offset:1024
    ds_write_b128 v{T}, {vr(T+2,4)} offset:{SLOT}
    ds_write_b128 v{T}, {vr(T+2,4)} offset:{SLOT+1024}
    s_mov_b64 exec, -1
    """)
    ONES = T + 2
    def zero_foreign(q):
        lab = f"K2_zf{q}_{len(a.lines)}"
        a(f"""
        s_cmp_eq_u32 s{sOdd}, 0
        s_cbranch_scc1 {lab}_e
        s_mov_b32 exec_hi, 0
        v_mov_b32 v{q}, 0
        v_mov_b32 v{q+1}, 0
        s_branch {lab}_x
        {lab}_e:
        s_mov_b32 exec_lo, 0
        v_mov_b32 v{q+6}, 0
        v_mov_b32 v{q+7}, 0
        {lab}_x:
        s_mov_b64 exec, -1
        """)
    def finalize_store(o, soff, t):
        a(f"""
        v_mov_b32 v{t}, v{o+12}
        v_mov_b32 v{t+1}, v{o+12}
        s_nop 1
        v_permlane32_swap_b32 v{t}, v{t+1}
        s_nop 1
        v_rcp_f32 v{t+1}, v{t+1}
        s_mov_b32 exec_lo, 0
        v_mov_b32 v{o+12}, 0
        v_mov_b32 v{o+13}, 0
        v_mov_b32 v{o+14}, 0
        v_mov_b32 v{o+15}, 0
        s_mov_b64 exec, -1
        """)
        for i in range(16):
            a(f"v_mul_f32 v{o+i}, v{t+1}, v{o+i}")
        for i in range(8):
            a(f"v_cvt_pk_bf16_f32 v{o+i}, v{o+2*i}, v{o+2*i+1}")
        a(f"""
        buffer_store_dwordx4 {vr(o,4)}, v{vL16}, {sr(sWS,4)}, s{soff} offen
        buffer_store_dwordx4 {vr(o+4,4)}, v{vL16}, {sr(sWS,4)}, s{soff} offen offset:1024
        """)
    a(f"s_cmp_eq_u32 s{sKH}, 0\n s_cbranch_scc1 K2_skipA")
    AQ, AKp, AKc, AVp, AVc = 108, 84, 92, 116, 120
    SP, SC = S[0], S[1]
    a(f"""
    s_cmp_eq_u32 s38, 0
    s_cselect_b32 s5, 0, 1
    s_sub_u32 s6, s38, s5
    s_mul_i32 s7, s6, {56*512}
    s_add_u32 s7, s7, s35
    s_add_u32 s7, s7, {KU_OFF}
    s_add_u32 s42, s39, {KU_OFF}
    s_lshl_b32 s43, s6, 11
    s_add_u32 s43, s43, s36
    s_add_u32 s43, s43, {VP_OFF}
    s_lshl_b32 s44, s38, 11
    s_add_u32 s44, s44, s36
    s_add_u32 s44, s44, {VP_OFF}
    """)
    for r in range(AVp, AVp + 12):
        a(f"v_mov_b32 v{r}, v{ONES}")
    a(f"""
    buffer_load_dwordx4 {vr(AQ,4)}, v{vL16}, {sr(sWS,4)}, s39 offen
    buffer_load_dwordx4 {vr(AQ+4,4)}, v{vL16}, {sr(sWS,4)}, s39 offen offset:1024
    buffer_load_dwordx4 {vr(AKp,4)}, v{vL16}, {sr(sWS,4)}, s7 offen
    buffer_load_dwordx4 {vr(AKp+4,4)}, v{vL16}, {sr(sWS,4)}, s7 offen offset:1024
    buffer_load_dwordx4 {vr(AKc,4)}, v{vL16}, {sr(sWS,4)}, s42 offen
    buffer_load_dwordx4 {vr(AKc+4,4)}, v{vL16}, {sr(sWS,4)}, s42 offen offset:1024
    s_mov_b64 exec, {sr(sVm,2)}
    buffer_load_dwordx4 {vr(AVp,4)}, v{vL16}, {sr(sWS,4)}, s43 offen offset:1024
    buffer_load_dwordx4 {vr(AVc,4)}, v{vL16}, {sr(sWS,4)}, s44 offen
    buffer_load_dwordx4 {vr(AVc+4,4)}, v{vL16}, {sr(sWS,4)}, s44 offen offset:1024
    s_mov_b64 exec, -1
    """)
    a(f"""
    v_and_b32 v{T}, 31, v0
    v_lshrrev_b32 v{T+1}, 5, v0
    v_lshlrev_b32 v{T+1}, 2, v{T+1}
    v_sub_u32 v{T}, v{T}, v{T+1}
    s_cmp_eq_u32 s38, 0
    s_cselect_b32 s5, 64, 32
    v_add_u32 v{T+1}, s5, v{T}
    s_mov_b32 s6, 0xf149f2ca
    v_mov_b32 v{O}, s6
    """)
    for r in range(16):
        key = 8 * (r // 4) + r % 4
        for (dst, src) in ((SC + r, T), (SP + r, T + 1)):
            if dst == SP + r and r < 8:
                a(f"v_mov_b32 v{dst}, 0")
                continue
            a(f"""
            v_subrev_u32 v{dst}, {key}, v{src}
            v_alignbit_b32 v{dst}, v{dst}, v{dst}, 1
            v_cmp_lt_u32 vcc, 7, v{dst}
            s_nop 1
            v_cndmask_b32 v{dst}, 0, v{O}, vcc
            """)
    a("s_waitcnt vmcnt(3)")
    zero_foreign(AQ)
    a(f"""
    s_nop 1
    v_mfma_f32_32x32x16_bf16 {vr(SP,16)}, {vr(AKp,4)}, {vr(AQ,4)}, {vr(SP,16)}
    v_mfma_f32_32x32x16_bf16 {vr(SC,16)}, {vr(AKc,4)}, {vr(AQ,4)}, {vr(SC,16)}
    v_mfma_f32_32x32x16_bf16 {vr(SP,16)}, {vr(AKp+4,4)}, {vr(AQ+4,4)}, {vr(SP,16)}
    v_mfma_f32_32x32x16_bf16 {vr(SC,16)}, {vr(AKc+4,4)}, {vr(AQ+4,4)}, {vr(SC,16)}
    s_nop 15
    """)
    regs = [SP + 8 + i for i in range(8)] + [SC + i for i in range(16)]
    a(f"v_max3_f32 v{T}, v{regs[0]}, v{regs[1]}, v{regs[2]}")
    for i in range(3, 23, 2):
        a(f"v_max3_f32 v{T}, v{T}, v{regs[i]}, v{regs[i+1]}")
    a(f"""
    v_max_f32 v{T}, v{T}, v{regs[23]}
    v_mov_b32 v{T+1}, v{T}
    s_nop 1
    v_permlane32_swap_b32 v{T}, v{T+1}
    s_nop 1
    v_max_f32 v{T}, v{T}, v{T+1}
    """)
    for r in regs:
        a(f"v_sub_f32 v{r}, v{r}, v{T}")
    for r in regs:
        a(f"v_exp_f32 v{r}, v{r}")
    a("s_nop 0")
    AP = AQ
    pk = [SP + i for i in range(4)] + [AQ + i for i in range(8)]
    for i in range(12):
        a(f"v_cvt_pk_bf16_f32 v{pk[i]}, v{regs[2*i]}, v{regs[2*i+1]}")
    a(f"""
    s_waitcnt vmcnt(0)
    s_nop 1
    v_mfma_f32_32x32x16_bf16 {vr(O,16)}, {vr(AVp,4)}, {vr(SP,4)}, 0
    v_mfma_f32_32x32x16_bf16 {vr(O,16)}, {vr(AVc,4)}, {vr(AQ,4)}, {vr(O,16)}
    v_mfma_f32_32x32x16_bf16 {vr(O,16)}, {vr(AVc+4,4)}, {vr(AQ+4,4)}, {vr(O,16)}
    s_lshl_b32 s5, s38, 4
    s_add_u32 s5, s5, s{sH}
    s_lshl_b32 s5, s5, 11
    s_add_u32 s45, s5, {OP_OFF}
    s_nop 15
    """)
    finalize_store(O, 45, T)
    a("s_waitcnt vmcnt(0)")
    a("K2_skipA:")
    a(f"""
    s_waitcnt vmcnt(8) lgkmcnt(0)
    s_barrier
    s_lshl_b32 s5, s{sKH}, 13
    v_add_u32 v{vCur}, s5, v{vL16}
    v_add_u32 v{vNxt}, {SLOT}, v{vCur}
    ds_read_b128 {vr(K,4)}, v{vL16}
    ds_read_b128 {vr(K+4,4)}, v{vL16} offset:1024
    """)
    zero_foreign(Q)
    a(f"""
    s_waitcnt lgkmcnt(0)
    v_mfma_f32_32x32x16_bf16 {vr(S[1],16)}, {vr(K,4)}, {vr(Q,4)}, 0
    v_mfma_f32_32x32x16_bf16 {vr(S[1],16)}, {vr(K+4,4)}, {vr(Q+4,4)}, {vr(S[1],16)}
    ds_read_b128 {vr(K,4)}, v{vCur}
    ds_read_b128 {vr(K+4,4)}, v{vCur} offset:1024
    ds_read_b128 {vr(V,4)}, v{vCur} offset:16384
    """)
    for i in range(16):
        a(f"v_mov_b32 v{O+i}, 0")
    for i in range(4):
        a(f"v_mov_b32 v{P+4+i}, 0")
        a(f"v_mov_b32 v{V+4+i}, 0")
    s1 = S[1]
    a(f"v_max3_f32 v{T}, v{s1}, v{s1+1}, v{s1+2}")
    for i in range(3, 15, 2):
        a(f"v_max3_f32 v{T}, v{T}, v{s1+i}, v{s1+i+1}")
    a(f"""
    v_max_f32 v{T}, v{T}, v{s1+15}
    v_mov_b32 v{T+1}, v{T}
    s_mov_b32 s5, {hex(f32bits(-DELTA))}
    s_nop 0
    v_permlane32_swap_b32 v{T}, v{T+1}
    s_nop 1
    v_max_f32 v{T}, v{T}, v{T+1}
    v_sub_f32 v{NM}, s5, v{T}
    """)
    for i in range(1, 16):
        a(f"v_mov_b32 v{NM+i}, v{NM}")
    a(f"""
    s_waitcnt lgkmcnt(1)
    s_nop 0
    v_mfma_f32_32x32x16_bf16 {vr(S[0],16)}, {vr(K,4)}, {vr(Q,4)}, {vr(NM,16)}
    v_mfma_f32_32x32x16_bf16 {vr(S[0],16)}, {vr(K+4,4)}, {vr(Q+4,4)}, {vr(S[0],16)}
    ds_read_b128 {vr(K,4)}, v{vCur} offset:2048
    ds_read_b128 {vr(K+4,4)}, v{vCur} offset:3072
    s_mov_b32 s{sS}, 0
    s_mov_b32 s46, {3*SLOT}
    s_nop 7
    """)
    a(".p2align 6" if False else "s_nop 0")
    a("K2_loop:")
    for i in range(4):
        cs, ns = S[i % 2], S[(i + 1) % 2]
        def ex(j): return f"v_exp_f32 v{cs+j}, v{cs+j}"
        def cv(j): return f"v_cvt_pk_bf16_f32 v{P+j}, v{cs+2*j}, v{cs+2*j+1}"
        if i == 2:
            a(f"""
            s_cmp_ge_u32 s{sS}, 6
            s_cbranch_scc1 K2_w0
            s_waitcnt vmcnt(4)
            K2_w0r:
            s_barrier
            s_cmp_ge_u32 s{sS}, 5
            s_cbranch_scc1 K2_nodma
            """)
            dma(slot_expr_sgpr=46)
            a(f"""
            s_add_u32 s46, s46, {SLOT}
            s_and_b32 s46, s46, {4*SLOT-1}
            K2_nodma:
            """)
        a(f"v_mfma_f32_32x32x16_bf16 {vr(O,16)}, {vr(V+4,4)}, {vr(P+4,4)}, {vr(O,16)}")
        a(f"ds_read_b128 {vr(V+4,4)}, v{vCur} offset:{16384 + i*2048 + 1024}")
        a(ex(0)); a(ex(1)); a(ex(2)); a(cv(0)); a(ex(3))
        a("s_waitcnt lgkmcnt(1)")
        a(f"v_mfma_f32_32x32x16_bf16 {vr(ns,16)}, {vr(K,4)}, {vr(Q,4)}, {vr(NM,16)}")
        a(ex(4)); a(cv(1)); a(ex(5)); a(ex(6)); a(cv(2)); a(ex(7))
        a(f"v_mfma_f32_32x32x16_bf16 {vr(ns,16)}, {vr(K+4,4)}, {vr(Q+4,4)}, {vr(ns,16)}")
        a(ex(8)); a(cv(3)); a(ex(9)); a(ex(10)); a(cv(4)); a(ex(11))
        a(f"v_mfma_f32_32x32x16_bf16 {vr(O,16)}, {vr(V,4)}, {vr(P,4)}, {vr(O,16)}")
        vreg, off = (vCur, (i + 1) * 2048) if i + 1 < 4 else (vNxt, 0)
        a(f"ds_read_b128 {vr(V,4)}, v{vreg} offset:{16384 + off}")
        kreg, off = (vCur, (i + 2) * 2048) if i + 2 < 4 else (vNxt, (i - 2) * 2048)
        a(f"ds_read_b128 {vr(K,4)}, v{kreg} offset:{off}")
        a(f"ds_read_b128 {vr(K+4,4)}, v{kreg} offset:{off+1024}")
        a(ex(12)); a(cv(5)); a(ex(13)); a(ex(14)); a(cv(6)); a(ex(15))
        if i == 3:
            a(f"""
            v_mov_b32 v{vCur}, v{vNxt}
            v_add_u32 v{vNxt}, {SLOT}, v{vNxt}
            """)
            a(cv(7))
            a(f"""
            v_and_b32 v{vNxt}, {4*SLOT-1}, v{vNxt}
            s_add_u32 s{sS}, s{sS}, 1
            s_cmp_lt_u32 s{sS}, 8
            s_waitcnt lgkmcnt(3)
            s_cbranch_scc1 K2_loop
            """)
        else:
            a("s_nop 0")
            a(cv(7))
            a("s_waitcnt lgkmcnt(3)")
            a("s_nop 0")
    a(f"""
    v_mfma_f32_32x32x16_bf16 {vr(O,16)}, {vr(V+4,4)}, {vr(P+4,4)}, {vr(O,16)}
    s_waitcnt lgkmcnt(0)
    s_barrier
    s_lshl_b32 s5, s{sQT}, 12
    v_add_u32 v{T}, s5, v{vL16}
    s_cmp_eq_u32 s{sKH}, 0
    s_nop 7
    s_cbranch_scc1 K2_comb
    s_nop 3
    ds_write_b128 v{T}, {vr(O,4)}
    ds_write_b128 v{T}, {vr(O+4,4)} offset:1024
    ds_write_b128 v{T}, {vr(O+8,4)} offset:2048
    ds_write_b128 v{T}, {vr(O+12,4)} offset:3072
    s_waitcnt lgkmcnt(0)
    s_barrier
    s_endpgm
    K2_w0:
    s_waitcnt vmcnt(0)
    s_branch K2_w0r
    K2_comb:
    s_barrier
    ds_read_b128 {vr(S[0],4)}, v{T}
    ds_read_b128 {vr(S[0]+4,4)}, v{T} offset:1024
    ds_read_b128 {vr(S[0]+8,4)}, v{T} offset:2048
    ds_read_b128 {vr(S[0]+12,4)}, v{T} offset:3072
    s_lshl_b32 s5, s38, 4
    s_add_u32 s5, s5, s{sH}
    s_lshl_b32 s5, s5, 11
    s_add_u32 s45, s5, {BR_SZ + OP_OFF}
    s_waitcnt lgkmcnt(0)
    """)
    for i in range(16):
        a(f"v_add_f32 v{O+i}, v{O+i}, v{S[0]+i}")
    a(f"v_mul_f32 v{T}, 0, v{O}")
    for i in range(1, 16):
        a(f"v_fma_f32 v{T}, v{O+i}, 0, v{T}")
    a(f"""
    v_cmp_u_f32 vcc, v{T}, v{T}
    s_cmp_lg_u64 vcc, 0
    s_cbranch_scc1 K2_slow
    K2_fin:
    """)
    finalize_store(O, 45, T)
    a("K2_done:\n s_endpgm")
    a(f"""
    K2_slow:
    v_mov_b32 v{T}, 0xff800000
    s_mov_b32 s{sTile}, 0
    K2_s1:
    s_mul_i32 s{sKo}, s{sTile}, {56*512}
    s_add_u32 s{sKo}, s{sKo}, s{sKb}
    buffer_load_dwordx4 {vr(K,4)}, v{vL16}, {sr(sWS,4)}, s{sKo} offen
    buffer_load_dwordx4 {vr(K+4,4)}, v{vL16}, {sr(sWS,4)}, s{sKo} offen offset:1024
    s_waitcnt vmcnt(0)
    v_mfma_f32_32x32x16_bf16 {vr(S[0],16)}, {vr(K,4)}, {vr(Q,4)}, 0
    v_mfma_f32_32x32x16_bf16 {vr(S[0],16)}, {vr(K+4,4)}, {vr(Q+4,4)}, {vr(S[0],16)}
    s_nop 15
    """)
    for i in range(0, 16, 2):
        a(f"v_max3_f32 v{T}, v{T}, v{S[0]+i}, v{S[0]+i+1}")
    a(f"""
    s_add_u32 s{sTile}, s{sTile}, 1
    s_cmp_lt_u32 s{sTile}, 64
    s_cbranch_scc1 K2_s1
    v_mov_b32 v{T+1}, v{T}
    s_nop 1
    v_permlane32_swap_b32 v{T}, v{T+1}
    s_nop 1
    v_max_f32 v{T}, v{T}, v{T+1}
    """)
    for i in range(16):
        a(f"v_mov_b32 v{O+i}, 0")
    for i in range(8):
        a(f"v_mov_b32 v{V+i}, v{ONES}")
    a(f"""
    s_mov_b32 s{sTile}, 0
    K2_s2:
    s_mul_i32 s{sKo}, s{sTile}, {56*512}
    s_add_u32 s{sKo}, s{sKo}, s{sKb}
    s_lshl_b32 s{sVo}, s{sTile}, 11
    s_add_u32 s{sVo}, s{sVo}, s{sVb}
    buffer_load_dwordx4 {vr(K,4)}, v{vL16}, {sr(sWS,4)}, s{sKo} offen
    buffer_load_dwordx4 {vr(K+4,4)}, v{vL16}, {sr(sWS,4)}, s{sKo} offen offset:1024
    s_mov_b64 exec, {sr(sVm,2)}
    buffer_load_dwordx4 {vr(V,4)}, v{vL16}, {sr(sWS,4)}, s{sVo} offen
    buffer_load_dwordx4 {vr(V+4,4)}, v{vL16}, {sr(sWS,4)}, s{sVo} offen offset:1024
    s_mov_b64 exec, -1
    s_waitcnt vmcnt(0)
    v_mfma_f32_32x32x16_bf16 {vr(S[0],16)}, {vr(K,4)}, {vr(Q,4)}, 0
    v_mfma_f32_32x32x16_bf16 {vr(S[0],16)}, {vr(K+4,4)}, {vr(Q+4,4)}, {vr(S[0],16)}
    s_nop 15
    """)
    for i in range(16):
        a(f"v_sub_f32 v{S[0]+i}, v{S[0]+i}, v{T}")
    for i in range(16):
        a(f"v_exp_f32 v{S[0]+i}, v{S[0]+i}")
    a("s_nop 0")
    for i in range(8):
        a(f"v_cvt_pk_bf16_f32 v{P+i}, v{S[0]+2*i}, v{S[0]+2*i+1}")
    a(f"""
    s_nop 1
    v_mfma_f32_32x32x16_bf16 {vr(O,16)}, {vr(V,4)}, {vr(P,4)}, {vr(O,16)}
    v_mfma_f32_32x32x16_bf16 {vr(O,16)}, {vr(V+4,4)}, {vr(P+4,4)}, {vr(O,16)}
    s_add_u32 s{sTile}, s{sTile}, 1
    s_cmp_lt_u32 s{sTile}, 64
    s_nop 15
    s_cbranch_scc1 K2_s2
    s_branch K2_fin
    """)
    return kernel_desc("attn_kernel", 128)

def gen_k3(a):
    kernel_head(a, "proj_kernel")
    sB, sRB, sCG, sW = 20, 21, 22, 23
    sWo, sOut, sWS = 8, 12, 16
    a(f"""
    s_cmp_ge_u32 s2, 224
    s_cbranch_scc1 K3_done
    s_load_dwordx2 s[32:33], s[0:1], 16
    s_load_dwordx4 s[36:39], s[0:1], 40
    s_load_dwordx2 s[40:41], s[0:1], 64
    v_lshrrev_b32 v1, 6, v0
    v_and_b32 v0, 63, v0
    s_and_b32 s3, s2, 7
    v_readfirstlane_b32 s{sW}, v1
    s_lshr_b32 s4, s2, 3
    s_lshr_b32 s{sB}, s3, 2
    s_and_b32 s3, s3, 3
    s_lshl_b32 s3, s3, 2
    s_and_b32 s5, s4, 3
    s_add_u32 s{sRB}, s3, s5
    s_lshr_b32 s{sCG}, s4, 2
    v_lshrrev_b32 v5, 3, v0
    v_and_b32 v6, 7, v0
    v_lshrrev_b32 v7, 4, v0
    s_lshl_b32 s4, s{sW}, 3
    v_add_u32 v8, s4, v5
    v_mul_u32_u24 v8, 896, v8
    v_and_b32 v9, 1, v7
    v_lshlrev_b32 v9, 2, v9
    v_xor_b32 v9, v9, v6
    v_lshlrev_b32 v9, 4, v9
    v_add_u32 v8, v8, v9
    s_lshl_b32 s4, s{sCG}, 7
    v_add_u32 v4, s4, v8
    v_lshlrev_b32 v2, 4, v0
    s_waitcnt lgkmcnt(0)
    s_cmp_eq_u32 s{sB}, 0
    s_cselect_b32 s32, s32, s36
    s_cselect_b32 s33, s33, s37
    """)
    srd(a, sWo, 32, 33, WO_BYTES)
    srd(a, sOut, 38, 39, OUT_BYTES)
    srd(a, sWS, 40, 41, WS_USED)
    a(f"s_lshl_b32 s31, s{sW}, 10")
    for i in range(8):
        a(f"""
        s_add_u32 m0, s31, {i*8192}
        s_mov_b32 s5, {i*64*896}
        buffer_load_dwordx4 v4, {sr(sWo,4)}, s5 offen lds
        """)
    OF = 32
    a(f"""
    s_and_b32 s3, s{sW}, 3
    s_lshr_b32 s4, s{sW}, 2
    s_lshl_b32 s5, s{sRB}, 2
    s_add_u32 s24, s5, s3
    s_lshl_b32 s5, s24, 15
    s_lshl_b32 s6, s4, 14
    s_add_u32 s5, s5, s6
    s_lshl_b32 s6, s{sB}, 23
    s_add_u32 s5, s5, s6
    s_add_u32 s5, s5, {OP_OFF}
    """)
    for i in range(16):
        if i % 4 == 0 and i:
            a("s_add_u32 s5, s5, 4096")
        a(f"buffer_load_dwordx4 {vr(OF+4*i,4)}, v2, {sr(sWS,4)}, s5 offen offset:{(i%4)*1024}")
    a(f"""
    v_lshrrev_b32 v6, 5, v0
    v_lshrrev_b32 v7, 2, v0
    v_and_b32 v7, 3, v7
    v_lshlrev_b32 v8, 2, v6
    v_add_u32 v8, v8, v7
    v_lshlrev_b32 v8, 7, v8
    v_lshrrev_b32 v7, 1, v7
    v_lshlrev_b32 v7, 6, v7
    v_add_u32 v8, v8, v7
    v_and_b32 v7, 16, v0
    v_lshlrev_b32 v7, 1, v7
    v_add_u32 v8, v8, v7
    v_and_b32 v7, 3, v0
    v_lshlrev_b32 v7, 3, v7
    v_add_u32 v8, v8, v7
    s_mul_i32 s5, s4, {8*28*128}
    v_add_u32 v10, s5, v8
    v_xor_b32 v11, 64, v10
    """)
    acc = [96, 112]
    WF = [12, 20]
    a("s_waitcnt vmcnt(16)\n s_barrier")
    def rd(i, buf):
        h, m = i // 2, i % 2
        for c in range(2):
            for j in range(2):
                a(f"ds_read_b64_tr_b16 {vr(WF[buf]+4*c+2*j,2)}, v{10+c} offset:{(28*h+16*m+8*j)*128}")
    rd(0, 0)
    for i in range(16):
        if i < 15:
            rd(i + 1, (i + 1) % 2)
            a(f"s_waitcnt vmcnt({15-i}) lgkmcnt(4)")
        else:
            a("s_waitcnt vmcnt(0) lgkmcnt(0)")
        for c in range(2):
            cin = "0" if i == 0 else vr(acc[c], 16)
            a(f"v_mfma_f32_32x32x16_bf16 {vr(acc[c],16)}, {vr(WF[i%2]+4*c,4)}, {vr(OF+4*i,4)}, {cin}")
    a(f"""
    s_barrier
    s_lshl_b32 s5, s{sW}, 12
    v_add_u32 v5, s5, v2
    v_xor_b32 v6, {4*4096}, v5
    s_cmp_eq_u32 s4, 0
    s_nop 7
    s_cbranch_scc1 K3_k0
    """)
    for i in range(4):
        a(f"ds_write_b128 v5, {vr(acc[0]+4*i,4)} offset:{i*1024}")
    a("s_waitcnt lgkmcnt(0)")
    for i in range(16):
        a(f"v_mov_b32 v{acc[0]+i}, v{acc[1]+i}")
    a("s_branch K3_j\n K3_k0:")
    a("s_nop 3")
    for i in range(4):
        a(f"ds_write_b128 v5, {vr(acc[1]+4*i,4)} offset:{i*1024}")
    a("K3_j:\n s_waitcnt lgkmcnt(0)\n s_barrier")
    for i in range(4):
        a(f"ds_read_b128 {vr(OF+4*i,4)}, v6 offset:{i*1024}")
    a(f"""
    v_and_b32 v7, 31, v0
    s_lshl_b32 s5, s24, 5
    v_add_u32 v7, s5, v7
    v_mul_u32_u24 v7, 1792, v7
    v_lshrrev_b32 v8, 5, v0
    v_lshlrev_b32 v8, 4, v8
    v_add_u32 v7, v7, v8
    s_mul_i32 s5, s{sB}, 896
    s_lshl_b32 s6, s{sCG}, 7
    s_add_u32 s5, s5, s6
    s_lshl_b32 s6, s4, 6
    s_add_u32 s5, s5, s6
    s_waitcnt lgkmcnt(0)
    """)
    for i in range(16):
        a(f"v_add_f32 v{acc[0]+i}, v{acc[0]+i}, v{OF+i}")
    P = 12
    for i in range(8):
        a(f"v_cvt_pk_bf16_f32 v{P+i}, v{acc[0]+2*i}, v{acc[0]+2*i+1}")
    a("s_nop 1")
    for g in (0, 4):
        a(f"v_permlane32_swap_b32 v{P+g}, v{P+g+2}")
        a(f"v_permlane32_swap_b32 v{P+g+1}, v{P+g+3}")
    a(f"""
    buffer_store_dwordx4 {vr(P,4)}, v7, {sr(sOut,4)}, s5 offen
    buffer_store_dwordx4 {vr(P+4,4)}, v7, {sr(sOut,4)}, s5 offen offset:32
    K3_done:
    s_endpgm
    """)
    return kernel_desc("proj_kernel", 128)

def main(out):
    a = Asm()
    d = gen_k1(a) + gen_k2(a) + gen_k3(a)
    hdr = f"""; generated by work/gen1.py (hand-written generator): QKV GEMM -> attention -> output projection
; @launch kernel=qkv_kernel grid=(224,1,1) block=(512,1,1) lds=163840
; @launch kernel=attn_kernel grid=(256,1,1) block=(512,1,1) lds=131072
; @launch kernel=proj_kernel grid=(224,1,1) block=(512,1,1) lds=65536
.amdgcn_target "amdgcn-amd-amdhsa--gfx950"
.text
"""
    open(out, "w").write(hdr + a.text() + '.section .rodata,"a"\n' + d)

if __name__ == "__main__":
    main(sys.argv[1] if len(sys.argv) > 1 else f"cdna_kernels/{NAME}.s")
```

```python
import sys, math, struct
NAME = "concat_heads__sliding_local_dilated__mha_block__prompt"
OPT = dict(prof=False, rot=0, prefetch=True, sleep=1)

class Asm:
    def __init__(self):
        self.lines = []
        self.q = []
        self.uid = 0
    def __call__(self, s):
        for l in s.strip("\n").split("\n"):
            l = l.strip()
            if not l: continue
            self.lines.append(l if l.endswith(":") else "    " + l)
    def vm(self, s, tag):
        self(s); self.q.append(tag)
    def wait(self, tag, extra=""):
        idx = max(i for i, t in enumerate(self.q) if t == tag)
        n = len(self.q) - 1 - idx
        assert n <= 63
        self(f"s_waitcnt vmcnt({n}){extra}")
        self.q = self.q[idx + 1:]
    def wait_all(self, extra=""):
        self(f"s_waitcnt vmcnt(0){extra}"); self.q = []
    def lab(self, p):
        self.uid += 1
        return f"{p}_{self.uid}"
    def text(self):
        return "\n".join(self.lines) + "\n"

def vr(a, n): return f"v[{a}:{a+n-1}]"
def sr(a, n=4): return f"s[{a}:{a+n-1}]"
def f32bits(x): return struct.unpack("<I", struct.pack("<f", x))[0]
MF32 = "v_mfma_f32_32x32x16_bf16"
MF16 = "v_mfma_f32_16x16x32_bf16"

RT = 56 * 512
BR = 0x800000
QU, KU, VU, OU = 0, 0x200000, 0x400000, 0x600000
F1 = 0x1000000
F2 = 0x1001000
EPOCH = 0x1010000
WS_USED = 0x1020000
PROF_OFF = 0x1100000
X_BYTES, W_BYTES, WO_BYTES, OUT_BYTES = 2048 * 896, 448 * 2688, 448 * 896, 2048 * 1792
CSCALE = (28 ** -0.5) * math.log2(math.e)
DELTA = 24.0
SPIN = 1 << 18

sWS, sX, sWt, sOUT, sWoA, sWoB, sDBG = 24, 28, 32, 36, 40, 44, 48
sW, sXCD, sJ, sB, sRB, sCG, sH, sQB, sU0, sODD, sRBK, sCG3 = range(52, 64)
sTAG, sVM = 64, 66
T0 = 68
NST = 10
def stamp(a, i, rt=False):
    if OPT["prof"]:
        assert i < NST
        a(f"{'s_memrealtime' if rt else 's_memtime'} s[{80+2*i}:{81+2*i}]")
def dump(a):
    if not OPT["prof"]: return
    a(f"""
    s_waitcnt lgkmcnt(0) vmcnt(0)
    s_memtime s[4:5]
    s_memrealtime s[6:7]
    s_mul_i32 s8, s2, 12
    s_add_u32 s8, s8, s{sW}
    s_lshl_b32 s8, s8, 6
    s_add_u32 s8, s8, {PROF_OFF}
    s_mov_b32 s{sWS+2}, 0x2000000
    s_waitcnt lgkmcnt(0)
    v_mov_b32 v1, 0
    s_mov_b64 exec, 1
    """)
    for i, s in enumerate([80 + 2 * i for i in range(NST)] + [4, 6]):
        a(f"v_mov_b32 v0, s{s}\n buffer_store_dword v0, v1, {sr(sWS)}, s8 offen offset:{4*i}\n s_nop 1")
    a("s_waitcnt vmcnt(0)")

def srd(a, d, lo, nbytes):
    a(f"s_mov_b32 s{d}, s{lo}\n s_and_b32 s{d+1}, s{lo+1}, 0xffff\n s_mov_b32 s{d+2}, {hex(nbytes)}\n s_mov_b32 s{d+3}, 0x20000")

def poll(a, vaddr, vt, soff="0"):
    L = a.lab("poll")
    a(f"""
    s_mov_b32 s{T0+11}, {SPIN}
    {L}:
    buffer_load_dwordx2 {vr(vt,2)}, v{vaddr}, {sr(sWS)}, {soff} offen sc1
    s_waitcnt vmcnt(0)
    v_cmp_ne_u64 vcc, {sr(sTAG,2)}, {vr(vt,2)}
    s_sub_u32 s{T0+11}, s{T0+11}, 1
    s_cbranch_scc1 {L}_x
    s_cmp_eq_u64 vcc, 0
    s_cbranch_scc1 {L}_x
    s_sleep {OPT['sleep']}
    s_branch {L}
    {L}_x:
    """)
    a.q = []

def set_flag(a, soff, vt):
    a(f"""
    v_mov_b32 v{vt}, s{sTAG}
    v_mov_b32 v{vt+1}, s{sTAG+1}
    v_mov_b32 v{vt+2}, 0
    s_mov_b64 exec, 1
    """)
    a.vm(f"buffer_store_dwordx2 {vr(vt,2)}, v{vt+2}, {sr(sWS)}, s{soff} offen sc1", "flag")
    a("s_mov_b64 exec, -1")

def zero_foreign(a, q):
    L = a.lab("zf")
    a(f"""
    s_cmp_eq_u32 s{sODD}, 0
    s_cbranch_scc1 {L}_e
    s_mov_b32 exec_hi, 0
    v_mov_b32 v{q}, 0
    v_mov_b32 v{q+1}, 0
    s_branch {L}_x
    {L}_e:
    s_mov_b32 exec_lo, 0
    v_mov_b32 v{q+6}, 0
    v_mov_b32 v{q+7}, 0
    {L}_x:
    s_mov_b64 exec, -1
    """)

G_SLOT = 40960
SLOT = 32768
def pslot(s): return ((s + 1) % 4) * SLOT
WOA_L, WOB_L = 1 * SLOT, 3 * SLOT

vL16 = 2

def gen():
    a = Asm()
    K = NAME + "_kernel"
    a.lines.append(f".globl {K}\n.p2align 8\n.type {K},@function\n{K}:")
    a(f"""
    s_cmp_ge_u32 s2, 256
    s_cbranch_scc1 L_end
    """)
    stamp(a, 0, rt=True); stamp(a, 1)
    a(f"""
    s_load_dwordx16 s[4:19], s[0:1], 0
    s_load_dwordx2 s[20:21], s[0:1], 64
    v_lshrrev_b32 v1, 6, v0
    v_and_b32 v0, 63, v0
    s_and_b32 s{sXCD}, s2, 7
    v_readfirstlane_b32 s{sW}, v1
    s_lshr_b32 s{sJ}, s2, 3
    s_lshr_b32 s{sB}, s{sXCD}, 2
    s_and_b32 s3, s{sXCD}, 3
    s_lshl_b32 s3, s3, 2
    s_and_b32 s{T0}, s{sJ}, 3
    s_add_u32 s{sRB}, s3, s{T0}
    s_lshr_b32 s{sCG}, s{sJ}, 2
    s_min_u32 s{sCG3}, s{sCG}, 6
    s_lshl_b32 s{sRBK}, s{sXCD}, 2
    s_add_u32 s{sRBK}, s{sRBK}, s{T0}
    s_lshl_b32 s{sH}, s{sXCD}, 1
    s_lshr_b32 s{sODD}, s{sJ}, 4
    s_add_u32 s{sH}, s{sH}, s{sODD}
    s_and_b32 s{sQB}, s{sJ}, 15
    s_mul_i32 s{sU0}, s{sH}, 7
    s_lshr_b32 s{sU0}, s{sU0}, 1
    s_cmp_eq_u32 s{sODD}, 0
    s_cselect_b32 s{sVM}, 0x0fffffff, 0xfffffff0
    s_mov_b32 s{sVM+1}, s{sVM}
    v_lshlrev_b32 v{vL16}, 4, v0
    s_cmp_ge_u32 s{sW}, 8
    s_cbranch_scc1 L_helper
    """)
    gen_compute(a)
    a("L_helper:")
    gen_helper(a)
    a("L_end:\n s_endpgm")
    a("L_code_end:")
    return a

def load_epoch(a, vt):
    a(f"v_mov_b32 v{vt}, {EPOCH}")
    a.vm(f"buffer_load_dword v{vt+1}, v{vt}, {sr(sWS)}, 0 offen sc1", "epoch")
def make_tag(a, vt):
    a(f"""
    v_readfirstlane_b32 s{sTAG}, v{vt+1}
    s_nop 3
    s_mul_i32 s{sTAG}, s{sTAG}, 0x9e3779b1
    s_add_u32 s{sTAG}, s{sTAG}, 0x7f4a7c15
    s_not_b32 s{sTAG+1}, s{sTAG}
    """)

def finalize(a, o, n, l, t):
    a(f"v_rcp_f32 v{l}, v{l}\n s_nop 0")
    for i in range(n):
        a(f"v_mul_f32 v{o+i}, v{l}, v{o+i}")
    for i in range(n // 2):
        a(f"v_cvt_pk_bf16_f32 v{o+i}, v{o+2*i}, v{o+2*i+1}")
    a("s_nop 1")
    for g in range(0, n // 2, 4):
        a(f"v_permlane32_swap_b32 v{o+g}, v{o+g+2}\n v_permlane32_swap_b32 v{o+g+1}, v{o+g+3}")

def bcast_l(a, src_e, src_o, t):
    L = a.lab("bl")
    a(f"""
    s_cmp_eq_u32 s{sODD}, 0
    s_cbranch_scc1 {L}_e
    v_mov_b32 v{t}, v{src_o}
    v_mov_b32 v{t+1}, v{src_o}
    s_nop 1
    v_permlane32_swap_b32 v{t}, v{t+1}
    s_branch {L}_x
    {L}_e:
    v_mov_b32 v{t}, v{src_e}
    v_mov_b32 v{t+1}, v{src_e}
    s_nop 1
    v_permlane32_swap_b32 v{t+1}, v{t}
    {L}_x:
    s_nop 1
    """)

def store_units(a, p, first, soff, off):
    L = a.lab("su")
    full = f"buffer_store_dwordx4 {vr(p,4)}, v{vL16}, {sr(sWS)}, s{soff} offen offset:{off} sc1"
    if first:
        a(f"""
        s_cmp_eq_u32 s{sODD}, 0
        s_cbranch_scc1 {L}_f
        s_mov_b32 exec_hi, 0
        buffer_store_dwordx2 {vr(p+2,2)}, v{vL16}, {sr(sWS)}, s{soff} offen offset:{off+8} sc1
        s_not_b64 exec, exec
        {L}_f:
        {full}
        s_mov_b64 exec, -1
        """)
    else:
        a(f"""
        s_cmp_eq_u32 s{sODD}, 1
        s_cbranch_scc1 {L}_f
        s_mov_b32 exec_lo, 0
        buffer_store_dwordx2 {vr(p,2)}, v{vL16}, {sr(sWS)}, s{soff} offen offset:{off} sc1
        s_not_b64 exec, exec
        {L}_f:
        {full}
        s_mov_b64 exec, -1
        """)

def gen_compute(a):
    sR, sC = T0 + 8, T0 + 9
    a("s_waitcnt lgkmcnt(0)")
    srd(a, sWS, 20, WS_USED)
    load_epoch(a, 4)
    if OPT["prefetch"]:
        a(f"""
        s_cmp_lg_u32 s{sW}, 7
        s_cbranch_scc1 C_nopf
        s_getpc_b64 s[{T0}:{T0+1}]
        C_pc:
        v_lshlrev_b32 v6, 7, v0
        v_min_u32 v6, L_code_end-C_pc-4, v6
        global_load_dword v7, v6, s[{T0}:{T0+1}]
        v_lshlrev_b32 v6, 7, v0
        v_add_u32 v6, 8192, v6
        v_min_u32 v6, L_code_end-C_pc-4, v6
        global_load_dword v8, v6, s[{T0}:{T0+1}]
        C_nopf:
        """)
    srd(a, sOUT, 16, OUT_BYTES)
    srd(a, sDBG, 18, 256)
    vXA, vWA = 10, 22
    accQ, accK, accV = 32, 48, 64
    F = [80, 96]
    a(f"""
    s_and_b32 s{sR}, s{sW}, 3
    s_lshr_b32 s{sC}, s{sW}, 2
    v_and_b32 v26, 31, v0
    v_lshrrev_b32 v27, 5, v0
    v_lshrrev_b32 v28, 1, v26
    v_and_b32 v28, 7, v28
    v_xor_b32 v28, v28, v27
    v_lshlrev_b32 v28, 4, v28
    s_lshl_b32 s3, s{sR}, 12
    v_lshlrev_b32 v29, 7, v26
    v_add_u32 v29, s3, v29
    v_add_u32 v{vXA}, v29, v28
    v_xor_b32 v{vXA+1}, 32, v{vXA}
    v_xor_b32 v{vXA+2}, 64, v{vXA}
    v_xor_b32 v{vXA+3}, 96, v{vXA}
    """)
    for i in range(4):
        a(f"v_add_u32 v{vXA+4+i}, {2*G_SLOT}, v{vXA+i}")
    a(f"""
    v_lshrrev_b32 v28, 2, v0
    v_and_b32 v28, 3, v28
    v_lshlrev_b32 v29, 3, v27
    v_add_u32 v29, v29, v28
    v_lshlrev_b32 v29, 7, v29
    v_lshrrev_b32 v28, 1, v28
    v_xor_b32 v28, s{sC}, v28
    v_lshlrev_b32 v28, 6, v28
    v_add_u32 v29, v29, v28
    v_and_b32 v28, 16, v0
    v_lshlrev_b32 v28, 1, v28
    v_add_u32 v29, v29, v28
    v_and_b32 v28, 3, v0
    v_lshlrev_b32 v28, 3, v28
    v_add_u32 v{vWA}, v29, v28
    v_add_u32 v{vWA+1}, {G_SLOT}, v{vWA}
    v_add_u32 v{vWA+2}, {2*G_SLOT}, v{vWA}
    """)
    for i in range(48):
        a(f"v_mov_b32 v{accQ+i}, 0")
    a.wait_all()
    make_tag(a, 4)
    a("s_barrier")
    stamp(a, 2)
    a(f"""
    s_cmp_lg_u32 s{sW}, 0
    s_cbranch_scc1 C_notk
    v_mov_b32 v4, 0
    v_mov_b32 v5, 1
    s_mov_b64 exec, 1
    buffer_atomic_add v5, v4, {sr(sDBG)}, 0 offen sc0
    s_mov_b64 exec, -1
    C_notk:
    s_cmp_ge_u32 s{sJ}, 28
    s_cbranch_scc1 C_p1done
    """)
    if OPT["prof"]: a("s_waitcnt lgkmcnt(0)")
    def reads(slot, ks, buf):
        f = F[buf]
        xa = vXA + ks + (4 if slot == 2 else 0)
        a(f"ds_read_b128 {vr(f,4)}, v{xa} offset:{(slot%2)*G_SLOT}")
        for p in range(3):
            for j in range(2):
                a(f"ds_read_b64_tr_b16 {vr(f+4+4*p+2*j,2)}, v{vWA+slot} offset:{16384+p*8192+ks*2048+j*512}")
    def mfmas(buf):
        f = F[buf]
        a(f"{MF32} {vr(accK,16)}, {vr(f+8,4)}, {vr(f,4)}, {vr(accK,16)}")
        a(f"{MF32} {vr(accV,16)}, {vr(f,4)}, {vr(f+12,4)}, {vr(accV,16)}")
        a(f"{MF32} {vr(accQ,16)}, {vr(f+4,4)}, {vr(f,4)}, {vr(accQ,16)}")
    reads(0, 0, 0)
    for s in range(7):
        slot = s % 3
        for ks in range(3):
            reads(slot, ks + 1, (ks + 1) % 2)
            a(f"s_setprio {2-ks}")
            a("s_waitcnt lgkmcnt(7)")
            mfmas(ks % 2)
        a("s_waitcnt lgkmcnt(0)\n s_barrier")
        if s < 6:
            a("s_setprio 3")
            reads((s + 1) % 3, 0, 0)
        mfmas(1)
    stamp(a, 3)
    a(f"""
    s_lshl_b32 s3, s{sRB}, 2
    s_add_u32 s3, s3, s{sR}
    s_mul_i32 s3, s3, {RT}
    s_lshl_b32 s{T0}, s{sB}, 23
    s_add_u32 s3, s3, s{T0}
    s_lshl_b32 s{T0}, s{sCG}, 1
    s_add_u32 s{T0}, s{T0}, s{sC}
    s_lshl_b32 s{T0+1}, s{T0}, 11
    s_add_u32 s{T0+1}, s{T0+1}, s3
    s_add_u32 s{T0+2}, s{T0+1}, {KU}
    s_lshl_b32 s{T0+3}, s{T0}, 9
    s_add_u32 s{T0+3}, s{T0+3}, s3
    s_add_u32 s{T0+3}, s{T0+3}, {VU}
    s_add_u32 s{T0+4}, s{T0+3}, 14336
    v_mul_u32_u24 v3, {7168-512}, v27
    v_add_u32 v3, v3, v{vL16}
    s_mov_b32 s{T0+5}, {hex(f32bits(CSCALE))}
    """)
    P = 80
    for i in range(8):
        a(f"v_cvt_pk_bf16_f32 v{P+8+i}, v{accK+2*i}, v{accK+2*i+1}")
    for i in range(8):
        a(f"v_cvt_pk_bf16_f32 v{P+16+i}, v{accV+2*i}, v{accV+2*i+1}")
    for g in (0, 4):
        a(f"v_permlane32_swap_b32 v{P+8+g}, v{P+8+g+2}\n v_permlane32_swap_b32 v{P+8+g+1}, v{P+8+g+3}")
    a(f"""
    buffer_store_dwordx4 {vr(P+16,4)}, v3, {sr(sWS)}, s{T0+3} offen sc1
    buffer_store_dwordx4 {vr(P+20,4)}, v3, {sr(sWS)}, s{T0+4} offen sc1
    buffer_store_dwordx4 {vr(P+8,4)}, v{vL16}, {sr(sWS)}, s{T0+2} offen sc1
    buffer_store_dwordx4 {vr(P+12,4)}, v{vL16}, {sr(sWS)}, s{T0+2} offen offset:1024 sc1
    """)
    for i in range(16):
        a(f"v_mul_f32 v{accQ+i}, s{T0+5}, v{accQ+i}")
    for i in range(8):
        a(f"v_cvt_pk_bf16_f32 v{P+i}, v{accQ+2*i}, v{accQ+2*i+1}")
    a("s_nop 1")
    for g in (0, 4):
        a(f"v_permlane32_swap_b32 v{P+g}, v{P+g+2}\n v_permlane32_swap_b32 v{P+g+1}, v{P+g+3}")
    a(f"""
    buffer_store_dwordx4 {vr(P,4)}, v{vL16}, {sr(sWS)}, s{T0+1} offen sc1
    buffer_store_dwordx4 {vr(P+4,4)}, v{vL16}, {sr(sWS)}, s{T0+1} offen offset:1024 sc1
    s_waitcnt vmcnt(0)
    s_barrier
    C_p1done:
    """)
    stamp(a, 4)
    a(f"""
    s_cmp_lg_u32 s{sW}, 0
    s_cbranch_scc1 C_noep
    s_waitcnt vmcnt(0)
    v_readfirstlane_b32 s3, v5
    s_nop 3
    s_cmp_lg_u32 s3, 255
    s_cbranch_scc1 C_noep
    v_mov_b32 v4, {EPOCH}
    v_mov_b32 v5, s{sTAG}
    s_mov_b64 exec, 1
    buffer_store_dword v5, v4, {sr(sWS)}, 0 offen sc1
    s_mov_b64 exec, -1
    C_noep:
    """)
    Q, NM, S, P, O, K, V, vCur, vNxt, T = 4, 12, [28, 44], 60, 68, 84, 92, 100, 101, 102
    sRT, sS = T0 + 6, T0 + 7
    a(f"""
    s_lshl_b32 s{sRT}, s{sQB}, 2
    s_add_u32 s{sRT}, s{sRT}, s{sR}
    s_mul_i32 s3, s{sRT}, {RT}
    s_lshl_b32 s{T0}, s{sU0}, 9
    s_add_u32 s{T0+5}, s3, s{T0}
    s_add_u32 s3, s{T0+5}, {BR + QU}
    s_lshl_b32 s{T0}, s{sC}, 13
    s_add_u32 s{T0}, s{T0}, {pslot(0)}
    v_add_u32 v{vCur}, s{T0}, v{vL16}
    v_add_u32 v{vNxt}, {SLOT}, v{vCur}
    """)
    for i in range(16):
        a(f"v_mov_b32 v{O+i}, 0")
    for i in range(4):
        a(f"v_mov_b32 v{P+4+i}, 0\n v_mov_b32 v{V+4+i}, 0")
    a(f"""
    s_barrier
    buffer_load_dwordx4 {vr(Q,4)}, v{vL16}, {sr(sWS)}, s3 offen sc1
    buffer_load_dwordx4 {vr(Q+4,4)}, v{vL16}, {sr(sWS)}, s3 offen offset:1024 sc1
    """)
    stamp(a, 5)
    a("s_waitcnt vmcnt(0)")
    zero_foreign(a, Q)
    a(f"""
    s_barrier
    """)
    stamp(a, 6)
    if OPT["prof"]: a("s_waitcnt lgkmcnt(0)")
    a(f"""
    ds_read_b128 {vr(NM,4)}, v{vL16} offset:{pslot(0)}
    ds_read_b128 {vr(NM+4,4)}, v{vL16} offset:{pslot(0)+1024}
    ds_read_b128 {vr(NM+8,4)}, v{vCur}
    ds_read_b128 {vr(NM+12,4)}, v{vCur} offset:1024
    ds_read_b128 {vr(K,4)}, v{vCur} offset:2048
    ds_read_b128 {vr(K+4,4)}, v{vCur} offset:3072
    ds_read_b128 {vr(V,4)}, v{vCur} offset:16384
    s_waitcnt lgkmcnt(5)
    {MF32} {vr(S[1],16)}, {vr(NM,4)}, {vr(Q,4)}, 0
    {MF32} {vr(S[1],16)}, {vr(NM+4,4)}, {vr(Q+4,4)}, {vr(S[1],16)}
    s_waitcnt lgkmcnt(3)
    {MF32} {vr(S[0],16)}, {vr(NM+8,4)}, {vr(Q,4)}, 0
    {MF32} {vr(S[0],16)}, {vr(NM+12,4)}, {vr(Q+4,4)}, {vr(S[0],16)}
    s_mov_b32 s{sS}, 0
    s_mov_b32 s3, {hex(f32bits(-DELTA))}
    s_nop 7
    """)
    s1 = S[1]
    a(f"v_max3_f32 v{T}, v{s1}, v{s1+1}, v{s1+2}")
    a(f"v_max3_f32 v{T+1}, v{s1+3}, v{s1+4}, v{s1+5}")
    for i in range(6, 14, 4):
        a(f"v_max3_f32 v{T}, v{T}, v{s1+i}, v{s1+i+1}")
        a(f"v_max3_f32 v{T+1}, v{T+1}, v{s1+i+2}, v{s1+i+3}")
    a(f"""
    v_max3_f32 v{T}, v{T}, v{s1+14}, v{s1+15}
    v_max_f32 v{T}, v{T}, v{T+1}
    v_mov_b32 v{T+1}, v{T}
    v_mov_b32 v{s1+14}, 0
    v_mov_b32 v{s1+15}, 0
    v_permlane32_swap_b32 v{T}, v{T+1}
    s_nop 1
    v_max_f32 v{T}, v{T}, v{T+1}
    v_sub_f32 v{NM}, s3, v{T}
    """)
    for i in range(16):
        a(f"v_add_f32 v{S[0]+i}, v{S[0]+i}, v{NM}")
    for i in range(1, 16):
        a(f"v_mov_b32 v{NM+i}, v{NM}")
    a("s_waitcnt lgkmcnt(0)\n s_setprio 1")
    a(".p2align 3")
    a("C_loop:")
    for i in range(4):
        cs, ns = S[i % 2], S[(i + 1) % 2]
        def ex(j): return f"v_exp_f32 v{cs+j}, v{cs+j}"
        def cv(j): return f"v_cvt_pk_bf16_f32 v{P+j}, v{cs+2*j}, v{cs+2*j+1}"
        kreg, ko = (vCur, (i + 2) * 2048) if i < 2 else (vNxt, (i - 2) * 2048)
        vreg, vo = (vCur, (i + 1) * 2048) if i < 3 else (vNxt, 0)
        a(ex(0)); a(ex(1))
        a(f"v_cvt_pk_bf16_f32 v{P+7}, v{ns+14}, v{ns+15}")
        a(ex(2))
        if i == 2:
            a("s_barrier\n s_setprio 3")
        a("s_waitcnt lgkmcnt(2)")
        a(f"{MF32} {vr(ns,16)}, {vr(K,4)}, {vr(Q,4)}, {vr(NM,16)}")
        a(f"ds_read_b128 {vr(K,4)}, v{kreg} offset:{ko}")
        a(cv(0)); a(ex(3)); a(ex(4)); a(cv(1)); a(ex(5)); a(ex(6))
        a(f"{MF32} {vr(O,16)}, {vr(V+4,4)}, {vr(P+4,4)}, {vr(O,16)}")
        a(f"ds_read_b128 {vr(V+4,4)}, v{vCur} offset:{16384 + i*2048 + 1024}")
        a(cv(2)); a(ex(7)); a(ex(8)); a(cv(3)); a(ex(9)); a("s_waitcnt lgkmcnt(2)")
        a(f"{MF32} {vr(ns,16)}, {vr(K+4,4)}, {vr(Q+4,4)}, {vr(ns,16)}")
        a(f"ds_read_b128 {vr(K+4,4)}, v{kreg} offset:{ko+1024}")
        a(ex(10)); a(ex(11)); a(cv(4)); a(ex(12)); a(ex(13)); a(cv(5))
        a(f"{MF32} {vr(O,16)}, {vr(V,4)}, {vr(P,4)}, {vr(O,16)}")
        a(f"ds_read_b128 {vr(V,4)}, v{vreg} offset:{16384 + vo}")
        a(ex(14)); a(ex(15)); a(cv(6))
        if i == 0: a("s_setprio 0\n s_add_u32 s{0}, s{0}, 1".format(sS))
        if i == 2: a("s_setprio 2\n s_nop 0")
        if i == 3:
            a(f"""
            v_mov_b32 v{vCur}, v{vNxt}
            s_setprio 1
            v_add_u32 v{vNxt}, {SLOT}, v{vNxt}
            v_and_b32 v{vNxt}, {4*SLOT-1}, v{vNxt}
            s_cmp_lt_u32 s{sS}, 8
            s_cbranch_scc1 C_loop
            """)
    a(f"""
    v_cvt_pk_bf16_f32 v{P+7}, v{S[1]+14}, v{S[1]+15}
    s_waitcnt lgkmcnt(0)
    s_lshl_b32 s3, s{sW}, 12
    {MF32} {vr(O,16)}, {vr(V+4,4)}, {vr(P+4,4)}, {vr(O,16)}
    """)
    stamp(a, 7)
    X = S[0]
    a(f"""
    s_barrier
    v_add_u32 v{T}, s3, v{vL16}
    v_xor_b32 v{T+1}, {4*4096}, v{T}
    s_add_u32 s{T0+4}, s{T0+5}, {BR + OU}
    s_lshl_b32 s3, s{sRT}, 4
    s_add_u32 s3, s3, s{sH}
    s_lshl_b32 s3, s3, 1
    s_add_u32 s3, s3, s{sC}
    s_lshl_b32 s3, s3, 3
    s_add_u32 s{T0+3}, s3, {F2 + 64*256}
    s_cmp_eq_u32 s{sODD}, 0
    s_cselect_b64 vcc, -1, 0
    s_nop 1
    v_cndmask_b32 v{T+2}, v{O}, v{O+12}, vcc
    s_cmp_eq_u32 s{sC}, 0
    s_cbranch_scc1 C_x0
    ds_write_b128 v{T}, {vr(O,4)}
    ds_write_b128 v{T}, {vr(O+4,4)} offset:1024
    ds_write_b32 v{T}, v{T+2} offset:2048
    s_waitcnt lgkmcnt(0)
    """)
    for i in range(8):
        a(f"v_mov_b32 v{O+i}, v{O+8+i}")
    a(f"""
    s_branch C_x1
    C_x0:
    ds_write_b128 v{T}, {vr(O+8,4)}
    ds_write_b128 v{T}, {vr(O+12,4)} offset:1024
    ds_write_b32 v{T}, v{T+2} offset:2048
    s_waitcnt lgkmcnt(0)
    C_x1:
    s_barrier
    ds_read_b32 v{X+8}, v{T+1} offset:2048
    ds_read_b128 {vr(X,4)}, v{T+1}
    ds_read_b128 {vr(X+4,4)}, v{T+1} offset:1024
    s_waitcnt lgkmcnt(2)
    v_add_f32 v{T+2}, v{T+2}, v{X+8}
    """)
    bcast_l(a, T + 2, T + 2, T + 4)
    a("s_waitcnt lgkmcnt(0)")
    a(f"v_mul_f32 v{T}, 0, v{T+4}")
    for i in range(8):
        a(f"v_add_f32 v{O+i}, v{O+i}, v{X+i}")
    for i in range(8):
        a(f"v_fma_f32 v{T}, v{O+i}, 0, v{T}")
    a(f"""
    v_cmp_u_f32 vcc, v{T}, v{T}
    s_cmp_lg_u64 vcc, 0
    s_cbranch_scc1 C_slow
    C_fin:
    """)
    finalize(a, O, 8, T + 4, T)
    a(f"s_cmp_eq_u32 s{sC}, 0\n s_cbranch_scc0 C_st1")
    store_units(a, O, True, T0 + 4, 0)
    a("s_branch C_st2\n C_st1:")
    store_units(a, O, False, T0 + 4, 1024)
    a("C_st2:")
    WF, OF, ACC, vT = 4, 116, 144, 160
    a(f"""
    v_lshrrev_b32 v{vT}, 4, v0
    v_lshrrev_b32 v{vT+1}, 2, v0
    v_and_b32 v{vT+1}, 3, v{vT+1}
    v_lshlrev_b32 v{vT+2}, 3, v{vT}
    v_add_u32 v{vT+2}, v{vT+2}, v{vT+1}
    v_lshlrev_b32 v{vT+2}, 7, v{vT+2}
    v_and_b32 v{vT+1}, 2, v{vT+1}
    v_and_b32 v{vT+3}, 1, v{vT}
    v_or_b32 v{vT+1}, v{vT+1}, v{vT+3}
    v_lshlrev_b32 v{vT+1}, 5, v{vT+1}
    v_add_u32 v{vT+2}, v{vT+2}, v{vT+1}
    v_and_b32 v{vT+1}, 3, v0
    v_lshlrev_b32 v{vT+1}, 3, v{vT+1}
    v_add_u32 v{vT+2}, v{vT+2}, v{vT+1}
    s_mul_i32 s3, s{sC}, {224*128}
    s_add_u32 s3, s3, {WOB_L}
    v_add_u32 v{vT+4}, s3, v{vT+2}
    v_xor_b32 v{vT+5}, 32, v{vT+4}
    v_xor_b32 v{vT+6}, 64, v{vT+4}
    v_xor_b32 v{vT+7}, 96, v{vT+4}
    s_waitcnt vmcnt(0)
    """)
    set_flag(a, T0 + 3, ACC)
    stamp(a, 8)
    a(f"s_cmp_ge_u32 s{sJ}, 28\n s_cbranch_scc1 C_exit")
    for s in range(7):
        for t in range(4):
            for j in range(2):
                a(f"ds_read_b64_tr_b16 {vr(WF+16*s+4*t+2*j,2)}, v{vT+4+t} offset:{(32*s+4*j)*128}")
    a(f"""
    s_lshl_b32 s{T0}, s{sRBK}, 1
    s_lshr_b32 s3, s{sR}, 1
    s_add_u32 s{T0}, s{T0}, s3
    s_lshl_b32 s{T0+1}, s{T0}, 8
    s_lshl_b32 s3, s{sC}, 7
    s_add_u32 s{T0+1}, s{T0+1}, s3
    s_add_u32 s{T0+1}, s{T0+1}, {F2 + 64*256}
    v_and_b32 v{vT+1}, 15, v0
    v_lshlrev_b32 v{vT+3}, 3, v{vT+1}
    s_mul_i32 s{T0+2}, s{T0}, {RT}
    s_mul_i32 s3, s{sC}, {28*512}
    s_add_u32 s{T0+2}, s{T0+2}, s3
    s_and_b32 s3, s{sR}, 1
    s_lshl_b32 s3, s3, 8
    s_add_u32 s{T0+2}, s{T0+2}, s3
    s_add_u32 s{T0+2}, s{T0+2}, {BR + OU}
    v_lshlrev_b32 v{vT+2}, 9, v{vT}
    v_lshlrev_b32 v{vT+1}, 4, v{vT+1}
    v_add_u32 v{vT+2}, v{vT+2}, v{vT+1}
    """)
    poll(a, vT + 3, ACC, f"s{T0+1}")
    for s in range(7):
        if s and s % 2 == 0:
            a(f"s_add_u32 s{T0+2}, s{T0+2}, 4096")
        a(f"buffer_load_dwordx4 {vr(OF+4*s,4)}, v{vT+2}, {sr(sWS)}, s{T0+2} offen offset:{(s%2)*2048} sc1")
    stamp(a, 9)
    a(f"""
    s_lshl_b32 s3, s{sRBK}, 2
    s_add_u32 s3, s3, s{sR}
    s_lshl_b32 s3, s3, 4
    v_and_b32 v{vT+1}, 15, v0
    v_add_u32 v{vT+1}, s3, v{vT+1}
    v_mul_u32_u24 v{vT+1}, 1792, v{vT+1}
    v_and_b32 v{vT+3}, 1, v{vT}
    v_lshlrev_b32 v{vT+3}, 5, v{vT+3}
    v_add_u32 v{vT+1}, v{vT+1}, v{vT+3}
    v_lshrrev_b32 v{vT+3}, 1, v{vT}
    v_lshlrev_b32 v{vT+3}, 4, v{vT+3}
    v_add_u32 v{vT+1}, v{vT+1}, v{vT+3}
    s_lshl_b32 s{T0}, s{sCG3}, 7
    s_lshl_b32 s3, s{sC}, 6
    s_add_u32 s{T0}, s{T0}, s3
    s_add_u32 s{T0}, s{T0}, 896
    s_lshl_b32 s3, s{sW}, 10
    s_add_u32 s3, s3, {WOA_L + 448*128}
    s_waitcnt lgkmcnt(0)
    v_add_u32 v{vT+4}, s3, v{vL16}
    v_add_u32 v{vT+5}, {2*SLOT}, v{vT+4}
    v_xor_b32 v{vT+6}, 4096, v{vT+4}
    v_xor_b32 v{vT+7}, 4096, v{vT+5}
    """)
    for s in range(7):
        a(f"s_waitcnt vmcnt({6-s})")
        for t in range(4):
            cin = "0" if s == 0 else vr(ACC + 4 * t, 4)
            a(f"{MF16} {vr(ACC+4*t,4)}, {vr(WF+16*s+4*t,4)}, {vr(OF+4*s,4)}, {cin}")
    a(f"""
    s_cmp_eq_u32 s{sC}, 0
    s_nop 7
    s_cbranch_scc1 C_y0
    ds_write_b128 v{vT+4}, {vr(ACC,4)}
    ds_write_b128 v{vT+5}, {vr(ACC+4,4)}
    s_waitcnt lgkmcnt(0)
    """)
    for i in range(8):
        a(f"v_mov_b32 v{ACC+i}, v{ACC+8+i}")
    a(f"""
    s_branch C_y1
    C_y0:
    ds_write_b128 v{vT+4}, {vr(ACC+8,4)}
    ds_write_b128 v{vT+5}, {vr(ACC+12,4)}
    s_waitcnt lgkmcnt(0)
    C_y1:
    s_barrier
    ds_read_b128 {vr(OF,4)}, v{vT+6}
    ds_read_b128 {vr(OF+4,4)}, v{vT+7}
    s_waitcnt lgkmcnt(0)
    """)
    for i in range(8):
        a(f"v_add_f32 v{ACC+i}, v{ACC+i}, v{OF+i}")
    for i in range(4):
        a(f"v_cvt_pk_bf16_f32 v{ACC+i}, v{ACC+2*i}, v{ACC+2*i+1}")
    a(f"""
    s_nop 1
    v_permlane16_swap_b32 v{ACC}, v{ACC+2}
    v_permlane16_swap_b32 v{ACC+1}, v{ACC+3}
    buffer_store_dwordx4 {vr(ACC,4)}, v{vT+1}, {sr(sOUT)}, s{T0} offen
    C_exit:
    """)
    dump(a)
    a("s_endpgm")
    sT, sKo, sVo = T0, T0 + 1, T0 + 2
    def kload():
        a(f"""
        s_mul_i32 s{sKo}, s{sT}, {RT}
        s_lshl_b32 s3, s{sU0}, 7
        s_add_u32 s{sVo}, s{sKo}, s3
        s_add_u32 s{sVo}, s{sVo}, {BR + VU}
        s_lshl_b32 s3, s{sU0}, 9
        s_add_u32 s{sKo}, s{sKo}, s3
        s_add_u32 s{sKo}, s{sKo}, {BR + KU}
        buffer_load_dwordx4 {vr(K,4)}, v{vL16}, {sr(sWS)}, s{sKo} offen sc1
        buffer_load_dwordx4 {vr(K+4,4)}, v{vL16}, {sr(sWS)}, s{sKo} offen offset:1024 sc1
        """)
    def qk():
        a(f"""
        s_waitcnt vmcnt(0)
        {MF32} {vr(S[0],16)}, {vr(K,4)}, {vr(Q,4)}, 0
        {MF32} {vr(S[0],16)}, {vr(K+4,4)}, {vr(Q+4,4)}, {vr(S[0],16)}
        s_nop 15
        """)
    a(f"C_slow:\n v_mov_b32 v{T}, 0xff800000\n s_mov_b32 s{sT}, 0\n C_s1:")
    kload(); qk()
    for i in range(0, 16, 2):
        a(f"v_max3_f32 v{T}, v{T}, v{S[0]+i}, v{S[0]+i+1}")
    a(f"""
    s_add_u32 s{sT}, s{sT}, 1
    s_cmp_lt_u32 s{sT}, 64
    s_cbranch_scc1 C_s1
    v_mov_b32 v{T+1}, v{T}
    s_nop 1
    v_permlane32_swap_b32 v{T}, v{T+1}
    s_nop 1
    v_max_f32 v{T}, v{T}, v{T+1}
    v_lshrrev_b32 v{T+1}, 5, v0
    v_mul_u32_u24 v{T+1}, {7168-512}, v{T+1}
    v_add_u32 v{T+1}, v{T+1}, v{vL16}
    """)
    for i in range(16):
        a(f"v_mov_b32 v{O+i}, 0")
    for i in range(8):
        a(f"v_mov_b32 v{V+i}, 0x3f803f80")
    a(f"s_mov_b32 s{sT}, 0\n C_s2:")
    kload()
    a(f"""
    s_add_u32 s3, s{sVo}, 14336
    s_mov_b64 exec, {sr(sVM,2)}
    buffer_load_dwordx4 {vr(V,4)}, v{T+1}, {sr(sWS)}, s{sVo} offen sc1
    buffer_load_dwordx4 {vr(V+4,4)}, v{T+1}, {sr(sWS)}, s3 offen sc1
    s_mov_b64 exec, -1
    """)
    qk()
    for i in range(16):
        a(f"v_sub_f32 v{S[0]+i}, v{S[0]+i}, v{T}")
    for i in range(16):
        a(f"v_exp_f32 v{S[0]+i}, v{S[0]+i}")
    a("s_nop 0")
    for i in range(8):
        a(f"v_cvt_pk_bf16_f32 v{P+i}, v{S[0]+2*i}, v{S[0]+2*i+1}")
    a(f"""
    s_nop 1
    {MF32} {vr(O,16)}, {vr(V,4)}, {vr(P,4)}, {vr(O,16)}
    {MF32} {vr(O,16)}, {vr(V+4,4)}, {vr(P+4,4)}, {vr(O,16)}
    s_add_u32 s{sT}, s{sT}, 1
    s_cmp_lt_u32 s{sT}, 64
    s_nop 15
    s_cbranch_scc1 C_s2
    """)
    bcast_l(a, O + 12, O, T + 4)
    a(f"s_cmp_eq_u32 s{sC}, 0\n s_cbranch_scc1 C_fin")
    for i in range(8):
        a(f"v_mov_b32 v{O+i}, v{O+8+i}")
    a("s_branch C_fin")

def gen_helper(a):
    a.q = []
    sHW, sCH = T0 + 8, T0 + 9
    vX0, vX1, vWs = 4, 5, 6
    a(f"""
    s_setprio 3
    s_sub_u32 s{sHW}, s{sW}, 8
    s_and_b32 s3, s{sJ}, 3
    s_lshl_b32 s3, s3, 1
    s_add_u32 s{sCH}, s{sCG3}, s3
    s_cmp_ge_u32 s{sCH}, 7
    s_cselect_b32 s3, 7, 0
    s_sub_u32 s{sCH}, s{sCH}, s3
    v_lshrrev_b32 v8, 3, v0
    v_and_b32 v9, 7, v0
    v_lshrrev_b32 v10, 4, v0
    s_lshl_b32 s3, s{sRB}, 7
    s_lshl_b32 s{T0}, s{sHW}, 5
    s_add_u32 s3, s3, s{T0}
    v_add_u32 v11, s3, v8
    v_mul_u32_u24 v11, 896, v11
    v_xor_b32 v12, v9, v10
    v_lshlrev_b32 v12, 4, v12
    v_add_u32 v{vX0}, v11, v12
    v_add_u32 v{vX1}, {8*896}, v{vX0}
    v_xor_b32 v{vX1}, 64, v{vX1}
    s_lshl_b32 s3, s{sHW}, 4
    v_add_u32 v11, s3, v8
    v_mul_u32_u24 v11, 2688, v11
    v_and_b32 v12, 1, v10
    v_lshlrev_b32 v12, 2, v12
    v_xor_b32 v12, v12, v9
    v_lshlrev_b32 v12, 4, v12
    v_add_u32 v11, v11, v12
    s_lshl_b32 s3, s{sCG3}, 7
    v_add_u32 v{vWs}, s3, v11
    s_waitcnt lgkmcnt(0)
    s_cmp_eq_u32 s{sB}, 0
    s_cselect_b32 s4, s4, s10
    s_cselect_b32 s5, s5, s11
    s_cselect_b32 s6, s6, s12
    s_cselect_b32 s7, s7, s13
    """)
    srd(a, sX, 4, X_BYTES)
    srd(a, sWt, 6, W_BYTES)
    srd(a, sWS, 20, WS_USED)
    sMx, sMw = T0 + 6, T0 + 7
    a(f"s_lshl_b32 s{sMx}, s{sHW}, 12\n s_lshl_b32 s{sMw}, s{sHW}, 11")
    a(f"s_cmp_ge_u32 s{sJ}, 28\n s_cbranch_scc1 H_idle")
    def gdma(s):
        base = (s % 3) * G_SLOT
        a(f"""
        s_lshl_b32 s{T0}, s{sCH}, 7
        s_mul_i32 s{T0+2}, s{sCH}, {64*2688}
        s_add_u32 s{T0+1}, s{T0}, {16*896}
        """)
        for i in range(4):
            a(f"s_add_u32 m0, s{sMx}, {base + i*1024}")
            a(f"s_add_u32 s{sCH}, s{sCH}, 1" if i == 0 else (f"s_cmp_eq_u32 s{sCH}, 7" if i == 3 else "s_nop 0"))
            a.vm(f"buffer_load_dwordx4 v{vX0 if i%2==0 else vX1}, {sr(sX)}, s{T0 + i//2} offen lds", f"g{s}")
        a(f"s_cselect_b32 s{sCH}, 0, s{sCH}")
        for p in range(3):
            for i in range(2):
                a(f"s_add_u32 m0, s{sMw}, {base + 16384 + p*8192 + i*1024}")
                a(f"s_add_u32 s{T0+3}, s{T0+2}, {p*896 + i*8*2688}")
                a.vm(f"buffer_load_dwordx4 v{vWs}, {sr(sWt)}, s{T0+3} offen lds", f"g{s}")
    gdma(0)
    load_epoch(a, 14)
    gdma(1)
    a.wait("epoch")
    make_tag(a, 14)
    a("s_barrier")
    for s in range(1, 7):
        if s + 1 <= 6:
            gdma(s + 1)
        a.wait(f"g{s}")
        a("s_barrier")
    a("s_barrier")
    a("s_branch H_p1x\n H_idle:")
    load_epoch(a, 14)
    a.wait_all()
    make_tag(a, 14)
    a("s_barrier\n H_p1x:")
    stamp(a, 2)
    srd(a, sWoA, 8, WO_BYTES)
    srd(a, sWoB, 14, WO_BYTES)
    srd(a, sOUT, 16, OUT_BYTES)
    vVs, vWo, vFl, ONES = 4, 5, 6, 8
    AQ, AKp, AKc, AVp, AVc, SP, SC, O, T = 12, 20, 28, 36, 40, 48, 64, 80, 96
    sKb, sVb, sTile, sM, sRT = T0 + 4, T0 + 5, T0 + 9, T0 + 6, T0 + 7
    a(f"""
    v_lshrrev_b32 v{T}, 5, v0
    v_mul_u32_u24 v{vVs}, {7168-512}, v{T}
    v_add_u32 v{vVs}, v{vVs}, v{vL16}
    v_mov_b32 v{ONES}, 0x3f803f80
    v_mov_b32 v{ONES+1}, 0x3f803f80
    v_mov_b32 v{ONES+2}, 0x3f803f80
    v_mov_b32 v{ONES+3}, 0x3f803f80
    s_lshl_b32 s{sM}, s{sHW}, 12
    s_add_u32 s3, s{sM}, 16384
    v_add_u32 v{T+1}, s3, v{vL16}
    v_add_u32 v{T+2}, {2*SLOT}, v{T+1}
    s_not_b64 exec, {sr(sVM,2)}
    """)
    for r in (T + 1, T + 2):
        for sl in range(2):
            for i in range(4):
                a(f"ds_write_b128 v{r}, {vr(ONES,4)} offset:{sl*SLOT + i*1024}")
    a(f"""
    s_mov_b64 exec, -1
    s_lshl_b32 s{sKb}, s{sU0}, 9
    s_lshl_b32 s{sVb}, s{sU0}, 7
    s_lshl_b32 s{sRT}, s{sQB}, 2
    s_add_u32 s{sRT}, s{sRT}, s{sHW}
    """)
    if OPT["rot"]:
        a(f"s_lshl_b32 s{sTile}, s{sQB}, 3\n s_and_b32 s{sTile}, s{sTile}, 63")
    else:
        a(f"s_mov_b32 s{sTile}, 0")
    a(f"""
    s_lshl_b32 s3, s{sHW}, 1
    s_add_u32 s{sTile}, s{sTile}, s3
    """)
    a(f"""
    v_lshrrev_b32 v{T}, 3, v0
    s_lshl_b32 s3, s{sHW}, 3
    v_add_u32 v{T+1}, s3, v{T}
    v_mul_u32_u24 v{T+1}, 896, v{T+1}
    v_and_b32 v{T}, 2, v{T}
    s_and_b32 s3, s{sHW}, 1
    v_or_b32 v{T}, s3, v{T}
    v_lshlrev_b32 v{T}, 1, v{T}
    v_and_b32 v{T+2}, 7, v0
    v_xor_b32 v{T}, v{T}, v{T+2}
    v_lshlrev_b32 v{T}, 4, v{T}
    v_add_u32 v{T+1}, v{T+1}, v{T}
    s_lshl_b32 s3, s{sCG3}, 7
    v_add_u32 v{vWo}, s3, v{T+1}
    """)
    a(f"""
    v_and_b32 v{T}, 31, v0
    v_lshrrev_b32 v{T+1}, 5, v0
    v_lshlrev_b32 v{T+1}, 2, v{T+1}
    v_sub_u32 v{T}, v{T}, v{T+1}
    s_cmp_eq_u32 s{sRT}, 0
    s_cselect_b32 s3, 64, 32
    v_add_u32 v{T+1}, s3, v{T}
    s_mov_b32 s3, 0xf149f2ca
    """)
    for r in range(16):
        key = 8 * (r // 4) + r % 4
        for (dst, src) in ((SC + r, T), (SP + r, T + 1)):
            if src == T + 1 and r < 8:
                a(f"v_mov_b32 v{dst}, 0")
                continue
            a(f"""
            v_subrev_u32 v{dst}, {key}, v{src}
            v_and_b32 v{dst}, -15, v{dst}
            v_min_u32 v{dst}, 1, v{dst}
            v_mul_lo_u32 v{dst}, v{dst}, s3
            """)
    for r in range(AVp, AVp + 12):
        a(f"v_mov_b32 v{r}, v{ONES}")
    a(f"""
    s_lshr_b32 s{T0}, s{sU0}, 3
    s_add_u32 s{T0+1}, s{sU0}, 3
    s_lshr_b32 s{T0+1}, s{T0+1}, 3
    s_sub_u32 s{T0+1}, s{T0+1}, s{T0}
    v_bfe_u32 v{T}, v0, 4, 1
    v_mul_u32_u24 v{T}, s{T0+1}, v{T}
    v_add_u32 v{T}, s{T0}, v{T}
    v_lshlrev_b32 v{T}, 7, v{T}
    v_and_b32 v{T+1}, 15, v0
    v_lshlrev_b32 v{T+1}, 3, v{T+1}
    v_add_u32 v{T+1}, {F1 + 1024}, v{T+1}
    s_cmp_eq_u32 s{sQB}, 0
    s_cselect_b32 s3, 0, 1
    v_and_b32 v{T+2}, s3, v0
    v_sub_u32 v{T+2}, s{sQB}, v{T+2}
    v_lshlrev_b32 v{T+2}, 3, v{T+2}
    v_add_u32 v{T+2}, {F1}, v{T+2}
    s_mov_b32 exec_lo, 0
    v_mov_b32 v{T+1}, v{T+2}
    s_mov_b64 exec, -1
    v_add_u32 v{vFl}, v{T}, v{T+1}
    s_lshl_b32 s3, s{sB}, 3
    s_add_u32 s3, s3, s{sCG}
    s_lshl_b32 s3, s3, 4
    s_add_u32 s3, s3, s{sRB}
    s_lshl_b32 s3, s3, 3
    s_add_u32 s{T0}, s3, {F1}
    s_waitcnt lgkmcnt(0)
    s_cmp_ge_u32 s{sJ}, 28
    s_cbranch_scc1 H_nog2
    s_barrier
    s_cmp_lg_u32 s{sHW}, 0
    s_cbranch_scc1 H_nog2
    """)
    set_flag(a, T0, T)
    a(f"""
    H_nog2:
    """)
    stamp(a, 3)
    a(f"""
    s_cmp_lg_u32 s{sHW}, 0
    s_cbranch_scc1 H_nopoll
    """)
    poll(a, vFl, T)
    a("H_nopoll:\n s_barrier")
    stamp(a, 4)
    a.q = []
    def kv(s):
        base = pslot(s)
        a(f"""
        s_mul_i32 s{T0}, s{sTile}, {RT}
        s_add_u32 m0, s{sM}, {base}
        s_add_u32 s{T0+1}, s{T0}, s{sKb}
        s_add_u32 s{T0+1}, s{T0+1}, {BR + KU}
        """)
        a.vm(f"buffer_load_dwordx4 v{vL16}, {sr(sWS)}, s{T0+1} offen sc1 lds", f"kv{s}")
        a(f"s_add_u32 s{T0+2}, s{T0+1}, {RT - 2048}")
        a.vm(f"buffer_load_dwordx4 v{vL16}, {sr(sWS)}, s{T0+1} offen offset:1024 sc1 lds", f"kv{s}")
        a(f"s_add_u32 s{T0}, s{T0}, s{sVb}")
        a.vm(f"buffer_load_dwordx4 v{vL16}, {sr(sWS)}, s{T0+2} offen offset:2048 sc1 lds", f"kv{s}")
        a(f"s_add_u32 s{T0}, s{T0}, {BR + VU}")
        a.vm(f"buffer_load_dwordx4 v{vL16}, {sr(sWS)}, s{T0+2} offen offset:3072 sc1 lds", f"kv{s}")
        a(f"s_add_u32 m0, s{sM}, {base + 16384}\n s_mov_b64 exec, {sr(sVM,2)}")
        for i in range(4):
            a.vm(f"buffer_load_dwordx4 v{vVs}, {sr(sWS)}, s{T0} offen offset:{i*1024} sc1 lds", f"kv{s}")
            if i < 3: a(f"s_add_u32 s{T0}, s{T0}, {14336 - 1024}")
        a(f"""
        s_mov_b64 exec, -1
        s_add_u32 s{sTile}, s{sTile}, 8
        s_and_b32 s{sTile}, s{sTile}, 63
        """)
    def wo(srdn, lbase, i0, i1, tag):
        for i in range(i0, i1):
            a(f"""
            s_lshr_b32 s{T0}, s{sM}, 2
            s_add_u32 m0, s{T0}, {lbase + i*4096}
            s_mov_b32 s{T0}, {i*32*896}
            """)
            a.vm(f"buffer_load_dwordx4 v{vWo}, {sr(srdn)}, s{T0} offen lds", tag)
    kv(0); kv(1)
    a.wait("kv0")
    a("s_barrier")
    stamp(a, 5)
    kv(2)
    a(f"""
    s_mul_i32 s{T0}, s{sRT}, {RT}
    s_cmp_eq_u32 s{sRT}, 0
    s_cselect_b32 s3, 0, {RT}
    s_sub_u32 s{T0+1}, s{T0}, s3
    s_add_u32 s{T0+10}, s{T0}, s{sKb}
    s_add_u32 s{T0+2}, s{T0+10}, {KU}
    s_add_u32 s{T0+3}, s{T0+1}, s{sKb}
    s_add_u32 s{T0+3}, s{T0+3}, {KU}
    """)
    for (r, so) in ((AQ, T0 + 10), (AKc, T0 + 2), (AKp, T0 + 3)):
        a.vm(f"buffer_load_dwordx4 {vr(r,4)}, v{vL16}, {sr(sWS)}, s{so} offen sc1", "loc")
        a.vm(f"buffer_load_dwordx4 {vr(r+4,4)}, v{vL16}, {sr(sWS)}, s{so} offen offset:1024 sc1", "loc")
    a(f"""
    s_add_u32 s{T0}, s{T0}, s{sVb}
    s_add_u32 s{T0}, s{T0}, {VU}
    s_add_u32 s{T0+2}, s{T0}, 14336
    s_add_u32 s{T0+1}, s{T0+1}, s{sVb}
    s_add_u32 s{T0+1}, s{T0+1}, {VU + 14336}
    s_mov_b64 exec, {sr(sVM,2)}
    """)
    a.vm(f"buffer_load_dwordx4 {vr(AVc,4)}, v{vVs}, {sr(sWS)}, s{T0} offen sc1", "loc")
    a.vm(f"buffer_load_dwordx4 {vr(AVc+4,4)}, v{vVs}, {sr(sWS)}, s{T0+2} offen sc1", "loc")
    a.vm(f"buffer_load_dwordx4 {vr(AVp,4)}, v{vVs}, {sr(sWS)}, s{T0+1} offen sc1", "loc")
    a("s_mov_b64 exec, -1")
    a.wait("kv1"); a("s_barrier"); kv(3)
    a.wait("loc")
    zero_foreign(a, AQ)
    a(f"""
    s_nop 0
    {MF32} {vr(SP,16)}, {vr(AKp,4)}, {vr(AQ,4)}, {vr(SP,16)}
    {MF32} {vr(SC,16)}, {vr(AKc,4)}, {vr(AQ,4)}, {vr(SC,16)}
    {MF32} {vr(SP,16)}, {vr(AKp+4,4)}, {vr(AQ+4,4)}, {vr(SP,16)}
    {MF32} {vr(SC,16)}, {vr(AKc+4,4)}, {vr(AQ+4,4)}, {vr(SC,16)}
    s_nop 11
    """)
    regs = [SP + 8 + i for i in range(8)] + [SC + i for i in range(16)]
    a(f"v_max3_f32 v{T}, v{regs[0]}, v{regs[1]}, v{regs[2]}")
    for i in range(3, 23, 2):
        a(f"v_max3_f32 v{T}, v{T}, v{regs[i]}, v{regs[i+1]}")
    a(f"""
    v_max_f32 v{T}, v{T}, v{regs[23]}
    v_mov_b32 v{T+1}, v{T}
    s_nop 1
    v_permlane32_swap_b32 v{T}, v{T+1}
    s_nop 1
    v_max_f32 v{T}, v{T}, v{T+1}
    """)
    for r in regs:
        a(f"v_sub_f32 v{r}, v{r}, v{T}")
    for r in regs:
        a(f"v_exp_f32 v{r}, v{r}")
    a("s_nop 0")
    pk = [SP + i for i in range(4)] + [AQ + i for i in range(8)]
    for i in range(12):
        a(f"v_cvt_pk_bf16_f32 v{pk[i]}, v{regs[2*i]}, v{regs[2*i+1]}")
    a(f"""
    s_nop 1
    {MF32} {vr(O,16)}, {vr(AVp,4)}, {vr(SP,4)}, 0
    {MF32} {vr(O,16)}, {vr(AVc,4)}, {vr(AQ,4)}, {vr(O,16)}
    {MF32} {vr(O,16)}, {vr(AVc+4,4)}, {vr(AQ+4,4)}, {vr(O,16)}
    s_add_u32 s{T0+10}, s{T0+10}, {OU}
    s_nop 11
    """)
    bcast_l(a, O + 12, O, T)
    finalize(a, O, 16, T, T + 2)
    store_units(a, O, True, T0 + 10, 0)
    store_units(a, O + 4, False, T0 + 10, 1024)
    a.q += ["oa"] * 3
    stamp(a, 6)
    a("s_barrier"); kv(4)
    a.wait("oa")
    a(f"""
    s_lshl_b32 s3, s{sRT}, 4
    s_add_u32 s3, s3, s{sH}
    s_lshl_b32 s3, s3, 4
    s_add_u32 s{T0+10}, s3, {F2}
    """)
    set_flag(a, T0 + 10, T)
    a("s_barrier"); kv(5)
    wo(sWoB, WOB_L, 8, 14, "wob")
    a.wait("kv4"); a("s_barrier"); kv(6)
    a.wait("kv5"); a("s_barrier"); kv(7)
    OFA, ACC, WB = 12, 124, 140
    T = 156
    a(f"""
    s_and_b32 s3, s{sHW}, 1
    s_lshl_b32 s{sRT}, s{sRBK}, 1
    s_add_u32 s{sRT}, s{sRT}, s3
    s_lshl_b32 s{T0+10}, s{sRT}, 8
    s_add_u32 s{T0+10}, s{T0+10}, {F2}
    v_and_b32 v{T}, 15, v0
    v_lshlrev_b32 v{T}, 4, v{T}
    """)
    poll(a, T, T + 2, f"s{T0+10}")
    a("s_barrier")
    wo(sWoA, WOA_L, 0, 8, "woa")
    a(f"s_mul_i32 s{T0+1}, s{sRT}, {RT}\n s_add_u32 s{T0+1}, s{T0+1}, {OU}")
    for i in range(28):
        if i and i % 4 == 0:
            a(f"s_add_u32 s{T0+1}, s{T0+1}, 4096")
        a.vm(f"buffer_load_dwordx4 {vr(OFA+4*i,4)}, v{vL16}, {sr(sWS)}, s{T0+1} offen offset:{(i%4)*1024} sc1", "ofa")
    a("s_barrier")
    wo(sWoA, WOA_L, 8, 14, "woa")
    a(f"""
    v_lshrrev_b32 v{T}, 5, v0
    v_lshrrev_b32 v{T+1}, 2, v0
    v_and_b32 v{T+1}, 3, v{T+1}
    v_lshlrev_b32 v{T+2}, 3, v{T}
    v_add_u32 v{T+2}, v{T+2}, v{T+1}
    v_lshlrev_b32 v{T+2}, 7, v{T+2}
    v_and_b32 v{T+1}, 2, v{T+1}
    v_or_b32 v{T+1}, v{T+1}, v{T}
    v_bfe_u32 v{T+3}, v0, 4, 1
    s_and_b32 s3, s{sHW}, 2
    v_or_b32 v{T+3}, s3, v{T+3}
    v_xor_b32 v{T+1}, v{T+1}, v{T+3}
    v_lshlrev_b32 v{T+1}, 5, v{T+1}
    v_add_u32 v{T+2}, v{T+2}, v{T+1}
    v_and_b32 v{T+1}, 3, v0
    v_lshlrev_b32 v{T+1}, 3, v{T+1}
    v_add_u32 v{T+2}, v{T+2}, v{T+1}
    v_add_u32 v{T+2}, {WOA_L}, v{T+2}
    v_and_b32 v{T+1}, 31, v0
    s_lshl_b32 s3, s{sRT}, 5
    v_add_u32 v{T+1}, s3, v{T+1}
    v_mul_u32_u24 v{T+1}, 1792, v{T+1}
    v_lshlrev_b32 v{T}, 4, v{T}
    v_add_u32 v{T+1}, v{T+1}, v{T}
    s_lshl_b32 s{T0+10}, s{sCG3}, 7
    s_lshl_b32 s3, s{sHW}, 5
    s_and_b32 s3, s3, 64
    s_add_u32 s{T0+10}, s{T0+10}, s3
    """)
    a("s_barrier")
    wo(sWoB, WOB_L, 0, 8, "wob")
    a.wait_all()
    stamp(a, 7)
    a("s_barrier\n s_setprio 0\n s_barrier")
    stamp(a, 8)
    a(f"s_cmp_ge_u32 s{sJ}, 28\n s_cbranch_scc1 H_exit")
    if OPT["prof"]: a("s_waitcnt lgkmcnt(0)")
    NB = 4
    def rd(i):
        for j in range(2):
            a(f"ds_read_b64_tr_b16 {vr(WB+4*(i%NB)+2*j,2)}, v{T+2} offset:{(16*i+4*j)*128}")
    for i in range(NB - 1): rd(i)
    for i in range(28):
        if i + NB - 1 < 28:
            rd(i + NB - 1)
        a(f"s_waitcnt lgkmcnt({2*min(NB-1, 27-i)})")
        cin = "0" if i == 0 else vr(ACC, 16)
        a(f"{MF32} {vr(ACC,16)}, {vr(WB+4*(i%NB),4)}, {vr(OFA+4*i,4)}, {cin}")
    a("s_nop 11")
    for i in range(8):
        a(f"v_cvt_pk_bf16_f32 v{ACC+i}, v{ACC+2*i}, v{ACC+2*i+1}")
    a("s_nop 1")
    for g in (0, 4):
        a(f"v_permlane32_swap_b32 v{ACC+g}, v{ACC+g+2}\n v_permlane32_swap_b32 v{ACC+g+1}, v{ACC+g+3}")
    a(f"""
    buffer_store_dwordx4 {vr(ACC,4)}, v{T+1}, {sr(sOUT)}, s{T0+10} offen
    buffer_store_dwordx4 {vr(ACC+4,4)}, v{T+1}, {sr(sOUT)}, s{T0+10} offen offset:32
    H_exit:
    """)
    stamp(a, 9)
    dump(a)

def main(out):
    a = gen()
    K = NAME + "_kernel"
    hdr = f"""; Fused QKV projection -> attention (A: dilated local window, B: full) -> output projection.
; @launch grid=(256,1,1) block=(768,1,1) lds=163840
.amdgcn_target "amdgcn-amd-amdhsa--gfx950"
.text
"""
    d = f""".section .rodata,"a"
.p2align 6
.amdhsa_kernel {K}
  .amdhsa_next_free_vgpr 168
  .amdhsa_next_free_sgpr 102
  .amdhsa_accum_offset 168
  .amdhsa_group_segment_fixed_size 0
  .amdhsa_kernarg_size 72
  .amdhsa_user_sgpr_count 2
  .amdhsa_user_sgpr_kernarg_segment_ptr 1
  .amdhsa_system_sgpr_workgroup_id_x 1
.end_amdhsa_kernel
"""
    open(out, "w").write(hdr + a.text() + d)

if __name__ == "__main__":
    for kv in sys.argv[2:]:
        k, v = kv.split("=")
        OPT[k] = int(v)
    main(sys.argv[1])
```

```python
import sys, math, struct
NAME = "concat_heads__sliding_local_dilated__mha_block__prompt"
OPT = dict(prof=0, rot=1, prefetch=1, sleep=1, touch=1, outsc=0, wpf=1, sa0=3, hst=1, lst=1, krot=1, kv1=0, kd=10, pp=12)

class Asm:
    def __init__(self):
        self.lines = []
        self.q = []
        self.uid = 0
    def __call__(self, s):
        for l in s.strip("\n").split("\n"):
            l = l.strip()
            if not l: continue
            self.lines.append(l if l.endswith(":") else "    " + l)
    def vm(self, s, tag):
        self(s); self.q.append(tag)
    def wait(self, tag, extra=""):
        if tag not in self.q:
            if extra: self(f"s_waitcnt{extra}")
            return
        idx = max(i for i, t in enumerate(self.q) if t == tag)
        n = len(self.q) - 1 - idx
        assert n <= 63
        self(f"s_waitcnt vmcnt({n}){extra}")
        self.q = self.q[idx + 1:]
    def wait_all(self, extra=""):
        self(f"s_waitcnt vmcnt(0){extra}"); self.q = []
    def lab(self, p):
        self.uid += 1
        return f"{p}_{self.uid}"
    def text(self):
        return "\n".join(self.lines) + "\n"

def vr(a, n): return f"v[{a}:{a+n-1}]"
def sr(a, n=4): return f"s[{a}:{a+n-1}]"
def f32bits(x): return struct.unpack("<I", struct.pack("<f", x))[0]
MF32 = "v_mfma_f32_32x32x16_bf16"
MF16 = "v_mfma_f32_16x16x32_bf16"

RT = 56 * 512
MAT = 64 * RT
BR = 4 * MAT
QU, KU, VU, OU = 0, MAT, 2 * MAT, 3 * MAT
FS = 7
FB = 2 * BR
FA = FB + (256 << FS)
FO = FA + (1024 << FS)
EPOCH = FO + (1024 << FS)
WS_USED = EPOCH + 0x1000
WS_OOB = 0x40000000
PROF_OFF = 0x1100000
X_BYTES, W_BYTES, WO_BYTES, OUT_BYTES = 2048 * 896, 448 * 2688, 448 * 896, 2048 * 1792
CSCALE = (28 ** -0.5) * math.log2(math.e)
DELTA = 24.0
SPIN = 1 << 18

sWS, sX, sWt, sOUT, sWoA, sWoB = 24, 28, 32, 36, 40, 44
sOo, sOf, sOb, sK3 = 48, 49, 50, 51
sW, sXCD, sJ, sRB, sCG, sACT, sH, sQB, sU0, sODD, sRBK, sCG3 = range(52, 64)
sTAG, sVM = 64, 66
T0 = 68
sR, sC, sWI = T0 + 8, T0 + 9, T0 + 10
NST = 10
def stamp(a, i, rt=False):
    if OPT["prof"]:
        assert i < NST
        a(f"{'s_memrealtime' if rt else 's_memtime'} s[{80+2*i}:{81+2*i}]")
def lstamp(a, idx):
    if OPT["prof"]:
        a(f"s_memtime s[100:101]\n s_mov_b32 m0, {idx}\n s_waitcnt lgkmcnt(0)\n v_writelane_b32 v1, s100, m0")
def dump(a):
    if not OPT["prof"]: return
    a(f"""
    s_mul_i32 s8, s2, 12
    s_add_u32 s8, s8, s{sW}
    s_lshl_b32 s8, s8, 8
    s_add_u32 s8, s8, {PROF_OFF + 0x100000}
    s_mov_b32 s{sWS+2}, 0x2000000
    s_waitcnt lgkmcnt(0) vmcnt(0)
    s_memtime s[4:5]
    s_memrealtime s[6:7]
    v_lshlrev_b32 v3, 2, v0
    buffer_store_dword v1, v3, {sr(sWS)}, s8 offen
    s_mul_i32 s8, s2, 12
    s_add_u32 s8, s8, s{sW}
    s_lshl_b32 s8, s8, 6
    s_add_u32 s8, s8, {PROF_OFF}
    s_waitcnt lgkmcnt(0) vmcnt(0)
    v_mov_b32 v1, 0
    s_mov_b64 exec, 1
    """)
    for i, s in enumerate([80 + 2 * i for i in range(NST)] + [4, 6]):
        a(f"v_mov_b32 v0, s{s}\n buffer_store_dword v0, v1, {sr(sWS)}, s8 offen offset:{4*i}\n s_nop 1")
    a("s_waitcnt vmcnt(0)")

def srd(a, d, lo, nbytes):
    nb = nbytes if isinstance(nbytes, str) else hex(nbytes)
    a(f"s_mov_b32 s{d}, s{lo}\n s_and_b32 s{d+1}, s{lo+1}, 0xffff\n s_mov_b32 s{d+2}, {nb}\n s_mov_b32 s{d+3}, 0x20000")

def poll(a, vaddr, vt, soff="0"):
    L = a.lab("poll")
    a(f"""
    s_mov_b32 s{T0+11}, {SPIN}
    {L}:
    buffer_load_dwordx2 {vr(vt,2)}, v{vaddr}, {sr(sWS)}, {soff} offen sc1
    s_waitcnt vmcnt(0)
    v_cmp_ne_u64 vcc, {sr(sTAG,2)}, {vr(vt,2)}
    s_sub_u32 s{T0+11}, s{T0+11}, 1
    s_cbranch_scc1 {L}_x
    s_cmp_eq_u64 vcc, 0
    s_cbranch_scc1 {L}_x
    s_sleep {OPT['sleep']}
    s_branch {L}
    {L}_x:
    """)
    a.q = []

def set_flag(a, soff, vt):
    a(f"""
    v_mov_b32 v{vt}, s{sTAG}
    v_mov_b32 v{vt+1}, s{sTAG+1}
    s_mov_b64 exec, 1
    """)
    a.vm(f"buffer_store_dwordx2 {vr(vt,2)}, v{vL16}, {sr(sWS)}, s{soff} offen sc1", "flag")
    a("s_mov_b64 exec, -1")

def zero_foreign(a, q):
    L = a.lab("zf")
    a(f"""
    s_cmp_eq_u32 s{sODD}, 0
    s_cbranch_scc1 {L}_e
    s_mov_b32 exec_hi, 0
    v_mov_b32 v{q}, 0
    v_mov_b32 v{q+1}, 0
    s_branch {L}_x
    {L}_e:
    s_mov_b32 exec_lo, 0
    v_mov_b32 v{q+6}, 0
    v_mov_b32 v{q+7}, 0
    {L}_x:
    s_mov_b64 exec, -1
    """)

SLOT = 32768
def pslot(s): return (4, 3, 2)[s % 3] * SLOT
WOA_L = (2 * SLOT, 4 * SLOT)
WOB_L = 0
HND_L = 2 * SLOT + 8192
QST_L = 2 * SLOT
XC1_L = 448 * 128
XC2_L = 3 * SLOT
XHA_L = 3 * SLOT + 16384
XFI_L = 3 * SLOT
HFL_L = 2 * SLOT + 28672
vL16 = 2

def p1_role(a, bi):
    a(f"""
    s_lshr_b32 s{sRB}, s{sXCD}, 1
    s_lshl_b32 s{sRB}, s{sRB}, 3
    s_and_b32 s3, s{sJ}, 7
    s_add_u32 s{sRB}, s{sRB}, s3
    s_xor_b32 s3, s{sXCD}, {bi}
    s_and_b32 s3, s3, 1
    s_lshl_b32 s3, s3, 2
    s_lshr_b32 s{sCG}, s{sJ}, 3
    s_add_u32 s{sCG}, s{sCG}, s3
    s_cmp_lt_u32 s{sCG}, 7
    s_cselect_b32 s{sACT}, 1, 0
    """)

def roles(a):
    a(f"""
    s_lshr_b32 s{sCG3}, s{sJ}, 2
    s_min_u32 s{sCG3}, s{sCG3}, 6
    s_and_b32 s3, s{sJ}, 3
    s_lshl_b32 s{sRBK}, s{sXCD}, 2
    s_add_u32 s{sRBK}, s{sRBK}, s3
    s_lshl_b32 s{sH}, s{sXCD}, 1
    s_lshr_b32 s{sODD}, s{sJ}, 4
    s_add_u32 s{sH}, s{sH}, s{sODD}
    s_and_b32 s{sQB}, s{sJ}, 15
    s_mul_i32 s{sU0}, s{sH}, 7
    s_lshr_b32 s{sU0}, s{sU0}, 1
    s_cmp_eq_u32 s{sODD}, 0
    s_cselect_b32 s{sVM}, 0x0fffffff, 0xfffffff0
    s_mov_b32 s{sVM+1}, s{sVM}
    v_lshlrev_b32 v{vL16}, 4, v0
    """)

def gen():
    a = Asm()
    K = NAME + "_kernel"
    a.lines.append(f".globl {K}\n.p2align 8\n.type {K},@function\n{K}:")
    a(f"""
    s_load_dwordx16 s[4:19], s[0:1], 0
    s_load_dwordx2 s[20:21], s[0:1], 64
    s_cmp_ge_u32 s2, 256
    s_cbranch_scc1 L_end
    """)
    stamp(a, 0, rt=True); stamp(a, 1)
    a(f"""
    v_lshrrev_b32 v1, 6, v0
    v_and_b32 v0, 63, v0
    s_and_b32 s{sXCD}, s2, 7
    v_readfirstlane_b32 s{sW}, v1
    s_lshr_b32 s{sJ}, s2, 3
    s_nop 1
    s_and_b32 s{sR}, s{sW}, 3
    s_lshr_b32 s{sC}, s{sW}, 2
    s_cmp_eq_u32 s{sC}, 0
    s_cbranch_scc1 L_gemm
    s_cmp_eq_u32 s{sC}, 2
    s_cbranch_scc1 L_loader
    """)
    if OPT["prefetch"]:
        a(f"""
        s_getpc_b64 s[{T0}:{T0+1}]
        C_pc:
        s_lshl_b32 s3, s{sJ}, 2
        s_add_u32 s3, s3, s{sR}
        s_lshl_b32 s3, s3, 7
        s_add_u32 s3, s3, 512
        s_min_u32 s3, s3, L_code_end-C_pc-4
        s_waitcnt lgkmcnt(0)
        s_load_dword s22, s[{T0}:{T0+1}], s3
        """)
    a("s_branch L_gemm\n L_loader:")
    gen_loader(a)
    a("L_gemm:")
    gen_gemm(a)
    gen_attn(a)
    a("L_helper:")
    gen_helper(a)
    a("L_end:\n s_endpgm")
    a("L_code_end:")
    return a

def make_tag(a, vt):
    a(f"""
    v_readfirstlane_b32 s{sTAG}, v{vt}
    s_nop 3
    s_mul_i32 s{sTAG}, s{sTAG}, 0x9e3779b1
    s_add_u32 s{sTAG}, s{sTAG}, 0x7f4a7c15
    s_not_b32 s{sTAG+1}, s{sTAG}
    """)

def finalize(a, o, n, l):
    a(f"v_rcp_f32 v{l}, v{l}\n s_nop 0")
    for i in range(n):
        a(f"v_mul_f32 v{o+i}, v{l}, v{o+i}")
    for i in range(n // 2):
        a(f"v_cvt_pk_bf16_f32 v{o+i}, v{o+2*i}, v{o+2*i+1}")
    a("s_nop 1")
    for g in range(0, n // 2, 4):
        a(f"v_permlane32_swap_b32 v{o+g}, v{o+g+2}\n v_permlane32_swap_b32 v{o+g+1}, v{o+g+3}")

def bcast_l(a, src_e, src_o, t):
    L = a.lab("bl")
    a(f"""
    s_cmp_eq_u32 s{sODD}, 0
    s_cbranch_scc1 {L}_e
    v_mov_b32 v{t}, v{src_o}
    v_mov_b32 v{t+1}, v{src_o}
    s_nop 1
    v_permlane32_swap_b32 v{t}, v{t+1}
    s_branch {L}_x
    {L}_e:
    v_mov_b32 v{t}, v{src_e}
    v_mov_b32 v{t+1}, v{src_e}
    s_nop 1
    v_permlane32_swap_b32 v{t+1}, v{t}
    {L}_x:
    s_nop 1
    """)

def store_units(a, p, first, soff, off):
    L = a.lab("su")
    full = f"buffer_store_dwordx4 {vr(p,4)}, v{vL16}, {sr(sWS)}, s{soff} offen offset:{off} sc1"
    if first:
        a(f"""
        s_cmp_eq_u32 s{sODD}, 0
        s_cbranch_scc1 {L}_f
        s_mov_b32 exec_hi, 0
        buffer_store_dwordx2 {vr(p+2,2)}, v{vL16}, {sr(sWS)}, s{soff} offen offset:{off+8} sc1
        s_not_b64 exec, exec
        {L}_f:
        {full}
        s_mov_b64 exec, -1
        """)
    else:
        a(f"""
        s_cmp_eq_u32 s{sODD}, 1
        s_cbranch_scc1 {L}_f
        s_mov_b32 exec_lo, 0
        buffer_store_dwordx2 {vr(p,2)}, v{vL16}, {sr(sWS)}, s{soff} offen offset:{off} sc1
        s_not_b64 exec, exec
        {L}_f:
        {full}
        s_mov_b64 exec, -1
        """)

def gen_loader(a):
    sCH, sSl, sN, sXb, sWb = T0 + 9, T0 + 7, T0 + 6, T0 + 5, T0 + 4
    vX0, vX1, vWs = 4, 5, 6
    a(f"""
    s_setprio 3
    v_lshrrev_b32 v8, 3, v0
    v_and_b32 v9, 7, v0
    v_lshrrev_b32 v10, 4, v0
    s_lshl_b32 s3, s{sR}, 4
    v_add_u32 v11, s3, v8
    v_mul_u32_u24 v13, 2688, v11
    v_mul_u32_u24 v11, 896, v11
    v_xor_b32 v12, v9, v10
    v_lshlrev_b32 v12, 4, v12
    v_add_u32 v{vX0}, v11, v12
    v_add_u32 v{vX1}, {8*896}, v{vX0}
    v_xor_b32 v{vX1}, 64, v{vX1}
    v_and_b32 v12, 1, v10
    v_lshlrev_b32 v12, 2, v12
    v_xor_b32 v12, v12, v9
    v_lshlrev_b32 v12, 4, v12
    v_add_u32 v{vWs}, v13, v12
    s_lshl_b32 s{sSl}, s{sR}, 11
    s_mov_b32 s{sN}, 0
    s_mov_b32 s{T0+11}, 0
    s_waitcnt lgkmcnt(0)
    s_mov_b64 s[44:45], s[10:11]
    s_mov_b64 s[46:47], s[12:13]
    """)
    lstamp(a, 0)
    a("H1_setup:")
    p1_role(a, f"s{T0+11}")
    a(f"""
    s_cselect_b32 s{T0}, {X_BYTES}, 0
    s_cselect_b32 s{T0+1}, {W_BYTES}, 0
    s_and_b32 s3, s{sCG}, 3
    s_lshl_b32 s3, s3, 1
    s_and_b32 s{sCH}, s{sRB}, 7
    s_add_u32 s{sCH}, s{sCH}, s3
    s_cmp_ge_u32 s{sCH}, 7
    s_cselect_b32 s3, 7, 0
    s_sub_u32 s{sCH}, s{sCH}, s3
    s_mul_i32 s{sXb}, s{sRB}, {64*896}
    s_lshl_b32 s{sWb}, s{sCG}, 7
    """)
    srd(a, sX, 44, f"s{T0}")
    srd(a, sWt, 46, f"s{T0+1}")
    a(f"""
    H1_loop:
    s_lshl_b32 s{T0}, s{sCH}, 7
    s_mov_b32 m0, s{sSl}
    s_add_u32 s{T0}, s{T0}, s{sXb}
    s_mul_i32 s{T0+2}, s{sCH}, {64*2688}
    buffer_load_dwordx4 v{vX0}, {sr(sX)}, s{T0} offen lds
    s_add_u32 m0, s{sSl}, 1024
    s_add_u32 s{T0+2}, s{T0+2}, s{sWb}
    buffer_load_dwordx4 v{vX1}, {sr(sX)}, s{T0} offen lds
    """)
    fill = [f"s_add_u32 s{sCH}, s{sCH}, 1", f"s_cmp_eq_u32 s{sCH}, 7\n s_cselect_b32 s{sCH}, 0, s{sCH}", f"s_add_u32 s{sN}, s{sN}, 1", "", "", ""]
    for p in (1, 2, 0):
        for i in range(2):
            a(f"s_add_u32 m0, s{sSl}, {8192 + p*8192 + i*1024}")
            a(f"s_add_u32 s{T0+3}, s{T0+2}, {p*896 + i*8*2688}")
            a(f"buffer_load_dwordx4 v{vWs}, {sr(sWt)}, s{T0+3} offen lds")
            a(fill.pop(0))
    a(f"""
    s_add_u32 s{sSl}, s{sSl}, {SLOT}
    s_and_b32 s{sSl}, s{sSl}, {4*SLOT-1}
    s_cmp_eq_u32 s{sN}, 1
    s_cbranch_scc1 H1_loop
    s_waitcnt vmcnt(8)
    s_barrier
    """)
    if OPT["prof"] and OPT["lst"]:
        a(f"s_add_u32 s3, s{sN}, 31"); lstamp(a, "s3")
    a(f"""
    s_cmp_lg_u32 s{sN}, 7
    s_cbranch_scc1 H1_same
    s_mov_b64 s[44:45], s[4:5]
    s_mov_b64 s[46:47], s[6:7]
    s_mov_b32 s{T0+11}, 1
    s_branch H1_setup
    H1_same:
    s_cmp_lt_u32 s{sN}, 14
    s_cbranch_scc1 H1_loop
    s_waitcnt vmcnt(0)
    s_barrier
    s_setprio 0
    s_mov_b32 s{sC}, 1
    """)
    stamp(a, 2)
    roles(a)
    srd(a, sWS, 20, WS_USED)
    srd(a, sOUT, 16, OUT_BYTES)
    attn_setup(a, 1)
    a("s_branch C_attn")

vVs, vWo, vFl, vFa, vPad, vM0, vM1, ONES = 15, 16, 17, 18, 19, 20, 21, 22
vPo, vWa, vOa, vXa = 160, 161, 163, 164
sKb, sVb, sTile, sM, sHRT = 8, 9, 10, 11, 12
def helper_setup(a):
    T = 152; sRT = sHRT
    srd(a, sWoA, 8, WO_BYTES)
    srd(a, sWoB, 14, WO_BYTES)
    srd(a, sOUT, 16, OUT_BYTES)
    a(f"""
    v_mov_b32 v{ONES}, 0x3f803f80
    v_mov_b32 v{ONES+1}, 0x3f803f80
    v_mov_b32 v{ONES+2}, 0x3f803f80
    v_mov_b32 v{ONES+3}, 0x3f803f80
    s_lshl_b32 s{sM}, s{sR}, 12
    s_add_u32 s3, s{sM}, {2*SLOT + 16384}
    v_add_u32 v{vPad}, s3, v{vL16}
    s_lshl_b32 s{sKb}, s{sU0}, 9
    s_lshl_b32 s{sVb}, s{sU0}, 7
    s_lshl_b32 s{sRT}, s{sQB}, 2
    s_add_u32 s{sRT}, s{sRT}, s{sR}
    """)
    if OPT["rot"]:
        a(f"s_lshl_b32 s{sTile}, s{sQB}, 3\n s_and_b32 s{sTile}, s{sTile}, 63")
    else:
        a(f"s_mov_b32 s{sTile}, 0")
    a(f"""
    s_lshl_b32 s3, s{sR}, 1
    s_add_u32 s{sTile}, s{sTile}, s3
    """)
    a(f"""
    v_bfe_u32 v{T}, v0, 3, 1
    v_mul_u32_u24 v{T}, 3, v{T}
    v_add_u32 v{T}, s{sU0}, v{T}
    v_lshrrev_b32 v{T+3}, 3, v{T}
    v_lshlrev_b32 v{T+3}, 5, v{T+3}
    s_lshr_b32 s3, s{sRT}, 1
    v_mov_b32 v{T+1}, s3
    s_mov_b64 exec, 0xffff
    v_and_b32 v{T+1}, 7, v0
    v_lshlrev_b32 v{T+1}, 2, v{T+1}
    v_add_u32 v{T+1}, s{sR}, v{T+1}
    s_mov_b64 exec, -1
    v_add_u32 v{T+1}, v{T+1}, v{T+3}
    v_lshlrev_b32 v{T+1}, {FS}, v{T+1}
    v_add_u32 v{vFl}, {FB}, v{T+1}
    v_lshrrev_b32 v{T+3}, 2, v{T}
    v_lshlrev_b32 v{T+3}, 6, v{T+3}
    s_cmp_eq_u32 s{sRT}, 0
    s_cselect_b32 s3, 0, 1
    v_and_b32 v{T+2}, s3, v0
    v_sub_u32 v{T+2}, s{sRT}, v{T+2}
    v_add_u32 v{T+2}, v{T+2}, v{T+3}
    v_lshlrev_b32 v{T+2}, {FS}, v{T+2}
    v_add_u32 v{vFa}, {FA}, v{T+2}
    """)
    a(f"""
    v_lshrrev_b32 v{T}, 3, v0
    s_lshl_b32 s3, s{sR}, 3
    v_add_u32 v{T+1}, s3, v{T}
    v_mul_u32_u24 v{T+1}, 896, v{T+1}
    v_and_b32 v{T}, 2, v{T}
    s_and_b32 s3, s{sR}, 1
    v_or_b32 v{T}, s3, v{T}
    v_lshlrev_b32 v{T}, 1, v{T}
    v_and_b32 v{T+2}, 7, v0
    v_xor_b32 v{T}, v{T}, v{T+2}
    v_lshlrev_b32 v{T}, 4, v{T}
    v_add_u32 v{T+1}, v{T+1}, v{T}
    s_lshl_b32 s3, s{sCG3}, 7
    v_add_u32 v{vWo}, s3, v{T+1}
    """)
def helper_setup_b(a):
    T = 152; sRT = sHRT
    a(f"""
    v_lshlrev_b32 v{T+1}, 2, v27
    v_sub_u32 v{T}, v26, v{T+1}
    v_add_u32 v{T}, 18, v{T}
    v_mov_b32 v{vM0}, 0x5555
    v_mov_b32 v{vM1}, 0
    v_lshlrev_b64 {vr(vM0,2)}, v{T}, {vr(vM0,2)}
    s_cmp_eq_u32 s{sRT}, 0
    s_cselect_b32 s3, 0, -1
    v_and_b32 v{vM0}, s3, v{vM0}
    v_not_b32 v{vM0}, v{vM0}
    v_not_b32 v{vM1}, v{vM1}
    """)
    a(f"""
    v_and_b32 v{vPo}, 7, v0
    v_lshlrev_b32 v{vPo}, {FS}, v{vPo}
    v_lshrrev_b32 v{T+1}, 2, v0
    v_and_b32 v{T+1}, 3, v{T+1}
    v_lshlrev_b32 v{T+2}, 3, v27
    v_add_u32 v{T+2}, v{T+2}, v{T+1}
    v_lshlrev_b32 v{T+2}, 7, v{T+2}
    v_and_b32 v{T+1}, 2, v{T+1}
    v_or_b32 v{T+1}, v{T+1}, v27
    v_bfe_u32 v{T+3}, v0, 4, 1
    v_xor_b32 v{T+1}, v{T+1}, v{T+3}
    v_lshlrev_b32 v{T+1}, 5, v{T+1}
    v_add_u32 v{T+2}, v{T+2}, v{T+1}
    v_and_b32 v{T+1}, 3, v0
    v_lshlrev_b32 v{T+1}, 3, v{T+1}
    v_add_u32 v{T+2}, v{T+2}, v{T+1}
    s_lshr_b32 s3, s{sR}, 1
    s_mul_i32 s3, s3, {WOA_L[1] - WOA_L[0]}
    s_add_u32 s3, s3, {WOA_L[0]}
    v_add_u32 v{vWa}, s3, v{T+2}
    v_xor_b32 v{vWa+1}, 64, v{vWa}
    v_mul_u32_u24 v{vOa}, 1792, v26
    v_lshlrev_b32 v{T}, 4, v27
    v_add_u32 v{vOa}, v{vOa}, v{T}
    s_add_u32 s3, s{sM}, {XHA_L}
    v_add_u32 v{vXa}, s3, v{vL16}
    v_xor_b32 v{vXa+1}, {2*4096}, v{vXa}
    """)

def store_offsets(a, base, d):
    a(f"""
    s_lshl_b32 s{d+4}, s{sRB}, 1
    s_and_b32 s3, s{sR}, 1
    s_add_u32 s{d+4}, s{d+4}, s3
    s_mul_i32 s{d+3}, s{d+4}, {RT}
    s_cmp_eq_u32 s{sACT}, 0
    s_cselect_b32 s3, {WS_OOB}, 0
    s_add_u32 s{d+3}, s{d+3}, s3
    s_add_u32 s{d+3}, s{d+3}, {base}
    s_lshl_b32 s{d+2}, s{sCG}, 1
    s_lshr_b32 s3, s{sR}, 1
    s_add_u32 s{d+2}, s{d+2}, s3
    s_lshl_b32 s3, s{d+2}, 6
    s_add_u32 s{d+4}, s{d+4}, s3
    s_lshl_b32 s{d}, s{d+2}, 11
    s_add_u32 s{d}, s{d}, s{d+3}
    s_add_u32 s{d+1}, s{d}, {KU}
    s_lshl_b32 s{d+2}, s{d+2}, 9
    s_add_u32 s{d+2}, s{d+2}, s{d+3}
    s_add_u32 s{d+2}, s{d+2}, {VU}
    s_add_u32 s{d+3}, s{d+2}, 14336
    """)
def qkv_stores(p, d):
    return [f"buffer_store_dwordx4 {vr(p+16,4)}, v{vVs}, {sr(sWS)}, s{d+2} offen sc1",
            f"buffer_store_dwordx4 {vr(p+20,4)}, v{vVs}, {sr(sWS)}, s{d+3} offen sc1",
            f"buffer_store_dwordx4 {vr(p+8,4)}, v{vL16}, {sr(sWS)}, s{d+1} offen sc1",
            f"buffer_store_dwordx4 {vr(p+12,4)}, v{vL16}, {sr(sWS)}, s{d+1} offen offset:1024 sc1",
            f"buffer_store_dwordx4 {vr(p,4)}, v{vL16}, {sr(sWS)}, s{d} offen sc1",
            f"buffer_store_dwordx4 {vr(p+4,4)}, v{vL16}, {sr(sWS)}, s{d} offen offset:1024 sc1"]

def gen_gemm(a):
    vXA, vWA = 10, 14
    accQ, accK, accV = 32, 48, 64
    a(f"""
    v_and_b32 v26, 31, v0
    v_lshrrev_b32 v27, 5, v0
    v_lshrrev_b32 v28, 1, v26
    v_and_b32 v28, 7, v28
    v_xor_b32 v28, v28, v27
    v_lshlrev_b32 v28, 4, v28
    s_mul_i32 s{T0}, s{sC}, {3*SLOT}
    s_and_b32 s3, s{sW}, 1
    s_lshl_b32 s3, s3, 12
    s_add_u32 s3, s3, s{T0}
    v_lshlrev_b32 v29, 7, v26
    v_add_u32 v29, s3, v29
    v_add_u32 v{vXA}, v29, v28
    v_xor_b32 v{vXA+1}, 32, v{vXA}
    v_xor_b32 v{vXA+2}, 64, v{vXA}
    v_xor_b32 v{vXA+3}, 96, v{vXA}
    s_lshr_b32 s{T0+1}, s{sR}, 1
    v_lshrrev_b32 v28, 2, v0
    v_and_b32 v28, 3, v28
    v_lshlrev_b32 v29, 3, v27
    v_add_u32 v29, v29, v28
    v_lshlrev_b32 v29, 7, v29
    v_lshrrev_b32 v28, 1, v28
    v_xor_b32 v28, s{T0+1}, v28
    v_lshlrev_b32 v28, 6, v28
    v_add_u32 v29, v29, v28
    v_and_b32 v28, 16, v0
    v_lshlrev_b32 v28, 1, v28
    v_add_u32 v29, v29, v28
    v_and_b32 v28, 3, v0
    v_lshlrev_b32 v28, 3, v28
    v_add_u32 v29, v29, v28
    v_add_u32 v{vWA}, s{T0}, v29
    """)
    for i in range(48):
        a(f"v_mov_b32 v{accQ+i}, 0")
    roles(a)
    a(f"""
    s_mov_b32 s{T0+6}, {hex(f32bits(CSCALE))}
    s_cmp_lg_u32 s{sC}, 0
    s_cbranch_scc1 C_await
    v_mul_u32_u24 v{vVs}, {7168-512}, v27
    v_add_u32 v{vVs}, v{vVs}, v{vL16}
    """)
    p1_role(a, 0)
    store_offsets(a, BR, T0 + 1)
    a("s_waitcnt lgkmcnt(0)")
    srd(a, sWS, 20, WS_USED)
    a(f"""
    v_mov_b32 v4, {EPOCH}
    buffer_load_dword v4, v4, {sr(sWS)}, 0 offen sc1
    s_branch C_b0
    C_await:
    """)
    if not OPT["prefetch"]: a("s_waitcnt lgkmcnt(0)")
    srd(a, sWS, 20, WS_USED)
    srd(a, sOUT, 16, OUT_BYTES)
    attn_setup(a, 0)
    a(f"""
    s_mul_i32 s3, s{sR}, 6144
    s_add_u32 s3, s3, {HND_L}
    v_add_u32 v3, s3, v{vL16}
    """)
    a(f"""
    s_lshl_b32 s3, s{sR}, 12
    s_add_u32 s3, s3, {4*SLOT + 16384}
    v_add_u32 v9, s3, v{vL16}
    v_mov_b32 v4, 0x3f803f80
    v_mov_b32 v5, 0x3f803f80
    v_mov_b32 v6, 0x3f803f80
    v_mov_b32 v7, 0x3f803f80
    s_not_b64 exec, {sr(sVM,2)}
    ds_write_b128 v9, v[4:7]
    ds_write_b128 v9, v[4:7] offset:1024
    ds_write_b128 v9, v[4:7] offset:2048
    ds_write_b128 v9, v[4:7] offset:3072
    s_mov_b64 exec, -1
    s_cmp_lg_u32 s{sW}, 5
    s_barrier
    s_barrier
    """)
    if OPT["touch"]:
        a(f"s_cbranch_scc1 C_nopf")
        a("s_load_dword s22, s[4:5], 0\n s_load_dword s22, s[6:7], 0")
        for i in range(8):
            a(f"s_mov_b32 s3, {min(i * 0x200000, WS_USED - 4)}\n s_load_dword s22, s[20:21], s3")
        a("s_mov_b32 s3, 0x200000\n s_load_dword s22, s[16:17], 0\n s_load_dword s22, s[16:17], s3\n s_load_dword s22, s[8:9], 0\n s_load_dword s22, s[14:15], 0")
        a("C_nopf:")
    a(f"""
    s_barrier
    s_barrier
    s_barrier
    s_barrier
    s_barrier
    s_waitcnt lgkmcnt(0)
    C_b0:
    s_barrier
    """)
    stamp(a, 2)
    if OPT["prof"]: a("s_waitcnt lgkmcnt(0)")
    F = [80, 96, 112, 128]
    def rlist(ks):
        f = F[ks]
        r = [f"ds_read_b128 {vr(f,4)}, v{vXA+ks}"]
        for p in (1, 2, 0):
            for j in range(2):
                r.append(f"ds_read_b64_tr_b16 {vr(f+4+4*p+2*j,2)}, v{vWA} offset:{8192+p*8192+ks*2048+j*512}")
        return r
    def mlist(ks):
        f = F[ks]
        return [f"{MF32} {vr(accK,16)}, {vr(f+8,4)}, {vr(f,4)}, {vr(accK,16)}",
                f"{MF32} {vr(accV,16)}, {vr(f,4)}, {vr(f+12,4)}, {vr(accV,16)}",
                f"{MF32} {vr(accQ,16)}, {vr(f+4,4)}, {vr(f,4)}, {vr(accQ,16)}"]
    def step(ks, rd):
        m = mlist(ks)
        r = rlist((ks + 2) % 4) if rd else [""] * 7
        a(m[0]); a(r[0]); a(r[1]); a(r[2]); a(m[1]); a(r[3]); a(r[4]); a(m[2]); a(r[5]); a(r[6])
    for l in rlist(0) + rlist(1): a(l)
    a(f"s_mov_b32 s{T0+7}, 7\n C_g:")
    a("s_waitcnt lgkmcnt(7)"); step(0, True)
    a("s_waitcnt lgkmcnt(7)"); step(1, True)
    for r in range(vXA, vXA + 5):
        a(f"v_add_u32 v{r}, {SLOT}, v{r}\n v_and_b32 v{r}, {4*SLOT-1}, v{r}")
    a(f"""
    s_sub_u32 s{T0+7}, s{T0+7}, 1
    s_cmp_eq_u32 s{T0+7}, 0
    s_cbranch_scc1 C_gx
    s_waitcnt lgkmcnt(0)
    s_barrier
    """)
    step(2, True)
    step(3, True)
    a("s_branch C_g\n C_gx:")
    a("s_waitcnt lgkmcnt(7)"); step(2, False)
    a("s_waitcnt lgkmcnt(0)"); step(3, False)
    stamp(a, 3)
    a("s_nop 10")
    P = 80
    for i in range(8):
        a(f"v_cvt_pk_bf16_f32 v{P+8+i}, v{accK+2*i}, v{accK+2*i+1}")
    for i in range(8):
        a(f"v_cvt_pk_bf16_f32 v{P+16+i}, v{accV+2*i}, v{accV+2*i+1}")
    for i in range(16):
        a(f"v_mul_f32 v{accQ+i}, s{T0+6}, v{accQ+i}")
    for i in range(8):
        a(f"v_cvt_pk_bf16_f32 v{P+i}, v{accQ+2*i}, v{accQ+2*i+1}")
    for g in (8, 12, 0, 4):
        a(f"v_permlane32_swap_b32 v{P+g}, v{P+g+2}\n v_permlane32_swap_b32 v{P+g+1}, v{P+g+3}")
    a(f"s_cmp_eq_u32 s{sC}, 0\n s_cbranch_scc1 L_helper")
    for i in range(6):
        a(f"ds_write_b128 v3, {vr(P+4*i,4)} offset:{i*1024}")
    a(f"s_mov_b32 s{sC}, 0")

vCur, vNxt, vNx2, vQa, vK0, vXw, vXr, vT = 148, 149, 150, 151, 152, 153, 156, 160
def attn_setup(a, kh):
    a(f"""
    s_and_b32 s{sK3}, s{sCG3}, {OPT["krot"]}
    s_xor_b32 s{sK3}, s{sK3}, {kh}
    s_add_u32 s{sWI}, s{sR}, {4*kh}
    s_lshl_b32 s3, s{sQB}, 2
    s_add_u32 s3, s3, s{sR}
    s_mul_i32 s3, s3, {RT}
    s_lshl_b32 s{sOb}, s{sU0}, 9
    s_add_u32 s{sOb}, s{sOb}, s3
    s_add_u32 s{sOb}, s{sOb}, {BR + OU}
    v_add_u32 v{vCur}, {pslot(0) + kh*8192}, v{vL16}
    v_add_u32 v{vNxt}, {pslot(1) + kh*8192}, v{vL16}
    v_add_u32 v{vNx2}, {pslot(2) + kh*8192}, v{vL16}
    v_add_u32 v{vK0}, {pslot(0)}, v{vL16}
    s_lshl_b32 s3, s{sR}, 11
    s_add_u32 s3, s3, {QST_L}
    v_add_u32 v{vQa}, s3, v{vL16}
    s_lshl_b32 s3, s{sR}, 10
    v_add_u32 v{vT}, s3, v{vL16}
    v_add_u32 v{vXw}, {XC1_L + kh*4096}, v{vT}
    v_add_u32 v{vXr}, {XC1_L + (1-kh)*4096}, v{vT}
    v_add_u32 v{vXw+1}, {XC2_L + kh*8192}, v{vT}
    v_add_u32 v{vXr+1}, {XC2_L + (1-kh)*8192}, v{vT}
    v_lshrrev_b32 v{vT}, 2, v{vT}
    v_add_u32 v{vXw+2}, {XC2_L + kh*8192 + 4096}, v{vT}
    v_add_u32 v{vXr+2}, {XC2_L + (1-kh)*8192 + 4096}, v{vT}
    v_lshrrev_b32 v{vT}, 4, v0
    v_lshrrev_b32 v{vT+1}, 2, v0
    v_and_b32 v{vT+1}, 3, v{vT+1}
    v_lshlrev_b32 v{vT+2}, 3, v{vT}
    v_add_u32 v{vT+2}, v{vT+2}, v{vT+1}
    v_lshlrev_b32 v{vT+2}, 7, v{vT+2}
    v_and_b32 v{vT+1}, 2, v{vT+1}
    v_and_b32 v{vT+3}, 1, v{vT}
    v_or_b32 v{vT+1}, v{vT+1}, v{vT+3}
    v_lshlrev_b32 v{vT+1}, 5, v{vT+1}
    v_add_u32 v{vT+2}, v{vT+2}, v{vT+1}
    v_and_b32 v{vT+1}, 3, v0
    v_lshlrev_b32 v{vT+1}, 3, v{vT+1}
    v_add_u32 v{vT+2}, v{vT+2}, v{vT+1}
    s_mul_i32 s3, s{sK3}, {224*128}
    v_add_u32 v{vT+4}, s3, v{vT+2}
    v_xor_b32 v{vT+5}, 32, v{vT+4}
    v_xor_b32 v{vT+6}, 64, v{vT+4}
    v_xor_b32 v{vT+7}, 96, v{vT+4}
    s_lshl_b32 s{sOf}, s{sRBK}, 1
    s_lshr_b32 s3, s{sR}, 1
    s_add_u32 s{sOf}, s{sOf}, s3
    s_mul_i32 s{sOf}, s{sOf}, {RT}
    s_and_b32 s3, s{sR}, 1
    s_lshl_b32 s3, s3, 8
    s_add_u32 s{sOf}, s{sOf}, s3
    s_mul_i32 s3, s{sK3}, {28*512}
    s_add_u32 s{sOf}, s{sOf}, s3
    s_add_u32 s{sOf}, s{sOf}, {BR + OU}
    v_and_b32 v{vT+1}, 15, v0
    v_lshlrev_b32 v{vT+2}, 9, v{vT}
    v_lshlrev_b32 v159, 4, v{vT+1}
    v_add_u32 v{vT+2}, v{vT+2}, v159
    s_lshl_b32 s3, s{sRBK}, 2
    s_add_u32 s3, s3, s{sR}
    s_lshl_b32 s3, s3, 4
    v_add_u32 v{vT+1}, s3, v{vT+1}
    v_mul_u32_u24 v{vT+1}, 1792, v{vT+1}
    v_lshlrev_b32 v{vT+3}, 5, v{vT+3}
    v_add_u32 v{vT+1}, v{vT+1}, v{vT+3}
    v_lshrrev_b32 v{vT+3}, 1, v{vT}
    v_lshlrev_b32 v{vT+3}, 4, v{vT+3}
    v_add_u32 v{vT+1}, v{vT+1}, v{vT+3}
    s_lshl_b32 s{sOo}, s{sCG3}, 7
    s_lshl_b32 s3, s{sK3}, 6
    s_add_u32 s{sOo}, s{sOo}, s3
    s_add_u32 s{sOo}, s{sOo}, 896
    s_lshl_b32 s3, s{sWI}, 11
    s_add_u32 s3, s3, {XFI_L}
    v_add_u32 v{vT}, s3, v{vL16}
    v_xor_b32 v{vT+3}, {4*2048}, v{vT}
    """)

def gen_attn(a):
    Q, NM, S, P, O, K, V, T = 4, 12, [28, 44], 60, 104, 120, 128, 140
    WF, OF, ACC = 4, 116, 144
    sS = T0 + 7
    a("C_attn:")
    stamp(a, 5)
    for i in range(16):
        a(f"v_mov_b32 v{O+i}, 0")
    for i in range(4):
        a(f"v_mov_b32 v{P+4+i}, 0\n v_mov_b32 v{V+4+i}, 0")
    a("s_waitcnt lgkmcnt(0)\n s_barrier")
    stamp(a, 6)
    if OPT["prof"]: a("s_waitcnt lgkmcnt(0)")
    a(f"""
    ds_read_b128 {vr(Q,4)}, v{vQa}
    ds_read_b128 {vr(Q+4,4)}, v{vQa} offset:1024
    ds_read_b128 {vr(NM,4)}, v{vK0}
    ds_read_b128 {vr(NM+4,4)}, v{vK0} offset:1024
    ds_read_b128 {vr(NM+8,4)}, v{vCur}
    ds_read_b128 {vr(NM+12,4)}, v{vCur} offset:1024
    ds_read_b128 {vr(K,4)}, v{vCur} offset:2048
    ds_read_b128 {vr(K+4,4)}, v{vCur} offset:3072
    ds_read_b128 {vr(V,4)}, v{vCur} offset:16384
    s_waitcnt lgkmcnt(7)
    """)
    zero_foreign(a, Q)
    a(f"""
    s_waitcnt lgkmcnt(5)
    {MF32} {vr(S[1],16)}, {vr(NM,4)}, {vr(Q,4)}, 0
    {MF32} {vr(S[1],16)}, {vr(NM+4,4)}, {vr(Q+4,4)}, {vr(S[1],16)}
    s_waitcnt lgkmcnt(3)
    {MF32} {vr(S[0],16)}, {vr(NM+8,4)}, {vr(Q,4)}, 0
    {MF32} {vr(S[0],16)}, {vr(NM+12,4)}, {vr(Q+4,4)}, {vr(S[0],16)}
    s_mov_b32 s{sS}, 0
    s_mov_b32 s3, {hex(f32bits(-DELTA))}
    s_nop 7
    """)
    s1 = S[1]
    a(f"v_max3_f32 v{T}, v{s1}, v{s1+1}, v{s1+2}")
    a(f"v_max3_f32 v{T+1}, v{s1+3}, v{s1+4}, v{s1+5}")
    for i in range(6, 14, 4):
        a(f"v_max3_f32 v{T}, v{T}, v{s1+i}, v{s1+i+1}")
        a(f"v_max3_f32 v{T+1}, v{T+1}, v{s1+i+2}, v{s1+i+3}")
    a(f"""
    v_max3_f32 v{T}, v{T}, v{s1+14}, v{s1+15}
    v_max_f32 v{T}, v{T}, v{T+1}
    v_mov_b32 v{T+1}, v{T}
    v_mov_b32 v{s1+14}, 0
    v_mov_b32 v{s1+15}, 0
    v_permlane32_swap_b32 v{T}, v{T+1}
    s_nop 1
    v_max_f32 v{T}, v{T}, v{T+1}
    v_sub_f32 v{NM}, s3, v{T}
    """)
    for i in range(16):
        a(f"v_add_f32 v{S[0]+i}, v{S[0]+i}, v{NM}")
    for i in range(1, 16):
        a(f"v_mov_b32 v{NM+i}, v{NM}")
    a("s_waitcnt lgkmcnt(0)\n s_setprio 1")
    a(".p2align 3")
    a("C_loop:")
    for i in range(4):
        cs, ns = S[i % 2], S[(i + 1) % 2]
        def ex(j): return f"v_exp_f32 v{cs+j}, v{cs+j}"
        def cv(j): return f"v_cvt_pk_bf16_f32 v{P+j}, v{cs+2*j}, v{cs+2*j+1}"
        kreg, ko = (vCur, (i + 2) * 2048) if i < 2 else (vNxt, (i - 2) * 2048)
        vreg, vo = (vCur, (i + 1) * 2048) if i < 3 else (vNxt, 0)
        a(ex(0)); a(ex(1))
        a(f"v_cvt_pk_bf16_f32 v{P+7}, v{ns+14}, v{ns+15}")
        a(ex(2))
        if i == 2:
            a("s_barrier\n s_setprio 3")
        a("s_waitcnt lgkmcnt(2)")
        a(f"{MF32} {vr(ns,16)}, {vr(K,4)}, {vr(Q,4)}, {vr(NM,16)}")
        a(f"ds_read_b128 {vr(K,4)}, v{kreg} offset:{ko}")
        a(cv(0)); a(ex(3)); a(ex(4)); a(cv(1)); a(ex(5)); a(ex(6))
        a(f"{MF32} {vr(O,16)}, {vr(V+4,4)}, {vr(P+4,4)}, {vr(O,16)}")
        a(f"ds_read_b128 {vr(V+4,4)}, v{vCur} offset:{16384 + i*2048 + 1024}")
        a(cv(2)); a(ex(7)); a(ex(8)); a(cv(3)); a(ex(9)); a("s_waitcnt lgkmcnt(2)")
        a(f"{MF32} {vr(ns,16)}, {vr(K+4,4)}, {vr(Q+4,4)}, {vr(ns,16)}")
        a(f"ds_read_b128 {vr(K+4,4)}, v{kreg} offset:{ko+1024}")
        a(ex(10)); a(ex(11)); a(cv(4)); a(ex(12)); a(ex(13)); a(cv(5))
        a(f"{MF32} {vr(O,16)}, {vr(V,4)}, {vr(P,4)}, {vr(O,16)}")
        a(f"ds_read_b128 {vr(V,4)}, v{vreg} offset:{16384 + vo}")
        a(ex(14)); a(ex(15)); a(cv(6))
        if i == 0: a("s_setprio 0\n s_add_u32 s{0}, s{0}, 1".format(sS))
        if i == 2: a("s_setprio 2\n s_nop 0")
        if i == 3:
            a(f"""
            v_swap_b32 v{vCur}, v{vNxt}
            s_setprio 1
            v_swap_b32 v{vNxt}, v{vNx2}
            s_cmp_lt_u32 s{sS}, 8
            s_cbranch_scc1 C_loop
            """)
    a(f"""
    v_cvt_pk_bf16_f32 v{P+7}, v{S[1]+14}, v{S[1]+15}
    s_waitcnt lgkmcnt(0)
    s_cmp_eq_u32 s{sODD}, 0
    {MF32} {vr(O,16)}, {vr(V+4,4)}, {vr(P+4,4)}, {vr(O,16)}
    """)
    stamp(a, 7)
    X = S[0]
    a(f"""
    s_nop 10
    s_cbranch_scc1 C_le
    v_mov_b32 v{T+2}, v{O}
    s_branch C_lx
    C_le:
    v_mov_b32 v{T+2}, v{O+12}
    C_lx:
    s_cmp_eq_u32 s{sC}, 0
    s_cbranch_scc1 C_x0
    ds_write_b128 v{vXw}, {vr(O,4)}
    ds_write_b128 v{vXw+1}, {vr(O+4,4)}
    ds_write_b32 v{vXw+2}, v{T+2}
    s_waitcnt lgkmcnt(0)
    s_barrier
    """)
    for i in range(8):
        a(f"v_mov_b32 v{O+i}, v{O+8+i}")
    a(f"""
    s_branch C_x1
    C_x0:
    ds_write_b128 v{vXw}, {vr(O+8,4)}
    ds_write_b128 v{vXw+1}, {vr(O+12,4)}
    ds_write_b32 v{vXw+2}, v{T+2}
    s_waitcnt lgkmcnt(0)
    s_barrier
    C_x1:
    ds_read_b32 v{X+8}, v{vXr+2}
    ds_read_b128 {vr(X,4)}, v{vXr}
    ds_read_b128 {vr(X+4,4)}, v{vXr+1}
    s_waitcnt lgkmcnt(2)
    v_add_f32 v{T+2}, v{T+2}, v{X+8}
    """)
    bcast_l(a, T + 2, T + 2, T + 4)
    a("s_waitcnt lgkmcnt(0)")
    a(f"v_mul_f32 v{T}, 0, v{T+4}")
    for i in range(8):
        a(f"v_add_f32 v{O+i}, v{O+i}, v{X+i}")
    for i in range(8):
        a(f"v_fma_f32 v{T}, v{O+i}, 0, v{T}")
    a(f"""
    v_cmp_u_f32 vcc, v{T}, v{T}
    s_cmp_lg_u64 vcc, 0
    s_cbranch_scc1 C_slow
    C_fin:
    """)
    finalize(a, O, 8, T + 4)
    a(f"s_cmp_eq_u32 s{sC}, 0\n s_cbranch_scc0 C_st1")
    store_units(a, O, True, sOb, 0)
    a("s_branch C_st2\n C_st1:")
    store_units(a, O, False, sOb, 1024)
    a("C_st2:")
    stamp(a, 8)
    a(f"s_cmp_ge_u32 s{sJ}, 28\n s_cbranch_scc1 C_exit\n s_barrier")
    def wrd(s0, s1):
        for s in range(s0, s1):
            for t in range(4):
                for j in range(2):
                    a(f"ds_read_b64_tr_b16 {vr(WF+16*s+4*t+2*j,2)}, v{vT+4+t} offset:{(32*s+4*j)*128}")
    wrd(0, 6)
    a("s_waitcnt vmcnt(0)")
    wrd(6, 7)
    a(f"s_mov_b32 s{T0+11}, {SPIN}\n s_mov_b32 s{T0+5}, 0\n C_pp:\n s_mov_b32 s3, s{sOf}")
    for s in range(7):
        if s and s % 2 == 0:
            a(f"s_add_u32 s3, s3, 4096")
        a(f"buffer_load_dwordx4 {vr(OF+4*s,4)}, v{vT+2}, {sr(sWS)}, s3 offen offset:{(s%2)*2048} sc1")
    a("s_waitcnt lgkmcnt(0)")
    for s in range(7):
        a(f"s_waitcnt vmcnt({6-s})")
        f = OF + 4 * s
        for t in range(4):
            cin = "0" if s == 0 else vr(ACC + 4 * t, 4)
            a(f"{MF16} {vr(ACC+4*t,4)}, {vr(WF+16*s+4*t,4)}, {vr(f,4)}, {cin}")
            if t == 0: a(f"v_max3_u32 v3, v{f}, v{f+1}, v{f+2 if s == 0 else 3}")
            if t == 1: a(f"v_max3_u32 v3, v3, v{f+2}, v{f+3}")
    a(f"""
    v_cmp_eq_u32 vcc, -1, v3
    s_add_u32 s{T0+5}, s{T0+5}, 1
    s_sub_u32 s{T0+11}, s{T0+11}, 1
    s_cbranch_scc1 C_ppx
    s_cmp_lg_u64 vcc, 0
    s_cbranch_scc1 C_pp
    C_ppx:
    """)
    stamp(a, 9)
    if OPT["prof"]: a(f"v_writelane_b32 v1, s{T0+5}, 63")
    a(f"""
    s_cmp_eq_u32 s{sK3}, 0
    s_nop 5
    s_cbranch_scc1 C_y0
    ds_write_b128 v{vT}, {vr(ACC,4)}
    ds_write_b128 v{vT}, {vr(ACC+4,4)} offset:1024
    s_waitcnt lgkmcnt(0)
    s_barrier
    """)
    for i in range(8):
        a(f"v_mov_b32 v{ACC+i}, v{ACC+8+i}")
    a(f"""
    s_branch C_y1
    C_y0:
    ds_write_b128 v{vT}, {vr(ACC+8,4)}
    ds_write_b128 v{vT}, {vr(ACC+12,4)} offset:1024
    s_waitcnt lgkmcnt(0)
    s_barrier
    C_y1:
    ds_read_b128 {vr(OF,4)}, v{vT+3}
    ds_read_b128 {vr(OF+4,4)}, v{vT+3} offset:1024
    s_waitcnt lgkmcnt(0)
    """)
    for i in range(8):
        a(f"v_add_f32 v{ACC+i}, v{ACC+i}, v{OF+i}")
    for i in range(4):
        a(f"v_cvt_pk_bf16_f32 v{ACC+i}, v{ACC+2*i}, v{ACC+2*i+1}")
    osc = ("", " sc1", " nt", " sc0 sc1")[OPT["outsc"]]
    a(f"""
    s_nop 1
    v_permlane16_swap_b32 v{ACC}, v{ACC+2}
    v_permlane16_swap_b32 v{ACC+1}, v{ACC+3}
    buffer_store_dwordx4 {vr(ACC,4)}, v{vT+1}, {sr(sOUT)}, s{sOo} offen{osc}
    C_exit:
    """)
    dump(a)
    a("s_endpgm")
    sT, sKo, sVo = T0, T0 + 1, T0 + 2
    def kload():
        a(f"""
        s_mul_i32 s{sKo}, s{sT}, {RT}
        s_lshl_b32 s3, s{sU0}, 7
        s_add_u32 s{sVo}, s{sKo}, s3
        s_add_u32 s{sVo}, s{sVo}, {BR + VU}
        s_lshl_b32 s3, s{sU0}, 9
        s_add_u32 s{sKo}, s{sKo}, s3
        s_add_u32 s{sKo}, s{sKo}, {BR + KU}
        buffer_load_dwordx4 {vr(K,4)}, v{vL16}, {sr(sWS)}, s{sKo} offen sc1
        buffer_load_dwordx4 {vr(K+4,4)}, v{vL16}, {sr(sWS)}, s{sKo} offen offset:1024 sc1
        """)
    def qk():
        a(f"""
        s_waitcnt vmcnt(0)
        {MF32} {vr(S[0],16)}, {vr(K,4)}, {vr(Q,4)}, 0
        {MF32} {vr(S[0],16)}, {vr(K+4,4)}, {vr(Q+4,4)}, {vr(S[0],16)}
        s_nop 15
        """)
    a(f"C_slow:\n v_mov_b32 v{T}, 0xff800000\n s_mov_b32 s{sT}, 0\n C_s1:")
    kload(); qk()
    for i in range(0, 16, 2):
        a(f"v_max3_f32 v{T}, v{T}, v{S[0]+i}, v{S[0]+i+1}")
    a(f"""
    s_add_u32 s{sT}, s{sT}, 1
    s_cmp_lt_u32 s{sT}, 64
    s_cbranch_scc1 C_s1
    v_mov_b32 v{T+1}, v{T}
    s_nop 1
    v_permlane32_swap_b32 v{T}, v{T+1}
    s_nop 1
    v_max_f32 v{T}, v{T}, v{T+1}
    v_lshrrev_b32 v{T+1}, 5, v0
    v_mul_u32_u24 v{T+1}, {7168-512}, v{T+1}
    v_add_u32 v{T+1}, v{T+1}, v{vL16}
    """)
    for i in range(16):
        a(f"v_mov_b32 v{O+i}, 0")
    for i in range(8):
        a(f"v_mov_b32 v{V+i}, 0x3f803f80")
    a(f"s_mov_b32 s{sT}, 0\n C_s2:")
    kload()
    a(f"""
    s_add_u32 s3, s{sVo}, 14336
    s_mov_b64 exec, {sr(sVM,2)}
    buffer_load_dwordx4 {vr(V,4)}, v{T+1}, {sr(sWS)}, s{sVo} offen sc1
    buffer_load_dwordx4 {vr(V+4,4)}, v{T+1}, {sr(sWS)}, s3 offen sc1
    s_mov_b64 exec, -1
    """)
    qk()
    for i in range(16):
        a(f"v_sub_f32 v{S[0]+i}, v{S[0]+i}, v{T}")
    for i in range(16):
        a(f"v_exp_f32 v{S[0]+i}, v{S[0]+i}")
    a("s_nop 0")
    for i in range(8):
        a(f"v_cvt_pk_bf16_f32 v{P+i}, v{S[0]+2*i}, v{S[0]+2*i+1}")
    a(f"""
    s_nop 1
    {MF32} {vr(O,16)}, {vr(V,4)}, {vr(P,4)}, {vr(O,16)}
    {MF32} {vr(O,16)}, {vr(V+4,4)}, {vr(P+4,4)}, {vr(O,16)}
    s_add_u32 s{sT}, s{sT}, 1
    s_cmp_lt_u32 s{sT}, 64
    s_nop 15
    s_cbranch_scc1 C_s2
    """)
    bcast_l(a, O + 12, O, T + 4)
    a(f"s_cmp_eq_u32 s{sC}, 0\n s_cbranch_scc1 C_fin")
    for i in range(8):
        a(f"v_mov_b32 v{O+i}, v{O+8+i}")
    a("s_branch C_fin")

def gen_helper(a):
    a.q = []
    AQ, AKp, AKc, AVp, AVc, O, HP, T, SP, SC, PM = 28, 36, 44, 52, 56, 64, 80, 104, 108, 124, 140
    sRT = sHRT
    nb = [0]
    def bar():
        k = nb[0]; nb[0] += 1
        if OPT["hst"]: lstamp(a, k)
        a("s_barrier")
        if OPT["hst"]: lstamp(a, 16 + k)
    regs = [SP + 8 + i for i in range(8)] + [SC + i for i in range(16)]
    def masks():
        a(f"s_mov_b32 s3, 0xf149f2ca\n s_mov_b32 s{T0}, 0xffff")
        for r in range(8):
            a(f"v_mov_b32 v{SP+r}, 0")
        for i in range(12):
            lo, hi = regs[2 * i], regs[2 * i + 1]
            pos = 16 + 8 * (i // 2) + 2 * (i % 2)
            src = vM0 if pos < 32 else vM1
            a(f"""
            v_bfe_i32 v{lo}, v{src}, {pos % 32}, 1
            v_bfe_i32 v{hi}, v{src}, {pos % 32 + 1}, 1
            v_bfi_b32 v{PM+i}, s{T0}, v{lo}, v{hi}
            v_and_b32 v{lo}, s3, v{lo}
            v_and_b32 v{hi}, s3, v{hi}
            v_not_b32 v{PM+i}, v{PM+i}
            """)
    a("s_setprio 3")
    kd, pp = OPT["kd"], OPT["pp"]
    for b in range(7, 14):
        if b == 7:
            for l in qkv_stores(HP, T0 + 1)[:4]: a(l)
        if b == 8:
            for l in qkv_stores(HP, T0 + 1)[4:]: a(l)
            a(f"""
            s_lshl_b32 s3, s{sCG}, 5
            s_add_u32 s3, s3, s{sRB}
            s_lshl_b32 s3, s3, {FS}
            s_add_u32 s13, s3, {FB}
            """)
        if b == 9: helper_setup(a)
        if b == 10: helper_setup_b(a)
        if b == 11: masks()
        if b == 12:
            p1_role(a, 1)
            store_offsets(a, 0, 14)
            a(f"""
            s_mul_i32 s{T0+10}, s{sRT}, {RT}
            s_add_u32 s{T0+10}, s{T0+10}, s{sKb}
            """)
        if b == kd:
            a("s_waitcnt vmcnt(0)")
            stamp(a, 4)
            make_tag(a, 4)
        a("s_barrier")
        if b == kd:
            a(f"s_cmp_lg_u32 s{sW}, 0\n s_cbranch_scc1 H_nofl")
            set_flag(a, 13, T)
            a("H_nofl:")
        if b == pp:
            a(f"buffer_load_dwordx2 {vr(T+2,2)}, v{vFl}, {sr(sWS)}, 0 offen sc1")
    stamp(a, 5)
    a(f"""
    s_waitcnt vmcnt(0)
    v_cmp_ne_u64 vcc, {sr(sTAG,2)}, {vr(T+2,2)}
    s_cmp_eq_u64 vcc, 0
    s_cbranch_scc1 H_ok
    """)
    poll(a, vFl, T + 2)
    a("H_ok:")
    stamp(a, 6)
    a.q = []
    def kv(s):
        base = pslot(s)
        a(f"""
        s_mul_i32 s{T0}, s{sTile}, {RT}
        s_add_u32 m0, s{sM}, {base}
        s_add_u32 s{T0+1}, s{T0}, s{sKb}
        s_add_u32 s{T0+1}, s{T0+1}, {BR + KU}
        """)
        a.vm(f"buffer_load_dwordx4 v{vL16}, {sr(sWS)}, s{T0+1} offen sc1 lds", f"kv{s}")
        a(f"s_add_u32 s{T0+2}, s{T0+1}, {RT - 2048}")
        a.vm(f"buffer_load_dwordx4 v{vL16}, {sr(sWS)}, s{T0+1} offen offset:1024 sc1 lds", f"kv{s}")
        a(f"s_add_u32 s{T0}, s{T0}, s{sVb}")
        a.vm(f"buffer_load_dwordx4 v{vL16}, {sr(sWS)}, s{T0+2} offen offset:2048 sc1 lds", f"kv{s}")
        a(f"s_add_u32 s{T0}, s{T0}, {BR + VU}")
        a.vm(f"buffer_load_dwordx4 v{vL16}, {sr(sWS)}, s{T0+2} offen offset:3072 sc1 lds", f"kv{s}")
        a(f"s_add_u32 m0, s{sM}, {base + 16384}\n s_mov_b64 exec, {sr(sVM,2)}")
        for i in range(4):
            a.vm(f"buffer_load_dwordx4 v{vVs}, {sr(sWS)}, s{T0} offen offset:{i*1024} sc1 lds", f"kv{s}")
            if i < 3: a(f"s_add_u32 s{T0}, s{T0}, {14336 - 1024}")
        a(f"""
        s_mov_b64 exec, -1
        s_add_u32 s{sTile}, s{sTile}, 8
        s_and_b32 s{sTile}, s{sTile}, 63
        """)
    def wo(srdn, lbase, i0, i1, tag):
        a(f"s_lshr_b32 s{T0+1}, s{sM}, 2")
        for i in range(i0, i1):
            a(f"s_add_u32 m0, s{T0+1}, {lbase + (i-i0)*4096}\n s_mov_b32 s{T0}, {i*32*896}")
            a.vm(f"buffer_load_dwordx4 v{vWo}, {sr(srdn)}, s{T0} offen lds", tag)
    a(f"""
    s_lshr_b32 s3, s{sM}, 1
    s_add_u32 m0, s3, {QST_L}
    s_add_u32 s3, s{T0+10}, {BR + QU}
    """)
    a.vm(f"buffer_load_dwordx4 v{vL16}, {sr(sWS)}, s3 offen sc1 lds", "q")
    a.vm(f"buffer_load_dwordx4 v{vL16}, {sr(sWS)}, s3 offen offset:1024 sc1 lds", "q")
    a(f"""
    s_mul_i32 s3, s{sR}, 6144
    s_add_u32 s3, s3, {HND_L}
    v_add_u32 v{T}, s3, v{vL16}
    """)
    kv(0)
    if OPT["kv1"]: kv(1)
    a.wait("kv0")
    a("s_barrier")
    stamp(a, 7)
    if OPT["prof"]: a("s_waitcnt lgkmcnt(0)")
    for i in range(6):
        a(f"ds_read_b128 {vr(HP+4*i,4)}, v{T} offset:{i*1024}")
    def pads(off):
        a(f"s_not_b64 exec, {sr(sVM,2)}")
        for i in range(4):
            a(f"ds_write_b128 v{vPad}, {vr(ONES,4)} offset:{off + i*1024}")
        a("s_mov_b64 exec, -1")
    pads(SLOT)
    if not OPT["kv1"]: kv(1)
    a("s_waitcnt lgkmcnt(0)")
    st = qkv_stores(HP, 14)
    n0 = OPT["sa0"]
    for l in st[:n0]: a.vm(l, "sa")
    pf = []
    if OPT["wpf"]:
        a(f"""
        s_lshl_b32 s3, s{sJ}, 2
        s_add_u32 s3, s3, s{sR}
        s_mul_i32 s3, s3, {25*128}
        s_min_u32 s3, s3, {WO_BYTES - 25*128}
        s_add_u32 s4, s{sWoB}, s3
        s_addc_u32 s5, s{sWoB+1}, 0
        s_add_u32 s6, s{sWoA}, s3
        s_addc_u32 s7, s{sWoA+1}, 0
        """)
        pf = [f"s_load_dword s19, s[{b}:{b+1}], {i*128}" for b in (4, 6) for i in range(25)]
    def pfb(n):
        for _ in range(n):
            if pf: a(pf.pop(0))
    a.wait("kv1"); bar(); kv(2)
    pads(0)
    a("s_waitcnt lgkmcnt(0)")
    for l in st[n0:]: a.vm(l, "sa")
    a(f"""
    s_lshl_b32 s18, s18, {FS}
    s_add_u32 s18, s18, {FA}
    v_mov_b32 v{O}, -1
    v_mov_b32 v{O+1}, -1
    v_mov_b32 v{O+2}, -1
    v_mov_b32 v{O+3}, -1
    s_add_u32 s13, s{T0+10}, {BR + OU}
    """)
    pfb(13)
    a.wait("kv2"); bar(); kv(3)
    a.wait("sa")
    set_flag(a, 18, T)
    store_units(a, O, True, 13, 0)
    store_units(a, O, False, 13, 1024)
    a.q += ["po"] * 3
    pfb(13)
    a.wait("kv3"); bar(); kv(4)
    pfb(12)
    poll(a, vFa, T)
    a(f"""
    s_mul_i32 s{T0}, s{sRT}, {RT}
    s_cmp_eq_u32 s{sRT}, 0
    s_cselect_b32 s3, 0, {RT}
    s_sub_u32 s{T0+1}, s{T0}, s3
    s_add_u32 s{T0+2}, s{T0+10}, {KU}
    s_add_u32 s{T0+3}, s{T0+1}, s{sKb}
    s_add_u32 s{T0+3}, s{T0+3}, {KU}
    """)
    for (r, so) in ((AQ, T0 + 10), (AKc, T0 + 2), (AKp, T0 + 3)):
        a.vm(f"buffer_load_dwordx4 {vr(r,4)}, v{vL16}, {sr(sWS)}, s{so} offen sc1", "loc")
        a.vm(f"buffer_load_dwordx4 {vr(r+4,4)}, v{vL16}, {sr(sWS)}, s{so} offen offset:1024 sc1", "loc")
    a(f"""
    s_add_u32 s{T0}, s{T0}, s{sVb}
    s_add_u32 s{T0}, s{T0}, {VU}
    s_add_u32 s{T0+2}, s{T0}, 14336
    s_add_u32 s{T0+1}, s{T0+1}, s{sVb}
    s_add_u32 s{T0+1}, s{T0+1}, {VU + 14336}
    """)
    a.vm(f"buffer_load_dwordx4 {vr(AVc,4)}, v{vVs}, {sr(sWS)}, s{T0} offen sc1", "loc")
    a.vm(f"buffer_load_dwordx4 {vr(AVc+4,4)}, v{vVs}, {sr(sWS)}, s{T0+2} offen sc1", "loc")
    a.vm(f"buffer_load_dwordx4 {vr(AVp,4)}, v{vVs}, {sr(sWS)}, s{T0+1} offen sc1", "loc")
    bar(); kv(5)
    pfb(12)
    a.wait("loc")
    zero_foreign(a, AQ)
    a(f"""
    s_nop 0
    {MF32} {vr(SP,16)}, {vr(AKp,4)}, {vr(AQ,4)}, {vr(SP,16)}
    {MF32} {vr(SC,16)}, {vr(AKc,4)}, {vr(AQ,4)}, {vr(SC,16)}
    {MF32} {vr(SP,16)}, {vr(AKp+4,4)}, {vr(AQ+4,4)}, {vr(SP,16)}
    {MF32} {vr(SC,16)}, {vr(AKc+4,4)}, {vr(AQ+4,4)}, {vr(SC,16)}
    s_nop 11
    """)
    G = HP
    for g in range(4):
        e = [regs[4 * q + 2 * (g % 2) + k] for q in range(g // 2, 6, 2) for k in range(2)]
        a(f"v_max3_f32 v{G+g}, v{e[0]}, v{e[1]}, v{e[2]}\n v_max3_f32 v{G+4+g}, v{e[3]}, v{e[4]}, v{e[5]}")
    for g in range(4):
        a(f"v_max_f32 v{G+g}, v{G+g}, v{G+4+g}")
    a(f"""
    v_max3_f32 v{T}, v{G}, v{G+1}, v{G+2}
    v_max_f32 v{T}, v{T}, v{G+3}
    v_mov_b32 v{T+1}, v{T}
    s_nop 1
    v_permlane32_swap_b32 v{T}, v{T+1}
    s_nop 1
    v_max_f32 v{T}, v{T}, v{T+1}
    """)
    for g in range(4): a(f"v_sub_f32 v{G+g}, v{G+g}, v{T}")
    for g in range(4): a(f"v_exp_f32 v{G+g}, v{G+g}")
    a(f"""
    s_nop 0
    v_add_f32 v{T}, v{G}, v{G+1}
    v_add_f32 v{T+1}, v{G+2}, v{G+3}
    v_add_f32 v{T}, v{T}, v{T+1}
    v_mov_b32 v{T+1}, v{T}
    s_nop 1
    v_permlane32_swap_b32 v{T}, v{T+1}
    s_nop 1
    v_add_f32 v{T}, v{T}, v{T+1}
    v_rcp_f32 v{T}, v{T}
    s_nop 0
    """)
    for g in range(4): a(f"v_mul_f32 v{G+g}, v{G+g}, v{T}")
    for g in range(4): a(f"v_cvt_pk_bf16_f32 v{G+g}, v{G+g}, v{G+g}")
    for i in range(12):
        g = 2 * ((i // 2) % 2) + i % 2
        a(f"v_and_b32 v{PM+i}, v{PM+i}, v{G+g}")
    O2 = SP
    a(f"""
    s_nop 1
    {MF32} {vr(O2,16)}, {vr(AVp,4)}, {vr(PM,4)}, 0
    {MF32} {vr(O2,16)}, {vr(AVc,4)}, {vr(PM+4,4)}, {vr(O2,16)}
    {MF32} {vr(O2,16)}, {vr(AVc+4,4)}, {vr(PM+8,4)}, {vr(O2,16)}
    s_add_u32 s{T0+10}, s{T0+10}, {OU}
    s_nop 11
    """)
    for i in range(8):
        a(f"v_cvt_pk_bf16_f32 v{O2+i}, v{O2+2*i}, v{O2+2*i+1}")
    a("s_nop 1")
    for g in (0, 4):
        a(f"v_permlane32_swap_b32 v{O2+g}, v{O2+g+2}\n v_permlane32_swap_b32 v{O2+g+1}, v{O2+g+3}")
    store_units(a, O2, True, T0 + 10, 0)
    store_units(a, O2 + 4, False, T0 + 10, 1024)
    a.q += ["oa"] * 3
    a.wait("kv5"); bar(); kv(6)
    a(f"""
    s_lshl_b32 s3, s{sRT}, 4
    s_add_u32 s3, s3, s{sH}
    s_lshl_b32 s3, s3, {FS}
    s_add_u32 s{T0+10}, s3, {FO}
    """)
    a.wait("oa")
    set_flag(a, T0 + 10, T)
    wo(sWoB, WOB_L, 0, 6, "wob")
    OFA, ACC, WB, T = 28, 84, 116, 152
    a(f"""
    s_and_b32 s3, s{sR}, 1
    s_lshl_b32 s{sRT}, s{sRBK}, 1
    s_add_u32 s{sRT}, s{sRT}, s3
    s_lshr_b32 s{sC}, s{sR}, 1
    s_lshl_b32 s3, s{sRT}, 1
    s_add_u32 s3, s3, s{sC}
    s_lshl_b32 s14, s3, {3+FS}
    s_add_u32 s14, s14, {FO}
    s_mul_i32 s13, s3, {RT//2}
    s_add_u32 s13, s13, {OU}
    s_lshl_b32 s{T0+10}, s{sCG3}, 7
    s_lshl_b32 s3, s{sC}, 6
    s_add_u32 s{T0+10}, s{T0+10}, s3
    s_mul_i32 s3, s{sRT}, {32*1792}
    s_add_u32 s{T0+10}, s{T0+10}, s3
    """)
    a.wait("kv6"); bar(); kv(7)
    wo(sWoB, WOB_L + 6 * 4096, 6, 14, "wob")
    a.vm(f"buffer_load_dwordx2 {vr(T+6,2)}, v{vPo}, {sr(sWS)}, s14 offen sc1", "fl")
    def ofa(i0, i1):
        for i in range(i0, i1):
            if i and i % 4 == 0:
                a(f"s_add_u32 s13, s13, 4096")
            a.vm(f"buffer_load_dwordx4 {vr(OFA+4*i,4)}, v{vL16}, {sr(sWS)}, s13 offen offset:{(i%4)*1024} sc1", f"ofa{i}")
    a.wait("kv7"); bar()
    a.wait_all()
    a(f"""
    v_cmp_ne_u64 vcc, {sr(sTAG,2)}, {vr(T+6,2)}
    s_cmp_eq_u64 vcc, 0
    s_cbranch_scc1 H_ok2
    """)
    poll(a, vPo, T + 6, "s14")
    a(f"""
    H_ok2:
    s_lshl_b32 s3, s{sR}, 2
    s_add_u32 s3, s3, {HFL_L}
    v_mov_b32 v{T}, s3
    v_xor_b32 v{T+1}, 8, v{T}
    v_mov_b32 v{T+2}, 0
    s_mov_b64 exec, 1
    ds_write_b32 v{T}, v{T+2}
    s_mov_b64 exec, -1
    """)
    wo(sWoA, WOA_L[0], 0, 7, "woa")
    ofa(0, 9)
    bar()
    wo(sWoA, WOA_L[1], 7, 14, "woa")
    ofa(9, 14)
    a("s_barrier")
    a(f"s_cmp_ge_u32 s{sJ}, 28\n s_cbranch_scc1 H_idle")
    a.wait("woa", " lgkmcnt(0)")
    stamp(a, 8)
    a("s_barrier")
    if OPT["prof"]: a("s_waitcnt lgkmcnt(0)")
    NB = 4
    def rd(i):
        for c in range(2):
            for j in range(2):
                a(f"ds_read_b64_tr_b16 {vr(WB+8*(i%NB)+4*c+2*j,2)}, v{vWa+c} offset:{(16*i+4*j)*128}")
    for i in range(NB - 1): rd(i)
    for i in range(14):
        a.wait(f"ofa{i}", f" lgkmcnt({4*min(NB-2, 13-i)})")
        for c in range(2):
            cin = "0" if i == 0 else vr(ACC + 16 * c, 16)
            a(f"{MF32} {vr(ACC+16*c,16)}, {vr(WB+8*(i%NB)+4*c,4)}, {vr(OFA+4*i,4)}, {cin}")
        if i + NB - 1 < 14:
            rd(i + NB - 1)
    a(f"""
    s_cmp_eq_u32 s{sC}, 0
    s_nop 10
    s_cbranch_scc1 H_y0
    """)
    for i in range(4):
        a(f"ds_write_b128 v{vXa}, {vr(ACC+4*i,4)} offset:{i*1024}")
    a("s_branch H_y1\n H_y0:")
    for i in range(4):
        a(f"ds_write_b128 v{vXa}, {vr(ACC+16+4*i,4)} offset:{i*1024}")
    a("H_y1:\n s_waitcnt lgkmcnt(0)")
    stamp(a, 9)
    a(f"""
    v_mov_b32 v{T+2}, 1
    s_mov_b64 exec, 1
    ds_write_b32 v{T}, v{T+2}
    s_mov_b32 s23, {SPIN * 8}
    H_pw:
    ds_read_b32 v{T+2}, v{T+1}
    s_waitcnt lgkmcnt(0)
    v_readfirstlane_b32 s3, v{T+2}
    s_sub_u32 s23, s23, 1
    s_cbranch_scc1 H_pwx
    s_cmp_eq_u32 s3, 0
    s_cbranch_scc1 H_pw
    H_pwx:
    s_mov_b64 exec, -1
    s_cmp_eq_u32 s{sC}, 0
    """)
    for i in range(4):
        a(f"ds_read_b128 {vr(OFA+4*i,4)}, v{vXa+1} offset:{i*1024}")
    a(f"s_waitcnt lgkmcnt(0)\n s_cbranch_scc1 H_z0")
    for i in range(16):
        a(f"v_add_f32 v{OFA+i}, v{ACC+16+i}, v{OFA+i}")
    a("s_branch H_z1\n H_z0:")
    for i in range(16):
        a(f"v_add_f32 v{OFA+i}, v{ACC+i}, v{OFA+i}")
    a("H_z1:")
    for i in range(8):
        a(f"v_cvt_pk_bf16_f32 v{OFA+i}, v{OFA+2*i}, v{OFA+2*i+1}")
    a("s_nop 1")
    for g in (0, 4):
        a(f"v_permlane32_swap_b32 v{OFA+g}, v{OFA+g+2}\n v_permlane32_swap_b32 v{OFA+g+1}, v{OFA+g+3}")
    osc = ("", " sc1", " nt", " sc0 sc1")[OPT["outsc"]]
    a(f"buffer_store_dwordx4 {vr(OFA,4)}, v{vOa}, {sr(sOUT)}, s{T0+10} offen{osc}")
    a(f"buffer_store_dwordx4 {vr(OFA+4,4)}, v{vOa}, {sr(sOUT)}, s{T0+10} offen offset:32{osc}")
    a("H_exit:")
    dump(a)
    a("s_endpgm")
    a(f"""
    H_idle:
    s_cmp_lg_u32 s2, 255
    s_cbranch_scc1 H_exit
    s_cmp_lg_u32 s{sW}, 0
    s_cbranch_scc1 H_exit
    v_lshlrev_b32 v{T}, {FS}, v0
    s_mov_b32 s{T0+11}, {SPIN}
    H_ep:
    """)
    for i in range(4):
        a(f"s_mov_b32 s3, {FB + (i*64 << FS)}\n buffer_load_dwordx2 {vr(OFA+2*i,2)}, v{T}, {sr(sWS)}, s3 offen sc1")
    a(f"s_waitcnt vmcnt(0)\n s_mov_b64 s[4:5], 0")
    for i in range(4):
        a(f"v_cmp_ne_u64 vcc, {sr(sTAG,2)}, {vr(OFA+2*i,2)}\n s_or_b64 s[4:5], s[4:5], vcc")
    a(f"""
    s_sub_u32 s{T0+11}, s{T0+11}, 1
    s_cbranch_scc1 H_epx
    s_cmp_lg_u64 s[4:5], 0
    s_cbranch_scc1 H_ep
    H_epx:
    v_mov_b32 v{T}, {EPOCH}
    v_mov_b32 v{T+1}, s{sTAG}
    s_mov_b64 exec, 1
    buffer_store_dword v{T+1}, v{T}, {sr(sWS)}, 0 offen sc1
    s_mov_b64 exec, -1
    s_branch H_exit
    """)

def main(out):
    a = gen()
    K = NAME + "_kernel"
    hdr = f"""; Fused QKV projection -> attention (A: dilated local window, B: full) -> output projection.
; @launch grid=(256,1,1) block=(768,1,1) lds=163840
.amdgcn_target "amdgcn-amd-amdhsa--gfx950"
.text
"""
    d = f""".section .rodata,"a"
.p2align 6
.amdhsa_kernel {K}
  .amdhsa_next_free_vgpr 168
  .amdhsa_next_free_sgpr 102
  .amdhsa_accum_offset 168
  .amdhsa_group_segment_fixed_size 0
  .amdhsa_kernarg_size 72
  .amdhsa_user_sgpr_count 2
  .amdhsa_user_sgpr_kernarg_segment_ptr 1
  .amdhsa_system_sgpr_workgroup_id_x 1
.end_amdhsa_kernel
"""
    open(out, "w").write(hdr + a.text() + d)

if __name__ == "__main__":
    for kv in sys.argv[2:]:
        k, v = kv.split("=")
        assert k in OPT
        OPT[k] = int(v)
    main(sys.argv[1])
```

```python
import sys, math, struct
NAME = "concat_heads__sliding_local_dilated__mha_block__prompt"
OPT = dict(prof=0, rot=1, prefetch=1, sleep=1, touch=1, outsc=0, wpf=1, sa0=3, hst=1, lst=1, krot=1, kv1=0, kd=10, pp=12, padrt=0, padcy=0, padx=-1)

class Asm:
    def __init__(self):
        self.lines = []
        self.q = []
        self.uid = 0
    def __call__(self, s):
        for l in s.strip("\n").split("\n"):
            l = l.strip()
            if not l: continue
            self.lines.append(l if l.endswith(":") else "    " + l)
    def vm(self, s, tag):
        self(s); self.q.append(tag)
    def wait(self, tag, extra=""):
        if tag not in self.q:
            if extra: self(f"s_waitcnt{extra}")
            return
        idx = max(i for i, t in enumerate(self.q) if t == tag)
        n = len(self.q) - 1 - idx
        assert n <= 63
        self(f"s_waitcnt vmcnt({n}){extra}")
        self.q = self.q[idx + 1:]
    def wait_all(self, extra=""):
        self(f"s_waitcnt vmcnt(0){extra}"); self.q = []
    def lab(self, p):
        self.uid += 1
        return f"{p}_{self.uid}"
    def text(self):
        return "\n".join(self.lines) + "\n"

def vr(a, n): return f"v[{a}:{a+n-1}]"
def sr(a, n=4): return f"s[{a}:{a+n-1}]"
def f32bits(x): return struct.unpack("<I", struct.pack("<f", x))[0]
MF32 = "v_mfma_f32_32x32x16_bf16"
MF16 = "v_mfma_f32_16x16x32_bf16"

RT = 56 * 512
MAT = 64 * RT
BR = 4 * MAT
QU, KU, VU, OU = 0, MAT, 2 * MAT, 3 * MAT
FS = 7
FB = 2 * BR
FA = FB + (256 << FS)
FO = FA + (1024 << FS)
EPOCH = FO + (1024 << FS)
WS_USED = EPOCH + 0x1000
WS_OOB = 0x40000000
PROF_OFF = 0x1100000
X_BYTES, W_BYTES, WO_BYTES, OUT_BYTES = 2048 * 896, 448 * 2688, 448 * 896, 2048 * 1792
CSCALE = (28 ** -0.5) * math.log2(math.e)
DELTA = 24.0
SPIN = 1 << 18

sWS, sX, sWt, sOUT, sWoA, sWoB = 24, 28, 32, 36, 40, 44
sOo, sOf, sOb, sK3 = 48, 49, 50, 51
sW, sXCD, sJ, sRB, sCG, sACT, sH, sQB, sU0, sODD, sRBK, sCG3 = range(52, 64)
sTAG, sVM = 64, 66
T0 = 68
sR, sC, sWI = T0 + 8, T0 + 9, T0 + 10
NST = 10
def stamp(a, i, rt=False):
    if OPT["prof"]:
        assert i < NST
        a(f"{'s_memrealtime' if rt else 's_memtime'} s[{80+2*i}:{81+2*i}]")
def lstamp(a, idx):
    if OPT["prof"]:
        a(f"s_memtime s[100:101]\n s_mov_b32 m0, {idx}\n s_waitcnt lgkmcnt(0)\n v_writelane_b32 v1, s100, m0")
def dump(a):
    if not OPT["prof"]: return
    a(f"""
    s_mul_i32 s8, s2, 12
    s_add_u32 s8, s8, s{sW}
    s_lshl_b32 s8, s8, 8
    s_add_u32 s8, s8, {PROF_OFF + 0x100000}
    s_mov_b32 s{sWS+2}, 0x2000000
    s_waitcnt lgkmcnt(0) vmcnt(0)
    s_memtime s[4:5]
    s_memrealtime s[6:7]
    v_lshlrev_b32 v3, 2, v0
    buffer_store_dword v1, v3, {sr(sWS)}, s8 offen
    s_mul_i32 s8, s2, 12
    s_add_u32 s8, s8, s{sW}
    s_lshl_b32 s8, s8, 6
    s_add_u32 s8, s8, {PROF_OFF}
    s_waitcnt lgkmcnt(0) vmcnt(0)
    v_mov_b32 v1, 0
    s_mov_b64 exec, 1
    """)
    for i, s in enumerate([80 + 2 * i for i in range(NST)] + [4, 6]):
        a(f"v_mov_b32 v0, s{s}\n buffer_store_dword v0, v1, {sr(sWS)}, s8 offen offset:{4*i}\n s_nop 1")
    a("s_waitcnt vmcnt(0)")

def srd(a, d, lo, nbytes):
    nb = nbytes if isinstance(nbytes, str) else hex(nbytes)
    a(f"s_mov_b32 s{d}, s{lo}\n s_and_b32 s{d+1}, s{lo+1}, 0xffff\n s_mov_b32 s{d+2}, {nb}\n s_mov_b32 s{d+3}, 0x20000")

def poll(a, vaddr, vt, soff="0"):
    L = a.lab("poll")
    a(f"""
    s_mov_b32 s{T0+11}, {SPIN}
    {L}:
    buffer_load_dwordx2 {vr(vt,2)}, v{vaddr}, {sr(sWS)}, {soff} offen sc1
    s_waitcnt vmcnt(0)
    v_cmp_ne_u64 vcc, {sr(sTAG,2)}, {vr(vt,2)}
    s_sub_u32 s{T0+11}, s{T0+11}, 1
    s_cbranch_scc1 {L}_x
    s_cmp_eq_u64 vcc, 0
    s_cbranch_scc1 {L}_x
    s_sleep {OPT['sleep']}
    s_branch {L}
    {L}_x:
    """)
    a.q = []

def set_flag(a, soff, vt):
    a(f"""
    v_mov_b32 v{vt}, s{sTAG}
    v_mov_b32 v{vt+1}, s{sTAG+1}
    s_mov_b64 exec, 1
    """)
    a.vm(f"buffer_store_dwordx2 {vr(vt,2)}, v{vL16}, {sr(sWS)}, s{soff} offen sc1", "flag")
    a("s_mov_b64 exec, -1")

def zero_foreign(a, q):
    L = a.lab("zf")
    a(f"""
    s_cmp_eq_u32 s{sODD}, 0
    s_cbranch_scc1 {L}_e
    s_mov_b32 exec_hi, 0
    v_mov_b32 v{q}, 0
    v_mov_b32 v{q+1}, 0
    s_branch {L}_x
    {L}_e:
    s_mov_b32 exec_lo, 0
    v_mov_b32 v{q+6}, 0
    v_mov_b32 v{q+7}, 0
    {L}_x:
    s_mov_b64 exec, -1
    """)

SLOT = 32768
def pslot(s): return (4, 3, 2)[s % 3] * SLOT
WOA_L = (2 * SLOT, 4 * SLOT)
WOB_L = 0
HND_L = 2 * SLOT + 8192
QST_L = 2 * SLOT
XC1_L = 448 * 128
XC2_L = 3 * SLOT
XHA_L = 3 * SLOT + 16384
XFI_L = 3 * SLOT
HFL_L = 2 * SLOT + 28672
vL16 = 2

def p1_role(a, bi):
    a(f"""
    s_lshr_b32 s{sRB}, s{sXCD}, 1
    s_lshl_b32 s{sRB}, s{sRB}, 3
    s_and_b32 s3, s{sJ}, 7
    s_add_u32 s{sRB}, s{sRB}, s3
    s_xor_b32 s3, s{sXCD}, {bi}
    s_and_b32 s3, s3, 1
    s_lshl_b32 s3, s3, 2
    s_lshr_b32 s{sCG}, s{sJ}, 3
    s_add_u32 s{sCG}, s{sCG}, s3
    s_cmp_lt_u32 s{sCG}, 7
    s_cselect_b32 s{sACT}, 1, 0
    """)

def roles(a):
    a(f"""
    s_lshr_b32 s{sCG3}, s{sJ}, 2
    s_min_u32 s{sCG3}, s{sCG3}, 6
    s_and_b32 s3, s{sJ}, 3
    s_lshl_b32 s{sRBK}, s{sXCD}, 2
    s_add_u32 s{sRBK}, s{sRBK}, s3
    s_lshl_b32 s{sH}, s{sXCD}, 1
    s_lshr_b32 s{sODD}, s{sJ}, 4
    s_add_u32 s{sH}, s{sH}, s{sODD}
    s_and_b32 s{sQB}, s{sJ}, 15
    s_mul_i32 s{sU0}, s{sH}, 7
    s_lshr_b32 s{sU0}, s{sU0}, 1
    s_cmp_eq_u32 s{sODD}, 0
    s_cselect_b32 s{sVM}, 0x0fffffff, 0xfffffff0
    s_mov_b32 s{sVM+1}, s{sVM}
    v_lshlrev_b32 v{vL16}, 4, v0
    """)

def gen():
    a = Asm()
    K = NAME + "_kernel"
    a.lines.append(f".globl {K}\n.p2align 8\n.type {K},@function\n{K}:")
    a(f"""
    s_load_dwordx16 s[4:19], s[0:1], 0
    s_load_dwordx2 s[20:21], s[0:1], 64
    s_cmp_ge_u32 s2, 256
    s_cbranch_scc1 L_end
    """)
    stamp(a, 0, rt=True); stamp(a, 1)
    if OPT["padrt"]: a("s_memrealtime s[96:97]")
    if OPT["padcy"]: a("s_memtime s[96:97]")
    a(f"""
    v_lshrrev_b32 v1, 6, v0
    v_and_b32 v0, 63, v0
    s_and_b32 s{sXCD}, s2, 7
    v_readfirstlane_b32 s{sW}, v1
    s_lshr_b32 s{sJ}, s2, 3
    s_nop 1
    s_and_b32 s{sR}, s{sW}, 3
    s_lshr_b32 s{sC}, s{sW}, 2
    s_cmp_eq_u32 s{sC}, 0
    s_cbranch_scc1 L_gemm
    s_cmp_eq_u32 s{sC}, 2
    s_cbranch_scc1 L_loader
    """)
    if OPT["prefetch"]:
        a(f"""
        s_getpc_b64 s[{T0}:{T0+1}]
        C_pc:
        s_lshl_b32 s3, s{sJ}, 2
        s_add_u32 s3, s3, s{sR}
        s_lshl_b32 s3, s3, 7
        s_add_u32 s3, s3, 512
        s_min_u32 s3, s3, L_code_end-C_pc-4
        s_waitcnt lgkmcnt(0)
        s_load_dword s22, s[{T0}:{T0+1}], s3
        """)
    a("s_branch L_gemm\n L_loader:")
    gen_loader(a)
    a("L_gemm:")
    gen_gemm(a)
    gen_attn(a)
    a("L_helper:")
    gen_helper(a)
    a("L_end:\n s_endpgm")
    a("L_code_end:")
    return a

def make_tag(a, vt):
    a(f"""
    v_readfirstlane_b32 s{sTAG}, v{vt}
    s_nop 3
    s_mul_i32 s{sTAG}, s{sTAG}, 0x9e3779b1
    s_add_u32 s{sTAG}, s{sTAG}, 0x7f4a7c15
    s_not_b32 s{sTAG+1}, s{sTAG}
    """)

def finalize(a, o, n, l):
    a(f"v_rcp_f32 v{l}, v{l}\n s_nop 0")
    for i in range(n):
        a(f"v_mul_f32 v{o+i}, v{l}, v{o+i}")
    for i in range(n // 2):
        a(f"v_cvt_pk_bf16_f32 v{o+i}, v{o+2*i}, v{o+2*i+1}")
    a("s_nop 1")
    for g in range(0, n // 2, 4):
        a(f"v_permlane32_swap_b32 v{o+g}, v{o+g+2}\n v_permlane32_swap_b32 v{o+g+1}, v{o+g+3}")

def bcast_l(a, src_e, src_o, t):
    L = a.lab("bl")
    a(f"""
    s_cmp_eq_u32 s{sODD}, 0
    s_cbranch_scc1 {L}_e
    v_mov_b32 v{t}, v{src_o}
    v_mov_b32 v{t+1}, v{src_o}
    s_nop 1
    v_permlane32_swap_b32 v{t}, v{t+1}
    s_branch {L}_x
    {L}_e:
    v_mov_b32 v{t}, v{src_e}
    v_mov_b32 v{t+1}, v{src_e}
    s_nop 1
    v_permlane32_swap_b32 v{t+1}, v{t}
    {L}_x:
    s_nop 1
    """)

def store_units(a, p, first, soff, off):
    L = a.lab("su")
    full = f"buffer_store_dwordx4 {vr(p,4)}, v{vL16}, {sr(sWS)}, s{soff} offen offset:{off} sc1"
    if first:
        a(f"""
        s_cmp_eq_u32 s{sODD}, 0
        s_cbranch_scc1 {L}_f
        s_mov_b32 exec_hi, 0
        buffer_store_dwordx2 {vr(p+2,2)}, v{vL16}, {sr(sWS)}, s{soff} offen offset:{off+8} sc1
        s_not_b64 exec, exec
        {L}_f:
        {full}
        s_mov_b64 exec, -1
        """)
    else:
        a(f"""
        s_cmp_eq_u32 s{sODD}, 1
        s_cbranch_scc1 {L}_f
        s_mov_b32 exec_lo, 0
        buffer_store_dwordx2 {vr(p,2)}, v{vL16}, {sr(sWS)}, s{soff} offen offset:{off} sc1
        s_not_b64 exec, exec
        {L}_f:
        {full}
        s_mov_b64 exec, -1
        """)

def gen_loader(a):
    sCH, sSl, sN, sXb, sWb = T0 + 9, T0 + 7, T0 + 6, T0 + 5, T0 + 4
    vX0, vX1, vWs = 4, 5, 6
    a(f"""
    s_setprio 3
    v_lshrrev_b32 v8, 3, v0
    v_and_b32 v9, 7, v0
    v_lshrrev_b32 v10, 4, v0
    s_lshl_b32 s3, s{sR}, 4
    v_add_u32 v11, s3, v8
    v_mul_u32_u24 v13, 2688, v11
    v_mul_u32_u24 v11, 896, v11
    v_xor_b32 v12, v9, v10
    v_lshlrev_b32 v12, 4, v12
    v_add_u32 v{vX0}, v11, v12
    v_add_u32 v{vX1}, {8*896}, v{vX0}
    v_xor_b32 v{vX1}, 64, v{vX1}
    v_and_b32 v12, 1, v10
    v_lshlrev_b32 v12, 2, v12
    v_xor_b32 v12, v12, v9
    v_lshlrev_b32 v12, 4, v12
    v_add_u32 v{vWs}, v13, v12
    s_lshl_b32 s{sSl}, s{sR}, 11
    s_mov_b32 s{sN}, 0
    s_mov_b32 s{T0+11}, 0
    s_waitcnt lgkmcnt(0)
    s_mov_b64 s[44:45], s[10:11]
    s_mov_b64 s[46:47], s[12:13]
    """)
    lstamp(a, 0)
    a("H1_setup:")
    p1_role(a, f"s{T0+11}")
    a(f"""
    s_cselect_b32 s{T0}, {X_BYTES}, 0
    s_cselect_b32 s{T0+1}, {W_BYTES}, 0
    s_and_b32 s3, s{sCG}, 3
    s_lshl_b32 s3, s3, 1
    s_and_b32 s{sCH}, s{sRB}, 7
    s_add_u32 s{sCH}, s{sCH}, s3
    s_cmp_ge_u32 s{sCH}, 7
    s_cselect_b32 s3, 7, 0
    s_sub_u32 s{sCH}, s{sCH}, s3
    s_mul_i32 s{sXb}, s{sRB}, {64*896}
    s_lshl_b32 s{sWb}, s{sCG}, 7
    """)
    srd(a, sX, 44, f"s{T0}")
    srd(a, sWt, 46, f"s{T0+1}")
    a(f"""
    H1_loop:
    s_lshl_b32 s{T0}, s{sCH}, 7
    s_mov_b32 m0, s{sSl}
    s_add_u32 s{T0}, s{T0}, s{sXb}
    s_mul_i32 s{T0+2}, s{sCH}, {64*2688}
    buffer_load_dwordx4 v{vX0}, {sr(sX)}, s{T0} offen lds
    s_add_u32 m0, s{sSl}, 1024
    s_add_u32 s{T0+2}, s{T0+2}, s{sWb}
    buffer_load_dwordx4 v{vX1}, {sr(sX)}, s{T0} offen lds
    """)
    fill = [f"s_add_u32 s{sCH}, s{sCH}, 1", f"s_cmp_eq_u32 s{sCH}, 7\n s_cselect_b32 s{sCH}, 0, s{sCH}", f"s_add_u32 s{sN}, s{sN}, 1", "", "", ""]
    for p in (1, 2, 0):
        for i in range(2):
            a(f"s_add_u32 m0, s{sSl}, {8192 + p*8192 + i*1024}")
            a(f"s_add_u32 s{T0+3}, s{T0+2}, {p*896 + i*8*2688}")
            a(f"buffer_load_dwordx4 v{vWs}, {sr(sWt)}, s{T0+3} offen lds")
            a(fill.pop(0))
    a(f"""
    s_add_u32 s{sSl}, s{sSl}, {SLOT}
    s_and_b32 s{sSl}, s{sSl}, {4*SLOT-1}
    s_cmp_eq_u32 s{sN}, 1
    s_cbranch_scc1 H1_loop
    s_waitcnt vmcnt(8)
    s_barrier
    """)
    if OPT["prof"] and OPT["lst"]:
        a(f"s_add_u32 s3, s{sN}, 31"); lstamp(a, "s3")
    a(f"""
    s_cmp_lg_u32 s{sN}, 7
    s_cbranch_scc1 H1_same
    s_mov_b64 s[44:45], s[4:5]
    s_mov_b64 s[46:47], s[6:7]
    s_mov_b32 s{T0+11}, 1
    s_branch H1_setup
    H1_same:
    s_cmp_lt_u32 s{sN}, 14
    s_cbranch_scc1 H1_loop
    s_waitcnt vmcnt(0)
    s_barrier
    s_setprio 0
    s_mov_b32 s{sC}, 1
    """)
    stamp(a, 2)
    roles(a)
    srd(a, sWS, 20, WS_USED)
    srd(a, sOUT, 16, OUT_BYTES)
    attn_setup(a, 1)
    a("s_branch C_attn")

vVs, vWo, vFl, vFa, vPad, vM0, vM1, ONES = 15, 16, 17, 18, 19, 20, 21, 22
vPo, vWa, vOa, vXa = 160, 161, 163, 164
sKb, sVb, sTile, sM, sHRT = 8, 9, 10, 11, 12
def helper_setup(a):
    T = 152; sRT = sHRT
    srd(a, sWoA, 8, WO_BYTES)
    srd(a, sWoB, 14, WO_BYTES)
    srd(a, sOUT, 16, OUT_BYTES)
    a(f"""
    v_mov_b32 v{ONES}, 0x3f803f80
    v_mov_b32 v{ONES+1}, 0x3f803f80
    v_mov_b32 v{ONES+2}, 0x3f803f80
    v_mov_b32 v{ONES+3}, 0x3f803f80
    s_lshl_b32 s{sM}, s{sR}, 12
    s_add_u32 s3, s{sM}, {2*SLOT + 16384}
    v_add_u32 v{vPad}, s3, v{vL16}
    s_lshl_b32 s{sKb}, s{sU0}, 9
    s_lshl_b32 s{sVb}, s{sU0}, 7
    s_lshl_b32 s{sRT}, s{sQB}, 2
    s_add_u32 s{sRT}, s{sRT}, s{sR}
    """)
    if OPT["rot"]:
        a(f"s_lshl_b32 s{sTile}, s{sQB}, 3\n s_and_b32 s{sTile}, s{sTile}, 63")
    else:
        a(f"s_mov_b32 s{sTile}, 0")
    a(f"""
    s_lshl_b32 s3, s{sR}, 1
    s_add_u32 s{sTile}, s{sTile}, s3
    """)
    a(f"""
    v_bfe_u32 v{T}, v0, 3, 1
    v_mul_u32_u24 v{T}, 3, v{T}
    v_add_u32 v{T}, s{sU0}, v{T}
    v_lshrrev_b32 v{T+3}, 3, v{T}
    v_lshlrev_b32 v{T+3}, 5, v{T+3}
    s_lshr_b32 s3, s{sRT}, 1
    v_mov_b32 v{T+1}, s3
    s_mov_b64 exec, 0xffff
    v_and_b32 v{T+1}, 7, v0
    v_lshlrev_b32 v{T+1}, 2, v{T+1}
    v_add_u32 v{T+1}, s{sR}, v{T+1}
    s_mov_b64 exec, -1
    v_add_u32 v{T+1}, v{T+1}, v{T+3}
    v_lshlrev_b32 v{T+1}, {FS}, v{T+1}
    v_add_u32 v{vFl}, {FB}, v{T+1}
    v_lshrrev_b32 v{T+3}, 2, v{T}
    v_lshlrev_b32 v{T+3}, 6, v{T+3}
    s_cmp_eq_u32 s{sRT}, 0
    s_cselect_b32 s3, 0, 1
    v_and_b32 v{T+2}, s3, v0
    v_sub_u32 v{T+2}, s{sRT}, v{T+2}
    v_add_u32 v{T+2}, v{T+2}, v{T+3}
    v_lshlrev_b32 v{T+2}, {FS}, v{T+2}
    v_add_u32 v{vFa}, {FA}, v{T+2}
    """)
    a(f"""
    v_lshrrev_b32 v{T}, 3, v0
    s_lshl_b32 s3, s{sR}, 3
    v_add_u32 v{T+1}, s3, v{T}
    v_mul_u32_u24 v{T+1}, 896, v{T+1}
    v_and_b32 v{T}, 2, v{T}
    s_and_b32 s3, s{sR}, 1
    v_or_b32 v{T}, s3, v{T}
    v_lshlrev_b32 v{T}, 1, v{T}
    v_and_b32 v{T+2}, 7, v0
    v_xor_b32 v{T}, v{T}, v{T+2}
    v_lshlrev_b32 v{T}, 4, v{T}
    v_add_u32 v{T+1}, v{T+1}, v{T}
    s_lshl_b32 s3, s{sCG3}, 7
    v_add_u32 v{vWo}, s3, v{T+1}
    """)
def helper_setup_b(a):
    T = 152; sRT = sHRT
    a(f"""
    v_lshlrev_b32 v{T+1}, 2, v27
    v_sub_u32 v{T}, v26, v{T+1}
    v_add_u32 v{T}, 18, v{T}
    v_mov_b32 v{vM0}, 0x5555
    v_mov_b32 v{vM1}, 0
    v_lshlrev_b64 {vr(vM0,2)}, v{T}, {vr(vM0,2)}
    s_cmp_eq_u32 s{sRT}, 0
    s_cselect_b32 s3, 0, -1
    v_and_b32 v{vM0}, s3, v{vM0}
    v_not_b32 v{vM0}, v{vM0}
    v_not_b32 v{vM1}, v{vM1}
    """)
    a(f"""
    v_and_b32 v{vPo}, 7, v0
    v_lshlrev_b32 v{vPo}, {FS}, v{vPo}
    v_lshrrev_b32 v{T+1}, 2, v0
    v_and_b32 v{T+1}, 3, v{T+1}
    v_lshlrev_b32 v{T+2}, 3, v27
    v_add_u32 v{T+2}, v{T+2}, v{T+1}
    v_lshlrev_b32 v{T+2}, 7, v{T+2}
    v_and_b32 v{T+1}, 2, v{T+1}
    v_or_b32 v{T+1}, v{T+1}, v27
    v_bfe_u32 v{T+3}, v0, 4, 1
    v_xor_b32 v{T+1}, v{T+1}, v{T+3}
    v_lshlrev_b32 v{T+1}, 5, v{T+1}
    v_add_u32 v{T+2}, v{T+2}, v{T+1}
    v_and_b32 v{T+1}, 3, v0
    v_lshlrev_b32 v{T+1}, 3, v{T+1}
    v_add_u32 v{T+2}, v{T+2}, v{T+1}
    s_lshr_b32 s3, s{sR}, 1
    s_mul_i32 s3, s3, {WOA_L[1] - WOA_L[0]}
    s_add_u32 s3, s3, {WOA_L[0]}
    v_add_u32 v{vWa}, s3, v{T+2}
    v_xor_b32 v{vWa+1}, 64, v{vWa}
    v_mul_u32_u24 v{vOa}, 1792, v26
    v_lshlrev_b32 v{T}, 4, v27
    v_add_u32 v{vOa}, v{vOa}, v{T}
    s_add_u32 s3, s{sM}, {XHA_L}
    v_add_u32 v{vXa}, s3, v{vL16}
    v_xor_b32 v{vXa+1}, {2*4096}, v{vXa}
    """)

def store_offsets(a, base, d):
    a(f"""
    s_lshl_b32 s{d+4}, s{sRB}, 1
    s_and_b32 s3, s{sR}, 1
    s_add_u32 s{d+4}, s{d+4}, s3
    s_mul_i32 s{d+3}, s{d+4}, {RT}
    s_cmp_eq_u32 s{sACT}, 0
    s_cselect_b32 s3, {WS_OOB}, 0
    s_add_u32 s{d+3}, s{d+3}, s3
    s_add_u32 s{d+3}, s{d+3}, {base}
    s_lshl_b32 s{d+2}, s{sCG}, 1
    s_lshr_b32 s3, s{sR}, 1
    s_add_u32 s{d+2}, s{d+2}, s3
    s_lshl_b32 s3, s{d+2}, 6
    s_add_u32 s{d+4}, s{d+4}, s3
    s_lshl_b32 s{d}, s{d+2}, 11
    s_add_u32 s{d}, s{d}, s{d+3}
    s_add_u32 s{d+1}, s{d}, {KU}
    s_lshl_b32 s{d+2}, s{d+2}, 9
    s_add_u32 s{d+2}, s{d+2}, s{d+3}
    s_add_u32 s{d+2}, s{d+2}, {VU}
    s_add_u32 s{d+3}, s{d+2}, 14336
    """)
def qkv_stores(p, d):
    return [f"buffer_store_dwordx4 {vr(p+16,4)}, v{vVs}, {sr(sWS)}, s{d+2} offen sc1",
            f"buffer_store_dwordx4 {vr(p+20,4)}, v{vVs}, {sr(sWS)}, s{d+3} offen sc1",
            f"buffer_store_dwordx4 {vr(p+8,4)}, v{vL16}, {sr(sWS)}, s{d+1} offen sc1",
            f"buffer_store_dwordx4 {vr(p+12,4)}, v{vL16}, {sr(sWS)}, s{d+1} offen offset:1024 sc1",
            f"buffer_store_dwordx4 {vr(p,4)}, v{vL16}, {sr(sWS)}, s{d} offen sc1",
            f"buffer_store_dwordx4 {vr(p+4,4)}, v{vL16}, {sr(sWS)}, s{d} offen offset:1024 sc1"]

def gen_gemm(a):
    vXA, vWA = 10, 14
    accQ, accK, accV = 32, 48, 64
    a(f"""
    v_and_b32 v26, 31, v0
    v_lshrrev_b32 v27, 5, v0
    v_lshrrev_b32 v28, 1, v26
    v_and_b32 v28, 7, v28
    v_xor_b32 v28, v28, v27
    v_lshlrev_b32 v28, 4, v28
    s_mul_i32 s{T0}, s{sC}, {3*SLOT}
    s_and_b32 s3, s{sW}, 1
    s_lshl_b32 s3, s3, 12
    s_add_u32 s3, s3, s{T0}
    v_lshlrev_b32 v29, 7, v26
    v_add_u32 v29, s3, v29
    v_add_u32 v{vXA}, v29, v28
    v_xor_b32 v{vXA+1}, 32, v{vXA}
    v_xor_b32 v{vXA+2}, 64, v{vXA}
    v_xor_b32 v{vXA+3}, 96, v{vXA}
    s_lshr_b32 s{T0+1}, s{sR}, 1
    v_lshrrev_b32 v28, 2, v0
    v_and_b32 v28, 3, v28
    v_lshlrev_b32 v29, 3, v27
    v_add_u32 v29, v29, v28
    v_lshlrev_b32 v29, 7, v29
    v_lshrrev_b32 v28, 1, v28
    v_xor_b32 v28, s{T0+1}, v28
    v_lshlrev_b32 v28, 6, v28
    v_add_u32 v29, v29, v28
    v_and_b32 v28, 16, v0
    v_lshlrev_b32 v28, 1, v28
    v_add_u32 v29, v29, v28
    v_and_b32 v28, 3, v0
    v_lshlrev_b32 v28, 3, v28
    v_add_u32 v29, v29, v28
    v_add_u32 v{vWA}, s{T0}, v29
    """)
    for i in range(48):
        a(f"v_mov_b32 v{accQ+i}, 0")
    roles(a)
    a(f"""
    s_mov_b32 s{T0+6}, {hex(f32bits(CSCALE))}
    s_cmp_lg_u32 s{sC}, 0
    s_cbranch_scc1 C_await
    v_mul_u32_u24 v{vVs}, {7168-512}, v27
    v_add_u32 v{vVs}, v{vVs}, v{vL16}
    """)
    p1_role(a, 0)
    store_offsets(a, BR, T0 + 1)
    a("s_waitcnt lgkmcnt(0)")
    srd(a, sWS, 20, WS_USED)
    a(f"""
    v_mov_b32 v4, {EPOCH}
    buffer_load_dword v4, v4, {sr(sWS)}, 0 offen sc1
    s_branch C_b0
    C_await:
    """)
    if not OPT["prefetch"]: a("s_waitcnt lgkmcnt(0)")
    srd(a, sWS, 20, WS_USED)
    srd(a, sOUT, 16, OUT_BYTES)
    attn_setup(a, 0)
    a(f"""
    s_mul_i32 s3, s{sR}, 6144
    s_add_u32 s3, s3, {HND_L}
    v_add_u32 v3, s3, v{vL16}
    """)
    a(f"""
    s_lshl_b32 s3, s{sR}, 12
    s_add_u32 s3, s3, {4*SLOT + 16384}
    v_add_u32 v9, s3, v{vL16}
    v_mov_b32 v4, 0x3f803f80
    v_mov_b32 v5, 0x3f803f80
    v_mov_b32 v6, 0x3f803f80
    v_mov_b32 v7, 0x3f803f80
    s_not_b64 exec, {sr(sVM,2)}
    ds_write_b128 v9, v[4:7]
    ds_write_b128 v9, v[4:7] offset:1024
    ds_write_b128 v9, v[4:7] offset:2048
    ds_write_b128 v9, v[4:7] offset:3072
    s_mov_b64 exec, -1
    s_cmp_lg_u32 s{sW}, 5
    s_barrier
    s_barrier
    """)
    if OPT["touch"]:
        a(f"s_cbranch_scc1 C_nopf")
        a("s_load_dword s22, s[4:5], 0\n s_load_dword s22, s[6:7], 0")
        for i in range(8):
            a(f"s_mov_b32 s3, {min(i * 0x200000, WS_USED - 4)}\n s_load_dword s22, s[20:21], s3")
        a("s_mov_b32 s3, 0x200000\n s_load_dword s22, s[16:17], 0\n s_load_dword s22, s[16:17], s3\n s_load_dword s22, s[8:9], 0\n s_load_dword s22, s[14:15], 0")
        a("C_nopf:")
    a(f"""
    s_barrier
    s_barrier
    s_barrier
    s_barrier
    s_barrier
    s_waitcnt lgkmcnt(0)
    C_b0:
    s_barrier
    """)
    stamp(a, 2)
    if OPT["prof"]: a("s_waitcnt lgkmcnt(0)")
    F = [80, 96, 112, 128]
    def rlist(ks):
        f = F[ks]
        r = [f"ds_read_b128 {vr(f,4)}, v{vXA+ks}"]
        for p in (1, 2, 0):
            for j in range(2):
                r.append(f"ds_read_b64_tr_b16 {vr(f+4+4*p+2*j,2)}, v{vWA} offset:{8192+p*8192+ks*2048+j*512}")
        return r
    def mlist(ks):
        f = F[ks]
        return [f"{MF32} {vr(accK,16)}, {vr(f+8,4)}, {vr(f,4)}, {vr(accK,16)}",
                f"{MF32} {vr(accV,16)}, {vr(f,4)}, {vr(f+12,4)}, {vr(accV,16)}",
                f"{MF32} {vr(accQ,16)}, {vr(f+4,4)}, {vr(f,4)}, {vr(accQ,16)}"]
    def step(ks, rd):
        m = mlist(ks)
        r = rlist((ks + 2) % 4) if rd else [""] * 7
        a(m[0]); a(r[0]); a(r[1]); a(r[2]); a(m[1]); a(r[3]); a(r[4]); a(m[2]); a(r[5]); a(r[6])
    for l in rlist(0) + rlist(1): a(l)
    a(f"s_mov_b32 s{T0+7}, 7\n C_g:")
    a("s_waitcnt lgkmcnt(7)"); step(0, True)
    a("s_waitcnt lgkmcnt(7)"); step(1, True)
    for r in range(vXA, vXA + 5):
        a(f"v_add_u32 v{r}, {SLOT}, v{r}\n v_and_b32 v{r}, {4*SLOT-1}, v{r}")
    a(f"""
    s_sub_u32 s{T0+7}, s{T0+7}, 1
    s_cmp_eq_u32 s{T0+7}, 0
    s_cbranch_scc1 C_gx
    s_waitcnt lgkmcnt(0)
    s_barrier
    """)
    step(2, True)
    step(3, True)
    a("s_branch C_g\n C_gx:")
    a("s_waitcnt lgkmcnt(7)"); step(2, False)
    a("s_waitcnt lgkmcnt(0)"); step(3, False)
    stamp(a, 3)
    a("s_nop 10")
    P = 80
    for i in range(8):
        a(f"v_cvt_pk_bf16_f32 v{P+8+i}, v{accK+2*i}, v{accK+2*i+1}")
    for i in range(8):
        a(f"v_cvt_pk_bf16_f32 v{P+16+i}, v{accV+2*i}, v{accV+2*i+1}")
    for i in range(16):
        a(f"v_mul_f32 v{accQ+i}, s{T0+6}, v{accQ+i}")
    for i in range(8):
        a(f"v_cvt_pk_bf16_f32 v{P+i}, v{accQ+2*i}, v{accQ+2*i+1}")
    for g in (8, 12, 0, 4):
        a(f"v_permlane32_swap_b32 v{P+g}, v{P+g+2}\n v_permlane32_swap_b32 v{P+g+1}, v{P+g+3}")
    a(f"s_cmp_eq_u32 s{sC}, 0\n s_cbranch_scc1 L_helper")
    for i in range(6):
        a(f"ds_write_b128 v3, {vr(P+4*i,4)} offset:{i*1024}")
    a(f"s_mov_b32 s{sC}, 0")

vCur, vNxt, vNx2, vQa, vK0, vXw, vXr, vT = 148, 149, 150, 151, 152, 153, 156, 160
def attn_setup(a, kh):
    a(f"""
    s_and_b32 s{sK3}, s{sCG3}, {OPT["krot"]}
    s_xor_b32 s{sK3}, s{sK3}, {kh}
    s_add_u32 s{sWI}, s{sR}, {4*kh}
    s_lshl_b32 s3, s{sQB}, 2
    s_add_u32 s3, s3, s{sR}
    s_mul_i32 s3, s3, {RT}
    s_lshl_b32 s{sOb}, s{sU0}, 9
    s_add_u32 s{sOb}, s{sOb}, s3
    s_add_u32 s{sOb}, s{sOb}, {BR + OU}
    v_add_u32 v{vCur}, {pslot(0) + kh*8192}, v{vL16}
    v_add_u32 v{vNxt}, {pslot(1) + kh*8192}, v{vL16}
    v_add_u32 v{vNx2}, {pslot(2) + kh*8192}, v{vL16}
    v_add_u32 v{vK0}, {pslot(0)}, v{vL16}
    s_lshl_b32 s3, s{sR}, 11
    s_add_u32 s3, s3, {QST_L}
    v_add_u32 v{vQa}, s3, v{vL16}
    s_lshl_b32 s3, s{sR}, 10
    v_add_u32 v{vT}, s3, v{vL16}
    v_add_u32 v{vXw}, {XC1_L + kh*4096}, v{vT}
    v_add_u32 v{vXr}, {XC1_L + (1-kh)*4096}, v{vT}
    v_add_u32 v{vXw+1}, {XC2_L + kh*8192}, v{vT}
    v_add_u32 v{vXr+1}, {XC2_L + (1-kh)*8192}, v{vT}
    v_lshrrev_b32 v{vT}, 2, v{vT}
    v_add_u32 v{vXw+2}, {XC2_L + kh*8192 + 4096}, v{vT}
    v_add_u32 v{vXr+2}, {XC2_L + (1-kh)*8192 + 4096}, v{vT}
    v_lshrrev_b32 v{vT}, 4, v0
    v_lshrrev_b32 v{vT+1}, 2, v0
    v_and_b32 v{vT+1}, 3, v{vT+1}
    v_lshlrev_b32 v{vT+2}, 3, v{vT}
    v_add_u32 v{vT+2}, v{vT+2}, v{vT+1}
    v_lshlrev_b32 v{vT+2}, 7, v{vT+2}
    v_and_b32 v{vT+1}, 2, v{vT+1}
    v_and_b32 v{vT+3}, 1, v{vT}
    v_or_b32 v{vT+1}, v{vT+1}, v{vT+3}
    v_lshlrev_b32 v{vT+1}, 5, v{vT+1}
    v_add_u32 v{vT+2}, v{vT+2}, v{vT+1}
    v_and_b32 v{vT+1}, 3, v0
    v_lshlrev_b32 v{vT+1}, 3, v{vT+1}
    v_add_u32 v{vT+2}, v{vT+2}, v{vT+1}
    s_mul_i32 s3, s{sK3}, {224*128}
    v_add_u32 v{vT+4}, s3, v{vT+2}
    v_xor_b32 v{vT+5}, 32, v{vT+4}
    v_xor_b32 v{vT+6}, 64, v{vT+4}
    v_xor_b32 v{vT+7}, 96, v{vT+4}
    s_lshl_b32 s{sOf}, s{sRBK}, 1
    s_lshr_b32 s3, s{sR}, 1
    s_add_u32 s{sOf}, s{sOf}, s3
    s_mul_i32 s{sOf}, s{sOf}, {RT}
    s_and_b32 s3, s{sR}, 1
    s_lshl_b32 s3, s3, 8
    s_add_u32 s{sOf}, s{sOf}, s3
    s_mul_i32 s3, s{sK3}, {28*512}
    s_add_u32 s{sOf}, s{sOf}, s3
    s_add_u32 s{sOf}, s{sOf}, {BR + OU}
    v_and_b32 v{vT+1}, 15, v0
    v_lshlrev_b32 v{vT+2}, 9, v{vT}
    v_lshlrev_b32 v159, 4, v{vT+1}
    v_add_u32 v{vT+2}, v{vT+2}, v159
    s_lshl_b32 s3, s{sRBK}, 2
    s_add_u32 s3, s3, s{sR}
    s_lshl_b32 s3, s3, 4
    v_add_u32 v{vT+1}, s3, v{vT+1}
    v_mul_u32_u24 v{vT+1}, 1792, v{vT+1}
    v_lshlrev_b32 v{vT+3}, 5, v{vT+3}
    v_add_u32 v{vT+1}, v{vT+1}, v{vT+3}
    v_lshrrev_b32 v{vT+3}, 1, v{vT}
    v_lshlrev_b32 v{vT+3}, 4, v{vT+3}
    v_add_u32 v{vT+1}, v{vT+1}, v{vT+3}
    s_lshl_b32 s{sOo}, s{sCG3}, 7
    s_lshl_b32 s3, s{sK3}, 6
    s_add_u32 s{sOo}, s{sOo}, s3
    s_add_u32 s{sOo}, s{sOo}, 896
    s_lshl_b32 s3, s{sWI}, 11
    s_add_u32 s3, s3, {XFI_L}
    v_add_u32 v{vT}, s3, v{vL16}
    v_xor_b32 v{vT+3}, {4*2048}, v{vT}
    """)

def gen_attn(a):
    Q, NM, S, P, O, K, V, T = 4, 12, [28, 44], 60, 104, 120, 128, 140
    WF, OF, ACC = 4, 116, 144
    sS = T0 + 7
    a("C_attn:")
    stamp(a, 5)
    for i in range(16):
        a(f"v_mov_b32 v{O+i}, 0")
    for i in range(4):
        a(f"v_mov_b32 v{P+4+i}, 0\n v_mov_b32 v{V+4+i}, 0")
    a("s_waitcnt lgkmcnt(0)\n s_barrier")
    stamp(a, 6)
    if OPT["prof"]: a("s_waitcnt lgkmcnt(0)")
    a(f"""
    ds_read_b128 {vr(Q,4)}, v{vQa}
    ds_read_b128 {vr(Q+4,4)}, v{vQa} offset:1024
    ds_read_b128 {vr(NM,4)}, v{vK0}
    ds_read_b128 {vr(NM+4,4)}, v{vK0} offset:1024
    ds_read_b128 {vr(NM+8,4)}, v{vCur}
    ds_read_b128 {vr(NM+12,4)}, v{vCur} offset:1024
    ds_read_b128 {vr(K,4)}, v{vCur} offset:2048
    ds_read_b128 {vr(K+4,4)}, v{vCur} offset:3072
    ds_read_b128 {vr(V,4)}, v{vCur} offset:16384
    s_waitcnt lgkmcnt(7)
    """)
    zero_foreign(a, Q)
    a(f"""
    s_waitcnt lgkmcnt(5)
    {MF32} {vr(S[1],16)}, {vr(NM,4)}, {vr(Q,4)}, 0
    {MF32} {vr(S[1],16)}, {vr(NM+4,4)}, {vr(Q+4,4)}, {vr(S[1],16)}
    s_waitcnt lgkmcnt(3)
    {MF32} {vr(S[0],16)}, {vr(NM+8,4)}, {vr(Q,4)}, 0
    {MF32} {vr(S[0],16)}, {vr(NM+12,4)}, {vr(Q+4,4)}, {vr(S[0],16)}
    s_mov_b32 s{sS}, 0
    s_mov_b32 s3, {hex(f32bits(-DELTA))}
    s_nop 7
    """)
    s1 = S[1]
    a(f"v_max3_f32 v{T}, v{s1}, v{s1+1}, v{s1+2}")
    a(f"v_max3_f32 v{T+1}, v{s1+3}, v{s1+4}, v{s1+5}")
    for i in range(6, 14, 4):
        a(f"v_max3_f32 v{T}, v{T}, v{s1+i}, v{s1+i+1}")
        a(f"v_max3_f32 v{T+1}, v{T+1}, v{s1+i+2}, v{s1+i+3}")
    a(f"""
    v_max3_f32 v{T}, v{T}, v{s1+14}, v{s1+15}
    v_max_f32 v{T}, v{T}, v{T+1}
    v_mov_b32 v{T+1}, v{T}
    v_mov_b32 v{s1+14}, 0
    v_mov_b32 v{s1+15}, 0
    v_permlane32_swap_b32 v{T}, v{T+1}
    s_nop 1
    v_max_f32 v{T}, v{T}, v{T+1}
    v_sub_f32 v{NM}, s3, v{T}
    """)
    for i in range(16):
        a(f"v_add_f32 v{S[0]+i}, v{S[0]+i}, v{NM}")
    for i in range(1, 16):
        a(f"v_mov_b32 v{NM+i}, v{NM}")
    a("s_waitcnt lgkmcnt(0)\n s_setprio 1")
    a(".p2align 3")
    a("C_loop:")
    for i in range(4):
        cs, ns = S[i % 2], S[(i + 1) % 2]
        def ex(j): return f"v_exp_f32 v{cs+j}, v{cs+j}"
        def cv(j): return f"v_cvt_pk_bf16_f32 v{P+j}, v{cs+2*j}, v{cs+2*j+1}"
        kreg, ko = (vCur, (i + 2) * 2048) if i < 2 else (vNxt, (i - 2) * 2048)
        vreg, vo = (vCur, (i + 1) * 2048) if i < 3 else (vNxt, 0)
        a(ex(0)); a(ex(1))
        a(f"v_cvt_pk_bf16_f32 v{P+7}, v{ns+14}, v{ns+15}")
        a(ex(2))
        if i == 2:
            a("s_barrier\n s_setprio 3")
        a("s_waitcnt lgkmcnt(2)")
        a(f"{MF32} {vr(ns,16)}, {vr(K,4)}, {vr(Q,4)}, {vr(NM,16)}")
        a(f"ds_read_b128 {vr(K,4)}, v{kreg} offset:{ko}")
        a(cv(0)); a(ex(3)); a(ex(4)); a(cv(1)); a(ex(5)); a(ex(6))
        a(f"{MF32} {vr(O,16)}, {vr(V+4,4)}, {vr(P+4,4)}, {vr(O,16)}")
        a(f"ds_read_b128 {vr(V+4,4)}, v{vCur} offset:{16384 + i*2048 + 1024}")
        a(cv(2)); a(ex(7)); a(ex(8)); a(cv(3)); a(ex(9)); a("s_waitcnt lgkmcnt(2)")
        a(f"{MF32} {vr(ns,16)}, {vr(K+4,4)}, {vr(Q+4,4)}, {vr(ns,16)}")
        a(f"ds_read_b128 {vr(K+4,4)}, v{kreg} offset:{ko+1024}")
        a(ex(10)); a(ex(11)); a(cv(4)); a(ex(12)); a(ex(13)); a(cv(5))
        a(f"{MF32} {vr(O,16)}, {vr(V,4)}, {vr(P,4)}, {vr(O,16)}")
        a(f"ds_read_b128 {vr(V,4)}, v{vreg} offset:{16384 + vo}")
        a(ex(14)); a(ex(15)); a(cv(6))
        if i == 0: a("s_setprio 0\n s_add_u32 s{0}, s{0}, 1".format(sS))
        if i == 2: a("s_setprio 2\n s_nop 0")
        if i == 3:
            a(f"""
            v_swap_b32 v{vCur}, v{vNxt}
            s_setprio 1
            v_swap_b32 v{vNxt}, v{vNx2}
            s_cmp_lt_u32 s{sS}, 8
            s_cbranch_scc1 C_loop
            """)
    a(f"""
    v_cvt_pk_bf16_f32 v{P+7}, v{S[1]+14}, v{S[1]+15}
    s_waitcnt lgkmcnt(0)
    s_cmp_eq_u32 s{sODD}, 0
    {MF32} {vr(O,16)}, {vr(V+4,4)}, {vr(P+4,4)}, {vr(O,16)}
    """)
    stamp(a, 7)
    X = S[0]
    a(f"""
    s_nop 10
    s_cbranch_scc1 C_le
    v_mov_b32 v{T+2}, v{O}
    s_branch C_lx
    C_le:
    v_mov_b32 v{T+2}, v{O+12}
    C_lx:
    s_cmp_eq_u32 s{sC}, 0
    s_cbranch_scc1 C_x0
    ds_write_b128 v{vXw}, {vr(O,4)}
    ds_write_b128 v{vXw+1}, {vr(O+4,4)}
    ds_write_b32 v{vXw+2}, v{T+2}
    s_waitcnt lgkmcnt(0)
    s_barrier
    """)
    for i in range(8):
        a(f"v_mov_b32 v{O+i}, v{O+8+i}")
    a(f"""
    s_branch C_x1
    C_x0:
    ds_write_b128 v{vXw}, {vr(O+8,4)}
    ds_write_b128 v{vXw+1}, {vr(O+12,4)}
    ds_write_b32 v{vXw+2}, v{T+2}
    s_waitcnt lgkmcnt(0)
    s_barrier
    C_x1:
    ds_read_b32 v{X+8}, v{vXr+2}
    ds_read_b128 {vr(X,4)}, v{vXr}
    ds_read_b128 {vr(X+4,4)}, v{vXr+1}
    s_waitcnt lgkmcnt(2)
    v_add_f32 v{T+2}, v{T+2}, v{X+8}
    """)
    bcast_l(a, T + 2, T + 2, T + 4)
    a("s_waitcnt lgkmcnt(0)")
    a(f"v_mul_f32 v{T}, 0, v{T+4}")
    for i in range(8):
        a(f"v_add_f32 v{O+i}, v{O+i}, v{X+i}")
    for i in range(8):
        a(f"v_fma_f32 v{T}, v{O+i}, 0, v{T}")
    a(f"""
    v_cmp_u_f32 vcc, v{T}, v{T}
    s_cmp_lg_u64 vcc, 0
    s_cbranch_scc1 C_slow
    C_fin:
    """)
    finalize(a, O, 8, T + 4)
    a(f"s_cmp_eq_u32 s{sC}, 0\n s_cbranch_scc0 C_st1")
    store_units(a, O, True, sOb, 0)
    a("s_branch C_st2\n C_st1:")
    store_units(a, O, False, sOb, 1024)
    a("C_st2:")
    stamp(a, 8)
    a(f"s_cmp_ge_u32 s{sJ}, 28\n s_cbranch_scc1 C_exit\n s_barrier")
    def wrd(s0, s1):
        for s in range(s0, s1):
            for t in range(4):
                for j in range(2):
                    a(f"ds_read_b64_tr_b16 {vr(WF+16*s+4*t+2*j,2)}, v{vT+4+t} offset:{(32*s+4*j)*128}")
    wrd(0, 6)
    a("s_waitcnt vmcnt(0)")
    wrd(6, 7)
    a(f"s_mov_b32 s{T0+11}, {SPIN}\n s_mov_b32 s{T0+5}, 0\n C_pp:\n s_mov_b32 s3, s{sOf}")
    for s in range(7):
        if s and s % 2 == 0:
            a(f"s_add_u32 s3, s3, 4096")
        a(f"buffer_load_dwordx4 {vr(OF+4*s,4)}, v{vT+2}, {sr(sWS)}, s3 offen offset:{(s%2)*2048} sc1")
    a("s_waitcnt lgkmcnt(0)")
    for s in range(7):
        a(f"s_waitcnt vmcnt({6-s})")
        f = OF + 4 * s
        for t in range(4):
            cin = "0" if s == 0 else vr(ACC + 4 * t, 4)
            a(f"{MF16} {vr(ACC+4*t,4)}, {vr(WF+16*s+4*t,4)}, {vr(f,4)}, {cin}")
            if t == 0: a(f"v_max3_u32 v3, v{f}, v{f+1}, v{f+2 if s == 0 else 3}")
            if t == 1: a(f"v_max3_u32 v3, v3, v{f+2}, v{f+3}")
    a(f"""
    v_cmp_eq_u32 vcc, -1, v3
    s_add_u32 s{T0+5}, s{T0+5}, 1
    s_sub_u32 s{T0+11}, s{T0+11}, 1
    s_cbranch_scc1 C_ppx
    s_cmp_lg_u64 vcc, 0
    s_cbranch_scc1 C_pp
    C_ppx:
    """)
    stamp(a, 9)
    if OPT["prof"]: a(f"v_writelane_b32 v1, s{T0+5}, 63")
    a(f"""
    s_cmp_eq_u32 s{sK3}, 0
    s_nop 5
    s_cbranch_scc1 C_y0
    ds_write_b128 v{vT}, {vr(ACC,4)}
    ds_write_b128 v{vT}, {vr(ACC+4,4)} offset:1024
    s_waitcnt lgkmcnt(0)
    s_barrier
    """)
    for i in range(8):
        a(f"v_mov_b32 v{ACC+i}, v{ACC+8+i}")
    a(f"""
    s_branch C_y1
    C_y0:
    ds_write_b128 v{vT}, {vr(ACC+8,4)}
    ds_write_b128 v{vT}, {vr(ACC+12,4)} offset:1024
    s_waitcnt lgkmcnt(0)
    s_barrier
    C_y1:
    ds_read_b128 {vr(OF,4)}, v{vT+3}
    ds_read_b128 {vr(OF+4,4)}, v{vT+3} offset:1024
    s_waitcnt lgkmcnt(0)
    """)
    for i in range(8):
        a(f"v_add_f32 v{ACC+i}, v{ACC+i}, v{OF+i}")
    for i in range(4):
        a(f"v_cvt_pk_bf16_f32 v{ACC+i}, v{ACC+2*i}, v{ACC+2*i+1}")
    osc = ("", " sc1", " nt", " sc0 sc1")[OPT["outsc"]]
    a(f"""
    s_nop 1
    v_permlane16_swap_b32 v{ACC}, v{ACC+2}
    v_permlane16_swap_b32 v{ACC+1}, v{ACC+3}
    buffer_store_dwordx4 {vr(ACC,4)}, v{vT+1}, {sr(sOUT)}, s{sOo} offen{osc}
    C_exit:
    """)
    if OPT["padrt"] or OPT["padcy"]:
        if OPT["padx"] >= 0: a(f"s_cmp_lg_u32 s{sXCD}, {OPT['padx']}\n s_cbranch_scc1 C_padx")
        a(f"""
        C_pad:
        {'s_memrealtime' if OPT['padrt'] else 's_memtime'} s[98:99]
        s_waitcnt lgkmcnt(0)
        s_sub_u32 s98, s98, s96
        s_cmp_lt_u32 s98, {OPT['padrt'] or OPT['padcy']}
        s_cbranch_scc1 C_pad
        C_padx:
        """)
    dump(a)
    a("s_endpgm")
    sT, sKo, sVo = T0, T0 + 1, T0 + 2
    def kload():
        a(f"""
        s_mul_i32 s{sKo}, s{sT}, {RT}
        s_lshl_b32 s3, s{sU0}, 7
        s_add_u32 s{sVo}, s{sKo}, s3
        s_add_u32 s{sVo}, s{sVo}, {BR + VU}
        s_lshl_b32 s3, s{sU0}, 9
        s_add_u32 s{sKo}, s{sKo}, s3
        s_add_u32 s{sKo}, s{sKo}, {BR + KU}
        buffer_load_dwordx4 {vr(K,4)}, v{vL16}, {sr(sWS)}, s{sKo} offen sc1
        buffer_load_dwordx4 {vr(K+4,4)}, v{vL16}, {sr(sWS)}, s{sKo} offen offset:1024 sc1
        """)
    def qk():
        a(f"""
        s_waitcnt vmcnt(0)
        {MF32} {vr(S[0],16)}, {vr(K,4)}, {vr(Q,4)}, 0
        {MF32} {vr(S[0],16)}, {vr(K+4,4)}, {vr(Q+4,4)}, {vr(S[0],16)}
        s_nop 15
        """)
    a(f"C_slow:\n v_mov_b32 v{T}, 0xff800000\n s_mov_b32 s{sT}, 0\n C_s1:")
    kload(); qk()
    for i in range(0, 16, 2):
        a(f"v_max3_f32 v{T}, v{T}, v{S[0]+i}, v{S[0]+i+1}")
    a(f"""
    s_add_u32 s{sT}, s{sT}, 1
    s_cmp_lt_u32 s{sT}, 64
    s_cbranch_scc1 C_s1
    v_mov_b32 v{T+1}, v{T}
    s_nop 1
    v_permlane32_swap_b32 v{T}, v{T+1}
    s_nop 1
    v_max_f32 v{T}, v{T}, v{T+1}
    v_lshrrev_b32 v{T+1}, 5, v0
    v_mul_u32_u24 v{T+1}, {7168-512}, v{T+1}
    v_add_u32 v{T+1}, v{T+1}, v{vL16}
    """)
    for i in range(16):
        a(f"v_mov_b32 v{O+i}, 0")
    for i in range(8):
        a(f"v_mov_b32 v{V+i}, 0x3f803f80")
    a(f"s_mov_b32 s{sT}, 0\n C_s2:")
    kload()
    a(f"""
    s_add_u32 s3, s{sVo}, 14336
    s_mov_b64 exec, {sr(sVM,2)}
    buffer_load_dwordx4 {vr(V,4)}, v{T+1}, {sr(sWS)}, s{sVo} offen sc1
    buffer_load_dwordx4 {vr(V+4,4)}, v{T+1}, {sr(sWS)}, s3 offen sc1
    s_mov_b64 exec, -1
    """)
    qk()
    for i in range(16):
        a(f"v_sub_f32 v{S[0]+i}, v{S[0]+i}, v{T}")
    for i in range(16):
        a(f"v_exp_f32 v{S[0]+i}, v{S[0]+i}")
    a("s_nop 0")
    for i in range(8):
        a(f"v_cvt_pk_bf16_f32 v{P+i}, v{S[0]+2*i}, v{S[0]+2*i+1}")
    a(f"""
    s_nop 1
    {MF32} {vr(O,16)}, {vr(V,4)}, {vr(P,4)}, {vr(O,16)}
    {MF32} {vr(O,16)}, {vr(V+4,4)}, {vr(P+4,4)}, {vr(O,16)}
    s_add_u32 s{sT}, s{sT}, 1
    s_cmp_lt_u32 s{sT}, 64
    s_nop 15
    s_cbranch_scc1 C_s2
    """)
    bcast_l(a, O + 12, O, T + 4)
    a(f"s_cmp_eq_u32 s{sC}, 0\n s_cbranch_scc1 C_fin")
    for i in range(8):
        a(f"v_mov_b32 v{O+i}, v{O+8+i}")
    a("s_branch C_fin")

def gen_helper(a):
    a.q = []
    AQ, AKp, AKc, AVp, AVc, O, HP, T, SP, SC, PM = 28, 36, 44, 52, 56, 64, 80, 104, 108, 124, 140
    sRT = sHRT
    nb = [0]
    def bar():
        k = nb[0]; nb[0] += 1
        if OPT["hst"]: lstamp(a, k)
        a("s_barrier")
        if OPT["hst"]: lstamp(a, 16 + k)
    regs = [SP + 8 + i for i in range(8)] + [SC + i for i in range(16)]
    def masks():
        a(f"s_mov_b32 s3, 0xf149f2ca\n s_mov_b32 s{T0}, 0xffff")
        for r in range(8):
            a(f"v_mov_b32 v{SP+r}, 0")
        for i in range(12):
            lo, hi = regs[2 * i], regs[2 * i + 1]
            pos = 16 + 8 * (i // 2) + 2 * (i % 2)
            src = vM0 if pos < 32 else vM1
            a(f"""
            v_bfe_i32 v{lo}, v{src}, {pos % 32}, 1
            v_bfe_i32 v{hi}, v{src}, {pos % 32 + 1}, 1
            v_bfi_b32 v{PM+i}, s{T0}, v{lo}, v{hi}
            v_and_b32 v{lo}, s3, v{lo}
            v_and_b32 v{hi}, s3, v{hi}
            v_not_b32 v{PM+i}, v{PM+i}
            """)
    a("s_setprio 3")
    kd, pp = OPT["kd"], OPT["pp"]
    for b in range(7, 14):
        if b == 7:
            for l in qkv_stores(HP, T0 + 1)[:4]: a(l)
        if b == 8:
            for l in qkv_stores(HP, T0 + 1)[4:]: a(l)
            a(f"""
            s_lshl_b32 s3, s{sCG}, 5
            s_add_u32 s3, s3, s{sRB}
            s_lshl_b32 s3, s3, {FS}
            s_add_u32 s13, s3, {FB}
            """)
        if b == 9: helper_setup(a)
        if b == 10: helper_setup_b(a)
        if b == 11: masks()
        if b == 12:
            p1_role(a, 1)
            store_offsets(a, 0, 14)
            a(f"""
            s_mul_i32 s{T0+10}, s{sRT}, {RT}
            s_add_u32 s{T0+10}, s{T0+10}, s{sKb}
            """)
        if b == kd:
            a("s_waitcnt vmcnt(0)")
            stamp(a, 4)
            make_tag(a, 4)
        a("s_barrier")
        if b == kd:
            a(f"s_cmp_lg_u32 s{sW}, 0\n s_cbranch_scc1 H_nofl")
            set_flag(a, 13, T)
            a("H_nofl:")
        if b == pp:
            a(f"buffer_load_dwordx2 {vr(T+2,2)}, v{vFl}, {sr(sWS)}, 0 offen sc1")
    stamp(a, 5)
    a(f"""
    s_waitcnt vmcnt(0)
    v_cmp_ne_u64 vcc, {sr(sTAG,2)}, {vr(T+2,2)}
    s_cmp_eq_u64 vcc, 0
    s_cbranch_scc1 H_ok
    """)
    poll(a, vFl, T + 2)
    a("H_ok:")
    stamp(a, 6)
    a.q = []
    def kv(s):
        base = pslot(s)
        a(f"""
        s_mul_i32 s{T0}, s{sTile}, {RT}
        s_add_u32 m0, s{sM}, {base}
        s_add_u32 s{T0+1}, s{T0}, s{sKb}
        s_add_u32 s{T0+1}, s{T0+1}, {BR + KU}
        """)
        a.vm(f"buffer_load_dwordx4 v{vL16}, {sr(sWS)}, s{T0+1} offen sc1 lds", f"kv{s}")
        a(f"s_add_u32 s{T0+2}, s{T0+1}, {RT - 2048}")
        a.vm(f"buffer_load_dwordx4 v{vL16}, {sr(sWS)}, s{T0+1} offen offset:1024 sc1 lds", f"kv{s}")
        a(f"s_add_u32 s{T0}, s{T0}, s{sVb}")
        a.vm(f"buffer_load_dwordx4 v{vL16}, {sr(sWS)}, s{T0+2} offen offset:2048 sc1 lds", f"kv{s}")
        a(f"s_add_u32 s{T0}, s{T0}, {BR + VU}")
        a.vm(f"buffer_load_dwordx4 v{vL16}, {sr(sWS)}, s{T0+2} offen offset:3072 sc1 lds", f"kv{s}")
        a(f"s_add_u32 m0, s{sM}, {base + 16384}\n s_mov_b64 exec, {sr(sVM,2)}")
        for i in range(4):
            a.vm(f"buffer_load_dwordx4 v{vVs}, {sr(sWS)}, s{T0} offen offset:{i*1024} sc1 lds", f"kv{s}")
            if i < 3: a(f"s_add_u32 s{T0}, s{T0}, {14336 - 1024}")
        a(f"""
        s_mov_b64 exec, -1
        s_add_u32 s{sTile}, s{sTile}, 8
        s_and_b32 s{sTile}, s{sTile}, 63
        """)
    def wo(srdn, lbase, i0, i1, tag):
        a(f"s_lshr_b32 s{T0+1}, s{sM}, 2")
        for i in range(i0, i1):
            a(f"s_add_u32 m0, s{T0+1}, {lbase + (i-i0)*4096}\n s_mov_b32 s{T0}, {i*32*896}")
            a.vm(f"buffer_load_dwordx4 v{vWo}, {sr(srdn)}, s{T0} offen lds", tag)
    a(f"""
    s_lshr_b32 s3, s{sM}, 1
    s_add_u32 m0, s3, {QST_L}
    s_add_u32 s3, s{T0+10}, {BR + QU}
    """)
    a.vm(f"buffer_load_dwordx4 v{vL16}, {sr(sWS)}, s3 offen sc1 lds", "q")
    a.vm(f"buffer_load_dwordx4 v{vL16}, {sr(sWS)}, s3 offen offset:1024 sc1 lds", "q")
    a(f"""
    s_mul_i32 s3, s{sR}, 6144
    s_add_u32 s3, s3, {HND_L}
    v_add_u32 v{T}, s3, v{vL16}
    """)
    kv(0)
    if OPT["kv1"]: kv(1)
    a.wait("kv0")
    a("s_barrier")
    stamp(a, 7)
    if OPT["prof"]: a("s_waitcnt lgkmcnt(0)")
    for i in range(6):
        a(f"ds_read_b128 {vr(HP+4*i,4)}, v{T} offset:{i*1024}")
    def pads(off):
        a(f"s_not_b64 exec, {sr(sVM,2)}")
        for i in range(4):
            a(f"ds_write_b128 v{vPad}, {vr(ONES,4)} offset:{off + i*1024}")
        a("s_mov_b64 exec, -1")
    pads(SLOT)
    if not OPT["kv1"]: kv(1)
    a("s_waitcnt lgkmcnt(0)")
    st = qkv_stores(HP, 14)
    n0 = OPT["sa0"]
    for l in st[:n0]: a.vm(l, "sa")
    pf = []
    if OPT["wpf"]:
        a(f"""
        s_lshl_b32 s3, s{sJ}, 2
        s_add_u32 s3, s3, s{sR}
        s_mul_i32 s3, s3, {25*128}
        s_min_u32 s3, s3, {WO_BYTES - 25*128}
        s_add_u32 s4, s{sWoB}, s3
        s_addc_u32 s5, s{sWoB+1}, 0
        s_add_u32 s6, s{sWoA}, s3
        s_addc_u32 s7, s{sWoA+1}, 0
        """)
        pf = [f"s_load_dword s19, s[{b}:{b+1}], {i*128}" for b in (4, 6) for i in range(25)]
    def pfb(n):
        for _ in range(n):
            if pf: a(pf.pop(0))
    a.wait("kv1"); bar(); kv(2)
    pads(0)
    a("s_waitcnt lgkmcnt(0)")
    for l in st[n0:]: a.vm(l, "sa")
    a(f"""
    s_lshl_b32 s18, s18, {FS}
    s_add_u32 s18, s18, {FA}
    v_mov_b32 v{O}, -1
    v_mov_b32 v{O+1}, -1
    v_mov_b32 v{O+2}, -1
    v_mov_b32 v{O+3}, -1
    s_add_u32 s13, s{T0+10}, {BR + OU}
    """)
    pfb(13)
    a.wait("kv2"); bar(); kv(3)
    a.wait("sa")
    set_flag(a, 18, T)
    store_units(a, O, True, 13, 0)
    store_units(a, O, False, 13, 1024)
    a.q += ["po"] * 3
    pfb(13)
    a.wait("kv3"); bar(); kv(4)
    pfb(12)
    poll(a, vFa, T)
    a(f"""
    s_mul_i32 s{T0}, s{sRT}, {RT}
    s_cmp_eq_u32 s{sRT}, 0
    s_cselect_b32 s3, 0, {RT}
    s_sub_u32 s{T0+1}, s{T0}, s3
    s_add_u32 s{T0+2}, s{T0+10}, {KU}
    s_add_u32 s{T0+3}, s{T0+1}, s{sKb}
    s_add_u32 s{T0+3}, s{T0+3}, {KU}
    """)
    for (r, so) in ((AQ, T0 + 10), (AKc, T0 + 2), (AKp, T0 + 3)):
        a.vm(f"buffer_load_dwordx4 {vr(r,4)}, v{vL16}, {sr(sWS)}, s{so} offen sc1", "loc")
        a.vm(f"buffer_load_dwordx4 {vr(r+4,4)}, v{vL16}, {sr(sWS)}, s{so} offen offset:1024 sc1", "loc")
    a(f"""
    s_add_u32 s{T0}, s{T0}, s{sVb}
    s_add_u32 s{T0}, s{T0}, {VU}
    s_add_u32 s{T0+2}, s{T0}, 14336
    s_add_u32 s{T0+1}, s{T0+1}, s{sVb}
    s_add_u32 s{T0+1}, s{T0+1}, {VU + 14336}
    """)
    a.vm(f"buffer_load_dwordx4 {vr(AVc,4)}, v{vVs}, {sr(sWS)}, s{T0} offen sc1", "loc")
    a.vm(f"buffer_load_dwordx4 {vr(AVc+4,4)}, v{vVs}, {sr(sWS)}, s{T0+2} offen sc1", "loc")
    a.vm(f"buffer_load_dwordx4 {vr(AVp,4)}, v{vVs}, {sr(sWS)}, s{T0+1} offen sc1", "loc")
    bar(); kv(5)
    pfb(12)
    a.wait("loc")
    zero_foreign(a, AQ)
    a(f"""
    s_nop 0
    {MF32} {vr(SP,16)}, {vr(AKp,4)}, {vr(AQ,4)}, {vr(SP,16)}
    {MF32} {vr(SC,16)}, {vr(AKc,4)}, {vr(AQ,4)}, {vr(SC,16)}
    {MF32} {vr(SP,16)}, {vr(AKp+4,4)}, {vr(AQ+4,4)}, {vr(SP,16)}
    {MF32} {vr(SC,16)}, {vr(AKc+4,4)}, {vr(AQ+4,4)}, {vr(SC,16)}
    s_nop 11
    """)
    G = HP
    for g in range(4):
        e = [regs[4 * q + 2 * (g % 2) + k] for q in range(g // 2, 6, 2) for k in range(2)]
        a(f"v_max3_f32 v{G+g}, v{e[0]}, v{e[1]}, v{e[2]}\n v_max3_f32 v{G+4+g}, v{e[3]}, v{e[4]}, v{e[5]}")
    for g in range(4):
        a(f"v_max_f32 v{G+g}, v{G+g}, v{G+4+g}")
    a(f"""
    v_max3_f32 v{T}, v{G}, v{G+1}, v{G+2}
    v_max_f32 v{T}, v{T}, v{G+3}
    v_mov_b32 v{T+1}, v{T}
    s_nop 1
    v_permlane32_swap_b32 v{T}, v{T+1}
    s_nop 1
    v_max_f32 v{T}, v{T}, v{T+1}
    """)
    for g in range(4): a(f"v_sub_f32 v{G+g}, v{G+g}, v{T}")
    for g in range(4): a(f"v_exp_f32 v{G+g}, v{G+g}")
    a(f"""
    s_nop 0
    v_add_f32 v{T}, v{G}, v{G+1}
    v_add_f32 v{T+1}, v{G+2}, v{G+3}
    v_add_f32 v{T}, v{T}, v{T+1}
    v_mov_b32 v{T+1}, v{T}
    s_nop 1
    v_permlane32_swap_b32 v{T}, v{T+1}
    s_nop 1
    v_add_f32 v{T}, v{T}, v{T+1}
    v_rcp_f32 v{T}, v{T}
    s_nop 0
    """)
    for g in range(4): a(f"v_mul_f32 v{G+g}, v{G+g}, v{T}")
    for g in range(4): a(f"v_cvt_pk_bf16_f32 v{G+g}, v{G+g}, v{G+g}")
    for i in range(12):
        g = 2 * ((i // 2) % 2) + i % 2
        a(f"v_and_b32 v{PM+i}, v{PM+i}, v{G+g}")
    O2 = SP
    a(f"""
    s_nop 1
    {MF32} {vr(O2,16)}, {vr(AVp,4)}, {vr(PM,4)}, 0
    {MF32} {vr(O2,16)}, {vr(AVc,4)}, {vr(PM+4,4)}, {vr(O2,16)}
    {MF32} {vr(O2,16)}, {vr(AVc+4,4)}, {vr(PM+8,4)}, {vr(O2,16)}
    s_add_u32 s{T0+10}, s{T0+10}, {OU}
    s_nop 11
    """)
    for i in range(8):
        a(f"v_cvt_pk_bf16_f32 v{O2+i}, v{O2+2*i}, v{O2+2*i+1}")
    a("s_nop 1")
    for g in (0, 4):
        a(f"v_permlane32_swap_b32 v{O2+g}, v{O2+g+2}\n v_permlane32_swap_b32 v{O2+g+1}, v{O2+g+3}")
    store_units(a, O2, True, T0 + 10, 0)
    store_units(a, O2 + 4, False, T0 + 10, 1024)
    a.q += ["oa"] * 3
    a.wait("kv5"); bar(); kv(6)
    a(f"""
    s_lshl_b32 s3, s{sRT}, 4
    s_add_u32 s3, s3, s{sH}
    s_lshl_b32 s3, s3, {FS}
    s_add_u32 s{T0+10}, s3, {FO}
    """)
    a.wait("oa")
    set_flag(a, T0 + 10, T)
    wo(sWoB, WOB_L, 0, 6, "wob")
    OFA, ACC, WB, T = 28, 84, 116, 152
    a(f"""
    s_and_b32 s3, s{sR}, 1
    s_lshl_b32 s{sRT}, s{sRBK}, 1
    s_add_u32 s{sRT}, s{sRT}, s3
    s_lshr_b32 s{sC}, s{sR}, 1
    s_lshl_b32 s3, s{sRT}, 1
    s_add_u32 s3, s3, s{sC}
    s_lshl_b32 s14, s3, {3+FS}
    s_add_u32 s14, s14, {FO}
    s_mul_i32 s13, s3, {RT//2}
    s_add_u32 s13, s13, {OU}
    s_lshl_b32 s{T0+10}, s{sCG3}, 7
    s_lshl_b32 s3, s{sC}, 6
    s_add_u32 s{T0+10}, s{T0+10}, s3
    s_mul_i32 s3, s{sRT}, {32*1792}
    s_add_u32 s{T0+10}, s{T0+10}, s3
    """)
    a.wait("kv6"); bar(); kv(7)
    wo(sWoB, WOB_L + 6 * 4096, 6, 14, "wob")
    a.vm(f"buffer_load_dwordx2 {vr(T+6,2)}, v{vPo}, {sr(sWS)}, s14 offen sc1", "fl")
    def ofa(i0, i1):
        for i in range(i0, i1):
            if i and i % 4 == 0:
                a(f"s_add_u32 s13, s13, 4096")
            a.vm(f"buffer_load_dwordx4 {vr(OFA+4*i,4)}, v{vL16}, {sr(sWS)}, s13 offen offset:{(i%4)*1024} sc1", f"ofa{i}")
    a.wait("kv7"); bar()
    a.wait_all()
    a(f"""
    v_cmp_ne_u64 vcc, {sr(sTAG,2)}, {vr(T+6,2)}
    s_cmp_eq_u64 vcc, 0
    s_cbranch_scc1 H_ok2
    """)
    poll(a, vPo, T + 6, "s14")
    a(f"""
    H_ok2:
    s_lshl_b32 s3, s{sR}, 2
    s_add_u32 s3, s3, {HFL_L}
    v_mov_b32 v{T}, s3
    v_xor_b32 v{T+1}, 8, v{T}
    v_mov_b32 v{T+2}, 0
    s_mov_b64 exec, 1
    ds_write_b32 v{T}, v{T+2}
    s_mov_b64 exec, -1
    """)
    wo(sWoA, WOA_L[0], 0, 7, "woa")
    ofa(0, 9)
    bar()
    wo(sWoA, WOA_L[1], 7, 14, "woa")
    ofa(9, 14)
    a("s_barrier")
    a(f"s_cmp_ge_u32 s{sJ}, 28\n s_cbranch_scc1 H_idle")
    a.wait("woa", " lgkmcnt(0)")
    stamp(a, 8)
    a("s_barrier")
    if OPT["prof"]: a("s_waitcnt lgkmcnt(0)")
    NB = 4
    def rd(i):
        for c in range(2):
            for j in range(2):
                a(f"ds_read_b64_tr_b16 {vr(WB+8*(i%NB)+4*c+2*j,2)}, v{vWa+c} offset:{(16*i+4*j)*128}")
    for i in range(NB - 1): rd(i)
    for i in range(14):
        a.wait(f"ofa{i}", f" lgkmcnt({4*min(NB-2, 13-i)})")
        for c in range(2):
            cin = "0" if i == 0 else vr(ACC + 16 * c, 16)
            a(f"{MF32} {vr(ACC+16*c,16)}, {vr(WB+8*(i%NB)+4*c,4)}, {vr(OFA+4*i,4)}, {cin}")
        if i + NB - 1 < 14:
            rd(i + NB - 1)
    a(f"""
    s_cmp_eq_u32 s{sC}, 0
    s_nop 10
    s_cbranch_scc1 H_y0
    """)
    for i in range(4):
        a(f"ds_write_b128 v{vXa}, {vr(ACC+4*i,4)} offset:{i*1024}")
    a("s_branch H_y1\n H_y0:")
    for i in range(4):
        a(f"ds_write_b128 v{vXa}, {vr(ACC+16+4*i,4)} offset:{i*1024}")
    a("H_y1:\n s_waitcnt lgkmcnt(0)")
    stamp(a, 9)
    a(f"""
    v_mov_b32 v{T+2}, 1
    s_mov_b64 exec, 1
    ds_write_b32 v{T}, v{T+2}
    s_mov_b32 s23, {SPIN * 8}
    H_pw:
    ds_read_b32 v{T+2}, v{T+1}
    s_waitcnt lgkmcnt(0)
    v_readfirstlane_b32 s3, v{T+2}
    s_sub_u32 s23, s23, 1
    s_cbranch_scc1 H_pwx
    s_cmp_eq_u32 s3, 0
    s_cbranch_scc1 H_pw
    H_pwx:
    s_mov_b64 exec, -1
    s_cmp_eq_u32 s{sC}, 0
    """)
    for i in range(4):
        a(f"ds_read_b128 {vr(OFA+4*i,4)}, v{vXa+1} offset:{i*1024}")
    a(f"s_waitcnt lgkmcnt(0)\n s_cbranch_scc1 H_z0")
    for i in range(16):
        a(f"v_add_f32 v{OFA+i}, v{ACC+16+i}, v{OFA+i}")
    a("s_branch H_z1\n H_z0:")
    for i in range(16):
        a(f"v_add_f32 v{OFA+i}, v{ACC+i}, v{OFA+i}")
    a("H_z1:")
    for i in range(8):
        a(f"v_cvt_pk_bf16_f32 v{OFA+i}, v{OFA+2*i}, v{OFA+2*i+1}")
    a("s_nop 1")
    for g in (0, 4):
        a(f"v_permlane32_swap_b32 v{OFA+g}, v{OFA+g+2}\n v_permlane32_swap_b32 v{OFA+g+1}, v{OFA+g+3}")
    osc = ("", " sc1", " nt", " sc0 sc1")[OPT["outsc"]]
    a(f"buffer_store_dwordx4 {vr(OFA,4)}, v{vOa}, {sr(sOUT)}, s{T0+10} offen{osc}")
    a(f"buffer_store_dwordx4 {vr(OFA+4,4)}, v{vOa}, {sr(sOUT)}, s{T0+10} offen offset:32{osc}")
    a("H_exit:")
    dump(a)
    a("s_endpgm")
    a(f"""
    H_idle:
    s_cmp_lg_u32 s2, 255
    s_cbranch_scc1 H_exit
    s_cmp_lg_u32 s{sW}, 0
    s_cbranch_scc1 H_exit
    v_lshlrev_b32 v{T}, {FS}, v0
    s_mov_b32 s{T0+11}, {SPIN}
    H_ep:
    """)
    for i in range(4):
        a(f"s_mov_b32 s3, {FB + (i*64 << FS)}\n buffer_load_dwordx2 {vr(OFA+2*i,2)}, v{T}, {sr(sWS)}, s3 offen sc1")
    a(f"s_waitcnt vmcnt(0)\n s_mov_b64 s[4:5], 0")
    for i in range(4):
        a(f"v_cmp_ne_u64 vcc, {sr(sTAG,2)}, {vr(OFA+2*i,2)}\n s_or_b64 s[4:5], s[4:5], vcc")
    a(f"""
    s_sub_u32 s{T0+11}, s{T0+11}, 1
    s_cbranch_scc1 H_epx
    s_cmp_lg_u64 s[4:5], 0
    s_cbranch_scc1 H_ep
    H_epx:
    v_mov_b32 v{T}, {EPOCH}
    v_mov_b32 v{T+1}, s{sTAG}
    s_mov_b64 exec, 1
    buffer_store_dword v{T+1}, v{T}, {sr(sWS)}, 0 offen sc1
    s_mov_b64 exec, -1
    s_branch H_exit
    """)

def main(out):
    a = gen()
    K = NAME + "_kernel"
    hdr = f"""; Fused QKV projection -> attention (A: dilated local window, B: full) -> output projection.
; @launch grid=(256,1,1) block=(768,1,1) lds=163840
.amdgcn_target "amdgcn-amd-amdhsa--gfx950"
.text
"""
    d = f""".section .rodata,"a"
.p2align 6
.amdhsa_kernel {K}
  .amdhsa_next_free_vgpr 168
  .amdhsa_next_free_sgpr 102
  .amdhsa_accum_offset 168
  .amdhsa_group_segment_fixed_size 0
  .amdhsa_kernarg_size 72
  .amdhsa_user_sgpr_count 2
  .amdhsa_user_sgpr_kernarg_segment_ptr 1
  .amdhsa_system_sgpr_workgroup_id_x 1
.end_amdhsa_kernel
"""
    open(out, "w").write(hdr + a.text() + d)

if __name__ == "__main__":
    for kv in sys.argv[2:]:
        k, v = kv.split("=")
        assert k in OPT
        OPT[k] = int(v)
    main(sys.argv[1])
```

```python
import sys, math, struct
NAME = "concat_heads__sliding_local_dilated__mha_block__prompt"
OPT = dict(prof=0, rot=7, prefetch=1, sleep=1, rts=0, outsc=0, wpf=1, sa0=3, hst=1, lst=1, krot=1, kd=9, apos=0, kv1=0, lsu=0, pp=11, padrt=0, padcy=0, padx=-1)

class Asm:
    def __init__(self):
        self.lines = []
        self.q = []
        self.uid = 0
    def __call__(self, s):
        for l in s.strip("\n").split("\n"):
            l = l.strip()
            if not l: continue
            self.lines.append(l if l.endswith(":") else "    " + l)
    def vm(self, s, tag):
        self(s); self.q.append(tag)
    def wait(self, tag, extra=""):
        if tag not in self.q:
            if extra: self(f"s_waitcnt{extra}")
            return
        idx = max(i for i, t in enumerate(self.q) if t == tag)
        n = len(self.q) - 1 - idx
        assert n <= 63
        self(f"s_waitcnt vmcnt({n}){extra}")
        self.q = self.q[idx + 1:]
    def wait_all(self, extra=""):
        self(f"s_waitcnt vmcnt(0){extra}"); self.q = []
    def lab(self, p):
        self.uid += 1
        return f"{p}_{self.uid}"
    def text(self):
        return "\n".join(self.lines) + "\n"

def vr(a, n): return f"v[{a}:{a+n-1}]"
def sr(a, n=4): return f"s[{a}:{a+n-1}]"
def f32bits(x): return struct.unpack("<I", struct.pack("<f", x))[0]
MF32 = "v_mfma_f32_32x32x16_bf16"
MF16 = "v_mfma_f32_16x16x32_bf16"

RT = 56 * 512
MAT = 64 * RT
BR = 4 * MAT
QU, KU, VU, OU = 0, MAT, 2 * MAT, 3 * MAT
FS = 7
FB = 2 * BR
FA = FB + (256 << FS)
FO = FA + (1024 << FS)
EPOCH = FO + (1024 << FS)
WS_USED = EPOCH + 0x1000
WS_OOB = 0x40000000
PROF_OFF = 0x1100000
X_BYTES, W_BYTES, WO_BYTES, OUT_BYTES = 2048 * 896, 448 * 2688, 448 * 896, 2048 * 1792
CSCALE = (28 ** -0.5) * math.log2(math.e)
DELTA = 24.0
SPIN = 1 << 18

sWS, sX, sWt, sOUT, sWoA, sWoB = 24, 28, 32, 36, 40, 44
sOo, sOf, sOb, sK3 = 48, 49, 50, 51
sW, sXCD, sJ, sRB, sCG, sACT, sH, sQB, sU0, sODD, sRBK, sCG3 = range(52, 64)
sTAG, sVM = 64, 66
T0 = 68
sR, sC, sWI = T0 + 8, T0 + 9, T0 + 10
NST = 10
def stamp(a, i, rt=False):
    if OPT["prof"]:
        assert i < NST
        a(f"{'s_memrealtime' if rt else 's_memtime'} s[{80+2*i}:{81+2*i}]")
def lstamp(a, idx):
    if OPT["prof"]:
        a(f"s_memtime s[100:101]\n s_mov_b32 m0, {idx}\n s_waitcnt lgkmcnt(0)\n v_writelane_b32 v1, s100, m0")
def dump(a):
    if not OPT["prof"]: return
    a(f"""
    s_mul_i32 s8, s2, 12
    s_add_u32 s8, s8, s{sW}
    s_lshl_b32 s8, s8, 8
    s_add_u32 s8, s8, {PROF_OFF + 0x100000}
    s_mov_b32 s{sWS+2}, 0x2000000
    s_waitcnt lgkmcnt(0) vmcnt(0)
    s_memtime s[4:5]
    s_memrealtime s[6:7]
    v_lshlrev_b32 v3, 2, v0
    buffer_store_dword v1, v3, {sr(sWS)}, s8 offen
    s_mul_i32 s8, s2, 12
    s_add_u32 s8, s8, s{sW}
    s_lshl_b32 s8, s8, 6
    s_add_u32 s8, s8, {PROF_OFF}
    s_waitcnt lgkmcnt(0) vmcnt(0)
    v_mov_b32 v1, 0
    s_mov_b64 exec, 1
    """)
    for i, s in enumerate([80 + 2 * i for i in range(NST)] + [4, 6]):
        a(f"v_mov_b32 v0, s{s}\n buffer_store_dword v0, v1, {sr(sWS)}, s8 offen offset:{4*i}\n s_nop 1")
    a("s_waitcnt vmcnt(0)")

def srd(a, d, lo, nbytes):
    nb = nbytes if isinstance(nbytes, str) else hex(nbytes)
    a(f"s_mov_b32 s{d}, s{lo}\n s_and_b32 s{d+1}, s{lo+1}, 0xffff\n s_mov_b32 s{d+2}, {nb}\n s_mov_b32 s{d+3}, 0x20000")

def poll(a, vaddr, vt, soff="0"):
    L = a.lab("poll")
    a(f"""
    s_mov_b32 s{T0+11}, {SPIN}
    {L}:
    buffer_load_dwordx2 {vr(vt,2)}, v{vaddr}, {sr(sWS)}, {soff} offen sc1
    s_waitcnt vmcnt(0)
    v_cmp_ne_u64 vcc, {sr(sTAG,2)}, {vr(vt,2)}
    s_sub_u32 s{T0+11}, s{T0+11}, 1
    s_cbranch_scc1 {L}_x
    s_cmp_eq_u64 vcc, 0
    s_cbranch_scc1 {L}_x
    s_sleep {OPT['sleep']}
    s_branch {L}
    {L}_x:
    """)
    a.q = []

def set_flag(a, soff, vt):
    a(f"""
    v_mov_b32 v{vt}, s{sTAG}
    v_mov_b32 v{vt+1}, s{sTAG+1}
    s_mov_b64 exec, 1
    """)
    a.vm(f"buffer_store_dwordx2 {vr(vt,2)}, v{vL16}, {sr(sWS)}, s{soff} offen sc1", "flag")
    a("s_mov_b64 exec, -1")

def zero_foreign(a, q):
    L = a.lab("zf")
    a(f"""
    s_cmp_eq_u32 s{sODD}, 0
    s_cbranch_scc1 {L}_e
    s_mov_b32 exec_hi, 0
    v_mov_b32 v{q}, 0
    v_mov_b32 v{q+1}, 0
    s_branch {L}_x
    {L}_e:
    s_mov_b32 exec_lo, 0
    v_mov_b32 v{q+6}, 0
    v_mov_b32 v{q+7}, 0
    {L}_x:
    s_mov_b64 exec, -1
    """)

SLOT = 32768
def pslot(s): return (4, 3, 2)[s % 3] * SLOT
WOA_L = (2 * SLOT, 4 * SLOT)
WOB_L = 0
QST_L = 2 * SLOT
XC1_L = 448 * 128
XC2_L = 3 * SLOT
XHA_L = 3 * SLOT + 16384
XFI_L = 3 * SLOT
HFL_L = 2 * SLOT + 28672
vL16 = 2

def p1_role(a, bi):
    a(f"""
    s_lshr_b32 s{sRB}, s{sXCD}, 1
    s_lshl_b32 s{sRB}, s{sRB}, 3
    s_and_b32 s3, s{sJ}, 7
    s_add_u32 s{sRB}, s{sRB}, s3
    s_xor_b32 s3, s{sXCD}, {bi}
    s_and_b32 s3, s3, 1
    s_lshl_b32 s3, s3, 2
    s_lshr_b32 s{sCG}, s{sJ}, 3
    s_add_u32 s{sCG}, s{sCG}, s3
    s_cmp_lt_u32 s{sCG}, 7
    s_cselect_b32 s{sACT}, 1, 0
    """)

def roles(a):
    a(f"""
    s_lshr_b32 s{sCG3}, s{sJ}, 2
    s_min_u32 s{sCG3}, s{sCG3}, 6
    s_and_b32 s3, s{sJ}, 3
    s_lshl_b32 s{sRBK}, s{sXCD}, 2
    s_add_u32 s{sRBK}, s{sRBK}, s3
    s_lshl_b32 s{sH}, s{sXCD}, 1
    s_lshr_b32 s{sODD}, s{sJ}, 4
    s_add_u32 s{sH}, s{sH}, s{sODD}
    s_and_b32 s{sQB}, s{sJ}, 15
    s_mul_i32 s{sU0}, s{sH}, 7
    s_lshr_b32 s{sU0}, s{sU0}, 1
    s_cmp_eq_u32 s{sODD}, 0
    s_cselect_b32 s{sVM}, 0x0fffffff, 0xfffffff0
    s_mov_b32 s{sVM+1}, s{sVM}
    v_lshlrev_b32 v{vL16}, 4, v0
    """)

def gen():
    a = Asm()
    K = NAME + "_kernel"
    a.lines.append(f".globl {K}\n.p2align 8\n.type {K},@function\n{K}:")
    a(f"""
    s_load_dwordx16 s[4:19], s[0:1], 0
    s_load_dwordx2 s[20:21], s[0:1], 64
    s_cmp_ge_u32 s2, 256
    s_cbranch_scc1 L_end
    """)
    stamp(a, 0, rt=True); stamp(a, 1)
    if OPT["padrt"]: a("s_memrealtime s[96:97]")
    if OPT["padcy"]: a("s_memtime s[96:97]")
    a(f"""
    v_lshrrev_b32 v1, 6, v0
    v_and_b32 v0, 63, v0
    s_and_b32 s{sXCD}, s2, 7
    v_readfirstlane_b32 s{sW}, v1
    s_lshr_b32 s{sJ}, s2, 3
    s_nop 1
    s_and_b32 s{sR}, s{sW}, 3
    s_lshr_b32 s{sC}, s{sW}, 2
    s_cmp_eq_u32 s{sC}, 0
    s_cbranch_scc1 L_gemm
    s_cmp_eq_u32 s{sC}, 2
    s_cbranch_scc1 L_loader
    """)
    if OPT["prefetch"]:
        a(f"""
        s_getpc_b64 s[{T0}:{T0+1}]
        C_pc:
        s_lshl_b32 s3, s{sJ}, 2
        s_add_u32 s3, s3, s{sR}
        s_lshl_b32 s3, s3, 7
        s_add_u32 s3, s3, 512
        s_min_u32 s3, s3, L_code_end-C_pc-4
        s_waitcnt lgkmcnt(0)
        s_load_dword s0, s[{T0}:{T0+1}], s3
        """)
    else:
        a("s_waitcnt lgkmcnt(0)")
    a("s_branch L_gemm\n L_loader:")
    gen_loader(a)
    a("L_gemm:")
    gen_gemm(a)
    gen_publish(a)
    gen_attn(a)
    a("L_helper:")
    gen_helper(a)
    a("L_end:\n s_endpgm")
    a(".p2align 4\n L_ones:\n .long 0x3f803f80, 0x3f803f80, 0x3f803f80, 0x3f803f80")
    a("L_code_end:")
    return a

def make_tag(a, vt):
    a(f"""
    v_readfirstlane_b32 s{sTAG}, v{vt}
    s_nop 3
    s_mul_i32 s{sTAG}, s{sTAG}, 0x9e3779b1
    s_add_u32 s{sTAG}, s{sTAG}, 0x7f4a7c15
    s_not_b32 s{sTAG+1}, s{sTAG}
    """)

def finalize(a, o, n, l):
    a(f"v_rcp_f32 v{l}, v{l}\n s_nop 0")
    for i in range(n):
        a(f"v_mul_f32 v{o+i}, v{l}, v{o+i}")
    for i in range(n // 2):
        a(f"v_cvt_pk_bf16_f32 v{o+i}, v{o+2*i}, v{o+2*i+1}")
    a("s_nop 1")
    for g in range(0, n // 2, 4):
        a(f"v_permlane32_swap_b32 v{o+g}, v{o+g+2}\n v_permlane32_swap_b32 v{o+g+1}, v{o+g+3}")

def bcast_l(a, src_e, src_o, t):
    L = a.lab("bl")
    a(f"""
    s_cmp_eq_u32 s{sODD}, 0
    s_cbranch_scc1 {L}_e
    v_mov_b32 v{t}, v{src_o}
    v_mov_b32 v{t+1}, v{src_o}
    s_nop 1
    v_permlane32_swap_b32 v{t}, v{t+1}
    s_branch {L}_x
    {L}_e:
    v_mov_b32 v{t}, v{src_e}
    v_mov_b32 v{t+1}, v{src_e}
    s_nop 1
    v_permlane32_swap_b32 v{t+1}, v{t}
    {L}_x:
    s_nop 1
    """)

def store_units(a, p, first, soff, off):
    L = a.lab("su")
    full = f"buffer_store_dwordx4 {vr(p,4)}, v{vL16}, {sr(sWS)}, s{soff} offen offset:{off} sc1"
    if first:
        a(f"""
        s_cmp_eq_u32 s{sODD}, 0
        s_cbranch_scc1 {L}_f
        s_mov_b32 exec_hi, 0
        buffer_store_dwordx2 {vr(p+2,2)}, v{vL16}, {sr(sWS)}, s{soff} offen offset:{off+8} sc1
        s_not_b64 exec, exec
        {L}_f:
        {full}
        s_mov_b64 exec, -1
        """)
    else:
        a(f"""
        s_cmp_eq_u32 s{sODD}, 1
        s_cbranch_scc1 {L}_f
        s_mov_b32 exec_lo, 0
        buffer_store_dwordx2 {vr(p,2)}, v{vL16}, {sr(sWS)}, s{soff} offen offset:{off} sc1
        s_not_b64 exec, exec
        {L}_f:
        {full}
        s_mov_b64 exec, -1
        """)

def dma_lanes(a, d, t):
    a(f"""
    v_lshrrev_b32 v{t}, 3, v0
    v_and_b32 v{t+1}, 7, v0
    v_lshrrev_b32 v{t+2}, 4, v0
    s_lshl_b32 s3, s{sR}, 4
    v_add_u32 v{t}, s3, v{t}
    v_mul_u32_u24 v{d+2}, 2688, v{t}
    v_mul_u32_u24 v{t}, 896, v{t}
    v_xor_b32 v{d}, v{t+1}, v{t+2}
    v_lshlrev_b32 v{d}, 4, v{d}
    v_add_u32 v{d}, v{t}, v{d}
    v_add_u32 v{d+1}, {8*896}, v{d}
    v_xor_b32 v{d+1}, 64, v{d+1}
    v_and_b32 v{t}, 1, v{t+2}
    v_lshlrev_b32 v{t}, 2, v{t}
    v_xor_b32 v{t}, v{t}, v{t+1}
    v_lshlrev_b32 v{t}, 4, v{t}
    v_add_u32 v{d+2}, v{d+2}, v{t}
    """)
def dma_tile(a, sCH, sXb, sWb, t, px):
    a(f"""
    s_cmp_lg_u32 s{sACT}, 0
    s_cselect_b32 s{t}, {X_BYTES}, 0
    s_cselect_b32 s{t+1}, {W_BYTES}, 0
    s_mul_i32 s{sXb}, s{sRB}, {64*896}
    s_lshl_b32 s{sWb}, s{sCG}, 7
    """)
    if sCH is not None:
        a(f"""
        s_and_b32 s3, s{sCG}, 3
        s_lshl_b32 s3, s3, 1
        s_and_b32 s{sCH}, s{sRB}, 7
        s_add_u32 s{sCH}, s{sCH}, s3
        s_cmp_ge_u32 s{sCH}, 7
        s_cselect_b32 s3, 7, 0
        s_sub_u32 s{sCH}, s{sCH}, s3
        """)
def dma_stage(a, d, sCH, sXb, sWb, sSl, t, fill):
    a(f"""
    s_lshl_b32 s{t}, s{sCH}, 7
    s_mov_b32 m0, s{sSl}
    s_add_u32 s{t}, s{t}, s{sXb}
    s_mul_i32 s{t+1}, s{sCH}, {64*2688}
    buffer_load_dwordx4 v{d}, {sr(sX)}, s{t} offen lds
    s_add_u32 m0, s{sSl}, 1024
    s_add_u32 s{t+1}, s{t+1}, s{sWb}
    buffer_load_dwordx4 v{d+1}, {sr(sX)}, s{t} offen lds
    """)
    fill = list(fill) + [""] * 6
    for p in (1, 2, 0):
        for i in range(2):
            a(f"s_add_u32 m0, s{sSl}, {8192 + p*8192 + i*1024}")
            a(f"s_add_u32 s{t}, s{t+1}, {p*896 + i*8*2688}")
            a(f"buffer_load_dwordx4 v{d+2}, {sr(sWt)}, s{t} offen lds")
            a(fill.pop(0))

def gen_loader(a):
    sCH, sSl, sN, sXb, sWb = 40, T0 + 7, T0 + 6, T0 + 5, T0 + 4
    a("s_setprio 3")
    dma_lanes(a, 4, 8)
    p1_role(a, 0)
    dma_tile(a, sCH, sXb, sWb, T0, 10)
    a(f"""
    s_lshl_b32 s{sSl}, s{sR}, 11
    s_mov_b32 s{sN}, 0
    s_waitcnt lgkmcnt(0)
    """)
    srd(a, sX, 10, f"s{T0}")
    srd(a, sWt, 12, f"s{T0+1}")
    nxt = [f"s_add_u32 s{sCH}, s{sCH}, 1", f"s_cmp_eq_u32 s{sCH}, 7\n s_cselect_b32 s{sCH}, 0, s{sCH}"]
    def late():
        roles(a)
        attn_setup(a, 1)
        srd(a, sWS, 20, WS_USED)
        srd(a, sOUT, 16, OUT_BYTES)
        a(f"s_mov_b32 s{sC}, 1")
    if OPT["lsu"] == 0:
        dma_stage(a, 4, sCH, sXb, sWb, sSl, T0, nxt)
        a(f"s_add_u32 s{sSl}, s{sSl}, {SLOT}\n s_mov_b32 s{sN}, 1")
        late()
    a("H1_loop:")
    dma_stage(a, 4, sCH, sXb, sWb, sSl, T0, nxt + [f"s_add_u32 s{sN}, s{sN}, 1"])
    a(f"""
    s_add_u32 s{sSl}, s{sSl}, {SLOT}
    s_and_b32 s{sSl}, s{sSl}, {4*SLOT-1}
    """)
    if OPT["lsu"]: a(f"s_cmp_eq_u32 s{sN}, 1\n s_cbranch_scc1 H1_loop")
    a("s_waitcnt vmcnt(8)\n s_barrier")
    if OPT["prof"] and OPT["lst"]:
        a(f"s_add_u32 s3, s{sN}, 31"); lstamp(a, "s3")
    a(f"s_cmp_lg_u32 s{sN}, 7\n s_cbranch_scc1 H1_same")
    p1_role(a, 1)
    dma_tile(a, None, sXb, sWb, T0, 4)
    srd(a, sX, 4, f"s{T0}")
    srd(a, sWt, 6, f"s{T0+1}")
    for l in nxt: a(l)
    a(f"""
    s_lshl_b32 s{sSl}, s{sR}, 11
    s_mov_b32 s{sN}, 8
    H1_same:
    s_cmp_lt_u32 s{sN}, 14
    s_cbranch_scc1 H1_loop
    """)
    if OPT["lsu"]: late()
    a("s_waitcnt vmcnt(0)\n s_barrier")
    stamp(a, 2)
    a("s_branch C_attn")

vVs, vWo, vFa, vPo, vWa, vOa, vXa, vPar, vHalf, VM, NG, vZ = 15, 16, 17, 18, 19, 21, 22, 24, 25, 144, 156, 9
sKb, sVb, sTile, sM, sHRT = 8, 9, 10, 11, 12
def kv_setup(a, first):
    sRT = sHRT
    a(f"""
    s_lshl_b32 s{sM}, s{sR}, 12
    s_lshl_b32 s{sKb}, s{sU0}, 9
    s_lshl_b32 s{sVb}, s{sU0}, 7
    s_lshl_b32 s{sRT}, s{sQB}, 2
    s_add_u32 s{sRT}, s{sRT}, s{sR}
    s_and_b32 s{sTile}, s{sQB}, {OPT["rot"]}
    s_add_u32 s{sTile}, s{sTile}, {first}
    s_lshl_b32 s{sTile}, s{sTile}, 3
    s_lshl_b32 s3, s{sR}, 1
    s_add_u32 s{sTile}, s{sTile}, s3
    s_and_b32 s{sTile}, s{sTile}, 63
    """)
def kv(a, s):
    base = pslot(s)
    a(f"""
    s_mul_i32 s{T0}, s{sTile}, {RT}
    s_add_u32 m0, s{sM}, {base}
    s_add_u32 s22, s{T0}, s{sKb}
    s_add_u32 s22, s22, {BR + KU}
    """)
    a.vm(f"buffer_load_dwordx4 v{vL16}, {sr(sWS)}, s22 offen sc1 lds", f"kv{s}")
    a(f"s_add_u32 s23, s22, {RT - 2048}")
    a.vm(f"buffer_load_dwordx4 v{vL16}, {sr(sWS)}, s22 offen offset:1024 sc1 lds", f"kv{s}")
    a(f"s_add_u32 s{T0}, s{T0}, s{sVb}")
    a.vm(f"buffer_load_dwordx4 v{vL16}, {sr(sWS)}, s23 offen offset:2048 sc1 lds", f"kv{s}")
    a(f"s_add_u32 s{T0}, s{T0}, {BR + VU}")
    a.vm(f"buffer_load_dwordx4 v{vL16}, {sr(sWS)}, s23 offen offset:3072 sc1 lds", f"kv{s}")
    a(f"s_add_u32 m0, s{sM}, {base + 16384}\n s_mov_b64 exec, {sr(sVM,2)}")
    for i in range(4):
        a.vm(f"buffer_load_dwordx4 v{vVs}, {sr(sWS)}, s{T0} offen offset:{i*1024} sc1 lds", f"kv{s}")
        if i < 3: a(f"s_add_u32 s{T0}, s{T0}, {14336 - 1024}")
    if s in (0, 1, 2):
        a("s_not_b64 exec, exec")
        for i in range(4):
            a.vm(f"global_load_lds_dwordx4 v{vZ}, s[18:19]", f"kv{s}")
            if i < 3: a(f"s_add_u32 m0, s{sM}, {base + 16384 + (i+1)*1024}\n s_nop 0")
    a(f"""
    s_mov_b64 exec, -1
    s_add_u32 s{sTile}, s{sTile}, 8
    s_and_b32 s{sTile}, s{sTile}, 63
    """)
def helper_setup(a, part):
    T = 160; sRT = sHRT
    if part == 0:
        kv_setup(a, 1)
        a(f"""
        v_bfe_u32 v{T}, v0, 3, 1
        v_mul_u32_u24 v{T}, 3, v{T}
        v_add_u32 v{T}, s{sU0}, v{T}
        v_lshrrev_b32 v{T+3}, 2, v{T}
        v_lshlrev_b32 v{T+3}, 6, v{T+3}
        s_cmp_eq_u32 s{sRT}, 0
        s_cselect_b32 s3, 0, 1
        v_and_b32 v{T+2}, s3, v0
        v_sub_u32 v{T+2}, s{sRT}, v{T+2}
        v_add_u32 v{T+2}, v{T+2}, v{T+3}
        v_lshlrev_b32 v{T+2}, {FS}, v{T+2}
        v_add_u32 v{vFa}, {FA}, v{T+2}
        """)
    if part == 1:
        a(f"""
        v_lshrrev_b32 v{T}, 3, v0
        s_lshl_b32 s3, s{sR}, 3
        v_add_u32 v{T+1}, s3, v{T}
        v_mul_u32_u24 v{T+1}, 896, v{T+1}
        v_and_b32 v{T}, 2, v{T}
        s_and_b32 s3, s{sR}, 1
        v_or_b32 v{T}, s3, v{T}
        v_lshlrev_b32 v{T}, 1, v{T}
        v_and_b32 v{T+2}, 7, v0
        v_xor_b32 v{T}, v{T}, v{T+2}
        v_lshlrev_b32 v{T}, 4, v{T}
        v_add_u32 v{T+1}, v{T+1}, v{T}
        s_lshl_b32 s3, s{sCG3}, 7
        v_add_u32 v{vWo}, s3, v{T+1}
        v_lshlrev_b32 v{vPo}, {FS}, v{T+2}
        v_lshrrev_b32 v{T+1}, 2, v0
        v_and_b32 v{T+1}, 3, v{T+1}
        v_lshlrev_b32 v{T+2}, 3, v27
        v_add_u32 v{T+2}, v{T+2}, v{T+1}
        v_lshlrev_b32 v{T+2}, 7, v{T+2}
        v_and_b32 v{T+1}, 2, v{T+1}
        v_or_b32 v{T+1}, v{T+1}, v27
        v_bfe_u32 v{T+3}, v0, 4, 1
        v_xor_b32 v{T+1}, v{T+1}, v{T+3}
        v_lshlrev_b32 v{T+1}, 5, v{T+1}
        v_add_u32 v{T+2}, v{T+2}, v{T+1}
        v_and_b32 v{T+1}, 3, v0
        v_lshlrev_b32 v{T+1}, 3, v{T+1}
        v_add_u32 v{T+2}, v{T+2}, v{T+1}
        s_lshr_b32 s3, s{sR}, 1
        s_mul_i32 s3, s3, {WOA_L[1] - WOA_L[0]}
        s_add_u32 s3, s3, {WOA_L[0]}
        v_add_u32 v{vWa}, s3, v{T+2}
        v_xor_b32 v{vWa+1}, 64, v{vWa}
        v_mul_u32_u24 v{vOa}, 1792, v26
        v_lshlrev_b32 v{T}, 4, v27
        v_add_u32 v{vOa}, v{vOa}, v{T}
        s_add_u32 s3, s{sM}, {XHA_L}
        v_add_u32 v{vXa}, s3, v{vL16}
        v_xor_b32 v{vXa+1}, {2*4096}, v{vXa}
        """)
    if part == 2:
        a(f"""
        v_lshlrev_b32 v{T+1}, 2, v27
        v_and_b32 v{T}, 30, v0
        v_sub_u32 v{T}, v{T}, v{T+1}
        v_add_u32 v{T}, 18, v{T}
        v_mov_b32 v{T+2}, 0x5555
        v_mov_b32 v{T+3}, 0
        v_lshlrev_b64 {vr(T+2,2)}, v{T}, {vr(T+2,2)}
        s_cmp_eq_u32 s{sRT}, 0
        s_cselect_b32 s3, 0, -1
        v_and_b32 v{T+2}, s3, v{T+2}
        v_bfe_i32 v{vPar}, v0, 0, 1
        v_xor_b32 v{vHalf}, 0xffff, v{vPar}
        s_mov_b32 s3, 0xf149f2ca
        """)
        for i in range(12):
            pos = 16 + 8 * (i // 2) + 2 * (i % 2)
            a(f"v_bfe_i32 v{VM+i}, v{T+2 + pos//32}, {pos % 32}, 1")
        for g in range(4):
            a(f"v_bitop3_b32 v{NG+g}, v{VM+g}, v{VM+g+4}, v{VM+g+8} bitop3:0x01\n v_and_b32 v{NG+g}, s3, v{NG+g}")

def store_offsets(a, base, d):
    a(f"""
    s_lshl_b32 s{d+4}, s{sRB}, 1
    s_and_b32 s3, s{sR}, 1
    s_add_u32 s{d+4}, s{d+4}, s3
    s_mul_i32 s{d+3}, s{d+4}, {RT}
    s_cmp_eq_u32 s{sACT}, 0
    s_cselect_b32 s3, {WS_OOB}, 0
    s_add_u32 s{d+3}, s{d+3}, s3
    s_add_u32 s{d+3}, s{d+3}, {base}
    s_lshl_b32 s{d+2}, s{sCG}, 1
    s_lshr_b32 s3, s{sR}, 1
    s_add_u32 s{d+2}, s{d+2}, s3
    s_lshl_b32 s3, s{d+2}, 6
    s_add_u32 s{d+4}, s{d+4}, s3
    s_lshl_b32 s{d}, s{d+2}, 11
    s_add_u32 s{d}, s{d}, s{d+3}
    s_add_u32 s{d+1}, s{d}, {KU}
    s_lshl_b32 s{d+2}, s{d+2}, 9
    s_add_u32 s{d+2}, s{d+2}, s{d+3}
    s_add_u32 s{d+2}, s{d+2}, {VU}
    s_add_u32 s{d+3}, s{d+2}, 14336
    """)
def qkv_stores(p, d):
    return [f"buffer_store_dwordx4 {vr(p+16,4)}, v{vVs}, {sr(sWS)}, s{d+2} offen sc1",
            f"buffer_store_dwordx4 {vr(p+20,4)}, v{vVs}, {sr(sWS)}, s{d+3} offen sc1",
            f"buffer_store_dwordx4 {vr(p+8,4)}, v{vL16}, {sr(sWS)}, s{d+1} offen sc1",
            f"buffer_store_dwordx4 {vr(p+12,4)}, v{vL16}, {sr(sWS)}, s{d+1} offen offset:1024 sc1",
            f"buffer_store_dwordx4 {vr(p,4)}, v{vL16}, {sr(sWS)}, s{d} offen sc1",
            f"buffer_store_dwordx4 {vr(p+4,4)}, v{vL16}, {sr(sWS)}, s{d} offen offset:1024 sc1"]

def gen_gemm(a):
    vXA, vWA = 10, 14
    accQ, accK, accV = 32, 48, 64
    a(f"""
    v_and_b32 v26, 31, v0
    v_lshrrev_b32 v27, 5, v0
    v_lshrrev_b32 v28, 1, v26
    v_and_b32 v28, 7, v28
    v_xor_b32 v28, v28, v27
    v_lshlrev_b32 v28, 4, v28
    s_mul_i32 s{T0}, s{sC}, {4*SLOT}
    s_and_b32 s3, s{sW}, 1
    s_lshl_b32 s3, s3, 12
    s_add_u32 s3, s3, s{T0}
    v_lshlrev_b32 v29, 7, v26
    v_add_u32 v29, s3, v29
    v_add_u32 v{vXA}, v29, v28
    v_xor_b32 v{vXA+1}, 32, v{vXA}
    v_xor_b32 v{vXA+2}, 64, v{vXA}
    v_xor_b32 v{vXA+3}, 96, v{vXA}
    s_lshr_b32 s{T0+1}, s{sR}, 1
    v_lshrrev_b32 v28, 2, v0
    v_and_b32 v28, 3, v28
    v_lshlrev_b32 v29, 3, v27
    v_add_u32 v29, v29, v28
    v_lshlrev_b32 v29, 7, v29
    v_lshrrev_b32 v28, 1, v28
    v_xor_b32 v28, s{T0+1}, v28
    v_lshlrev_b32 v28, 6, v28
    v_add_u32 v29, v29, v28
    v_and_b32 v28, 16, v0
    v_lshlrev_b32 v28, 1, v28
    v_add_u32 v29, v29, v28
    v_and_b32 v28, 3, v0
    v_lshlrev_b32 v28, 3, v28
    v_add_u32 v29, v29, v28
    v_add_u32 v{vWA}, s{T0}, v29
    """)
    for i in range(48):
        a(f"v_mov_b32 v{accQ+i}, 0")
    roles(a)
    a(f"""
    s_mov_b32 s{T0+6}, {hex(f32bits(CSCALE))}
    v_mov_b32 v{vZ}, 0
    v_mov_b32 v{vWo}, 0
    v_mov_b32 v{vFa}, 0
    v_mov_b32 v{vPo}, 0
    v_mov_b32 v{vOa}, 0
    v_mul_u32_u24 v{vVs}, {7168-512}, v27
    v_add_u32 v{vVs}, v{vVs}, v{vL16}
    """)
    p1_role(a, f"s{sC}")
    a(f"s_cmp_eq_u32 s{sC}, 0\n s_cselect_b32 s{T0}, {BR}, 0")
    store_offsets(a, f"s{T0}", T0 + 1)
    a(f"""
    s_cmp_lg_u32 s{sC}, 0
    s_cbranch_scc1 C_nw
    s_waitcnt lgkmcnt(0)
    C_nw:
    """)
    srd(a, sWS, 20, WS_USED)
    a(f"""
    v_mov_b32 v4, {EPOCH}
    buffer_load_dword v4, v4, {sr(sWS)}, 0 offen sc1
    """)
    srd(a, sOUT, 16, OUT_BYTES)
    srd(a, sWoA, 8, WO_BYTES)
    srd(a, sWoB, 14, WO_BYTES)
    a(f"""
    s_getpc_b64 s[18:19]
    H_pc:
    s_add_u32 s18, s18, L_ones-H_pc
    s_addc_u32 s19, s19, 0
    s_mov_b32 s{T0+11}, {SLOT}
    s_cmp_eq_u32 s{sC}, 0
    s_cbranch_scc1 C_b0
    """)
    dma_lanes(a, 160, 164)
    dma_tile(a, 14, 15, 16, 22, 4)
    srd(a, sX, 4, "s22")
    srd(a, sWt, 6, "s23")
    a(f"s_lshl_b32 s17, s{sR}, 11\n s_add_u32 s17, s17, {4*SLOT}\n s_mov_b32 s{T0+11}, 0")
    work = {OPT["apos"]: lambda: dma_stage(a, 160, 14, 15, 16, 17, 22, []), 2: lambda: helper_setup(a, 0), 3: lambda: helper_setup(a, 1), 4: lambda: helper_setup(a, 2),
            5: lambda: (a("s_waitcnt vmcnt(0) lgkmcnt(0)"), make_tag(a, 4))}
    assert OPT["apos"] < 2
    for b in range(-1, 6):
        if b >= 0: a("s_barrier")
        if b in work: work[b]()
    a(f"""
    C_b0:
    s_mov_b32 s{T0+7}, 7
    C_w:
    s_barrier
    """)
    F = [80, 96, 112, 128]
    def rlist(ks):
        f = F[ks]
        r = [f"ds_read_b128 {vr(f,4)}, v{vXA+ks}"]
        for p in (1, 2, 0):
            for j in range(2):
                r.append(f"ds_read_b64_tr_b16 {vr(f+4+4*p+2*j,2)}, v{vWA} offset:{8192+p*8192+ks*2048+j*512}")
        return r
    def mlist(ks):
        f = F[ks]
        return [f"{MF32} {vr(accK,16)}, {vr(f+8,4)}, {vr(f,4)}, {vr(accK,16)}",
                f"{MF32} {vr(accV,16)}, {vr(f,4)}, {vr(f+12,4)}, {vr(accV,16)}",
                f"{MF32} {vr(accQ,16)}, {vr(f+4,4)}, {vr(f,4)}, {vr(accQ,16)}"]
    def step(ks, rd):
        m = mlist(ks)
        r = rlist((ks + 2) % 4) if rd else [""] * 7
        a(m[0]); a(r[0]); a(r[1]); a(r[2]); a(m[1]); a(r[3]); a(r[4]); a(m[2]); a(r[5]); a(r[6])
    for l in rlist(0) + rlist(1): a(l)
    a("C_g:")
    a("s_waitcnt lgkmcnt(7)"); step(0, True)
    a("s_waitcnt lgkmcnt(7)"); step(1, True)
    for r in range(vXA, vXA + 5):
        a(f"v_add_u32 v{r}, s{T0+11}, v{r}\n v_and_b32 v{r}, {4*SLOT-1}, v{r}")
    a(f"""
    s_mov_b32 s{T0+11}, {SLOT}
    s_sub_u32 s{T0+7}, s{T0+7}, 1
    s_cmp_le_u32 s{T0+7}, 1
    s_cbranch_scc1 C_gx
    s_waitcnt lgkmcnt(0)
    s_barrier
    """)
    step(2, True)
    step(3, True)
    a("s_branch C_g\n C_gx:")
    a("s_waitcnt lgkmcnt(7)"); step(2, False)
    a("s_waitcnt lgkmcnt(0)"); step(3, False)
    a(f"s_cmp_eq_u32 s{T0+7}, 1\n s_cbranch_scc1 C_w")
    stamp(a, 3)
    a("s_nop 8")
    P = 80
    st = qkv_stores(P, T0 + 1)
    for i in range(8):
        a(f"v_cvt_pk_bf16_f32 v{P+8+i}, v{accK+2*i}, v{accK+2*i+1}")
    for i in range(8):
        a(f"v_cvt_pk_bf16_f32 v{P+16+i}, v{accV+2*i}, v{accV+2*i+1}")
    for g in (8, 12):
        a(f"v_permlane32_swap_b32 v{P+g}, v{P+g+2}\n v_permlane32_swap_b32 v{P+g+1}, v{P+g+3}")
    a(f"s_cmp_lg_u32 s{sC}, 0\n s_cbranch_scc1 C_ns")
    for l in st[:4]: a(l)
    a("C_ns:")
    for i in range(16):
        a(f"v_mul_f32 v{accQ+i}, s{T0+6}, v{accQ+i}")
    for i in range(8):
        a(f"v_cvt_pk_bf16_f32 v{P+i}, v{accQ+2*i}, v{accQ+2*i+1}")
    a("s_nop 1")
    for g in (0, 4):
        a(f"v_permlane32_swap_b32 v{P+g}, v{P+g+2}\n v_permlane32_swap_b32 v{P+g+1}, v{P+g+3}")
    a(f"s_cbranch_scc1 L_helper")

def gen_publish(a):
    T, vFl = 28, 32
    sRT = sHRT
    kd, pp = OPT["kd"], OPT["pp"]
    for l in qkv_stores(80, T0 + 1)[4:]: a(l)
    lstamp(a, 0)
    a("s_barrier")
    a(f"""
    s_lshl_b32 s3, s{sCG}, 5
    s_add_u32 s3, s3, s{sRB}
    s_lshl_b32 s3, s3, {FS}
    s_add_u32 s13, s3, {FB}
    """)
    kv_setup(a, 0)
    a(f"""
    v_bfe_u32 v{T}, v0, 3, 1
    v_mul_u32_u24 v{T}, 3, v{T}
    v_add_u32 v{T}, s{sU0}, v{T}
    v_lshrrev_b32 v{T+3}, 3, v{T}
    v_lshlrev_b32 v{T+3}, 5, v{T+3}
    s_lshr_b32 s3, s{sRT}, 1
    v_mov_b32 v{T+1}, s3
    s_mov_b64 exec, 0xffff
    v_and_b32 v{T+1}, 7, v0
    v_lshlrev_b32 v{T+1}, 2, v{T+1}
    v_add_u32 v{T+1}, s{sR}, v{T+1}
    s_mov_b64 exec, -1
    v_add_u32 v{T+1}, v{T+1}, v{T+3}
    v_lshlrev_b32 v{T+1}, {FS}, v{T+1}
    v_add_u32 v{vFl}, {FB}, v{T+1}
    """)
    attn_setup(a, 0)
    def qload():
        a(f"""
        s_lshr_b32 s3, s{sM}, 1
        s_add_u32 m0, s3, {QST_L}
        s_sub_u32 s3, s{sOb}, {OU - QU}
        buffer_load_dwordx4 v{vL16}, {sr(sWS)}, s3 offen sc1 lds
        buffer_load_dwordx4 v{vL16}, {sr(sWS)}, s3 offen offset:1024 sc1 lds
        """)
    for b in range(9, 13):
        if b == kd:
            a("s_waitcnt vmcnt(0)")
            lstamp(a, 1)
            make_tag(a, 4)
        a("s_barrier")
        if b == kd:
            a(f"s_cmp_lg_u32 s{sW}, 0\n s_cbranch_scc1 H_nofl")
            set_flag(a, 13, T)
            a("H_nofl:")
            lstamp(a, 3)
        if b == pp:
            a(f"buffer_load_dwordx2 {vr(T+2,2)}, v{vFl}, {sr(sWS)}, 0 offen sc1")
    a(f"""
    s_waitcnt vmcnt(0)
    v_cmp_ne_u64 vcc, {sr(sTAG,2)}, {vr(T+2,2)}
    s_cmp_eq_u64 vcc, 0
    s_cselect_b32 s13, 1, 0
    s_cbranch_scc1 H_ok
    s_barrier
    """)
    poll(a, vFl, T + 2)
    a("H_ok:")
    lstamp(a, 2)
    qload()
    kv(a, 0)
    a("s_cmp_eq_u32 s13, 0\n s_cbranch_scc1 H_b13\n s_barrier\n H_b13:\n s_waitcnt vmcnt(0)")

vCur, vNxt, vNx2, vQa, vK0, vXw, vXr, vT = 148, 149, 150, 151, 152, 153, 156, 160
def attn_setup(a, kh):
    a(f"""
    s_and_b32 s{sK3}, s{sCG3}, {OPT["krot"]}
    s_xor_b32 s{sK3}, s{sK3}, {kh}
    s_add_u32 s{sWI}, s{sR}, {4*kh}
    s_lshl_b32 s3, s{sQB}, 2
    s_add_u32 s3, s3, s{sR}
    s_mul_i32 s3, s3, {RT}
    s_lshl_b32 s{sOb}, s{sU0}, 9
    s_add_u32 s{sOb}, s{sOb}, s3
    s_add_u32 s{sOb}, s{sOb}, {BR + OU}
    v_add_u32 v{vCur}, {pslot(0) + kh*8192}, v{vL16}
    v_add_u32 v{vNxt}, {pslot(1) + kh*8192}, v{vL16}
    v_add_u32 v{vNx2}, {pslot(2) + kh*8192}, v{vL16}
    v_add_u32 v{vK0}, {pslot(0)}, v{vL16}
    s_lshl_b32 s3, s{sR}, 11
    s_add_u32 s3, s3, {QST_L}
    v_add_u32 v{vQa}, s3, v{vL16}
    s_lshl_b32 s3, s{sR}, 10
    v_add_u32 v{vT}, s3, v{vL16}
    v_add_u32 v{vXw}, {XC1_L + kh*4096}, v{vT}
    v_add_u32 v{vXr}, {XC1_L + (1-kh)*4096}, v{vT}
    v_add_u32 v{vXw+1}, {XC2_L + kh*8192}, v{vT}
    v_add_u32 v{vXr+1}, {XC2_L + (1-kh)*8192}, v{vT}
    v_lshrrev_b32 v{vT}, 2, v{vT}
    v_add_u32 v{vXw+2}, {XC2_L + kh*8192 + 4096}, v{vT}
    v_add_u32 v{vXr+2}, {XC2_L + (1-kh)*8192 + 4096}, v{vT}
    v_lshrrev_b32 v{vT}, 4, v0
    v_lshrrev_b32 v{vT+1}, 2, v0
    v_and_b32 v{vT+1}, 3, v{vT+1}
    v_lshlrev_b32 v{vT+2}, 3, v{vT}
    v_add_u32 v{vT+2}, v{vT+2}, v{vT+1}
    v_lshlrev_b32 v{vT+2}, 7, v{vT+2}
    v_and_b32 v{vT+1}, 2, v{vT+1}
    v_and_b32 v{vT+3}, 1, v{vT}
    v_or_b32 v{vT+1}, v{vT+1}, v{vT+3}
    v_lshlrev_b32 v{vT+1}, 5, v{vT+1}
    v_add_u32 v{vT+2}, v{vT+2}, v{vT+1}
    v_and_b32 v{vT+1}, 3, v0
    v_lshlrev_b32 v{vT+1}, 3, v{vT+1}
    v_add_u32 v{vT+2}, v{vT+2}, v{vT+1}
    s_mul_i32 s3, s{sK3}, {224*128}
    v_add_u32 v{vT+4}, s3, v{vT+2}
    v_xor_b32 v{vT+5}, 32, v{vT+4}
    v_xor_b32 v{vT+6}, 64, v{vT+4}
    v_xor_b32 v{vT+7}, 96, v{vT+4}
    s_lshl_b32 s{sOf}, s{sRBK}, 1
    s_lshr_b32 s3, s{sR}, 1
    s_add_u32 s{sOf}, s{sOf}, s3
    s_mul_i32 s{sOf}, s{sOf}, {RT}
    s_and_b32 s3, s{sR}, 1
    s_lshl_b32 s3, s3, 8
    s_add_u32 s{sOf}, s{sOf}, s3
    s_mul_i32 s3, s{sK3}, {28*512}
    s_add_u32 s{sOf}, s{sOf}, s3
    s_add_u32 s{sOf}, s{sOf}, {BR + OU}
    v_and_b32 v{vT+1}, 15, v0
    v_lshlrev_b32 v{vT+2}, 9, v{vT}
    v_lshlrev_b32 v159, 4, v{vT+1}
    v_add_u32 v{vT+2}, v{vT+2}, v159
    s_lshl_b32 s3, s{sRBK}, 2
    s_add_u32 s3, s3, s{sR}
    s_lshl_b32 s3, s3, 4
    v_add_u32 v{vT+1}, s3, v{vT+1}
    v_mul_u32_u24 v{vT+1}, 1792, v{vT+1}
    v_lshlrev_b32 v{vT+3}, 5, v{vT+3}
    v_add_u32 v{vT+1}, v{vT+1}, v{vT+3}
    v_lshrrev_b32 v{vT+3}, 1, v{vT}
    v_lshlrev_b32 v{vT+3}, 4, v{vT+3}
    v_add_u32 v{vT+1}, v{vT+1}, v{vT+3}
    s_lshl_b32 s{sOo}, s{sCG3}, 7
    s_lshl_b32 s3, s{sK3}, 6
    s_add_u32 s{sOo}, s{sOo}, s3
    s_add_u32 s{sOo}, s{sOo}, 896
    s_lshl_b32 s3, s{sWI}, 11
    s_add_u32 s3, s3, {XFI_L}
    v_add_u32 v{vT}, s3, v{vL16}
    v_xor_b32 v{vT+3}, {4*2048}, v{vT}
    """)
    for r in list(range(104, 120)) + list(range(64, 68)) + list(range(132, 136)):
        a(f"v_mov_b32 v{r}, 0")

def gen_attn(a):
    Q, NM, S, P, O, K, V, T = 4, 12, [28, 44], 60, 104, 120, 128, 140
    WF, OF, ACC = 4, 116, 144
    sS = T0 + 7
    a("C_attn:")
    stamp(a, 5)
    a("s_setprio 1\n s_barrier")
    stamp(a, 6)
    if OPT["rts"]: stamp(a, 3, rt=True)
    if OPT["prof"]: a("s_waitcnt lgkmcnt(0)")
    a(f"""
    ds_read_b128 {vr(Q,4)}, v{vQa}
    ds_read_b128 {vr(Q+4,4)}, v{vQa} offset:1024
    ds_read_b128 {vr(NM,4)}, v{vK0}
    ds_read_b128 {vr(NM+4,4)}, v{vK0} offset:1024
    ds_read_b128 {vr(NM+8,4)}, v{vCur}
    ds_read_b128 {vr(NM+12,4)}, v{vCur} offset:1024
    ds_read_b128 {vr(K,4)}, v{vCur} offset:2048
    ds_read_b128 {vr(K+4,4)}, v{vCur} offset:3072
    ds_read_b128 {vr(V,4)}, v{vCur} offset:16384
    s_waitcnt lgkmcnt(7)
    """)
    zero_foreign(a, Q)
    a(f"""
    s_waitcnt lgkmcnt(5)
    {MF32} {vr(S[1],16)}, {vr(NM,4)}, {vr(Q,4)}, 0
    {MF32} {vr(S[1],16)}, {vr(NM+4,4)}, {vr(Q+4,4)}, {vr(S[1],16)}
    s_waitcnt lgkmcnt(3)
    {MF32} {vr(S[0],16)}, {vr(NM+8,4)}, {vr(Q,4)}, 0
    {MF32} {vr(S[0],16)}, {vr(NM+12,4)}, {vr(Q+4,4)}, {vr(S[0],16)}
    s_mov_b32 s{sS}, 0
    s_mov_b32 s3, {hex(f32bits(-DELTA))}
    s_nop 7
    """)
    s1 = S[1]
    a(f"v_max3_f32 v{T}, v{s1}, v{s1+1}, v{s1+2}")
    a(f"v_max3_f32 v{T+1}, v{s1+3}, v{s1+4}, v{s1+5}")
    for i in range(6, 14, 4):
        a(f"v_max3_f32 v{T}, v{T}, v{s1+i}, v{s1+i+1}")
        a(f"v_max3_f32 v{T+1}, v{T+1}, v{s1+i+2}, v{s1+i+3}")
    a(f"""
    v_max3_f32 v{T}, v{T}, v{s1+14}, v{s1+15}
    v_max_f32 v{T}, v{T}, v{T+1}
    v_mov_b32 v{T+1}, v{T}
    v_mov_b32 v{s1+14}, 0
    v_mov_b32 v{s1+15}, 0
    v_permlane32_swap_b32 v{T}, v{T+1}
    s_nop 1
    v_max_f32 v{T}, v{T}, v{T+1}
    v_sub_f32 v{NM}, s3, v{T}
    """)
    for i in range(16):
        a(f"v_add_f32 v{S[0]+i}, v{S[0]+i}, v{NM}")
    for i in range(1, 16):
        a(f"v_mov_b32 v{NM+i}, v{NM}")
    a("s_waitcnt lgkmcnt(0)\n s_setprio 1")
    a(".p2align 3")
    a("C_loop:")
    for i in range(4):
        cs, ns = S[i % 2], S[(i + 1) % 2]
        def ex(j): return f"v_exp_f32 v{cs+j}, v{cs+j}"
        def cv(j): return f"v_cvt_pk_bf16_f32 v{P+j}, v{cs+2*j}, v{cs+2*j+1}"
        kreg, ko = (vCur, (i + 2) * 2048) if i < 2 else (vNxt, (i - 2) * 2048)
        vreg, vo = (vCur, (i + 1) * 2048) if i < 3 else (vNxt, 0)
        a(ex(0)); a(ex(1))
        a(f"v_cvt_pk_bf16_f32 v{P+7}, v{ns+14}, v{ns+15}")
        a(ex(2))
        if i == 2:
            a("s_barrier\n s_setprio 3")
        a("s_waitcnt lgkmcnt(2)")
        a(f"{MF32} {vr(ns,16)}, {vr(K,4)}, {vr(Q,4)}, {vr(NM,16)}")
        a(f"ds_read_b128 {vr(K,4)}, v{kreg} offset:{ko}")
        a(cv(0)); a(ex(3)); a(ex(4)); a(cv(1)); a(ex(5)); a(ex(6))
        a(f"{MF32} {vr(O,16)}, {vr(V+4,4)}, {vr(P+4,4)}, {vr(O,16)}")
        a(f"ds_read_b128 {vr(V+4,4)}, v{vCur} offset:{16384 + i*2048 + 1024}")
        a(cv(2)); a(ex(7)); a(ex(8)); a(cv(3)); a(ex(9)); a("s_waitcnt lgkmcnt(2)")
        a(f"{MF32} {vr(ns,16)}, {vr(K+4,4)}, {vr(Q+4,4)}, {vr(ns,16)}")
        a(f"ds_read_b128 {vr(K+4,4)}, v{kreg} offset:{ko+1024}")
        a(ex(10)); a(ex(11)); a(cv(4)); a(ex(12)); a(ex(13)); a(cv(5))
        a(f"{MF32} {vr(O,16)}, {vr(V,4)}, {vr(P,4)}, {vr(O,16)}")
        a(f"ds_read_b128 {vr(V,4)}, v{vreg} offset:{16384 + vo}")
        a(ex(14)); a(ex(15)); a(cv(6))
        if i == 0: a("s_setprio 0\n s_add_u32 s{0}, s{0}, 1".format(sS))
        if i == 2: a("s_setprio 2\n s_nop 0")
        if i == 3:
            a(f"""
            v_swap_b32 v{vCur}, v{vNxt}
            s_setprio 1
            v_swap_b32 v{vNxt}, v{vNx2}
            s_cmp_lt_u32 s{sS}, 8
            s_cbranch_scc1 C_loop
            """)
    a(f"""
    v_cvt_pk_bf16_f32 v{P+7}, v{S[1]+14}, v{S[1]+15}
    s_waitcnt lgkmcnt(0)
    s_cmp_eq_u32 s{sODD}, 0
    {MF32} {vr(O,16)}, {vr(V+4,4)}, {vr(P+4,4)}, {vr(O,16)}
    """)
    stamp(a, 7)
    if OPT["rts"]: stamp(a, 4, rt=True)
    X = S[0]
    a(f"""
    s_nop 10
    s_cbranch_scc1 C_le
    v_mov_b32 v{T+2}, v{O}
    s_branch C_lx
    C_le:
    v_mov_b32 v{T+2}, v{O+12}
    C_lx:
    s_cmp_eq_u32 s{sC}, 0
    s_cbranch_scc1 C_x0
    ds_write_b128 v{vXw}, {vr(O,4)}
    ds_write_b128 v{vXw+1}, {vr(O+4,4)}
    ds_write_b32 v{vXw+2}, v{T+2}
    s_waitcnt lgkmcnt(0)
    s_barrier
    """)
    for i in range(8):
        a(f"v_mov_b32 v{O+i}, v{O+8+i}")
    a(f"""
    s_branch C_x1
    C_x0:
    ds_write_b128 v{vXw}, {vr(O+8,4)}
    ds_write_b128 v{vXw+1}, {vr(O+12,4)}
    ds_write_b32 v{vXw+2}, v{T+2}
    s_waitcnt lgkmcnt(0)
    s_barrier
    C_x1:
    ds_read_b32 v{X+8}, v{vXr+2}
    ds_read_b128 {vr(X,4)}, v{vXr}
    ds_read_b128 {vr(X+4,4)}, v{vXr+1}
    s_waitcnt lgkmcnt(2)
    v_add_f32 v{T+2}, v{T+2}, v{X+8}
    """)
    bcast_l(a, T + 2, T + 2, T + 4)
    a("s_waitcnt lgkmcnt(0)")
    a(f"v_mul_f32 v{T}, 0, v{T+4}")
    for i in range(8):
        a(f"v_add_f32 v{O+i}, v{O+i}, v{X+i}")
    for i in range(8):
        a(f"v_fma_f32 v{T}, v{O+i}, 0, v{T}")
    a(f"""
    v_cmp_u_f32 vcc, v{T}, v{T}
    s_cmp_lg_u64 vcc, 0
    s_cbranch_scc1 C_slow
    C_fin:
    """)
    finalize(a, O, 8, T + 4)
    a(f"s_cmp_eq_u32 s{sC}, 0\n s_cbranch_scc0 C_st1")
    store_units(a, O, True, sOb, 0)
    a("s_branch C_st2\n C_st1:")
    store_units(a, O, False, sOb, 1024)
    a("C_st2:")
    stamp(a, 8)
    a(f"s_cmp_ge_u32 s{sJ}, 28\n s_cbranch_scc1 C_exit\n s_barrier")
    def wrd(s0, s1):
        for s in range(s0, s1):
            for t in range(4):
                for j in range(2):
                    a(f"ds_read_b64_tr_b16 {vr(WF+16*s+4*t+2*j,2)}, v{vT+4+t} offset:{(32*s+4*j)*128}")
    wrd(0, 6)
    a("s_waitcnt vmcnt(0)")
    wrd(6, 7)
    a(f"s_mov_b32 s{T0+11}, {SPIN}\n s_mov_b32 s{T0+5}, 0\n C_pp:\n s_mov_b32 s3, s{sOf}")
    for s in range(7):
        if s and s % 2 == 0:
            a(f"s_add_u32 s3, s3, 4096")
        a(f"buffer_load_dwordx4 {vr(OF+4*s,4)}, v{vT+2}, {sr(sWS)}, s3 offen offset:{(s%2)*2048} sc1")
    a("s_waitcnt lgkmcnt(0)")
    for s in range(7):
        a(f"s_waitcnt vmcnt({6-s})")
        f = OF + 4 * s
        for t in range(4):
            cin = "0" if s == 0 else vr(ACC + 4 * t, 4)
            a(f"{MF16} {vr(ACC+4*t,4)}, {vr(WF+16*s+4*t,4)}, {vr(f,4)}, {cin}")
            if t == 0: a(f"v_max3_u32 v3, v{f}, v{f+1}, v{f+2 if s == 0 else 3}")
            if t == 1: a(f"v_max3_u32 v3, v3, v{f+2}, v{f+3}")
    a(f"""
    v_cmp_eq_u32 vcc, -1, v3
    s_add_u32 s{T0+5}, s{T0+5}, 1
    s_sub_u32 s{T0+11}, s{T0+11}, 1
    s_cbranch_scc1 C_ppx
    s_cmp_lg_u64 vcc, 0
    s_cbranch_scc1 C_pp
    C_ppx:
    """)
    stamp(a, 9)
    if OPT["prof"]: a(f"v_writelane_b32 v1, s{T0+5}, 63")
    a(f"""
    s_cmp_eq_u32 s{sK3}, 0
    s_nop 5
    s_cbranch_scc1 C_y0
    ds_write_b128 v{vT}, {vr(ACC,4)}
    ds_write_b128 v{vT}, {vr(ACC+4,4)} offset:1024
    s_waitcnt lgkmcnt(0)
    s_barrier
    """)
    for i in range(8):
        a(f"v_mov_b32 v{ACC+i}, v{ACC+8+i}")
    a(f"""
    s_branch C_y1
    C_y0:
    ds_write_b128 v{vT}, {vr(ACC+8,4)}
    ds_write_b128 v{vT}, {vr(ACC+12,4)} offset:1024
    s_waitcnt lgkmcnt(0)
    s_barrier
    C_y1:
    ds_read_b128 {vr(OF,4)}, v{vT+3}
    ds_read_b128 {vr(OF+4,4)}, v{vT+3} offset:1024
    s_waitcnt lgkmcnt(0)
    """)
    for i in range(8):
        a(f"v_add_f32 v{ACC+i}, v{ACC+i}, v{OF+i}")
    for i in range(4):
        a(f"v_cvt_pk_bf16_f32 v{ACC+i}, v{ACC+2*i}, v{ACC+2*i+1}")
    osc = ("", " sc1", " nt", " sc0 sc1")[OPT["outsc"]]
    a(f"""
    s_nop 1
    v_permlane16_swap_b32 v{ACC}, v{ACC+2}
    v_permlane16_swap_b32 v{ACC+1}, v{ACC+3}
    buffer_store_dwordx4 {vr(ACC,4)}, v{vT+1}, {sr(sOUT)}, s{sOo} offen{osc}
    C_exit:
    """)
    if OPT["padrt"] or OPT["padcy"]:
        if OPT["padx"] >= 0: a(f"s_cmp_lg_u32 s{sXCD}, {OPT['padx']}\n s_cbranch_scc1 C_padx")
        a(f"""
        C_pad:
        {'s_memrealtime' if OPT['padrt'] else 's_memtime'} s[98:99]
        s_waitcnt lgkmcnt(0)
        s_sub_u32 s98, s98, s96
        s_cmp_lt_u32 s98, {OPT['padrt'] or OPT['padcy']}
        s_cbranch_scc1 C_pad
        C_padx:
        """)
    dump(a)
    a("s_endpgm")
    sT, sKo, sVo = T0, T0 + 1, T0 + 2
    def kload():
        a(f"""
        s_mul_i32 s{sKo}, s{sT}, {RT}
        s_lshl_b32 s3, s{sU0}, 7
        s_add_u32 s{sVo}, s{sKo}, s3
        s_add_u32 s{sVo}, s{sVo}, {BR + VU}
        s_lshl_b32 s3, s{sU0}, 9
        s_add_u32 s{sKo}, s{sKo}, s3
        s_add_u32 s{sKo}, s{sKo}, {BR + KU}
        buffer_load_dwordx4 {vr(K,4)}, v{vL16}, {sr(sWS)}, s{sKo} offen sc1
        buffer_load_dwordx4 {vr(K+4,4)}, v{vL16}, {sr(sWS)}, s{sKo} offen offset:1024 sc1
        """)
    def qk():
        a(f"""
        s_waitcnt vmcnt(0)
        {MF32} {vr(S[0],16)}, {vr(K,4)}, {vr(Q,4)}, 0
        {MF32} {vr(S[0],16)}, {vr(K+4,4)}, {vr(Q+4,4)}, {vr(S[0],16)}
        s_nop 15
        """)
    a(f"C_slow:\n v_mov_b32 v{T}, 0xff800000\n s_mov_b32 s{sT}, 0\n C_s1:")
    kload(); qk()
    for i in range(0, 16, 2):
        a(f"v_max3_f32 v{T}, v{T}, v{S[0]+i}, v{S[0]+i+1}")
    a(f"""
    s_add_u32 s{sT}, s{sT}, 1
    s_cmp_lt_u32 s{sT}, 64
    s_cbranch_scc1 C_s1
    v_mov_b32 v{T+1}, v{T}
    s_nop 1
    v_permlane32_swap_b32 v{T}, v{T+1}
    s_nop 1
    v_max_f32 v{T}, v{T}, v{T+1}
    v_lshrrev_b32 v{T+1}, 5, v0
    v_mul_u32_u24 v{T+1}, {7168-512}, v{T+1}
    v_add_u32 v{T+1}, v{T+1}, v{vL16}
    """)
    for i in range(16):
        a(f"v_mov_b32 v{O+i}, 0")
    for i in range(8):
        a(f"v_mov_b32 v{V+i}, 0x3f803f80")
    a(f"s_mov_b32 s{sT}, 0\n C_s2:")
    kload()
    a(f"""
    s_add_u32 s3, s{sVo}, 14336
    s_mov_b64 exec, {sr(sVM,2)}
    buffer_load_dwordx4 {vr(V,4)}, v{T+1}, {sr(sWS)}, s{sVo} offen sc1
    buffer_load_dwordx4 {vr(V+4,4)}, v{T+1}, {sr(sWS)}, s3 offen sc1
    s_mov_b64 exec, -1
    """)
    qk()
    for i in range(16):
        a(f"v_sub_f32 v{S[0]+i}, v{S[0]+i}, v{T}")
    for i in range(16):
        a(f"v_exp_f32 v{S[0]+i}, v{S[0]+i}")
    a("s_nop 0")
    for i in range(8):
        a(f"v_cvt_pk_bf16_f32 v{P+i}, v{S[0]+2*i}, v{S[0]+2*i+1}")
    a(f"""
    s_nop 1
    {MF32} {vr(O,16)}, {vr(V,4)}, {vr(P,4)}, {vr(O,16)}
    {MF32} {vr(O,16)}, {vr(V+4,4)}, {vr(P+4,4)}, {vr(O,16)}
    s_add_u32 s{sT}, s{sT}, 1
    s_cmp_lt_u32 s{sT}, 64
    s_nop 15
    s_cbranch_scc1 C_s2
    """)
    bcast_l(a, O + 12, O, T + 4)
    a(f"s_cmp_eq_u32 s{sC}, 0\n s_cbranch_scc1 C_fin")
    for i in range(8):
        a(f"v_mov_b32 v{O+i}, v{O+8+i}")
    a("s_branch C_fin")

def gen_helper(a):
    AQ, AKp, AKc, AVp, AVc, O, HP, T, SP, SC = 28, 36, 44, 52, 56, 64, 80, 104, 108, 124
    sRT = sHRT
    nb = [0]
    def bar():
        k = nb[0]; nb[0] += 1
        if OPT["hst"]: lstamp(a, k)
        a("s_barrier")
        if OPT["hst"]: lstamp(a, 16 + k)
    regs = [SP + 8 + i for i in range(8)] + [SC + i for i in range(16)]
    def wo(srdn, lbase, i0, i1, tag):
        a(f"s_lshr_b32 s22, s{sM}, 2")
        for i in range(i0, i1):
            a(f"s_add_u32 m0, s22, {lbase + (i-i0)*4096}\n s_mov_b32 s{T0}, {i*32*896}")
            a.vm(f"buffer_load_dwordx4 v{vWo}, {sr(srdn)}, s{T0} offen lds", tag)
    a.q = []
    stamp(a, 5)
    a("s_setprio 3\n s_barrier")
    kv(a, 1)
    st = qkv_stores(HP, T0 + 1)
    n0 = OPT["sa0"]
    for l in st[:n0]: a.vm(l, "sa")
    a(f"""
    s_mul_i32 s{T0+10}, s{sRT}, {RT}
    s_add_u32 s{T0+10}, s{T0+10}, s{sKb}
    """)
    pf = []
    if OPT["wpf"]:
        a(f"""
        s_lshl_b32 s3, s{sJ}, 2
        s_add_u32 s3, s3, s{sR}
        s_mul_i32 s3, s3, {25*128}
        s_min_u32 s3, s3, {WO_BYTES - 25*128}
        s_add_u32 s4, s{sWoB}, s3
        s_addc_u32 s5, s{sWoB+1}, 0
        s_add_u32 s6, s{sWoA}, s3
        s_addc_u32 s7, s{sWoA+1}, 0
        """)
        pf = [f"s_load_dword s17, s[{b}:{b+1}], {i*128}" for b in (4, 6) for i in range(25)]
    def pfb(n):
        for _ in range(n):
            if pf: a(pf.pop(0))
    a.wait("kv1"); bar(); kv(a, 2)
    for l in st[n0:]: a.vm(l, "sa")
    a(f"""
    s_lshl_b32 s16, s{T0+5}, {FS}
    s_add_u32 s16, s16, {FA}
    v_mov_b32 v{O}, -1
    v_mov_b32 v{O+1}, -1
    v_mov_b32 v{O+2}, -1
    v_mov_b32 v{O+3}, -1
    s_add_u32 s13, s{T0+10}, {BR + OU}
    """)
    pfb(13)
    a.wait("kv2"); bar(); kv(a, 3)
    a.wait("sa")
    set_flag(a, 16, T)
    store_units(a, O, True, 13, 0)
    store_units(a, O, False, 13, 1024)
    a.q += ["po"] * 3
    pfb(13)
    a.wait("kv3"); bar(); kv(a, 4)
    pfb(12)
    poll(a, vFa, T)
    a(f"""
    s_mul_i32 s{T0}, s{sRT}, {RT}
    s_cmp_eq_u32 s{sRT}, 0
    s_cselect_b32 s3, 0, {RT}
    s_sub_u32 s{T0+1}, s{T0}, s3
    s_add_u32 s{T0+2}, s{T0+10}, {KU}
    s_add_u32 s{T0+3}, s{T0+1}, s{sKb}
    s_add_u32 s{T0+3}, s{T0+3}, {KU}
    """)
    for (r, so) in ((AQ, T0 + 10), (AKc, T0 + 2), (AKp, T0 + 3)):
        a.vm(f"buffer_load_dwordx4 {vr(r,4)}, v{vL16}, {sr(sWS)}, s{so} offen sc1", "loc")
        a.vm(f"buffer_load_dwordx4 {vr(r+4,4)}, v{vL16}, {sr(sWS)}, s{so} offen offset:1024 sc1", "loc")
    a(f"""
    s_add_u32 s{T0}, s{T0}, s{sVb}
    s_add_u32 s{T0}, s{T0}, {VU}
    s_add_u32 s{T0+2}, s{T0}, 14336
    s_add_u32 s{T0+1}, s{T0+1}, s{sVb}
    s_add_u32 s{T0+1}, s{T0+1}, {VU + 14336}
    """)
    a.vm(f"buffer_load_dwordx4 {vr(AVc,4)}, v{vVs}, {sr(sWS)}, s{T0} offen sc1", "loc")
    a.vm(f"buffer_load_dwordx4 {vr(AVc+4,4)}, v{vVs}, {sr(sWS)}, s{T0+2} offen sc1", "loc")
    a.vm(f"buffer_load_dwordx4 {vr(AVp,4)}, v{vVs}, {sr(sWS)}, s{T0+1} offen sc1", "loc")
    bar(); kv(a, 5)
    pfb(12)
    a.wait("loc")
    zero_foreign(a, AQ)
    a(f"""
    s_nop 0
    {MF32} {vr(SP,16)}, {vr(AKp,4)}, {vr(AQ,4)}, 0
    {MF32} {vr(SC,16)}, {vr(AKc,4)}, {vr(AQ,4)}, 0
    {MF32} {vr(SP,16)}, {vr(AKp+4,4)}, {vr(AQ+4,4)}, {vr(SP,16)}
    {MF32} {vr(SC,16)}, {vr(AKc+4,4)}, {vr(AQ+4,4)}, {vr(SC,16)}
    s_nop 11
    """)
    G = NG
    for i in range(12):
        a(f"v_bitop3_b32 v{regs[2*i]}, v{vPar}, v{regs[2*i+1]}, v{regs[2*i]} bitop3:0xca")
    for i in range(12):
        a(f"v_bitop3_b32 v{G + i%4}, v{regs[2*i]}, v{VM+i}, v{G + i%4} bitop3:0xea")
    a(f"""
    v_max3_f32 v{T}, v{G}, v{G+1}, v{G+2}
    v_max_f32 v{T}, v{T}, v{G+3}
    v_mov_b32 v{T+1}, v{T}
    s_nop 1
    v_permlane32_swap_b32 v{T}, v{T+1}
    s_nop 1
    v_max_f32 v{T}, v{T}, v{T+1}
    """)
    for g in range(4): a(f"v_sub_f32 v{G+g}, v{G+g}, v{T}")
    for g in range(4): a(f"v_exp_f32 v{G+g}, v{G+g}")
    a(f"""
    s_nop 0
    v_add_f32 v{T}, v{G}, v{G+1}
    v_add_f32 v{T+1}, v{G+2}, v{G+3}
    v_add_f32 v{T}, v{T}, v{T+1}
    v_mov_b32 v{T+1}, v{T}
    s_nop 1
    v_permlane32_swap_b32 v{T}, v{T+1}
    s_nop 1
    v_add_f32 v{T}, v{T}, v{T+1}
    v_rcp_f32 v{T}, v{T}
    s_nop 0
    """)
    for g in range(4): a(f"v_mul_f32 v{G+g}, v{G+g}, v{T}")
    for g in range(4): a(f"v_cvt_pk_bf16_f32 v{G+g}, v{G+g}, v{G+g}")
    PM = VM
    for i in range(12):
        a(f"v_bitop3_b32 v{PM+i}, v{PM+i}, v{G + i%4}, v{vHalf} bitop3:0x80")
    O2 = SP
    a(f"""
    s_nop 1
    {MF32} {vr(O2,16)}, {vr(AVp,4)}, {vr(PM,4)}, 0
    {MF32} {vr(O2,16)}, {vr(AVc,4)}, {vr(PM+4,4)}, {vr(O2,16)}
    {MF32} {vr(O2,16)}, {vr(AVc+4,4)}, {vr(PM+8,4)}, {vr(O2,16)}
    s_add_u32 s{T0+10}, s{T0+10}, {OU}
    s_nop 11
    """)
    for i in range(8):
        a(f"v_cvt_pk_bf16_f32 v{O2+i}, v{O2+2*i}, v{O2+2*i+1}")
    a("s_nop 1")
    for g in (0, 4):
        a(f"v_permlane32_swap_b32 v{O2+g}, v{O2+g+2}\n v_permlane32_swap_b32 v{O2+g+1}, v{O2+g+3}")
    store_units(a, O2, True, T0 + 10, 0)
    store_units(a, O2 + 4, False, T0 + 10, 1024)
    a.q += ["oa"] * 3
    a.wait("kv5"); bar(); kv(a, 6)
    a(f"""
    s_lshl_b32 s3, s{sRT}, 4
    s_add_u32 s3, s3, s{sH}
    s_lshl_b32 s3, s3, {FS}
    s_add_u32 s{T0+10}, s3, {FO}
    """)
    a.wait("oa")
    set_flag(a, T0 + 10, T)
    wo(sWoB, WOB_L, 0, 6, "wob")
    OFA, ACC, WB, T = 28, 84, 116, 160
    a(f"""
    s_and_b32 s3, s{sR}, 1
    s_lshl_b32 s{sRT}, s{sRBK}, 1
    s_add_u32 s{sRT}, s{sRT}, s3
    s_lshr_b32 s{sC}, s{sR}, 1
    s_lshl_b32 s3, s{sRT}, 1
    s_add_u32 s3, s3, s{sC}
    s_lshl_b32 s14, s3, {3+FS}
    s_add_u32 s14, s14, {FO}
    s_mul_i32 s13, s3, {RT//2}
    s_add_u32 s13, s13, {OU}
    s_lshl_b32 s{T0+10}, s{sCG3}, 7
    s_lshl_b32 s3, s{sC}, 6
    s_add_u32 s{T0+10}, s{T0+10}, s3
    s_mul_i32 s3, s{sRT}, {32*1792}
    s_add_u32 s{T0+10}, s{T0+10}, s3
    """)
    a.wait("kv6"); bar(); kv(a, 7)
    wo(sWoB, WOB_L + 6 * 4096, 6, 14, "wob")
    a.vm(f"buffer_load_dwordx2 {vr(T+6,2)}, v{vPo}, {sr(sWS)}, s14 offen sc1", "fl")
    def ofa(i0, i1):
        for i in range(i0, i1):
            if i and i % 4 == 0:
                a(f"s_add_u32 s13, s13, 4096")
            a.vm(f"buffer_load_dwordx4 {vr(OFA+4*i,4)}, v{vL16}, {sr(sWS)}, s13 offen offset:{(i%4)*1024} sc1", f"ofa{i}")
    a.wait("kv7"); bar()
    a.wait_all()
    a(f"""
    v_cmp_ne_u64 vcc, {sr(sTAG,2)}, {vr(T+6,2)}
    s_cmp_eq_u64 vcc, 0
    s_cbranch_scc1 H_ok2
    """)
    poll(a, vPo, T + 6, "s14")
    a(f"""
    H_ok2:
    s_lshl_b32 s3, s{sR}, 2
    s_add_u32 s3, s3, {HFL_L}
    v_mov_b32 v{T}, s3
    v_xor_b32 v{T+1}, 8, v{T}
    v_mov_b32 v{T+2}, 0
    s_mov_b64 exec, 1
    ds_write_b32 v{T}, v{T+2}
    s_mov_b64 exec, -1
    """)
    wo(sWoA, WOA_L[0], 0, 7, "woa")
    ofa(0, 9)
    bar()
    wo(sWoA, WOA_L[1], 7, 14, "woa")
    ofa(9, 14)
    a("s_barrier")
    a(f"s_cmp_ge_u32 s{sJ}, 28\n s_cbranch_scc1 H_idle")
    a.wait("woa", " lgkmcnt(0)")
    stamp(a, 8)
    a("s_barrier")
    if OPT["prof"]: a("s_waitcnt lgkmcnt(0)")
    NB = 4
    def rd(i):
        for c in range(2):
            for j in range(2):
                a(f"ds_read_b64_tr_b16 {vr(WB+8*(i%NB)+4*c+2*j,2)}, v{vWa+c} offset:{(16*i+4*j)*128}")
    for i in range(NB - 1): rd(i)
    for i in range(14):
        a.wait(f"ofa{i}", f" lgkmcnt({4*min(NB-2, 13-i)})")
        for c in range(2):
            cin = "0" if i == 0 else vr(ACC + 16 * c, 16)
            a(f"{MF32} {vr(ACC+16*c,16)}, {vr(WB+8*(i%NB)+4*c,4)}, {vr(OFA+4*i,4)}, {cin}")
        if i + NB - 1 < 14:
            rd(i + NB - 1)
    a(f"""
    s_cmp_eq_u32 s{sC}, 0
    s_nop 10
    s_cbranch_scc1 H_y0
    """)
    for i in range(4):
        a(f"ds_write_b128 v{vXa}, {vr(ACC+4*i,4)} offset:{i*1024}")
    a("s_branch H_y1\n H_y0:")
    for i in range(4):
        a(f"ds_write_b128 v{vXa}, {vr(ACC+16+4*i,4)} offset:{i*1024}")
    a("H_y1:\n s_waitcnt lgkmcnt(0)")
    stamp(a, 9)
    a(f"""
    v_mov_b32 v{T+2}, 1
    s_mov_b64 exec, 1
    ds_write_b32 v{T}, v{T+2}
    s_mov_b32 s23, {SPIN * 8}
    H_pw:
    ds_read_b32 v{T+2}, v{T+1}
    s_waitcnt lgkmcnt(0)
    v_readfirstlane_b32 s3, v{T+2}
    s_sub_u32 s23, s23, 1
    s_cbranch_scc1 H_pwx
    s_cmp_eq_u32 s3, 0
    s_cbranch_scc1 H_pw
    H_pwx:
    s_mov_b64 exec, -1
    s_cmp_eq_u32 s{sC}, 0
    """)
    for i in range(4):
        a(f"ds_read_b128 {vr(OFA+4*i,4)}, v{vXa+1} offset:{i*1024}")
    a(f"s_waitcnt lgkmcnt(0)\n s_cbranch_scc1 H_z0")
    for i in range(16):
        a(f"v_add_f32 v{OFA+i}, v{ACC+16+i}, v{OFA+i}")
    a("s_branch H_z1\n H_z0:")
    for i in range(16):
        a(f"v_add_f32 v{OFA+i}, v{ACC+i}, v{OFA+i}")
    a("H_z1:")
    for i in range(8):
        a(f"v_cvt_pk_bf16_f32 v{OFA+i}, v{OFA+2*i}, v{OFA+2*i+1}")
    a("s_nop 1")
    for g in (0, 4):
        a(f"v_permlane32_swap_b32 v{OFA+g}, v{OFA+g+2}\n v_permlane32_swap_b32 v{OFA+g+1}, v{OFA+g+3}")
    osc = ("", " sc1", " nt", " sc0 sc1")[OPT["outsc"]]
    a(f"buffer_store_dwordx4 {vr(OFA,4)}, v{vOa}, {sr(sOUT)}, s{T0+10} offen{osc}")
    a(f"buffer_store_dwordx4 {vr(OFA+4,4)}, v{vOa}, {sr(sOUT)}, s{T0+10} offen offset:32{osc}")
    a("H_exit:")
    dump(a)
    a("s_endpgm")
    a(f"""
    H_idle:
    s_cmp_lg_u32 s2, 255
    s_cbranch_scc1 H_exit
    s_cmp_lg_u32 s{sW}, 4
    s_cbranch_scc1 H_exit
    v_lshlrev_b32 v{T}, {FS}, v0
    s_mov_b32 s{T0+11}, {SPIN}
    H_ep:
    """)
    for i in range(4):
        a(f"s_mov_b32 s3, {FB + (i*64 << FS)}\n buffer_load_dwordx2 {vr(OFA+2*i,2)}, v{T}, {sr(sWS)}, s3 offen sc1")
    a(f"s_waitcnt vmcnt(0)\n s_mov_b64 s[4:5], 0")
    for i in range(4):
        a(f"v_cmp_ne_u64 vcc, {sr(sTAG,2)}, {vr(OFA+2*i,2)}\n s_or_b64 s[4:5], s[4:5], vcc")
    a(f"""
    s_sub_u32 s{T0+11}, s{T0+11}, 1
    s_cbranch_scc1 H_epx
    s_cmp_lg_u64 s[4:5], 0
    s_cbranch_scc1 H_ep
    H_epx:
    v_mov_b32 v{T}, {EPOCH}
    v_mov_b32 v{T+1}, s{sTAG}
    s_mov_b64 exec, 1
    buffer_store_dword v{T+1}, v{T}, {sr(sWS)}, 0 offen sc1
    s_mov_b64 exec, -1
    s_branch H_exit
    """)

def main(out):
    a = gen()
    K = NAME + "_kernel"
    hdr = f"""; Fused QKV projection -> attention (A: dilated local window, B: full) -> output projection.
; @launch grid=(256,1,1) block=(768,1,1) lds=163840
.amdgcn_target "amdgcn-amd-amdhsa--gfx950"
.text
"""
    d = f""".section .rodata,"a"
.p2align 6
.amdhsa_kernel {K}
  .amdhsa_next_free_vgpr 168
  .amdhsa_next_free_sgpr 102
  .amdhsa_accum_offset 168
  .amdhsa_group_segment_fixed_size 0
  .amdhsa_kernarg_size 72
  .amdhsa_user_sgpr_count 2
  .amdhsa_user_sgpr_kernarg_segment_ptr 1
  .amdhsa_system_sgpr_workgroup_id_x 1
.end_amdhsa_kernel
"""
    open(out, "w").write(hdr + a.text() + d)

if __name__ == "__main__":
    for arg in sys.argv[2:]:
        k, v = arg.split("=")
        assert k in OPT
        OPT[k] = int(v)
    main(sys.argv[1])
```

```python
import sys, math, struct
NAME = "concat_heads__sliding_local_dilated__mha_block__prompt"
OPT = dict(prof=0, rot=7, prefetch=1, sleep=1, rts=0, outsc=2, wpf=0, sa0=3, hst=1, lst=1, krot=1, kd=9, apos=3, g5=0, p2=1, pads=1, delta=96, ipf=1, ipw=1, skip=1, tch=0, lsu=0, pp=11, padrt=0, padcy=0, padx=-1)

class Asm:
    def __init__(self):
        self.lines = []
        self.q = []
        self.uid = 0
    def __call__(self, s):
        for l in s.strip("\n").split("\n"):
            l = l.strip()
            if not l: continue
            self.lines.append(l if l.endswith(":") else "    " + l)
    def vm(self, s, tag):
        self(s); self.q.append(tag)
    def wait(self, tag, extra=""):
        if tag not in self.q:
            if extra: self(f"s_waitcnt{extra}")
            return
        idx = max(i for i, t in enumerate(self.q) if t == tag)
        n = len(self.q) - 1 - idx
        assert n <= 63
        self(f"s_waitcnt vmcnt({n}){extra}")
        self.q = self.q[idx + 1:]
    def wait_all(self, extra=""):
        self(f"s_waitcnt vmcnt(0){extra}"); self.q = []
    def lab(self, p):
        self.uid += 1
        return f"{p}_{self.uid}"
    def text(self):
        return "\n".join(self.lines) + "\n"

def vr(a, n): return f"v[{a}:{a+n-1}]"
def sr(a, n=4): return f"s[{a}:{a+n-1}]"
def f32bits(x): return struct.unpack("<I", struct.pack("<f", x))[0]
MF32 = "v_mfma_f32_32x32x16_bf16"
MF16 = "v_mfma_f32_16x16x32_bf16"

RT = 56 * 512
MAT = 64 * RT
BR = 4 * MAT
QU, KU, VU, OU = 0, MAT, 2 * MAT, 3 * MAT
FS = 7
FB = 2 * BR
FA = FB + (256 << FS)
FO = FA + (1024 << FS)
EPOCH = FO + (1024 << FS)
WS_USED = EPOCH + 0x1000
WS_OOB = 0x40000000
PROF_OFF = 0x1100000
X_BYTES, W_BYTES, WO_BYTES, OUT_BYTES = 2048 * 896, 448 * 2688, 448 * 896, 2048 * 1792
CSCALE = (28 ** -0.5) * math.log2(math.e)
DELTA = 24.0
SPIN = 1 << 18

sWS, sX, sWt, sOUT, sWoA, sWoB = 24, 28, 32, 36, 40, 44
sOo, sOf, sOb, sK3 = 48, 49, 50, 51
sW, sXCD, sJ, sRB, sCG, sACT, sH, sQB, sU0, sODD, sRBK, sCG3 = range(52, 64)
sTAG, sVM = 64, 66
T0 = 68
sR, sC, sWI = T0 + 8, T0 + 9, T0 + 10
NST = 10
def stamp(a, i, rt=False):
    if OPT["prof"]:
        assert i < NST
        a(f"{'s_memrealtime' if rt else 's_memtime'} s[{80+2*i}:{81+2*i}]")
def lstamp(a, idx):
    if OPT["prof"]:
        a(f"s_memtime s[100:101]\n s_mov_b32 m0, {idx}\n s_waitcnt lgkmcnt(0)\n v_writelane_b32 v1, s100, m0")
def dump(a):
    if not OPT["prof"]: return
    a(f"""
    s_mul_i32 s8, s2, 12
    s_add_u32 s8, s8, s{sW}
    s_lshl_b32 s8, s8, 8
    s_add_u32 s8, s8, {PROF_OFF + 0x100000}
    s_mov_b32 s{sWS+2}, 0x2000000
    s_waitcnt lgkmcnt(0) vmcnt(0)
    s_memtime s[4:5]
    s_memrealtime s[6:7]
    v_lshlrev_b32 v3, 2, v0
    buffer_store_dword v1, v3, {sr(sWS)}, s8 offen
    s_mul_i32 s8, s2, 12
    s_add_u32 s8, s8, s{sW}
    s_lshl_b32 s8, s8, 6
    s_add_u32 s8, s8, {PROF_OFF}
    s_waitcnt lgkmcnt(0) vmcnt(0)
    v_mov_b32 v1, 0
    s_mov_b64 exec, 1
    """)
    for i, s in enumerate([80 + 2 * i for i in range(NST)] + [4, 6]):
        a(f"v_mov_b32 v0, s{s}\n buffer_store_dword v0, v1, {sr(sWS)}, s8 offen offset:{4*i}\n s_nop 1")
    a("s_waitcnt vmcnt(0)")

def srd(a, d, lo, nbytes):
    nb = nbytes if isinstance(nbytes, str) else hex(nbytes)
    a(f"s_mov_b32 s{d}, s{lo}\n s_and_b32 s{d+1}, s{lo+1}, 0xffff\n s_mov_b32 s{d+2}, {nb}\n s_mov_b32 s{d+3}, 0x20000")

def poll(a, vaddr, vt, soff="0"):
    L = a.lab("poll")
    a(f"""
    s_mov_b32 s{T0+11}, {SPIN}
    {L}:
    buffer_load_dwordx2 {vr(vt,2)}, v{vaddr}, {sr(sWS)}, {soff} offen sc1
    s_waitcnt vmcnt(0)
    v_cmp_ne_u64 vcc, {sr(sTAG,2)}, {vr(vt,2)}
    s_sub_u32 s{T0+11}, s{T0+11}, 1
    s_cbranch_scc1 {L}_x
    s_cmp_eq_u64 vcc, 0
    s_cbranch_scc1 {L}_x
    s_sleep {OPT['sleep']}
    s_branch {L}
    {L}_x:
    """)
    a.q = []

def set_flag(a, soff, vt):
    a(f"""
    v_mov_b32 v{vt}, s{sTAG}
    v_mov_b32 v{vt+1}, s{sTAG+1}
    s_mov_b64 exec, 1
    """)
    a.vm(f"buffer_store_dwordx2 {vr(vt,2)}, v{vL16}, {sr(sWS)}, s{soff} offen sc1", "flag")
    a("s_mov_b64 exec, -1")

def zero_foreign(a, q):
    L = a.lab("zf")
    a(f"""
    s_cmp_eq_u32 s{sODD}, 0
    s_cbranch_scc1 {L}_e
    s_mov_b32 exec_hi, 0
    v_mov_b32 v{q}, 0
    v_mov_b32 v{q+1}, 0
    s_branch {L}_x
    {L}_e:
    s_mov_b32 exec_lo, 0
    v_mov_b32 v{q+6}, 0
    v_mov_b32 v{q+7}, 0
    {L}_x:
    s_mov_b64 exec, -1
    """)

SLOT = 32768
def pslot(s): return (4, 3, 2)[s % 3] * SLOT
WOA_L = (2 * SLOT, 4 * SLOT)
WOB_L = 0
QST_L = 2 * SLOT
XC1_L = 448 * 128
XC2_L = 3 * SLOT
XHA_L = 3 * SLOT + 16384
XFI_L = 3 * SLOT
HFL_L = 2 * SLOT + 28672
vL16 = 2

def p1_role(a, bi):
    a(f"""
    s_lshr_b32 s{sRB}, s{sXCD}, 1
    s_lshl_b32 s{sRB}, s{sRB}, 3
    s_and_b32 s3, s{sJ}, 7
    s_add_u32 s{sRB}, s{sRB}, s3
    s_xor_b32 s3, s{sXCD}, {bi}
    s_and_b32 s3, s3, 1
    s_lshl_b32 s3, s3, 2
    s_lshr_b32 s{sCG}, s{sJ}, 3
    s_add_u32 s{sCG}, s{sCG}, s3
    s_cmp_lt_u32 s{sCG}, 7
    s_cselect_b32 s{sACT}, 1, 0
    """)

def roles(a):
    a(f"""
    s_lshr_b32 s{sCG3}, s{sJ}, 2
    s_min_u32 s{sCG3}, s{sCG3}, 6
    s_and_b32 s3, s{sJ}, 3
    s_lshl_b32 s{sRBK}, s{sXCD}, 2
    s_add_u32 s{sRBK}, s{sRBK}, s3
    s_lshl_b32 s{sH}, s{sXCD}, 1
    s_lshr_b32 s{sODD}, s{sJ}, 4
    s_add_u32 s{sH}, s{sH}, s{sODD}
    s_and_b32 s{sQB}, s{sJ}, 15
    s_mul_i32 s{sU0}, s{sH}, 7
    s_lshr_b32 s{sU0}, s{sU0}, 1
    s_cmp_eq_u32 s{sODD}, 0
    s_cselect_b32 s{sVM}, 0x0fffffff, 0xfffffff0
    s_mov_b32 s{sVM+1}, s{sVM}
    v_lshlrev_b32 v{vL16}, 4, v0
    """)

def gen():
    a = Asm()
    K = NAME + "_kernel"
    a.lines.append(f".globl {K}\n.p2align 8\n.type {K},@function\n{K}:")
    a(f"""
    s_load_dwordx16 s[4:19], s[0:1], 0
    s_load_dwordx2 s[20:21], s[0:1], 64
    s_cmp_ge_u32 s2, 256
    s_cbranch_scc1 L_end
    """)
    stamp(a, 0, rt=True); stamp(a, 1)
    if OPT["padrt"]: a("s_memrealtime s[96:97]")
    if OPT["padcy"]: a("s_memtime s[96:97]")
    a(f"""
    v_lshrrev_b32 v1, 6, v0
    v_and_b32 v0, 63, v0
    s_and_b32 s{sXCD}, s2, 7
    v_readfirstlane_b32 s{sW}, v1
    s_lshr_b32 s{sJ}, s2, 3
    s_nop 1
    s_and_b32 s{sR}, s{sW}, 3
    s_lshr_b32 s{sC}, s{sW}, 2
    """)
    if OPT["pads"]:
        a(f"""
        s_cmp_lt_u32 s{sW}, 2
        s_cbranch_scc1 L_gemm
        s_cmp_lt_u32 s{sW}, 4
        s_cbranch_scc1 L_pad0
        s_cmp_lt_u32 s{sW}, 6
        s_cbranch_scc1 L_pad1
        s_cmp_lt_u32 s{sW}, 8
        s_cbranch_scc1 L_pad2
        """)
    else:
        a(f"s_cmp_lt_u32 s{sW}, 8\n s_cbranch_scc1 L_gemm")
    gen_loader(a)
    gen_bskip(a)
    a("L_gemm:")
    gen_gemm(a)
    gen_publish(a)
    gen_attn(a)
    a("L_helper:")
    gen_helper(a)
    a("L_end:\n s_endpgm")
    a(".p2align 4\n L_ones:\n .long 0x3f803f80, 0x3f803f80, 0x3f803f80, 0x3f803f80")
    a("L_code_end:")
    return a

def make_tag(a, vt):
    a(f"""
    v_readfirstlane_b32 s{sTAG}, v{vt}
    s_nop 3
    s_mul_i32 s{sTAG}, s{sTAG}, 0x9e3779b1
    s_add_u32 s{sTAG}, s{sTAG}, 0x7f4a7c15
    s_not_b32 s{sTAG+1}, s{sTAG}
    """)

def finalize(a, o, n, l):
    a(f"v_rcp_f32 v{l}, v{l}\n s_nop 0")
    for i in range(n):
        a(f"v_mul_f32 v{o+i}, v{l}, v{o+i}")
    for i in range(n // 2):
        a(f"v_cvt_pk_bf16_f32 v{o+i}, v{o+2*i}, v{o+2*i+1}")
    a("s_nop 1")
    for g in range(0, n // 2, 4):
        a(f"v_permlane32_swap_b32 v{o+g}, v{o+g+2}\n v_permlane32_swap_b32 v{o+g+1}, v{o+g+3}")

def bcast_l(a, src_e, src_o, t):
    L = a.lab("bl")
    a(f"""
    s_cmp_eq_u32 s{sODD}, 0
    s_cbranch_scc1 {L}_e
    v_mov_b32 v{t}, v{src_o}
    v_mov_b32 v{t+1}, v{src_o}
    s_nop 1
    v_permlane32_swap_b32 v{t}, v{t+1}
    s_branch {L}_x
    {L}_e:
    v_mov_b32 v{t}, v{src_e}
    v_mov_b32 v{t+1}, v{src_e}
    s_nop 1
    v_permlane32_swap_b32 v{t+1}, v{t}
    {L}_x:
    s_nop 1
    """)

def store_units(a, p, first, soff, off):
    L = a.lab("su")
    full = f"buffer_store_dwordx4 {vr(p,4)}, v{vL16}, {sr(sWS)}, s{soff} offen offset:{off} sc1"
    if first:
        a(f"""
        s_cmp_eq_u32 s{sODD}, 0
        s_cbranch_scc1 {L}_f
        s_mov_b32 exec_hi, 0
        buffer_store_dwordx2 {vr(p+2,2)}, v{vL16}, {sr(sWS)}, s{soff} offen offset:{off+8} sc1
        s_not_b64 exec, exec
        {L}_f:
        {full}
        s_mov_b64 exec, -1
        """)
    else:
        a(f"""
        s_cmp_eq_u32 s{sODD}, 1
        s_cbranch_scc1 {L}_f
        s_mov_b32 exec_lo, 0
        buffer_store_dwordx2 {vr(p,2)}, v{vL16}, {sr(sWS)}, s{soff} offen offset:{off} sc1
        s_not_b64 exec, exec
        {L}_f:
        {full}
        s_mov_b64 exec, -1
        """)

def dma_lanes(a, d, t):
    a(f"""
    v_lshrrev_b32 v{t}, 3, v0
    v_and_b32 v{t+1}, 7, v0
    v_lshrrev_b32 v{t+2}, 4, v0
    s_lshl_b32 s3, s{sR}, 4
    v_add_u32 v{t}, s3, v{t}
    v_mul_u32_u24 v{d+2}, 2688, v{t}
    v_mul_u32_u24 v{t}, 896, v{t}
    v_xor_b32 v{d}, v{t+1}, v{t+2}
    v_lshlrev_b32 v{d}, 4, v{d}
    v_add_u32 v{d}, v{t}, v{d}
    v_add_u32 v{d+1}, {8*896}, v{d}
    v_xor_b32 v{d+1}, 64, v{d+1}
    v_and_b32 v{t}, 1, v{t+2}
    v_lshlrev_b32 v{t}, 2, v{t}
    v_xor_b32 v{t}, v{t}, v{t+1}
    v_lshlrev_b32 v{t}, 4, v{t}
    v_add_u32 v{d+2}, v{d+2}, v{t}
    """)
def dma_tile(a, sCH, sXb, sWb, t, px):
    a(f"""
    s_cmp_lg_u32 s{sACT}, 0
    s_cselect_b32 s{t}, {X_BYTES}, 0
    s_cselect_b32 s{t+1}, {W_BYTES}, 0
    s_mul_i32 s{sXb}, s{sRB}, {64*896}
    s_lshl_b32 s{sWb}, s{sCG}, 7
    """)
    if sCH is not None:
        a(f"""
        s_and_b32 s3, s{sCG}, 3
        s_lshl_b32 s3, s3, 1
        s_and_b32 s{sCH}, s{sRB}, 7
        s_add_u32 s{sCH}, s{sCH}, s3
        s_cmp_ge_u32 s{sCH}, 7
        s_cselect_b32 s3, 7, 0
        s_sub_u32 s{sCH}, s{sCH}, s3
        """)
def dma_stage(a, d, sCH, sXb, sWb, sSl, t, fill):
    a(f"""
    s_lshl_b32 s{t}, s{sCH}, 7
    s_mov_b32 m0, s{sSl}
    s_add_u32 s{t}, s{t}, s{sXb}
    s_mul_i32 s{t+1}, s{sCH}, {64*2688}
    buffer_load_dwordx4 v{d}, {sr(sX)}, s{t} offen lds
    s_add_u32 m0, s{sSl}, 1024
    s_add_u32 s{t+1}, s{t+1}, s{sWb}
    buffer_load_dwordx4 v{d+1}, {sr(sX)}, s{t} offen lds
    """)
    fill = list(fill) + [""] * 6
    for p in (1, 2, 0):
        for i in range(2):
            a(f"s_add_u32 m0, s{sSl}, {8192 + p*8192 + i*1024}")
            a(f"s_add_u32 s{t}, s{t+1}, {p*896 + i*8*2688}")
            a(f"buffer_load_dwordx4 v{d+2}, {sr(sWt)}, s{t} offen lds")
            a(fill.pop(0))

def gen_loader(a):
    sCH, sSl, sN, sXb, sWb = 40, T0 + 7, T0 + 6, T0 + 5, T0 + 4
    a("s_setprio 3")
    def pad(i):
        if OPT["pads"]: a(f"s_cmp_lg_u32 0, 0\n L_pad{i}:\n s_cbranch_scc1 L_gemm")
    dma_lanes(a, 4, 8)
    p1_role(a, 0)
    pad(0)
    dma_tile(a, sCH, sXb, sWb, T0, 10)
    a(f"""
    s_lshl_b32 s{sSl}, s{sR}, 11
    s_mov_b32 s{sN}, 0
    s_waitcnt lgkmcnt(0)
    """)
    srd(a, sX, 10, f"s{T0}")
    srd(a, sWt, 12, f"s{T0+1}")
    pad(1)
    nxt = [f"s_add_u32 s{sCH}, s{sCH}, 1", f"s_cmp_eq_u32 s{sCH}, 7\n s_cselect_b32 s{sCH}, 0, s{sCH}"]
    def late():
        roles(a)
        attn_setup(a, 1)
        srd(a, sWS, 20, WS_USED)
        srd(a, sOUT, 16, OUT_BYTES)
        a(f"s_mov_b32 s{sC}, 1")
    if OPT["lsu"] == 0:
        dma_stage(a, 4, sCH, sXb, sWb, sSl, T0, nxt + ([f"s_cmp_lg_u32 0, 0\n L_pad2:\n s_cbranch_scc1 L_gemm"] if OPT["pads"] else []))
        lstamp(a, 0)
        a(f"s_add_u32 s{sSl}, s{sSl}, {SLOT}\n s_mov_b32 s{sN}, 1")
        late()
        if OPT["skip"]:
            a(f"""
            s_cmp_lg_u32 s{sACT}, 0
            s_cbranch_scc1 H1_loop
            s_cmp_eq_u32 s{sCH}, 0
            s_cselect_b32 s{sCH}, 7, s{sCH}
            s_sub_u32 s{sCH}, s{sCH}, 1
            s_barrier
            s_branch H1_sw
            """)
    a("H1_loop:")
    dma_stage(a, 4, sCH, sXb, sWb, sSl, T0, nxt + [f"s_add_u32 s{sN}, s{sN}, 1"])
    a(f"""
    s_add_u32 s{sSl}, s{sSl}, {SLOT}
    s_and_b32 s{sSl}, s{sSl}, {4*SLOT-1}
    """)
    if OPT["lsu"]: a(f"s_cmp_eq_u32 s{sN}, 1\n s_cbranch_scc1 H1_loop")
    a("s_waitcnt vmcnt(8)\n s_barrier")
    if OPT["prof"] and OPT["lst"]:
        a(f"s_add_u32 s3, s{sN}, 31"); lstamp(a, "s3")
    a(f"s_cmp_lg_u32 s{sN}, 7\n s_cbranch_scc1 H1_same\n H1_sw:")
    p1_role(a, 1)
    dma_tile(a, None, sXb, sWb, T0, 4)
    srd(a, sX, 4, f"s{T0}")
    srd(a, sWt, 6, f"s{T0+1}")
    for l in nxt: a(l)
    a(f"""
    s_lshl_b32 s{sSl}, s{sR}, 11
    s_mov_b32 s{sN}, 8
    H1_same:
    s_cmp_lt_u32 s{sN}, 14
    s_cbranch_scc1 H1_loop
    """)
    if OPT["lsu"]: late()
    a("s_waitcnt vmcnt(0)\n s_barrier")
    stamp(a, 2)
    a("s_branch C_attn")

vVs, vWo, vFa, vPo, vWa, vOa, vXa, vPar, vHalf, VM, NG, vZ = 15, 16, 17, 18, 19, 21, 22, 24, 25, 144, 156, 9
sKb, sVb, sTile, sM, sHRT = 8, 9, 10, 11, 12
def kv_setup(a, first):
    sRT = sHRT
    a(f"""
    s_lshl_b32 s{sM}, s{sR}, 12
    s_lshl_b32 s{sKb}, s{sU0}, 9
    s_lshl_b32 s{sVb}, s{sU0}, 7
    s_lshl_b32 s{sRT}, s{sQB}, 2
    s_add_u32 s{sRT}, s{sRT}, s{sR}
    s_and_b32 s{sTile}, s{sQB}, {OPT["rot"]}
    s_add_u32 s{sTile}, s{sTile}, {first}
    s_lshl_b32 s{sTile}, s{sTile}, 3
    s_lshl_b32 s3, s{sR}, 1
    s_add_u32 s{sTile}, s{sTile}, s3
    s_and_b32 s{sTile}, s{sTile}, 63
    """)
def kv(a, s):
    base = pslot(s)
    a(f"""
    s_mul_i32 s{T0}, s{sTile}, {RT}
    s_add_u32 m0, s{sM}, {base}
    s_add_u32 s22, s{T0}, s{sKb}
    s_add_u32 s22, s22, {BR + KU}
    """)
    a.vm(f"buffer_load_dwordx4 v{vL16}, {sr(sWS)}, s22 offen sc1 lds", f"kv{s}")
    a(f"s_add_u32 s23, s22, {RT - 2048}")
    a.vm(f"buffer_load_dwordx4 v{vL16}, {sr(sWS)}, s22 offen offset:1024 sc1 lds", f"kv{s}")
    a(f"s_add_u32 s{T0}, s{T0}, s{sVb}")
    a.vm(f"buffer_load_dwordx4 v{vL16}, {sr(sWS)}, s23 offen offset:2048 sc1 lds", f"kv{s}")
    a(f"s_add_u32 s{T0}, s{T0}, {BR + VU}")
    a.vm(f"buffer_load_dwordx4 v{vL16}, {sr(sWS)}, s23 offen offset:3072 sc1 lds", f"kv{s}")
    a(f"s_add_u32 m0, s{sM}, {base + 16384}\n s_mov_b64 exec, {sr(sVM,2)}")
    for i in range(4):
        a.vm(f"buffer_load_dwordx4 v{vVs}, {sr(sWS)}, s{T0} offen offset:{i*1024} sc1 lds", f"kv{s}")
        if i < 3: a(f"s_add_u32 s{T0}, s{T0}, {14336 - 1024}")
    if s in (0, 1, 2):
        a("s_not_b64 exec, exec")
        for i in range(4):
            a.vm(f"global_load_lds_dwordx4 v{vZ}, s[18:19]", f"kv{s}")
            if i < 3: a(f"s_add_u32 m0, s{sM}, {base + 16384 + (i+1)*1024}\n s_nop 0")
    a(f"""
    s_mov_b64 exec, -1
    s_add_u32 s{sTile}, s{sTile}, 8
    s_and_b32 s{sTile}, s{sTile}, 63
    """)
def helper_setup(a, part):
    T = 160; sRT = sHRT
    if part == 0:
        kv_setup(a, 1)
        a(f"""
        v_bfe_u32 v{T}, v0, 3, 1
        v_mul_u32_u24 v{T}, 3, v{T}
        v_add_u32 v{T}, s{sU0}, v{T}
        v_lshrrev_b32 v{T+3}, 2, v{T}
        v_lshlrev_b32 v{T+3}, 6, v{T+3}
        s_cmp_eq_u32 s{sRT}, 0
        s_cselect_b32 s3, 0, 1
        v_and_b32 v{T+2}, s3, v0
        v_sub_u32 v{T+2}, s{sRT}, v{T+2}
        v_add_u32 v{T+2}, v{T+2}, v{T+3}
        v_lshlrev_b32 v{T+2}, {FS}, v{T+2}
        v_add_u32 v{vFa}, {FA}, v{T+2}
        """)
    if part == 1:
        a(f"""
        v_lshrrev_b32 v{T}, 3, v0
        s_lshl_b32 s3, s{sR}, 3
        v_add_u32 v{T+1}, s3, v{T}
        v_mul_u32_u24 v{T+1}, 896, v{T+1}
        v_and_b32 v{T}, 2, v{T}
        s_and_b32 s3, s{sR}, 1
        v_or_b32 v{T}, s3, v{T}
        v_lshlrev_b32 v{T}, 1, v{T}
        v_and_b32 v{T+2}, 7, v0
        v_xor_b32 v{T}, v{T}, v{T+2}
        v_lshlrev_b32 v{T}, 4, v{T}
        v_add_u32 v{T+1}, v{T+1}, v{T}
        s_lshl_b32 s3, s{sCG3}, 7
        v_add_u32 v{vWo}, s3, v{T+1}
        v_lshlrev_b32 v{vPo}, {FS}, v{T+2}
        v_lshrrev_b32 v{T+1}, 2, v0
        v_and_b32 v{T+1}, 3, v{T+1}
        v_lshlrev_b32 v{T+2}, 3, v27
        v_add_u32 v{T+2}, v{T+2}, v{T+1}
        v_lshlrev_b32 v{T+2}, 7, v{T+2}
        v_and_b32 v{T+1}, 2, v{T+1}
        v_or_b32 v{T+1}, v{T+1}, v27
        v_bfe_u32 v{T+3}, v0, 4, 1
        v_xor_b32 v{T+1}, v{T+1}, v{T+3}
        v_lshlrev_b32 v{T+1}, 5, v{T+1}
        v_add_u32 v{T+2}, v{T+2}, v{T+1}
        v_and_b32 v{T+1}, 3, v0
        v_lshlrev_b32 v{T+1}, 3, v{T+1}
        v_add_u32 v{T+2}, v{T+2}, v{T+1}
        s_lshr_b32 s3, s{sR}, 1
        s_mul_i32 s3, s3, {WOA_L[1] - WOA_L[0]}
        s_add_u32 s3, s3, {WOA_L[0]}
        v_add_u32 v{vWa}, s3, v{T+2}
        v_xor_b32 v{vWa+1}, 64, v{vWa}
        v_mul_u32_u24 v{vOa}, 1792, v26
        v_lshlrev_b32 v{T}, 4, v27
        v_add_u32 v{vOa}, v{vOa}, v{T}
        s_add_u32 s3, s{sM}, {XHA_L}
        v_add_u32 v{vXa}, s3, v{vL16}
        v_xor_b32 v{vXa+1}, {2*4096}, v{vXa}
        """)
    if part == 2:
        a(f"""
        v_lshlrev_b32 v{T+1}, 2, v27
        v_and_b32 v{T}, 30, v0
        v_sub_u32 v{T}, v{T}, v{T+1}
        v_add_u32 v{T}, 18, v{T}
        v_mov_b32 v{T+2}, 0x5555
        v_mov_b32 v{T+3}, 0
        v_lshlrev_b64 {vr(T+2,2)}, v{T}, {vr(T+2,2)}
        s_cmp_eq_u32 s{sRT}, 0
        s_cselect_b32 s3, 0, -1
        v_and_b32 v{T+2}, s3, v{T+2}
        v_bfe_i32 v{vPar}, v0, 0, 1
        v_xor_b32 v{vHalf}, 0xffff, v{vPar}
        s_mov_b32 s3, 0xf149f2ca
        """)
        for i in range(12):
            pos = 16 + 8 * (i // 2) + 2 * (i % 2)
            a(f"v_bfe_i32 v{VM+i}, v{T+2 + pos//32}, {pos % 32}, 1")
        for g in range(4):
            a(f"v_bitop3_b32 v{NG+g}, v{VM+g}, v{VM+g+4}, v{VM+g+8} bitop3:0x01\n v_and_b32 v{NG+g}, s3, v{NG+g}")

def store_offsets(a, base, d):
    a(f"""
    s_lshl_b32 s{d+4}, s{sRB}, 1
    s_and_b32 s3, s{sR}, 1
    s_add_u32 s{d+4}, s{d+4}, s3
    s_mul_i32 s{d+3}, s{d+4}, {RT}
    s_cmp_eq_u32 s{sACT}, 0
    s_cselect_b32 s3, {WS_OOB}, 0
    s_add_u32 s{d+3}, s{d+3}, s3
    s_add_u32 s{d+3}, s{d+3}, {base}
    s_lshl_b32 s{d+2}, s{sCG}, 1
    s_lshr_b32 s3, s{sR}, 1
    s_add_u32 s{d+2}, s{d+2}, s3
    s_lshl_b32 s3, s{d+2}, 6
    s_add_u32 s{d+4}, s{d+4}, s3
    s_lshl_b32 s{d}, s{d+2}, 11
    s_add_u32 s{d}, s{d}, s{d+3}
    s_add_u32 s{d+1}, s{d}, {KU}
    s_lshl_b32 s{d+2}, s{d+2}, 9
    s_add_u32 s{d+2}, s{d+2}, s{d+3}
    s_add_u32 s{d+2}, s{d+2}, {VU}
    s_add_u32 s{d+3}, s{d+2}, 14336
    """)
def qkv_stores(p, d):
    return [f"buffer_store_dwordx4 {vr(p+16,4)}, v{vVs}, {sr(sWS)}, s{d+2} offen sc1",
            f"buffer_store_dwordx4 {vr(p+20,4)}, v{vVs}, {sr(sWS)}, s{d+3} offen sc1",
            f"buffer_store_dwordx4 {vr(p+8,4)}, v{vL16}, {sr(sWS)}, s{d+1} offen sc1",
            f"buffer_store_dwordx4 {vr(p+12,4)}, v{vL16}, {sr(sWS)}, s{d+1} offen offset:1024 sc1",
            f"buffer_store_dwordx4 {vr(p,4)}, v{vL16}, {sr(sWS)}, s{d} offen sc1",
            f"buffer_store_dwordx4 {vr(p+4,4)}, v{vL16}, {sr(sWS)}, s{d} offen offset:1024 sc1"]

def gen_gemm(a):
    vXA, vWA = 10, 14
    accQ, accK, accV = 32, 48, 64
    a(f"""
    v_and_b32 v26, 31, v0
    v_lshrrev_b32 v27, 5, v0
    v_lshrrev_b32 v28, 1, v26
    v_and_b32 v28, 7, v28
    v_xor_b32 v28, v28, v27
    v_lshlrev_b32 v28, 4, v28
    s_mul_i32 s{T0}, s{sC}, {4*SLOT}
    s_and_b32 s3, s{sW}, 1
    s_lshl_b32 s3, s3, 12
    s_add_u32 s3, s3, s{T0}
    v_lshlrev_b32 v29, 7, v26
    v_add_u32 v29, s3, v29
    v_add_u32 v{vXA}, v29, v28
    v_xor_b32 v{vXA+1}, 32, v{vXA}
    v_xor_b32 v{vXA+2}, 64, v{vXA}
    v_xor_b32 v{vXA+3}, 96, v{vXA}
    s_lshr_b32 s{T0+1}, s{sR}, 1
    v_lshrrev_b32 v28, 2, v0
    v_and_b32 v28, 3, v28
    v_lshlrev_b32 v29, 3, v27
    v_add_u32 v29, v29, v28
    v_lshlrev_b32 v29, 7, v29
    v_lshrrev_b32 v28, 1, v28
    v_xor_b32 v28, s{T0+1}, v28
    v_lshlrev_b32 v28, 6, v28
    v_add_u32 v29, v29, v28
    v_and_b32 v28, 16, v0
    v_lshlrev_b32 v28, 1, v28
    v_add_u32 v29, v29, v28
    v_and_b32 v28, 3, v0
    v_lshlrev_b32 v28, 3, v28
    v_add_u32 v29, v29, v28
    v_add_u32 v{vWA}, s{T0}, v29
    """)
    for i in range(48):
        a(f"v_mov_b32 v{accQ+i}, 0")
    roles(a)
    a(f"""
    s_mov_b32 s{T0+6}, {hex(f32bits(CSCALE))}
    v_mov_b32 v{vZ}, 0
    v_mov_b32 v{vWo}, 0
    v_mov_b32 v{vFa}, 0
    v_mov_b32 v{vPo}, 0
    v_mov_b32 v{vOa}, 0
    v_mul_u32_u24 v{vVs}, {7168-512}, v27
    v_add_u32 v{vVs}, v{vVs}, v{vL16}
    """)
    p1_role(a, f"s{sC}")
    a(f"s_cmp_eq_u32 s{sC}, 0\n s_cselect_b32 s{T0}, {BR}, 0")
    store_offsets(a, f"s{T0}", T0 + 1)
    a(f"""
    s_waitcnt lgkmcnt(0)
    """)
    srd(a, sWS, 20, WS_USED)
    a(f"""
    v_mov_b32 v4, {EPOCH}
    buffer_load_dword v4, v4, {sr(sWS)}, 0 offen sc1
    """)
    srd(a, sOUT, 16, OUT_BYTES)
    srd(a, sWoA, 8, WO_BYTES)
    srd(a, sWoB, 14, WO_BYTES)
    a(f"""
    s_getpc_b64 s[18:19]
    H_pc:
    s_add_u32 s18, s18, L_ones-H_pc
    s_addc_u32 s19, s19, 0
    s_mov_b32 s{T0+11}, {SLOT}
    s_cmp_eq_u32 s{sC}, 0
    s_cbranch_scc1 C_bb
    """)
    if OPT["prefetch"]:
        a(f"""
        s_lshl_b32 s3, s{sJ}, 2
        s_add_u32 s3, s3, s{sR}
        s_lshl_b32 s3, s3, 7
        s_min_u32 s3, s3, L_ones-C_b0-64
        s_sub_u32 s22, s18, L_ones-C_b0
        s_subb_u32 s23, s19, 0
        s_load_dword s0, s[22:23], s3
        s_add_u32 s3, s3, 64
        s_load_dword s0, s[22:23], s3
        """)
    dma_lanes(a, 5, 164)
    dma_tile(a, 14, 15, 16, 22, 4)
    srd(a, sX, 4, "s22")
    srd(a, sWt, 6, "s23")
    a(f"s_lshl_b32 s17, s{sR}, 11\n s_add_u32 s17, s17, {4*SLOT}\n s_mov_b32 s{T0+11}, 0")
    if OPT["ipf"]:
        a(f"""
        s_and_b32 s3, s2, {0xc1}
        s_cmp_lg_u32 s3, {0xc1}
        s_cbranch_scc1 C_nipf
        s_lshl_b32 s3, s{sRB}, 2
        s_add_u32 s3, s3, s{sR}
        s_mul_i32 s22, s3, 14336
        s_mul_i32 s23, s3, 9408
        s_and_b32 s23, s23, -128
        s_mov_b32 m0, s17
        """)
        if OPT["ipw"]: a("s_waitcnt vmcnt(0)")
        for i in range(14):
            a(f"buffer_load_dwordx4 v{vL16}, {sr(sX)}, s22 offen lds\n s_add_u32 s22, s22, 1024")
            if i < 10: a(f"buffer_load_dwordx4 v{vL16}, {sr(sWt)}, s23 offen lds\n s_add_u32 s23, s23, 1024")
        a("C_nipf:")
    steps = [lambda: helper_setup(a, 0), lambda: helper_setup(a, 1), lambda: helper_setup(a, 2)]
    for b in range(-1, 6):
        if b == 5 or (b >= 0 and not OPT["skip"]): a("s_barrier")
        elif b >= 0: a(f"s_and_b32 s3, s2, 0xc1\n s_cmp_eq_u32 s3, 0xc1\n s_cbranch_scc1 C_sk{b}\n s_barrier\n C_sk{b}:")
        if b == 0 and OPT["tch"]:
            a("s_load_dword s0, s[4:5], 0\n s_load_dword s0, s[6:7], 0")
        if b == OPT["apos"]: dma_stage(a, 5, 14, 15, 16, 17, 22, [])
        elif b == 5: a("s_waitcnt vmcnt(0) lgkmcnt(0)"); make_tag(a, 4)
        elif steps: steps.pop(0)()
    assert not steps
    a(f"""
    C_b0:
    s_mov_b32 s{T0+7}, 7
    C_w:
    s_barrier
    """)
    F = [80, 96, 112, 128]
    def rlist(ks):
        f = F[ks]
        r = [f"ds_read_b128 {vr(f,4)}, v{vXA+ks}"]
        for p in (1, 2, 0):
            for j in range(2):
                r.append(f"ds_read_b64_tr_b16 {vr(f+4+4*p+2*j,2)}, v{vWA} offset:{8192+p*8192+ks*2048+j*512}")
        return r
    def mlist(ks):
        f = F[ks]
        return [f"{MF32} {vr(accK,16)}, {vr(f+8,4)}, {vr(f,4)}, {vr(accK,16)}",
                f"{MF32} {vr(accV,16)}, {vr(f,4)}, {vr(f+12,4)}, {vr(accV,16)}",
                f"{MF32} {vr(accQ,16)}, {vr(f+4,4)}, {vr(f,4)}, {vr(accQ,16)}"]
    def step(ks, rd):
        m = mlist(ks)
        r = rlist((ks + 2) % 4) if rd else [""] * 7
        a(m[0]); a(r[0]); a(r[1]); a(r[2]); a(m[1]); a(r[3]); a(r[4]); a(m[2]); a(r[5]); a(r[6])
    for l in rlist(0) + rlist(1): a(l)
    a("C_g:")
    a("s_waitcnt lgkmcnt(7)"); step(0, True)
    a("s_waitcnt lgkmcnt(7)"); step(1, True)
    for r in range(vXA, vXA + 5):
        a(f"v_add_u32 v{r}, s{T0+11}, v{r}\n v_and_b32 v{r}, {4*SLOT-1}, v{r}")
    a(f"""
    s_mov_b32 s{T0+11}, {SLOT}
    s_sub_u32 s{T0+7}, s{T0+7}, 1
    s_cmp_le_u32 s{T0+7}, 1
    s_cbranch_scc1 C_gx
    s_waitcnt lgkmcnt(0)
    s_barrier
    """)
    step(2, True)
    step(3, True)
    a("s_branch C_g\n C_gx:")
    a("s_waitcnt lgkmcnt(7)"); step(2, False)
    a("s_waitcnt lgkmcnt(0)"); step(3, False)
    a(f"s_cmp_eq_u32 s{T0+7}, 1\n s_cbranch_scc1 C_w")
    stamp(a, 3)
    a("s_nop 8")
    P = 80
    st = qkv_stores(P, T0 + 1)
    for i in range(8):
        a(f"v_cvt_pk_bf16_f32 v{P+8+i}, v{accK+2*i}, v{accK+2*i+1}")
    for i in range(8):
        a(f"v_cvt_pk_bf16_f32 v{P+16+i}, v{accV+2*i}, v{accV+2*i+1}")
    for g in (8, 12):
        a(f"v_permlane32_swap_b32 v{P+g}, v{P+g+2}\n v_permlane32_swap_b32 v{P+g+1}, v{P+g+3}")
    a(f"s_cmp_lg_u32 s{sC}, 0\n s_cbranch_scc1 C_ns")
    for l in st[:4]: a(l)
    a("C_ns:")
    for i in range(16):
        a(f"v_mul_f32 v{accQ+i}, s{T0+6}, v{accQ+i}")
    for i in range(8):
        a(f"v_cvt_pk_bf16_f32 v{P+i}, v{accQ+2*i}, v{accQ+2*i+1}")
    a("s_nop 1")
    for g in (0, 4):
        a(f"v_permlane32_swap_b32 v{P+g}, v{P+g+2}\n v_permlane32_swap_b32 v{P+g+1}, v{P+g+3}")
    a(f"s_cbranch_scc1 L_helper")

def gen_bskip(a):
    a("C_bb:")
    if OPT["skip"]:
        a(f"s_cmp_lg_u32 s{sACT}, 0\n s_cbranch_scc1 C_b0\n s_barrier\n s_barrier\n s_branch C_pub")
    else:
        a("s_branch C_b0")

def gen_publish(a):
    T, vFl = 28, 32
    sRT = sHRT
    kd, pp = OPT["kd"], OPT["pp"]
    for l in qkv_stores(80, T0 + 1)[4:]: a(l)
    a("C_pub:")
    lstamp(a, 0)
    a("s_barrier")
    a(f"""
    s_lshl_b32 s3, s{sCG}, 5
    s_add_u32 s3, s3, s{sRB}
    s_lshl_b32 s3, s3, {FS}
    s_add_u32 s13, s3, {FB}
    """)
    kv_setup(a, 0)
    a(f"""
    v_bfe_u32 v{T}, v0, 3, 1
    v_mul_u32_u24 v{T}, 3, v{T}
    v_add_u32 v{T}, s{sU0}, v{T}
    v_lshrrev_b32 v{T+3}, 3, v{T}
    v_lshlrev_b32 v{T+3}, 5, v{T+3}
    s_lshr_b32 s3, s{sRT}, 1
    v_mov_b32 v{T+1}, s3
    s_mov_b64 exec, 0xffff
    v_and_b32 v{T+1}, 7, v0
    v_lshlrev_b32 v{T+1}, 2, v{T+1}
    v_add_u32 v{T+1}, s{sR}, v{T+1}
    s_mov_b64 exec, -1
    v_add_u32 v{T+1}, v{T+1}, v{T+3}
    v_lshlrev_b32 v{T+1}, {FS}, v{T+1}
    v_add_u32 v{vFl}, {FB}, v{T+1}
    """)
    attn_setup(a, 0)
    def qload():
        a(f"""
        s_lshr_b32 s3, s{sM}, 1
        s_add_u32 m0, s3, {QST_L}
        s_sub_u32 s3, s{sOb}, {OU - QU}
        buffer_load_dwordx4 v{vL16}, {sr(sWS)}, s3 offen sc1 lds
        buffer_load_dwordx4 v{vL16}, {sr(sWS)}, s3 offen offset:1024 sc1 lds
        """)
    for b in range(9, 13):
        if b == kd:
            a("s_waitcnt vmcnt(0)")
            lstamp(a, 1)
            make_tag(a, 4)
        a("s_barrier")
        if b == kd:
            a(f"s_cmp_lg_u32 s{sW}, 0\n s_cbranch_scc1 H_nofl")
            set_flag(a, 13, T)
            a("H_nofl:")
            lstamp(a, 3)
        if b == pp:
            a(f"buffer_load_dwordx2 {vr(T+2,2)}, v{vFl}, {sr(sWS)}, 0 offen sc1")
    a(f"""
    s_waitcnt vmcnt(0)
    v_cmp_ne_u64 vcc, {sr(sTAG,2)}, {vr(T+2,2)}
    s_cmp_eq_u64 vcc, 0
    s_cselect_b32 s13, 1, 0
    s_cbranch_scc1 H_ok
    """)
    if OPT["p2"]:
        a(f"""
        buffer_load_dwordx2 {vr(T+2,2)}, v{vFl}, {sr(sWS)}, 0 offen sc1
        s_barrier
        s_waitcnt vmcnt(0)
        v_cmp_ne_u64 vcc, {sr(sTAG,2)}, {vr(T+2,2)}
        s_cmp_eq_u64 vcc, 0
        s_cbranch_scc1 H_ok
        """)
    else:
        a("s_barrier")
    poll(a, vFl, T + 2)
    a("H_ok:")
    lstamp(a, 2)
    qload()
    kv(a, 0)
    a("s_cmp_eq_u32 s13, 0\n s_cbranch_scc1 H_b13\n s_barrier\n H_b13:\n s_waitcnt vmcnt(%d)" % (8 if OPT["g5"] else 0))

vCur, vNxt, vNx2, vQa, vK0, vXw, vXr, vT = 148, 149, 150, 151, 152, 153, 156, 160
def attn_setup(a, kh):
    a(f"""
    s_and_b32 s{sK3}, s{sCG3}, {OPT["krot"]}
    s_xor_b32 s{sK3}, s{sK3}, {kh}
    s_add_u32 s{sWI}, s{sR}, {4*kh}
    s_lshl_b32 s3, s{sQB}, 2
    s_add_u32 s3, s3, s{sR}
    s_mul_i32 s3, s3, {RT}
    s_lshl_b32 s{sOb}, s{sU0}, 9
    s_add_u32 s{sOb}, s{sOb}, s3
    s_add_u32 s{sOb}, s{sOb}, {BR + OU}
    v_add_u32 v{vCur}, {pslot(0) + kh*8192}, v{vL16}
    v_add_u32 v{vNxt}, {pslot(1) + kh*8192}, v{vL16}
    v_add_u32 v{vNx2}, {pslot(2) + kh*8192}, v{vL16}
    v_add_u32 v{vK0}, {pslot(0)}, v{vL16}
    s_lshl_b32 s3, s{sR}, 11
    s_add_u32 s3, s3, {QST_L}
    v_add_u32 v{vQa}, s3, v{vL16}
    s_lshl_b32 s3, s{sR}, 10
    v_add_u32 v{vT}, s3, v{vL16}
    v_add_u32 v{vXw}, {XC1_L + kh*4096}, v{vT}
    v_add_u32 v{vXr}, {XC1_L + (1-kh)*4096}, v{vT}
    v_add_u32 v{vXw+1}, {XC2_L + kh*8192}, v{vT}
    v_add_u32 v{vXr+1}, {XC2_L + (1-kh)*8192}, v{vT}
    v_lshrrev_b32 v{vT}, 2, v{vT}
    v_add_u32 v{vXw+2}, {XC2_L + kh*8192 + 4096}, v{vT}
    v_add_u32 v{vXr+2}, {XC2_L + (1-kh)*8192 + 4096}, v{vT}
    v_lshrrev_b32 v{vT}, 4, v0
    v_lshrrev_b32 v{vT+1}, 2, v0
    v_and_b32 v{vT+1}, 3, v{vT+1}
    v_lshlrev_b32 v{vT+2}, 3, v{vT}
    v_add_u32 v{vT+2}, v{vT+2}, v{vT+1}
    v_lshlrev_b32 v{vT+2}, 7, v{vT+2}
    v_and_b32 v{vT+1}, 2, v{vT+1}
    v_and_b32 v{vT+3}, 1, v{vT}
    v_or_b32 v{vT+1}, v{vT+1}, v{vT+3}
    v_lshlrev_b32 v{vT+1}, 5, v{vT+1}
    v_add_u32 v{vT+2}, v{vT+2}, v{vT+1}
    v_and_b32 v{vT+1}, 3, v0
    v_lshlrev_b32 v{vT+1}, 3, v{vT+1}
    v_add_u32 v{vT+2}, v{vT+2}, v{vT+1}
    s_mul_i32 s3, s{sK3}, {224*128}
    v_add_u32 v{vT+4}, s3, v{vT+2}
    v_xor_b32 v{vT+5}, 32, v{vT+4}
    v_xor_b32 v{vT+6}, 64, v{vT+4}
    v_xor_b32 v{vT+7}, 96, v{vT+4}
    s_lshl_b32 s{sOf}, s{sRBK}, 1
    s_lshr_b32 s3, s{sR}, 1
    s_add_u32 s{sOf}, s{sOf}, s3
    s_mul_i32 s{sOf}, s{sOf}, {RT}
    s_and_b32 s3, s{sR}, 1
    s_lshl_b32 s3, s3, 8
    s_add_u32 s{sOf}, s{sOf}, s3
    s_mul_i32 s3, s{sK3}, {28*512}
    s_add_u32 s{sOf}, s{sOf}, s3
    s_add_u32 s{sOf}, s{sOf}, {BR + OU}
    v_and_b32 v{vT+1}, 15, v0
    v_lshlrev_b32 v{vT+2}, 9, v{vT}
    v_lshlrev_b32 v159, 4, v{vT+1}
    v_add_u32 v{vT+2}, v{vT+2}, v159
    s_lshl_b32 s3, s{sRBK}, 2
    s_add_u32 s3, s3, s{sR}
    s_lshl_b32 s3, s3, 4
    v_add_u32 v{vT+1}, s3, v{vT+1}
    v_mul_u32_u24 v{vT+1}, 1792, v{vT+1}
    v_lshlrev_b32 v{vT+3}, 5, v{vT+3}
    v_add_u32 v{vT+1}, v{vT+1}, v{vT+3}
    v_lshrrev_b32 v{vT+3}, 1, v{vT}
    v_lshlrev_b32 v{vT+3}, 4, v{vT+3}
    v_add_u32 v{vT+1}, v{vT+1}, v{vT+3}
    s_lshl_b32 s{sOo}, s{sCG3}, 7
    s_lshl_b32 s3, s{sK3}, 6
    s_add_u32 s{sOo}, s{sOo}, s3
    s_add_u32 s{sOo}, s{sOo}, 896
    s_lshl_b32 s3, s{sWI}, 11
    s_add_u32 s3, s3, {XFI_L}
    v_add_u32 v{vT}, s3, v{vL16}
    v_xor_b32 v{vT+3}, {4*2048}, v{vT}
    """)
    for r in list(range(104, 120)) + list(range(64, 68)) + list(range(132, 136)):
        a(f"v_mov_b32 v{r}, 0")

def gen_attn(a):
    Q, NM, S, P, O, K, V, T = 4, 12, [28, 44], 60, 104, 120, 128, 140
    WF, OF, ACC = 4, 116, 144
    sS = T0 + 7
    a("C_attn:")
    stamp(a, 5)
    a("s_setprio 1\n s_barrier")
    stamp(a, 6)
    if OPT["rts"]: stamp(a, 3, rt=True)
    if OPT["prof"]: a("s_waitcnt lgkmcnt(0)")
    a(f"""
    ds_read_b128 {vr(Q,4)}, v{vQa}
    ds_read_b128 {vr(Q+4,4)}, v{vQa} offset:1024
    ds_read_b128 {vr(NM,4)}, v{vK0}
    ds_read_b128 {vr(NM+4,4)}, v{vK0} offset:1024
    ds_read_b128 {vr(NM+8,4)}, v{vCur}
    ds_read_b128 {vr(NM+12,4)}, v{vCur} offset:1024
    ds_read_b128 {vr(K,4)}, v{vCur} offset:2048
    ds_read_b128 {vr(K+4,4)}, v{vCur} offset:3072
    {"" if OPT["g5"] else f"ds_read_b128 {vr(V,4)}, v{vCur} offset:16384"}
    s_waitcnt lgkmcnt({7 - OPT["g5"]})
    """)
    zero_foreign(a, Q)
    a(f"""
    s_waitcnt lgkmcnt({5 - OPT['g5']})
    {MF32} {vr(S[1],16)}, {vr(NM,4)}, {vr(Q,4)}, 0
    {MF32} {vr(S[1],16)}, {vr(NM+4,4)}, {vr(Q+4,4)}, {vr(S[1],16)}
    s_waitcnt lgkmcnt({3 - OPT['g5']})
    {MF32} {vr(S[0],16)}, {vr(NM+8,4)}, {vr(Q,4)}, 0
    {MF32} {vr(S[0],16)}, {vr(NM+12,4)}, {vr(Q+4,4)}, {vr(S[0],16)}
    s_mov_b32 s{sS}, 0
    s_mov_b32 s3, {hex(f32bits(-float(OPT["delta"])))}
    s_nop 7
    """)
    s1 = S[1]
    a(f"v_max3_f32 v{T}, v{s1}, v{s1+1}, v{s1+2}")
    a(f"v_max3_f32 v{T+1}, v{s1+3}, v{s1+4}, v{s1+5}")
    for i in range(6, 14, 4):
        a(f"v_max3_f32 v{T}, v{T}, v{s1+i}, v{s1+i+1}")
        a(f"v_max3_f32 v{T+1}, v{T+1}, v{s1+i+2}, v{s1+i+3}")
    a(f"""
    v_max3_f32 v{T}, v{T}, v{s1+14}, v{s1+15}
    v_max_f32 v{T}, v{T}, v{T+1}
    v_mov_b32 v{T+1}, v{T}
    v_mov_b32 v{s1+14}, 0
    v_mov_b32 v{s1+15}, 0
    v_permlane32_swap_b32 v{T}, v{T+1}
    s_nop 1
    v_max_f32 v{T}, v{T}, v{T+1}
    v_sub_f32 v{NM}, s3, v{T}
    """)
    if OPT["g5"]:
        a(f"s_waitcnt vmcnt(0)\n s_barrier\n ds_read_b128 {vr(V,4)}, v{vCur} offset:16384")
    for i in range(16):
        a(f"v_add_f32 v{S[0]+i}, v{S[0]+i}, v{NM}")
    for i in range(1, 16):
        a(f"v_mov_b32 v{NM+i}, v{NM}")
    a("s_waitcnt lgkmcnt(0)\n s_setprio 1")
    a(".p2align 3")
    a("C_loop:")
    for i in range(4):
        cs, ns = S[i % 2], S[(i + 1) % 2]
        def ex(j): return f"v_exp_f32 v{cs+j}, v{cs+j}"
        def cv(j): return f"v_cvt_pk_bf16_f32 v{P+j}, v{cs+2*j}, v{cs+2*j+1}"
        kreg, ko = (vCur, (i + 2) * 2048) if i < 2 else (vNxt, (i - 2) * 2048)
        vreg, vo = (vCur, (i + 1) * 2048) if i < 3 else (vNxt, 0)
        a(ex(0)); a(ex(1))
        a(f"v_cvt_pk_bf16_f32 v{P+7}, v{ns+14}, v{ns+15}")
        a(ex(2))
        if i == 2:
            a("s_barrier\n s_setprio 3")
        a("s_waitcnt lgkmcnt(2)")
        a(f"{MF32} {vr(ns,16)}, {vr(K,4)}, {vr(Q,4)}, {vr(NM,16)}")
        a(f"ds_read_b128 {vr(K,4)}, v{kreg} offset:{ko}")
        a(cv(0)); a(ex(3)); a(ex(4)); a(cv(1)); a(ex(5)); a(ex(6))
        a(f"{MF32} {vr(O,16)}, {vr(V+4,4)}, {vr(P+4,4)}, {vr(O,16)}")
        a(f"ds_read_b128 {vr(V+4,4)}, v{vCur} offset:{16384 + i*2048 + 1024}")
        a(cv(2)); a(ex(7)); a(ex(8)); a(cv(3)); a(ex(9)); a("s_waitcnt lgkmcnt(2)")
        a(f"{MF32} {vr(ns,16)}, {vr(K+4,4)}, {vr(Q+4,4)}, {vr(ns,16)}")
        a(f"ds_read_b128 {vr(K+4,4)}, v{kreg} offset:{ko+1024}")
        a(ex(10)); a(ex(11)); a(cv(4)); a(ex(12)); a(ex(13)); a(cv(5))
        a(f"{MF32} {vr(O,16)}, {vr(V,4)}, {vr(P,4)}, {vr(O,16)}")
        a(f"ds_read_b128 {vr(V,4)}, v{vreg} offset:{16384 + vo}")
        a(ex(14)); a(ex(15)); a(cv(6))
        if i == 0: a("s_setprio 0\n s_add_u32 s{0}, s{0}, 1".format(sS))
        if i == 2: a("s_setprio 2\n s_nop 0")
        if i == 3:
            a(f"""
            v_swap_b32 v{vCur}, v{vNxt}
            s_setprio 1
            v_swap_b32 v{vNxt}, v{vNx2}
            s_cmp_lt_u32 s{sS}, 8
            s_cbranch_scc1 C_loop
            """)
    a(f"""
    v_cvt_pk_bf16_f32 v{P+7}, v{S[1]+14}, v{S[1]+15}
    s_waitcnt lgkmcnt(0)
    s_cmp_eq_u32 s{sODD}, 0
    {MF32} {vr(O,16)}, {vr(V+4,4)}, {vr(P+4,4)}, {vr(O,16)}
    """)
    stamp(a, 7)
    if OPT["rts"]: stamp(a, 4, rt=True)
    X = S[0]
    a(f"""
    s_nop 10
    s_cbranch_scc1 C_le
    v_mov_b32 v{T+2}, v{O}
    s_branch C_lx
    C_le:
    v_mov_b32 v{T+2}, v{O+12}
    C_lx:
    s_cmp_eq_u32 s{sC}, 0
    s_cbranch_scc1 C_x0
    ds_write_b128 v{vXw}, {vr(O,4)}
    ds_write_b128 v{vXw+1}, {vr(O+4,4)}
    ds_write_b32 v{vXw+2}, v{T+2}
    s_waitcnt lgkmcnt(0)
    s_barrier
    """)
    for i in range(8):
        a(f"v_mov_b32 v{O+i}, v{O+8+i}")
    a(f"""
    s_branch C_x1
    C_x0:
    ds_write_b128 v{vXw}, {vr(O+8,4)}
    ds_write_b128 v{vXw+1}, {vr(O+12,4)}
    ds_write_b32 v{vXw+2}, v{T+2}
    s_waitcnt lgkmcnt(0)
    s_barrier
    C_x1:
    ds_read_b32 v{X+8}, v{vXr+2}
    ds_read_b128 {vr(X,4)}, v{vXr}
    ds_read_b128 {vr(X+4,4)}, v{vXr+1}
    s_waitcnt lgkmcnt(2)
    v_add_f32 v{T+2}, v{T+2}, v{X+8}
    """)
    bcast_l(a, T + 2, T + 2, T + 4)
    a("s_waitcnt lgkmcnt(0)")
    a(f"v_mul_f32 v{T}, 0, v{T+4}\n v_mov_b32 v{T+1}, 0x207")
    for i in range(8):
        a(f"v_add_f32 v{O+i}, v{O+i}, v{X+i}")
    for i in range(8):
        a(f"v_add_f32 v{T}, v{T}, abs(v{O+i})")
    a(f"""
    s_mov_b32 s3, {hex((127 - 100) << 23)}
    v_cmp_nge_f32 vcc, v{T}, s3
    v_cmp_class_f32 s[22:23], v{T}, v{T+1}
    s_or_b64 vcc, vcc, s[22:23]
    s_cbranch_scc1 C_slow
    C_fin:
    """)
    finalize(a, O, 8, T + 4)
    a(f"s_cmp_eq_u32 s{sC}, 0\n s_cbranch_scc0 C_st1")
    store_units(a, O, True, sOb, 0)
    a("s_branch C_st2\n C_st1:")
    store_units(a, O, False, sOb, 1024)
    a("C_st2:")
    stamp(a, 8)
    a(f"s_cmp_ge_u32 s{sJ}, 28\n s_cbranch_scc1 C_exit\n s_barrier")
    def wrd(s0, s1):
        for s in range(s0, s1):
            for t in range(4):
                for j in range(2):
                    a(f"ds_read_b64_tr_b16 {vr(WF+16*s+4*t+2*j,2)}, v{vT+4+t} offset:{(32*s+4*j)*128}")
    wrd(0, 6)
    a("s_waitcnt vmcnt(0)")
    wrd(6, 7)
    a(f"s_mov_b32 s{T0+11}, {SPIN}\n s_mov_b32 s{T0+5}, 0\n C_pp:\n s_mov_b32 s3, s{sOf}")
    for s in range(7):
        if s and s % 2 == 0:
            a(f"s_add_u32 s3, s3, 4096")
        a(f"buffer_load_dwordx4 {vr(OF+4*s,4)}, v{vT+2}, {sr(sWS)}, s3 offen offset:{(s%2)*2048} sc1")
    a("s_waitcnt lgkmcnt(0)")
    for s in range(7):
        a(f"s_waitcnt vmcnt({6-s})")
        f = OF + 4 * s
        for t in range(4):
            cin = "0" if s == 0 else vr(ACC + 4 * t, 4)
            a(f"{MF16} {vr(ACC+4*t,4)}, {vr(WF+16*s+4*t,4)}, {vr(f,4)}, {cin}")
            if t == 0: a(f"v_max3_u32 v3, v{f}, v{f+1}, v{f+2 if s == 0 else 3}")
            if t == 1: a(f"v_max3_u32 v3, v3, v{f+2}, v{f+3}")
    a(f"""
    v_cmp_eq_u32 vcc, -1, v3
    s_add_u32 s{T0+5}, s{T0+5}, 1
    s_sub_u32 s{T0+11}, s{T0+11}, 1
    s_cbranch_scc1 C_ppx
    s_cmp_lg_u64 vcc, 0
    s_cbranch_scc1 C_pp
    C_ppx:
    """)
    stamp(a, 9)
    if OPT["prof"]: a(f"v_writelane_b32 v1, s{T0+5}, 63")
    a(f"""
    s_cmp_eq_u32 s{sK3}, 0
    s_nop 5
    s_cbranch_scc1 C_y0
    ds_write_b128 v{vT}, {vr(ACC,4)}
    ds_write_b128 v{vT}, {vr(ACC+4,4)} offset:1024
    s_waitcnt lgkmcnt(0)
    s_barrier
    """)
    for i in range(8):
        a(f"v_mov_b32 v{ACC+i}, v{ACC+8+i}")
    a(f"""
    s_branch C_y1
    C_y0:
    ds_write_b128 v{vT}, {vr(ACC+8,4)}
    ds_write_b128 v{vT}, {vr(ACC+12,4)} offset:1024
    s_waitcnt lgkmcnt(0)
    s_barrier
    C_y1:
    ds_read_b128 {vr(OF,4)}, v{vT+3}
    ds_read_b128 {vr(OF+4,4)}, v{vT+3} offset:1024
    s_waitcnt lgkmcnt(0)
    """)
    for i in range(8):
        a(f"v_add_f32 v{ACC+i}, v{ACC+i}, v{OF+i}")
    for i in range(4):
        a(f"v_cvt_pk_bf16_f32 v{ACC+i}, v{ACC+2*i}, v{ACC+2*i+1}")
    osc = ("", " sc1", " nt", " sc0 sc1")[OPT["outsc"]]
    a(f"""
    s_nop 1
    v_permlane16_swap_b32 v{ACC}, v{ACC+2}
    v_permlane16_swap_b32 v{ACC+1}, v{ACC+3}
    buffer_store_dwordx4 {vr(ACC,4)}, v{vT+1}, {sr(sOUT)}, s{sOo} offen{osc}
    C_exit:
    """)
    if OPT["padrt"] or OPT["padcy"]:
        if OPT["padx"] >= 0: a(f"s_cmp_lg_u32 s{sXCD}, {OPT['padx']}\n s_cbranch_scc1 C_padx")
        a(f"""
        C_pad:
        {'s_memrealtime' if OPT['padrt'] else 's_memtime'} s[98:99]
        s_waitcnt lgkmcnt(0)
        s_sub_u32 s98, s98, s96
        s_cmp_lt_u32 s98, {OPT['padrt'] or OPT['padcy']}
        s_cbranch_scc1 C_pad
        C_padx:
        """)
    dump(a)
    a("s_endpgm")
    sT, sKo, sVo = T0, T0 + 1, T0 + 2
    def kload():
        a(f"""
        s_mul_i32 s{sKo}, s{sT}, {RT}
        s_lshl_b32 s3, s{sU0}, 7
        s_add_u32 s{sVo}, s{sKo}, s3
        s_add_u32 s{sVo}, s{sVo}, {BR + VU}
        s_lshl_b32 s3, s{sU0}, 9
        s_add_u32 s{sKo}, s{sKo}, s3
        s_add_u32 s{sKo}, s{sKo}, {BR + KU}
        buffer_load_dwordx4 {vr(K,4)}, v{vL16}, {sr(sWS)}, s{sKo} offen sc1
        buffer_load_dwordx4 {vr(K+4,4)}, v{vL16}, {sr(sWS)}, s{sKo} offen offset:1024 sc1
        """)
    def qk():
        a(f"""
        s_waitcnt vmcnt(0)
        {MF32} {vr(S[0],16)}, {vr(K,4)}, {vr(Q,4)}, 0
        {MF32} {vr(S[0],16)}, {vr(K+4,4)}, {vr(Q+4,4)}, {vr(S[0],16)}
        s_nop 15
        """)
    a(f"C_slow:\n v_mov_b32 v{T}, 0xff800000\n s_mov_b32 s{sT}, 0\n C_s1:")
    kload(); qk()
    for i in range(0, 16, 2):
        a(f"v_max3_f32 v{T}, v{T}, v{S[0]+i}, v{S[0]+i+1}")
    a(f"""
    s_add_u32 s{sT}, s{sT}, 1
    s_cmp_lt_u32 s{sT}, 64
    s_cbranch_scc1 C_s1
    v_mov_b32 v{T+1}, v{T}
    s_nop 1
    v_permlane32_swap_b32 v{T}, v{T+1}
    s_nop 1
    v_max_f32 v{T}, v{T}, v{T+1}
    v_lshrrev_b32 v{T+1}, 5, v0
    v_mul_u32_u24 v{T+1}, {7168-512}, v{T+1}
    v_add_u32 v{T+1}, v{T+1}, v{vL16}
    """)
    for i in range(16):
        a(f"v_mov_b32 v{O+i}, 0")
    for i in range(8):
        a(f"v_mov_b32 v{V+i}, 0x3f803f80")
    a(f"s_mov_b32 s{sT}, 0\n C_s2:")
    kload()
    a(f"""
    s_add_u32 s3, s{sVo}, 14336
    s_mov_b64 exec, {sr(sVM,2)}
    buffer_load_dwordx4 {vr(V,4)}, v{T+1}, {sr(sWS)}, s{sVo} offen sc1
    buffer_load_dwordx4 {vr(V+4,4)}, v{T+1}, {sr(sWS)}, s3 offen sc1
    s_mov_b64 exec, -1
    """)
    qk()
    for i in range(16):
        a(f"v_sub_f32 v{S[0]+i}, v{S[0]+i}, v{T}")
    for i in range(16):
        a(f"v_exp_f32 v{S[0]+i}, v{S[0]+i}")
    a("s_nop 0")
    for i in range(8):
        a(f"v_cvt_pk_bf16_f32 v{P+i}, v{S[0]+2*i}, v{S[0]+2*i+1}")
    a(f"""
    s_nop 1
    {MF32} {vr(O,16)}, {vr(V,4)}, {vr(P,4)}, {vr(O,16)}
    {MF32} {vr(O,16)}, {vr(V+4,4)}, {vr(P+4,4)}, {vr(O,16)}
    s_add_u32 s{sT}, s{sT}, 1
    s_cmp_lt_u32 s{sT}, 64
    s_nop 15
    s_cbranch_scc1 C_s2
    """)
    bcast_l(a, O + 12, O, T + 4)
    a(f"s_cmp_eq_u32 s{sC}, 0\n s_cbranch_scc1 C_fin")
    for i in range(8):
        a(f"v_mov_b32 v{O+i}, v{O+8+i}")
    a("s_branch C_fin")

def gen_helper(a):
    AQ, AKp, AKc, AVp, AVc, O, HP, T, SP, SC = 28, 36, 44, 52, 56, 64, 80, 104, 108, 124
    sRT = sHRT
    nb = [0]
    def bar():
        k = nb[0]; nb[0] += 1
        if OPT["hst"]: lstamp(a, k)
        a("s_barrier")
        if OPT["hst"]: lstamp(a, 16 + k)
    regs = [SP + 8 + i for i in range(8)] + [SC + i for i in range(16)]
    def wo(srdn, lbase, i0, i1, tag):
        a(f"s_lshr_b32 s22, s{sM}, 2")
        for i in range(i0, i1):
            a(f"s_add_u32 m0, s22, {lbase + (i-i0)*4096}\n s_mov_b32 s{T0}, {i*32*896}")
            a.vm(f"buffer_load_dwordx4 v{vWo}, {sr(srdn)}, s{T0} offen lds", tag)
    a.q = []
    stamp(a, 5)
    a("s_setprio 3\n s_barrier")
    if OPT["g5"]: a("s_barrier")
    kv(a, 1)
    st = qkv_stores(HP, T0 + 1)
    n0 = OPT["sa0"]
    for l in st[:n0]: a.vm(l, "sa")
    a(f"""
    s_mul_i32 s{T0+10}, s{sRT}, {RT}
    s_add_u32 s{T0+10}, s{T0+10}, s{sKb}
    """)
    pf = []
    if OPT["wpf"]:
        a(f"""
        s_lshl_b32 s3, s{sJ}, 2
        s_add_u32 s3, s3, s{sR}
        s_mul_i32 s3, s3, {25*128}
        s_min_u32 s3, s3, {WO_BYTES - 25*128}
        s_add_u32 s4, s{sWoB}, s3
        s_addc_u32 s5, s{sWoB+1}, 0
        s_add_u32 s6, s{sWoA}, s3
        s_addc_u32 s7, s{sWoA+1}, 0
        """)
        pf = [f"s_load_dword s17, s[{b}:{b+1}], {i*128}" for b in (4, 6) for i in range(25)]
    def pfb(n):
        for _ in range(n):
            if pf: a(pf.pop(0))
    a.wait("kv1"); bar(); kv(a, 2)
    for l in st[n0:]: a.vm(l, "sa")
    a(f"""
    s_lshl_b32 s16, s{T0+5}, {FS}
    s_add_u32 s16, s16, {FA}
    v_mov_b32 v{O}, -1
    v_mov_b32 v{O+1}, -1
    v_mov_b32 v{O+2}, -1
    v_mov_b32 v{O+3}, -1
    s_add_u32 s13, s{T0+10}, {BR + OU}
    """)
    pfb(13)
    a.wait("kv2"); bar(); kv(a, 3)
    a.wait("sa")
    set_flag(a, 16, T)
    store_units(a, O, True, 13, 0)
    store_units(a, O, False, 13, 1024)
    a.q += ["po"] * 3
    pfb(13)
    a.wait("kv3"); bar(); kv(a, 4)
    pfb(12)
    poll(a, vFa, T)
    a(f"""
    s_mul_i32 s{T0}, s{sRT}, {RT}
    s_cmp_eq_u32 s{sRT}, 0
    s_cselect_b32 s3, 0, {RT}
    s_sub_u32 s{T0+1}, s{T0}, s3
    s_add_u32 s{T0+2}, s{T0+10}, {KU}
    s_add_u32 s{T0+3}, s{T0+1}, s{sKb}
    s_add_u32 s{T0+3}, s{T0+3}, {KU}
    """)
    for (r, so) in ((AQ, T0 + 10), (AKc, T0 + 2), (AKp, T0 + 3)):
        a.vm(f"buffer_load_dwordx4 {vr(r,4)}, v{vL16}, {sr(sWS)}, s{so} offen sc1", "loc")
        a.vm(f"buffer_load_dwordx4 {vr(r+4,4)}, v{vL16}, {sr(sWS)}, s{so} offen offset:1024 sc1", "loc")
    a(f"""
    s_add_u32 s{T0}, s{T0}, s{sVb}
    s_add_u32 s{T0}, s{T0}, {VU}
    s_add_u32 s{T0+2}, s{T0}, 14336
    s_add_u32 s{T0+1}, s{T0+1}, s{sVb}
    s_add_u32 s{T0+1}, s{T0+1}, {VU + 14336}
    """)
    a.vm(f"buffer_load_dwordx4 {vr(AVc,4)}, v{vVs}, {sr(sWS)}, s{T0} offen sc1", "loc")
    a.vm(f"buffer_load_dwordx4 {vr(AVc+4,4)}, v{vVs}, {sr(sWS)}, s{T0+2} offen sc1", "loc")
    a.vm(f"buffer_load_dwordx4 {vr(AVp,4)}, v{vVs}, {sr(sWS)}, s{T0+1} offen sc1", "loc")
    bar(); kv(a, 5)
    pfb(12)
    a.wait("loc")
    zero_foreign(a, AQ)
    a(f"""
    s_nop 0
    {MF32} {vr(SP,16)}, {vr(AKp,4)}, {vr(AQ,4)}, 0
    {MF32} {vr(SC,16)}, {vr(AKc,4)}, {vr(AQ,4)}, 0
    {MF32} {vr(SP,16)}, {vr(AKp+4,4)}, {vr(AQ+4,4)}, {vr(SP,16)}
    {MF32} {vr(SC,16)}, {vr(AKc+4,4)}, {vr(AQ+4,4)}, {vr(SC,16)}
    s_nop 11
    """)
    G = NG
    for i in range(12):
        a(f"v_bitop3_b32 v{regs[2*i]}, v{vPar}, v{regs[2*i+1]}, v{regs[2*i]} bitop3:0xca")
    for i in range(12):
        a(f"v_bitop3_b32 v{G + i%4}, v{regs[2*i]}, v{VM+i}, v{G + i%4} bitop3:0xea")
    a(f"""
    v_max3_f32 v{T}, v{G}, v{G+1}, v{G+2}
    v_max_f32 v{T}, v{T}, v{G+3}
    v_mov_b32 v{T+1}, v{T}
    s_nop 1
    v_permlane32_swap_b32 v{T}, v{T+1}
    s_nop 1
    v_max_f32 v{T}, v{T}, v{T+1}
    """)
    for g in range(4): a(f"v_sub_f32 v{G+g}, v{G+g}, v{T}")
    for g in range(4): a(f"v_exp_f32 v{G+g}, v{G+g}")
    a(f"""
    s_nop 0
    v_add_f32 v{T}, v{G}, v{G+1}
    v_add_f32 v{T+1}, v{G+2}, v{G+3}
    v_add_f32 v{T}, v{T}, v{T+1}
    v_mov_b32 v{T+1}, v{T}
    s_nop 1
    v_permlane32_swap_b32 v{T}, v{T+1}
    s_nop 1
    v_add_f32 v{T}, v{T}, v{T+1}
    v_rcp_f32 v{T}, v{T}
    s_nop 0
    """)
    for g in range(4): a(f"v_mul_f32 v{G+g}, v{G+g}, v{T}")
    for g in range(4): a(f"v_cvt_pk_bf16_f32 v{G+g}, v{G+g}, v{G+g}")
    PM = VM
    for i in range(12):
        a(f"v_bitop3_b32 v{PM+i}, v{PM+i}, v{G + i%4}, v{vHalf} bitop3:0x80")
    O2 = SP
    a(f"""
    s_nop 1
    {MF32} {vr(O2,16)}, {vr(AVp,4)}, {vr(PM,4)}, 0
    {MF32} {vr(O2,16)}, {vr(AVc,4)}, {vr(PM+4,4)}, {vr(O2,16)}
    {MF32} {vr(O2,16)}, {vr(AVc+4,4)}, {vr(PM+8,4)}, {vr(O2,16)}
    s_add_u32 s{T0+10}, s{T0+10}, {OU}
    s_nop 11
    """)
    for i in range(8):
        a(f"v_cvt_pk_bf16_f32 v{O2+i}, v{O2+2*i}, v{O2+2*i+1}")
    a("s_nop 1")
    for g in (0, 4):
        a(f"v_permlane32_swap_b32 v{O2+g}, v{O2+g+2}\n v_permlane32_swap_b32 v{O2+g+1}, v{O2+g+3}")
    store_units(a, O2, True, T0 + 10, 0)
    store_units(a, O2 + 4, False, T0 + 10, 1024)
    a.q += ["oa"] * 3
    a.wait("kv5"); bar(); kv(a, 6)
    a(f"""
    s_lshl_b32 s3, s{sRT}, 4
    s_add_u32 s3, s3, s{sH}
    s_lshl_b32 s3, s3, {FS}
    s_add_u32 s{T0+10}, s3, {FO}
    """)
    a.wait("oa")
    set_flag(a, T0 + 10, T)
    wo(sWoB, WOB_L, 0, 6, "wob")
    OFA, ACC, WB, T = 28, 84, 116, 160
    a(f"""
    s_and_b32 s3, s{sR}, 1
    s_lshl_b32 s{sRT}, s{sRBK}, 1
    s_add_u32 s{sRT}, s{sRT}, s3
    s_lshr_b32 s{sC}, s{sR}, 1
    s_lshl_b32 s3, s{sRT}, 1
    s_add_u32 s3, s3, s{sC}
    s_lshl_b32 s14, s3, {3+FS}
    s_add_u32 s14, s14, {FO}
    s_mul_i32 s13, s3, {RT//2}
    s_add_u32 s13, s13, {OU}
    s_lshl_b32 s{T0+10}, s{sCG3}, 7
    s_lshl_b32 s3, s{sC}, 6
    s_add_u32 s{T0+10}, s{T0+10}, s3
    s_mul_i32 s3, s{sRT}, {32*1792}
    s_add_u32 s{T0+10}, s{T0+10}, s3
    """)
    a.wait("kv6"); bar(); kv(a, 7)
    wo(sWoB, WOB_L + 6 * 4096, 6, 14, "wob")
    a.vm(f"buffer_load_dwordx2 {vr(T+6,2)}, v{vPo}, {sr(sWS)}, s14 offen sc1", "fl")
    def ofa(i0, i1):
        for i in range(i0, i1):
            if i and i % 4 == 0:
                a(f"s_add_u32 s13, s13, 4096")
            a.vm(f"buffer_load_dwordx4 {vr(OFA+4*i,4)}, v{vL16}, {sr(sWS)}, s13 offen offset:{(i%4)*1024} sc1", f"ofa{i}")
    a.wait("kv7"); bar()
    a.wait_all()
    a(f"""
    v_cmp_ne_u64 vcc, {sr(sTAG,2)}, {vr(T+6,2)}
    s_cmp_eq_u64 vcc, 0
    s_cbranch_scc1 H_ok2
    """)
    poll(a, vPo, T + 6, "s14")
    a(f"""
    H_ok2:
    s_lshl_b32 s3, s{sR}, 2
    s_add_u32 s3, s3, {HFL_L}
    v_mov_b32 v{T}, s3
    v_xor_b32 v{T+1}, 8, v{T}
    v_mov_b32 v{T+2}, 0
    s_mov_b64 exec, 1
    ds_write_b32 v{T}, v{T+2}
    s_mov_b64 exec, -1
    """)
    wo(sWoA, WOA_L[0], 0, 7, "woa")
    ofa(0, 9)
    bar()
    wo(sWoA, WOA_L[1], 7, 14, "woa")
    ofa(9, 14)
    a("s_barrier")
    a(f"s_cmp_ge_u32 s{sJ}, 28\n s_cbranch_scc1 H_idle")
    a.wait("woa", " lgkmcnt(0)")
    stamp(a, 8)
    a("s_barrier")
    if OPT["prof"]: a("s_waitcnt lgkmcnt(0)")
    NB = 4
    def rd(i):
        for c in range(2):
            for j in range(2):
                a(f"ds_read_b64_tr_b16 {vr(WB+8*(i%NB)+4*c+2*j,2)}, v{vWa+c} offset:{(16*i+4*j)*128}")
    for i in range(NB - 1): rd(i)
    for i in range(14):
        a.wait(f"ofa{i}", f" lgkmcnt({4*min(NB-2, 13-i)})")
        for c in range(2):
            cin = "0" if i == 0 else vr(ACC + 16 * c, 16)
            a(f"{MF32} {vr(ACC+16*c,16)}, {vr(WB+8*(i%NB)+4*c,4)}, {vr(OFA+4*i,4)}, {cin}")
        if i + NB - 1 < 14:
            rd(i + NB - 1)
    a(f"""
    s_cmp_eq_u32 s{sC}, 0
    s_nop 10
    s_cbranch_scc1 H_y0
    """)
    for i in range(4):
        a(f"ds_write_b128 v{vXa}, {vr(ACC+4*i,4)} offset:{i*1024}")
    a("s_branch H_y1\n H_y0:")
    for i in range(4):
        a(f"ds_write_b128 v{vXa}, {vr(ACC+16+4*i,4)} offset:{i*1024}")
    a("H_y1:\n s_waitcnt lgkmcnt(0)")
    stamp(a, 9)
    a(f"""
    v_mov_b32 v{T+2}, 1
    s_mov_b64 exec, 1
    ds_write_b32 v{T}, v{T+2}
    s_mov_b32 s23, {SPIN * 8}
    H_pw:
    ds_read_b32 v{T+2}, v{T+1}
    s_waitcnt lgkmcnt(0)
    v_readfirstlane_b32 s3, v{T+2}
    s_sub_u32 s23, s23, 1
    s_cbranch_scc1 H_pwx
    s_cmp_eq_u32 s3, 0
    s_cbranch_scc1 H_pw
    H_pwx:
    s_mov_b64 exec, -1
    s_cmp_eq_u32 s{sC}, 0
    """)
    for i in range(4):
        a(f"ds_read_b128 {vr(OFA+4*i,4)}, v{vXa+1} offset:{i*1024}")
    a(f"s_waitcnt lgkmcnt(0)\n s_cbranch_scc1 H_z0")
    for i in range(16):
        a(f"v_add_f32 v{OFA+i}, v{ACC+16+i}, v{OFA+i}")
    a("s_branch H_z1\n H_z0:")
    for i in range(16):
        a(f"v_add_f32 v{OFA+i}, v{ACC+i}, v{OFA+i}")
    a("H_z1:")
    for i in range(8):
        a(f"v_cvt_pk_bf16_f32 v{OFA+i}, v{OFA+2*i}, v{OFA+2*i+1}")
    a("s_nop 1")
    for g in (0, 4):
        a(f"v_permlane32_swap_b32 v{OFA+g}, v{OFA+g+2}\n v_permlane32_swap_b32 v{OFA+g+1}, v{OFA+g+3}")
    osc = ("", " sc1", " nt", " sc0 sc1")[OPT["outsc"]]
    a(f"buffer_store_dwordx4 {vr(OFA,4)}, v{vOa}, {sr(sOUT)}, s{T0+10} offen{osc}")
    a(f"buffer_store_dwordx4 {vr(OFA+4,4)}, v{vOa}, {sr(sOUT)}, s{T0+10} offen offset:32{osc}")
    a("H_exit:")
    dump(a)
    a("s_endpgm")
    a(f"""
    H_idle:
    s_cmp_lg_u32 s2, 255
    s_cbranch_scc1 H_exit
    s_cmp_lg_u32 s{sW}, 4
    s_cbranch_scc1 H_exit
    v_lshlrev_b32 v{T}, {FS}, v0
    s_mov_b32 s{T0+11}, {SPIN}
    H_ep:
    """)
    for i in range(4):
        a(f"s_mov_b32 s3, {FB + (i*64 << FS)}\n buffer_load_dwordx2 {vr(OFA+2*i,2)}, v{T}, {sr(sWS)}, s3 offen sc1")
    a(f"s_waitcnt vmcnt(0)\n s_mov_b64 s[4:5], 0")
    for i in range(4):
        a(f"v_cmp_ne_u64 vcc, {sr(sTAG,2)}, {vr(OFA+2*i,2)}\n s_or_b64 s[4:5], s[4:5], vcc")
    a(f"""
    s_sub_u32 s{T0+11}, s{T0+11}, 1
    s_cbranch_scc1 H_epx
    s_cmp_lg_u64 s[4:5], 0
    s_cbranch_scc1 H_ep
    H_epx:
    v_mov_b32 v{T}, {EPOCH}
    v_mov_b32 v{T+1}, s{sTAG}
    s_mov_b64 exec, 1
    buffer_store_dword v{T+1}, v{T}, {sr(sWS)}, 0 offen sc1
    s_mov_b64 exec, -1
    s_branch H_exit
    """)

def main(out):
    a = gen()
    K = NAME + "_kernel"
    hdr = f"""; Fused QKV projection -> attention (A: dilated local window, B: full) -> output projection.
; @launch grid=(256,1,1) block=(768,1,1) lds=163840
.amdgcn_target "amdgcn-amd-amdhsa--gfx950"
.text
"""
    d = f""".section .rodata,"a"
.p2align 6
.amdhsa_kernel {K}
  .amdhsa_next_free_vgpr 168
  .amdhsa_next_free_sgpr 102
  .amdhsa_accum_offset 168
  .amdhsa_group_segment_fixed_size 0
  .amdhsa_kernarg_size 72
  .amdhsa_user_sgpr_count 2
  .amdhsa_user_sgpr_kernarg_segment_ptr 1
  .amdhsa_system_sgpr_workgroup_id_x 1
.end_amdhsa_kernel
"""
    open(out, "w").write(hdr + a.text() + d)

if __name__ == "__main__":
    for arg in sys.argv[2:]:
        k, v = arg.split("=")
        assert k in OPT
        OPT[k] = int(v)
    main(sys.argv[1])
```

```python
import sys, math, struct
NAME = "concat_heads__sliding_local_dilated__mha_block__prompt"
OPT = dict(prof=0, rot=7, prefetch=1, sleep=1, rts=0, outsc=2, wpf=0, sa0=3, hst=1, lst=1, krot=1, kd=9, apos=3, g5=0, p2=1, pads=1, delta=96, ipf=1, ipw=1, skip=1, tch=0, tpos=3, shr=1, ipoll=4, la=2, hp=3, sst=0, rmb=0, rma=0, tp=1, wt=0, lsu=0, pp=11, padrt=0, padcy=0, padx=-1)

class Asm:
    def __init__(self):
        self.lines = []
        self.q = []
        self.uid = 0
    def __call__(self, s):
        for l in s.strip("\n").split("\n"):
            l = l.strip()
            if not l: continue
            self.lines.append(l if l.endswith(":") else "    " + l)
    def vm(self, s, tag):
        self(s); self.q.append(tag)
    def wait(self, tag, extra=""):
        if tag not in self.q:
            if extra: self(f"s_waitcnt{extra}")
            return
        idx = max(i for i, t in enumerate(self.q) if t == tag)
        n = len(self.q) - 1 - idx
        assert n <= 63
        self(f"s_waitcnt vmcnt({n}){extra}")
        self.q = self.q[idx + 1:]
    def wait_all(self, extra=""):
        self(f"s_waitcnt vmcnt(0){extra}"); self.q = []
    def lab(self, p):
        self.uid += 1
        return f"{p}_{self.uid}"
    def text(self):
        return "\n".join(self.lines) + "\n"

def vr(a, n): return f"v[{a}:{a+n-1}]"
def sr(a, n=4): return f"s[{a}:{a+n-1}]"
def f32bits(x): return struct.unpack("<I", struct.pack("<f", x))[0]
MF32 = "v_mfma_f32_32x32x16_bf16"
MF16 = "v_mfma_f32_16x16x32_bf16"

RT = 56 * 512
MAT = 64 * RT
BR = 4 * MAT
QU, KU, VU, OU = 0, MAT, 2 * MAT, 3 * MAT
FS = 7
FB = 2 * BR
FA = FB + (256 << FS)
FO = FA + (1024 << FS)
EPOCH = FO + (1024 << FS)
WS_USED = EPOCH + 0x1000
WS_OOB = 0x40000000
PROF_OFF = 0x1100000
X_BYTES, W_BYTES, WO_BYTES, OUT_BYTES = 2048 * 896, 448 * 2688, 448 * 896, 2048 * 1792
CSCALE = (28 ** -0.5) * math.log2(math.e)
DELTA = 24.0
SPIN = 1 << 18

sWS, sX, sWt, sOUT, sWoA, sWoB = 24, 28, 32, 36, 40, 44
sOo, sOf, sOb, sK3 = 48, 49, 50, 51
sW, sXCD, sJ, sRB, sCG, sACT, sH, sQB, sU0, sODD, sRBK, sCG3 = range(52, 64)
sTAG, sVM = 64, 66
T0 = 68
sR, sC, sWI = T0 + 8, T0 + 9, T0 + 10
NST = 10
def stamp(a, i, rt=False):
    if OPT["prof"]:
        assert i < NST
        a(f"{'s_memrealtime' if rt else 's_memtime'} s[{80+2*i}:{81+2*i}]")
def lstamp(a, idx):
    if OPT["prof"]:
        a(f"s_memtime s[100:101]\n s_mov_b32 m0, {idx}\n s_waitcnt lgkmcnt(0)\n v_writelane_b32 v1, s100, m0")
def dump(a):
    if not OPT["prof"]: return
    a(f"""
    s_mul_i32 s8, s2, 12
    s_add_u32 s8, s8, s{sW}
    s_lshl_b32 s8, s8, 8
    s_add_u32 s8, s8, {PROF_OFF + 0x100000}
    s_mov_b32 s{sWS+2}, 0x2000000
    s_waitcnt lgkmcnt(0) vmcnt(0)
    s_memtime s[4:5]
    s_memrealtime s[6:7]
    v_lshlrev_b32 v3, 2, v0
    buffer_store_dword v1, v3, {sr(sWS)}, s8 offen
    s_mul_i32 s8, s2, 12
    s_add_u32 s8, s8, s{sW}
    s_lshl_b32 s8, s8, 6
    s_add_u32 s8, s8, {PROF_OFF}
    s_waitcnt lgkmcnt(0) vmcnt(0)
    v_mov_b32 v1, 0
    s_mov_b64 exec, 1
    """)
    for i, s in enumerate([80 + 2 * i for i in range(NST)] + [4, 6]):
        a(f"v_mov_b32 v0, s{s}\n buffer_store_dword v0, v1, {sr(sWS)}, s8 offen offset:{4*i}\n s_nop 1")
    a("s_waitcnt vmcnt(0)")

def srd(a, d, lo, nbytes):
    nb = nbytes if isinstance(nbytes, str) else hex(nbytes)
    a(f"s_mov_b32 s{d}, s{lo}\n s_and_b32 s{d+1}, s{lo+1}, 0xffff\n s_mov_b32 s{d+2}, {nb}\n s_mov_b32 s{d+3}, 0x20000")

def poll(a, vaddr, vt, soff="0", sleep=None):
    L = a.lab("poll")
    a(f"""
    s_mov_b32 s{T0+11}, {SPIN}
    {L}:
    buffer_load_dwordx2 {vr(vt,2)}, v{vaddr}, {sr(sWS)}, {soff} offen sc1
    s_waitcnt vmcnt(0)
    v_cmp_ne_u64 vcc, {sr(sTAG,2)}, {vr(vt,2)}
    s_sub_u32 s{T0+11}, s{T0+11}, 1
    s_cbranch_scc1 {L}_x
    s_cmp_eq_u64 vcc, 0
    s_cbranch_scc1 {L}_x
    {"s_mov_b64 exec, vcc" if OPT["shr"] else ""}
    s_sleep {OPT['sleep'] if sleep is None else sleep}
    s_branch {L}
    {L}_x:
    s_mov_b64 exec, -1
    """)
    a.q = []

def set_flag(a, soff, vt):
    a(f"""
    v_mov_b32 v{vt}, s{sTAG}
    v_mov_b32 v{vt+1}, s{sTAG+1}
    s_mov_b64 exec, 1
    """)
    a.vm(f"buffer_store_dwordx2 {vr(vt,2)}, v{vL16}, {sr(sWS)}, s{soff} offen sc1", "flag")
    a("s_mov_b64 exec, -1")

def zero_foreign(a, q):
    L = a.lab("zf")
    a(f"""
    s_cmp_eq_u32 s{sODD}, 0
    s_cbranch_scc1 {L}_e
    s_mov_b32 exec_hi, 0
    v_mov_b32 v{q}, 0
    v_mov_b32 v{q+1}, 0
    s_branch {L}_x
    {L}_e:
    s_mov_b32 exec_lo, 0
    v_mov_b32 v{q+6}, 0
    v_mov_b32 v{q+7}, 0
    {L}_x:
    s_mov_b64 exec, -1
    """)

SLOT = 32768
def pslot(s): return (4, 3, 2)[s % 3] * SLOT
WOA_L = (2 * SLOT, 4 * SLOT)
WOB_L = 0
QST_L = 2 * SLOT
XC1_L = 448 * 128
XC2_L = 3 * SLOT
XHA_L = 3 * SLOT + 16384
XFI_L = 3 * SLOT
HFL_L = 2 * SLOT + 28672
vL16 = 2

def p1_role(a, bi):
    a(f"""
    s_lshr_b32 s{sRB}, s{sXCD}, 1
    s_lshl_b32 s{sRB}, s{sRB}, 3
    s_and_b32 s3, s{sJ}, 7
    s_add_u32 s{sRB}, s{sRB}, s3
    s_xor_b32 s3, s{sXCD}, {bi}
    s_and_b32 s3, s3, 1
    s_lshl_b32 s3, s3, 2
    s_lshr_b32 s{sCG}, s{sJ}, 3
    s_add_u32 s{sCG}, s{sCG}, s3
    s_cmp_lt_u32 s{sCG}, 7
    s_cselect_b32 s{sACT}, 1, 0
    """)

def roles(a):
    a(f"""
    s_lshr_b32 s{sCG3}, s{sJ}, 2
    s_min_u32 s{sCG3}, s{sCG3}, 6
    s_and_b32 s3, s{sJ}, 3
    s_lshl_b32 s{sRBK}, s{sXCD}, 2
    s_add_u32 s{sRBK}, s{sRBK}, s3
    s_lshl_b32 s{sH}, s{sXCD}, 1
    s_lshr_b32 s{sODD}, s{sJ}, 4
    s_add_u32 s{sH}, s{sH}, s{sODD}
    s_and_b32 s{sQB}, s{sJ}, 15
    s_mul_i32 s{sU0}, s{sH}, 7
    s_lshr_b32 s{sU0}, s{sU0}, 1
    s_cmp_eq_u32 s{sODD}, 0
    s_cselect_b32 s{sVM}, 0x0fffffff, 0xfffffff0
    s_mov_b32 s{sVM+1}, s{sVM}
    v_lshlrev_b32 v{vL16}, 4, v0
    """)

def gen():
    a = Asm()
    K = NAME + "_kernel"
    a.lines.append(f".globl {K}\n.p2align 8\n.type {K},@function\n{K}:")
    a(f"""
    s_load_dwordx16 s[4:19], s[0:1], 0
    s_load_dwordx2 s[20:21], s[0:1], 64
    s_cmp_ge_u32 s2, 256
    s_cbranch_scc1 L_end
    """)
    stamp(a, 0, rt=True); stamp(a, 1)
    if OPT["padrt"]: a("s_memrealtime s[96:97]")
    if OPT["padcy"]: a("s_memtime s[96:97]")
    a(f"""
    v_lshrrev_b32 v1, 6, v0
    v_and_b32 v0, 63, v0
    s_and_b32 s{sXCD}, s2, 7
    v_readfirstlane_b32 s{sW}, v1
    s_lshr_b32 s{sJ}, s2, 3
    s_nop 1
    s_and_b32 s{sR}, s{sW}, 3
    s_lshr_b32 s{sC}, s{sW}, 2
    """)
    if OPT["pads"]:
        a(f"""
        s_cmp_lt_u32 s{sW}, 2
        s_cbranch_scc1 L_gemm
        s_cmp_lt_u32 s{sW}, 4
        s_cbranch_scc1 L_pad0
        s_cmp_lt_u32 s{sW}, 6
        s_cbranch_scc1 L_pad1
        s_cmp_lt_u32 s{sW}, 8
        s_cbranch_scc1 L_pad2
        """)
    else:
        a(f"s_cmp_lt_u32 s{sW}, 8\n s_cbranch_scc1 L_gemm")
    gen_loader(a)
    gen_bskip(a)
    a("L_gemm:")
    gen_gemm(a)
    gen_publish(a)
    gen_attn(a)
    a("L_helper:")
    gen_helper(a)
    a("L_end:\n s_endpgm")
    a(".p2align 4\n L_ones:\n .long 0x3f803f80, 0x3f803f80, 0x3f803f80, 0x3f803f80")
    a("L_code_end:")
    return a

def make_tag(a, vt):
    a(f"""
    v_readfirstlane_b32 s{sTAG}, v{vt}
    s_nop 3
    s_mul_i32 s{sTAG}, s{sTAG}, 0x9e3779b1
    s_add_u32 s{sTAG}, s{sTAG}, 0x7f4a7c15
    s_not_b32 s{sTAG+1}, s{sTAG}
    """)

def finalize(a, o, n, l):
    a(f"v_rcp_f32 v{l}, v{l}\n s_nop 0")
    for i in range(n):
        a(f"v_mul_f32 v{o+i}, v{l}, v{o+i}")
    for i in range(n // 2):
        a(f"v_cvt_pk_bf16_f32 v{o+i}, v{o+2*i}, v{o+2*i+1}")
    a("s_nop 1")
    for g in range(0, n // 2, 4):
        a(f"v_permlane32_swap_b32 v{o+g}, v{o+g+2}\n v_permlane32_swap_b32 v{o+g+1}, v{o+g+3}")

def bcast_l(a, src_e, src_o, t):
    L = a.lab("bl")
    a(f"""
    s_cmp_eq_u32 s{sODD}, 0
    s_cbranch_scc1 {L}_e
    v_mov_b32 v{t}, v{src_o}
    v_mov_b32 v{t+1}, v{src_o}
    s_nop 1
    v_permlane32_swap_b32 v{t}, v{t+1}
    s_branch {L}_x
    {L}_e:
    v_mov_b32 v{t}, v{src_e}
    v_mov_b32 v{t+1}, v{src_e}
    s_nop 1
    v_permlane32_swap_b32 v{t+1}, v{t}
    {L}_x:
    s_nop 1
    """)

def store_units(a, p, first, soff, off):
    L = a.lab("su")
    full = f"buffer_store_dwordx4 {vr(p,4)}, v{vL16}, {sr(sWS)}, s{soff} offen offset:{off} sc1"
    if first:
        a(f"""
        s_cmp_eq_u32 s{sODD}, 0
        s_cbranch_scc1 {L}_f
        s_mov_b32 exec_hi, 0
        buffer_store_dwordx2 {vr(p+2,2)}, v{vL16}, {sr(sWS)}, s{soff} offen offset:{off+8} sc1
        s_not_b64 exec, exec
        {L}_f:
        {full}
        s_mov_b64 exec, -1
        """)
    else:
        a(f"""
        s_cmp_eq_u32 s{sODD}, 1
        s_cbranch_scc1 {L}_f
        s_mov_b32 exec_lo, 0
        buffer_store_dwordx2 {vr(p,2)}, v{vL16}, {sr(sWS)}, s{soff} offen offset:{off} sc1
        s_not_b64 exec, exec
        {L}_f:
        {full}
        s_mov_b64 exec, -1
        """)

def dma_lanes(a, d, t):
    a(f"""
    v_lshrrev_b32 v{t}, 3, v0
    v_and_b32 v{t+1}, 7, v0
    v_lshrrev_b32 v{t+2}, 4, v0
    s_lshl_b32 s3, s{sR}, 4
    v_add_u32 v{t}, s3, v{t}
    v_mul_u32_u24 v{d+2}, 2688, v{t}
    v_mul_u32_u24 v{t}, 896, v{t}
    v_xor_b32 v{d}, v{t+1}, v{t+2}
    v_lshlrev_b32 v{d}, 4, v{d}
    v_add_u32 v{d}, v{t}, v{d}
    v_add_u32 v{d+1}, {8*896}, v{d}
    v_xor_b32 v{d+1}, 64, v{d+1}
    v_and_b32 v{t}, 1, v{t+2}
    v_lshlrev_b32 v{t}, 2, v{t}
    v_xor_b32 v{t}, v{t}, v{t+1}
    v_lshlrev_b32 v{t}, 4, v{t}
    v_add_u32 v{d+2}, v{d+2}, v{t}
    """)
def dma_tile(a, sCH, sXb, sWb, t, px):
    a(f"""
    s_cmp_lg_u32 s{sACT}, 0
    s_cselect_b32 s{t}, {X_BYTES}, 0
    s_cselect_b32 s{t+1}, {W_BYTES}, 0
    s_mul_i32 s{sXb}, s{sRB}, {64*896}
    s_lshl_b32 s{sWb}, s{sCG}, 7
    """)
    mode = OPT["rmb"] if px == 10 else OPT["rma"]
    if mode == 0:
        a(f"""
        s_and_b32 s3, s{sCG}, 3
        s_lshl_b32 s3, s3, 1
        s_and_b32 s{sCH}, s{sRB}, 7
        s_add_u32 s{sCH}, s{sCH}, s3
        """)
    else:
        if mode == 1: a(f"s_mov_b32 s{sCH}, 0")
        if mode == 2: a(f"s_xor_b32 s{sCH}, s{sRB}, s{sCG}\n s_and_b32 s{sCH}, s{sCH}, 1\n s_mul_i32 s{sCH}, s{sCH}, 3")
        if mode == 4: a(f"s_add_u32 s{sCH}, s{sRB}, s{sCG}\n s_and_b32 s{sCH}, s{sCH}, 3\n s_lshl_b32 s{sCH}, s{sCH}, 1")
        a(f"s_add_u32 s{sCH}, s{sCH}, s{sXCD}")
    a(f"""
    s_cmp_ge_u32 s{sCH}, 7
    s_cselect_b32 s3, 7, 0
    s_sub_u32 s{sCH}, s{sCH}, s3
    """)
def dma_stage(a, d, sCH, sXb, sWb, sSl, t, fill):
    a(f"""
    s_lshl_b32 s{t}, s{sCH}, 7
    s_mov_b32 m0, s{sSl}
    s_add_u32 s{t}, s{t}, s{sXb}
    s_mul_i32 s{t+1}, s{sCH}, {64*2688}
    buffer_load_dwordx4 v{d}, {sr(sX)}, s{t} offen lds
    s_add_u32 m0, s{sSl}, 1024
    s_add_u32 s{t+1}, s{t+1}, s{sWb}
    buffer_load_dwordx4 v{d+1}, {sr(sX)}, s{t} offen lds
    """)
    fill = list(fill) + [""] * 6
    for p in (1, 2, 0):
        for i in range(2):
            a(f"s_add_u32 m0, s{sSl}, {8192 + p*8192 + i*1024}")
            a(f"s_add_u32 s{t}, s{t+1}, {p*896 + i*8*2688}")
            a(f"buffer_load_dwordx4 v{d+2}, {sr(sWt)}, s{t} offen lds")
            a(fill.pop(0))

def gen_loader(a):
    sCH, sSl, sN, sXb, sWb = 40, T0 + 7, T0 + 6, T0 + 5, T0 + 4
    a("s_setprio 3")
    def pad(i):
        if OPT["pads"]: a(f"s_cmp_lg_u32 0, 0\n L_pad{i}:\n s_cbranch_scc1 L_gemm")
    dma_lanes(a, 4, 8)
    p1_role(a, 0)
    pad(0)
    dma_tile(a, sCH, sXb, sWb, T0, 10)
    a(f"""
    s_lshl_b32 s{sSl}, s{sR}, 11
    s_mov_b32 s{sN}, 0
    """)
    stamp(a, 5)
    a("s_waitcnt lgkmcnt(0)")
    stamp(a, 6)
    srd(a, sX, 10, f"s{T0}")
    srd(a, sWt, 12, f"s{T0+1}")
    pad(1)
    stamp(a, 7)
    nxt = [f"s_add_u32 s{sCH}, s{sCH}, 1", f"s_cmp_eq_u32 s{sCH}, 7\n s_cselect_b32 s{sCH}, 0, s{sCH}"]
    def late():
        roles(a)
        attn_setup(a, 1)
        srd(a, sWS, 20, WS_USED)
        srd(a, sOUT, 16, OUT_BYTES)
        a(f"s_mov_b32 s{sC}, 1")
    if OPT["lsu"] == 0:
        dma_stage(a, 4, sCH, sXb, sWb, sSl, T0, nxt + ([f"s_cmp_lg_u32 0, 0\n L_pad2:\n s_cbranch_scc1 L_gemm"] if OPT["pads"] else []))
        lstamp(a, 0)
        if OPT["prof"]:
            a("v_writelane_b32 v1, s90, 1\n v_writelane_b32 v1, s92, 2\n v_writelane_b32 v1, s94, 3")
            if OPT["sst"]:
                a("s_waitcnt vmcnt(7)"); lstamp(a, 4); a("s_waitcnt vmcnt(0)"); lstamp(a, 5)
        a(f"s_add_u32 s{sSl}, s{sSl}, {SLOT}\n s_mov_b32 s{sN}, 1")
        late()
        if OPT["skip"]:
            a(f"""
            s_cmp_lg_u32 s{sACT}, 0
            s_cbranch_scc1 H1_loop
            s_barrier
            s_branch H1_sw
            """)
    a("H1_loop:")
    dma_stage(a, 4, sCH, sXb, sWb, sSl, T0, nxt + [f"s_add_u32 s{sN}, s{sN}, 1"])
    a(f"""
    s_add_u32 s{sSl}, s{sSl}, {SLOT}
    s_and_b32 s{sSl}, s{sSl}, {4*SLOT-1}
    """)
    if OPT["lsu"]: a(f"s_cmp_eq_u32 s{sN}, 1\n s_cbranch_scc1 H1_loop")
    a("s_waitcnt vmcnt(8)\n s_barrier")
    if OPT["prof"] and OPT["lst"]:
        a(f"s_add_u32 s3, s{sN}, 31"); lstamp(a, "s3")
    a(f"s_cmp_lg_u32 s{sN}, 7\n s_cbranch_scc1 H1_same\n H1_sw:")
    p1_role(a, 1)
    dma_tile(a, sCH, sXb, sWb, T0, 4)
    srd(a, sX, 4, f"s{T0}")
    srd(a, sWt, 6, f"s{T0+1}")
    for l in nxt: a(l)
    a(f"""
    s_lshl_b32 s{sSl}, s{sR}, 11
    s_mov_b32 s{sN}, 8
    H1_same:
    s_cmp_lt_u32 s{sN}, 14
    s_cbranch_scc1 H1_loop
    """)
    if OPT["lsu"]: late()
    a("s_waitcnt vmcnt(0)\n s_barrier")
    stamp(a, 2)
    a("s_branch C_attn")

vVs, vWo, vFa, vPo, vWa, vOa, vXa, vPar, vHalf, VM, NG, vZ = 15, 16, 17, 18, 19, 21, 22, 24, 25, 144, 156, 9
sKb, sVb, sTile, sM, sHRT = 8, 9, 10, 11, 12
def kv_setup(a, first):
    sRT = sHRT
    a(f"""
    s_lshl_b32 s{sM}, s{sR}, 12
    s_lshl_b32 s{sKb}, s{sU0}, 9
    s_lshl_b32 s{sVb}, s{sU0}, 7
    s_lshl_b32 s{sRT}, s{sQB}, 2
    s_add_u32 s{sRT}, s{sRT}, s{sR}
    s_and_b32 s{sTile}, s{sQB}, {OPT["rot"]}
    s_add_u32 s{sTile}, s{sTile}, {first}
    s_lshl_b32 s{sTile}, s{sTile}, 3
    s_lshl_b32 s3, s{sR}, 1
    s_add_u32 s{sTile}, s{sTile}, s3
    s_and_b32 s{sTile}, s{sTile}, 63
    """)
def kv(a, s):
    base = pslot(s)
    a(f"""
    s_mul_i32 s{T0}, s{sTile}, {RT}
    s_add_u32 m0, s{sM}, {base}
    s_add_u32 s22, s{T0}, s{sKb}
    s_add_u32 s22, s22, {BR + KU}
    """)
    a.vm(f"buffer_load_dwordx4 v{vL16}, {sr(sWS)}, s22 offen sc1 lds", f"kv{s}")
    a(f"s_add_u32 s23, s22, {RT - 2048}")
    a.vm(f"buffer_load_dwordx4 v{vL16}, {sr(sWS)}, s22 offen offset:1024 sc1 lds", f"kv{s}")
    a(f"s_add_u32 s{T0}, s{T0}, s{sVb}")
    a.vm(f"buffer_load_dwordx4 v{vL16}, {sr(sWS)}, s23 offen offset:2048 sc1 lds", f"kv{s}")
    a(f"s_add_u32 s{T0}, s{T0}, {BR + VU}")
    a.vm(f"buffer_load_dwordx4 v{vL16}, {sr(sWS)}, s23 offen offset:3072 sc1 lds", f"kv{s}")
    a(f"s_add_u32 m0, s{sM}, {base + 16384}\n s_mov_b64 exec, {sr(sVM,2)}")
    for i in range(4):
        a.vm(f"buffer_load_dwordx4 v{vVs}, {sr(sWS)}, s{T0} offen offset:{i*1024} sc1 lds", f"kv{s}")
        if i < 3: a(f"s_add_u32 s{T0}, s{T0}, {14336 - 1024}")
    if s in (0, 1, 2):
        a("s_not_b64 exec, exec")
        for i in range(4):
            a.vm(f"global_load_lds_dwordx4 v{vZ}, s[18:19]", f"kv{s}")
            if i < 3: a(f"s_add_u32 m0, s{sM}, {base + 16384 + (i+1)*1024}\n s_nop 0")
    a(f"""
    s_mov_b64 exec, -1
    s_add_u32 s{sTile}, s{sTile}, 8
    s_and_b32 s{sTile}, s{sTile}, 63
    """)
def helper_setup(a, part):
    T = 160; sRT = sHRT
    if part == 0:
        kv_setup(a, 1)
        a(f"""
        v_bfe_u32 v{T}, v0, 3, 1
        v_mul_u32_u24 v{T}, 3, v{T}
        v_add_u32 v{T}, s{sU0}, v{T}
        v_lshrrev_b32 v{T+3}, 2, v{T}
        v_lshlrev_b32 v{T+3}, 6, v{T+3}
        s_cmp_eq_u32 s{sRT}, 0
        s_cselect_b32 s3, 0, 1
        v_and_b32 v{T+2}, s3, v0
        v_sub_u32 v{T+2}, s{sRT}, v{T+2}
        v_add_u32 v{T+2}, v{T+2}, v{T+3}
        v_lshlrev_b32 v{T+2}, {FS}, v{T+2}
        v_add_u32 v{vFa}, {FA}, v{T+2}
        """)
    if part == 1:
        a(f"""
        v_lshrrev_b32 v{T}, 3, v0
        s_lshl_b32 s3, s{sR}, 3
        v_add_u32 v{T+1}, s3, v{T}
        v_mul_u32_u24 v{T+1}, 896, v{T+1}
        v_and_b32 v{T}, 2, v{T}
        s_and_b32 s3, s{sR}, 1
        v_or_b32 v{T}, s3, v{T}
        v_lshlrev_b32 v{T}, 1, v{T}
        v_and_b32 v{T+2}, 7, v0
        v_xor_b32 v{T}, v{T}, v{T+2}
        v_lshlrev_b32 v{T}, 4, v{T}
        v_add_u32 v{T+1}, v{T+1}, v{T}
        s_lshl_b32 s3, s{sCG3}, 7
        v_add_u32 v{vWo}, s3, v{T+1}
        v_lshlrev_b32 v{vPo}, {FS}, v{T+2}
        v_lshrrev_b32 v{T+1}, 2, v0
        v_and_b32 v{T+1}, 3, v{T+1}
        v_lshlrev_b32 v{T+2}, 3, v27
        v_add_u32 v{T+2}, v{T+2}, v{T+1}
        v_lshlrev_b32 v{T+2}, 7, v{T+2}
        v_and_b32 v{T+1}, 2, v{T+1}
        v_or_b32 v{T+1}, v{T+1}, v27
        v_bfe_u32 v{T+3}, v0, 4, 1
        v_xor_b32 v{T+1}, v{T+1}, v{T+3}
        v_lshlrev_b32 v{T+1}, 5, v{T+1}
        v_add_u32 v{T+2}, v{T+2}, v{T+1}
        v_and_b32 v{T+1}, 3, v0
        v_lshlrev_b32 v{T+1}, 3, v{T+1}
        v_add_u32 v{T+2}, v{T+2}, v{T+1}
        s_lshr_b32 s3, s{sR}, 1
        s_mul_i32 s3, s3, {WOA_L[1] - WOA_L[0]}
        s_add_u32 s3, s3, {WOA_L[0]}
        v_add_u32 v{vWa}, s3, v{T+2}
        v_xor_b32 v{vWa+1}, 64, v{vWa}
        v_mul_u32_u24 v{vOa}, 1792, v26
        v_lshlrev_b32 v{T}, 4, v27
        v_add_u32 v{vOa}, v{vOa}, v{T}
        s_add_u32 s3, s{sM}, {XHA_L}
        v_add_u32 v{vXa}, s3, v{vL16}
        v_xor_b32 v{vXa+1}, {2*4096}, v{vXa}
        """)
    if part == 2:
        a(f"""
        v_lshlrev_b32 v{T+1}, 2, v27
        v_and_b32 v{T}, 30, v0
        v_sub_u32 v{T}, v{T}, v{T+1}
        v_add_u32 v{T}, 18, v{T}
        v_mov_b32 v{T+2}, 0x5555
        v_mov_b32 v{T+3}, 0
        v_lshlrev_b64 {vr(T+2,2)}, v{T}, {vr(T+2,2)}
        s_cmp_eq_u32 s{sRT}, 0
        s_cselect_b32 s3, 0, -1
        v_and_b32 v{T+2}, s3, v{T+2}
        v_bfe_i32 v{vPar}, v0, 0, 1
        v_xor_b32 v{vHalf}, 0xffff, v{vPar}
        s_mov_b32 s3, 0xf149f2ca
        """)
        for i in range(12):
            pos = 16 + 8 * (i // 2) + 2 * (i % 2)
            a(f"v_bfe_i32 v{VM+i}, v{T+2 + pos//32}, {pos % 32}, 1")
        for g in range(4):
            a(f"v_bitop3_b32 v{NG+g}, v{VM+g}, v{VM+g+4}, v{VM+g+8} bitop3:0x01\n v_and_b32 v{NG+g}, s3, v{NG+g}")

def store_offsets(a, base, d):
    a(f"""
    s_lshl_b32 s{d+4}, s{sRB}, 1
    s_and_b32 s3, s{sR}, 1
    s_add_u32 s{d+4}, s{d+4}, s3
    s_mul_i32 s{d+3}, s{d+4}, {RT}
    s_cmp_eq_u32 s{sACT}, 0
    s_cselect_b32 s3, {WS_OOB}, 0
    s_add_u32 s{d+3}, s{d+3}, s3
    s_add_u32 s{d+3}, s{d+3}, {base}
    s_lshl_b32 s{d+2}, s{sCG}, 1
    s_lshr_b32 s3, s{sR}, 1
    s_add_u32 s{d+2}, s{d+2}, s3
    s_lshl_b32 s3, s{d+2}, 6
    s_add_u32 s{d+4}, s{d+4}, s3
    s_lshl_b32 s{d}, s{d+2}, 11
    s_add_u32 s{d}, s{d}, s{d+3}
    s_add_u32 s{d+1}, s{d}, {KU}
    s_lshl_b32 s{d+2}, s{d+2}, 9
    s_add_u32 s{d+2}, s{d+2}, s{d+3}
    s_add_u32 s{d+2}, s{d+2}, {VU}
    s_add_u32 s{d+3}, s{d+2}, 14336
    """)
def qkv_stores(p, d):
    return [f"buffer_store_dwordx4 {vr(p+16,4)}, v{vVs}, {sr(sWS)}, s{d+2} offen sc1",
            f"buffer_store_dwordx4 {vr(p+20,4)}, v{vVs}, {sr(sWS)}, s{d+3} offen sc1",
            f"buffer_store_dwordx4 {vr(p+8,4)}, v{vL16}, {sr(sWS)}, s{d+1} offen sc1",
            f"buffer_store_dwordx4 {vr(p+12,4)}, v{vL16}, {sr(sWS)}, s{d+1} offen offset:1024 sc1",
            f"buffer_store_dwordx4 {vr(p,4)}, v{vL16}, {sr(sWS)}, s{d} offen sc1",
            f"buffer_store_dwordx4 {vr(p+4,4)}, v{vL16}, {sr(sWS)}, s{d} offen offset:1024 sc1"]

def gen_gemm(a):
    vXA, vWA = 10, 14
    accQ, accK, accV = 32, 48, 64
    a(f"""
    v_and_b32 v26, 31, v0
    v_lshrrev_b32 v27, 5, v0
    v_lshrrev_b32 v28, 1, v26
    v_and_b32 v28, 7, v28
    v_xor_b32 v28, v28, v27
    v_lshlrev_b32 v28, 4, v28
    s_mul_i32 s{T0}, s{sC}, {4*SLOT}
    s_and_b32 s3, s{sW}, 1
    s_lshl_b32 s3, s3, 12
    s_add_u32 s3, s3, s{T0}
    v_lshlrev_b32 v29, 7, v26
    v_add_u32 v29, s3, v29
    v_add_u32 v{vXA}, v29, v28
    v_xor_b32 v{vXA+1}, 32, v{vXA}
    v_xor_b32 v{vXA+2}, 64, v{vXA}
    v_xor_b32 v{vXA+3}, 96, v{vXA}
    s_lshr_b32 s{T0+1}, s{sR}, 1
    v_lshrrev_b32 v28, 2, v0
    v_and_b32 v28, 3, v28
    v_lshlrev_b32 v29, 3, v27
    v_add_u32 v29, v29, v28
    v_lshlrev_b32 v29, 7, v29
    v_lshrrev_b32 v28, 1, v28
    v_xor_b32 v28, s{T0+1}, v28
    v_lshlrev_b32 v28, 6, v28
    v_add_u32 v29, v29, v28
    v_and_b32 v28, 16, v0
    v_lshlrev_b32 v28, 1, v28
    v_add_u32 v29, v29, v28
    v_and_b32 v28, 3, v0
    v_lshlrev_b32 v28, 3, v28
    v_add_u32 v29, v29, v28
    v_add_u32 v{vWA}, s{T0}, v29
    """)
    for i in range(48):
        a(f"v_mov_b32 v{accQ+i}, 0")
    roles(a)
    a(f"""
    s_mov_b32 s{T0+6}, {hex(f32bits(CSCALE))}
    v_mov_b32 v{vZ}, 0
    v_mov_b32 v{vWo}, 0
    v_mov_b32 v{vFa}, 0
    v_mov_b32 v{vPo}, 0
    v_mov_b32 v{vOa}, 0
    v_mul_u32_u24 v{vVs}, {7168-512}, v27
    v_add_u32 v{vVs}, v{vVs}, v{vL16}
    """)
    p1_role(a, f"s{sC}")
    a(f"s_cmp_eq_u32 s{sC}, 0\n s_cselect_b32 s{T0}, {BR}, 0")
    store_offsets(a, f"s{T0}", T0 + 1)
    a(f"""
    s_waitcnt lgkmcnt(0)
    """)
    srd(a, sWS, 20, WS_USED)
    a(f"""
    v_mov_b32 v4, {EPOCH}
    buffer_load_dword v4, v4, {sr(sWS)}, 0 offen sc1
    """)
    srd(a, sOUT, 16, OUT_BYTES)
    srd(a, sWoA, 8, WO_BYTES)
    srd(a, sWoB, 14, WO_BYTES)
    a(f"""
    s_getpc_b64 s[18:19]
    H_pc:
    s_add_u32 s18, s18, L_ones-H_pc
    s_addc_u32 s19, s19, 0
    s_mov_b32 s{T0+11}, {SLOT}
    s_cmp_eq_u32 s{sC}, 0
    s_cbranch_scc1 C_bb
    """)
    if OPT["prefetch"]:
        a(f"""
        s_lshl_b32 s3, s{sJ}, 2
        s_add_u32 s3, s3, s{sR}
        s_lshl_b32 s3, s3, 7
        s_min_u32 s3, s3, L_ones-C_b0-64
        s_sub_u32 s22, s18, L_ones-C_b0
        s_subb_u32 s23, s19, 0
        s_load_dword s0, s[22:23], s3
        s_add_u32 s3, s3, 64
        s_load_dword s0, s[22:23], s3
        """)
    dma_lanes(a, 5, 164)
    dma_tile(a, 14, 15, 16, 22, 4)
    srd(a, sX, 4, "s22")
    srd(a, sWt, 6, "s23")
    a(f"s_lshl_b32 s17, s{sR}, 11\n s_add_u32 s17, s17, {4*SLOT}\n s_mov_b32 s{T0+11}, 0")
    if OPT["ipf"]:
        a(f"""
        s_and_b32 s3, s2, {0xc1}
        s_cmp_lg_u32 s3, {0xc1}
        s_cbranch_scc1 C_nipf
        s_lshl_b32 s3, s{sRB}, 2
        s_add_u32 s3, s3, s{sR}
        s_mul_i32 s22, s3, 14336
        s_mul_i32 s23, s3, 9408
        s_and_b32 s23, s23, -128
        s_mov_b32 m0, s17
        """)
        if OPT["ipw"]: a("s_waitcnt vmcnt(0)")
        for i in range(14):
            a(f"buffer_load_dwordx4 v{vL16}, {sr(sX)}, s22 offen lds\n s_add_u32 s22, s22, 1024")
            if i < 10: a(f"buffer_load_dwordx4 v{vL16}, {sr(sWt)}, s23 offen lds\n s_add_u32 s23, s23, 1024")
        a("C_nipf:")
    steps = [lambda: helper_setup(a, 0), lambda: helper_setup(a, 1), lambda: helper_setup(a, 2)]
    for b in range(-1, 6):
        if b == 5 or (b >= 0 and not OPT["skip"]): a("s_barrier")
        elif b >= 0: a(f"s_and_b32 s3, s2, 0xc1\n s_cmp_eq_u32 s3, 0xc1\n s_cbranch_scc1 C_sk{b}\n s_barrier\n C_sk{b}:")
        if b == OPT["tpos"] and OPT["tch"] >= 2:
            a(f"""
            v_and_b32 v8, 7, v0
            s_mov_b32 s3, {MAT}
            v_mul_lo_u32 v8, v8, s3
            s_and_b32 s3, s{T0+1}, {WS_OOB - 1}
            s_mov_b64 exec, 0xff
            buffer_load_dword v3, v8, {sr(sWS)}, s3 offen sc1
            """)
            if OPT["tch"] >= 3:
                a(f"""
                s_mul_i32 s3, s{sRBK}, {64*1792}
                s_mov_b64 exec, 1
                buffer_load_dword v3, v8, {sr(sOUT)}, s3 offen sc1
                buffer_load_dword v3, v8, {sr(sWoA)}, 0 offen
                buffer_load_dword v3, v8, {sr(sWoB)}, 0 offen
                """)
            a("s_mov_b64 exec, -1")
        if b == 0 and OPT["tch"] == 1:
            a("s_load_dword s0, s[4:5], 0\n s_load_dword s0, s[6:7], 0")
        if b == OPT["apos"]: dma_stage(a, 5, 14, 15, 16, 17, 22, [])
        elif b == 5: a("s_waitcnt vmcnt(0) lgkmcnt(0)"); make_tag(a, 4)
        elif steps: steps.pop(0)()
    assert not steps
    a(f"""
    C_b0:
    s_mov_b32 s{T0+7}, 7
    C_w:
    s_barrier
    """)
    F = [80, 96, 112, 128]
    def rlist(ks):
        f = F[ks]
        r = [f"ds_read_b128 {vr(f,4)}, v{vXA+ks}"]
        for p in (1, 2, 0):
            for j in range(2):
                r.append(f"ds_read_b64_tr_b16 {vr(f+4+4*p+2*j,2)}, v{vWA} offset:{8192+p*8192+ks*2048+j*512}")
        return r
    def mlist(ks):
        f = F[ks]
        return [f"{MF32} {vr(accK,16)}, {vr(f+8,4)}, {vr(f,4)}, {vr(accK,16)}",
                f"{MF32} {vr(accV,16)}, {vr(f,4)}, {vr(f+12,4)}, {vr(accV,16)}",
                f"{MF32} {vr(accQ,16)}, {vr(f+4,4)}, {vr(f,4)}, {vr(accQ,16)}"]
    def step(ks, rd):
        m = mlist(ks)
        r = rlist((ks + 2) % 4) if rd else [""] * 7
        a(m[0]); a(r[0]); a(r[1]); a(r[2]); a(m[1]); a(r[3]); a(r[4]); a(m[2]); a(r[5]); a(r[6])
    for l in rlist(0) + rlist(1): a(l)
    a("C_g:")
    a("s_waitcnt lgkmcnt(7)"); step(0, True)
    a("s_waitcnt lgkmcnt(7)"); step(1, True)
    for r in range(vXA, vXA + 5):
        a(f"v_add_u32 v{r}, s{T0+11}, v{r}\n v_and_b32 v{r}, {4*SLOT-1}, v{r}")
    a(f"""
    s_mov_b32 s{T0+11}, {SLOT}
    s_sub_u32 s{T0+7}, s{T0+7}, 1
    s_cmp_le_u32 s{T0+7}, 1
    s_cbranch_scc1 C_gx
    s_waitcnt lgkmcnt(0)
    s_barrier
    """)
    step(2, True)
    step(3, True)
    a("s_branch C_g\n C_gx:")
    a("s_waitcnt lgkmcnt(7)"); step(2, False)
    a("s_waitcnt lgkmcnt(0)"); step(3, False)
    a(f"s_cmp_eq_u32 s{T0+7}, 1\n s_cbranch_scc1 C_w")
    stamp(a, 3)
    a("s_nop 8")
    P = 80
    st = qkv_stores(P, T0 + 1)
    for i in range(8):
        a(f"v_cvt_pk_bf16_f32 v{P+8+i}, v{accK+2*i}, v{accK+2*i+1}")
    for i in range(8):
        a(f"v_cvt_pk_bf16_f32 v{P+16+i}, v{accV+2*i}, v{accV+2*i+1}")
    for g in (8, 12):
        a(f"v_permlane32_swap_b32 v{P+g}, v{P+g+2}\n v_permlane32_swap_b32 v{P+g+1}, v{P+g+3}")
    a(f"s_cmp_lg_u32 s{sC}, 0\n s_cbranch_scc1 C_ns")
    for l in st[:4]: a(l)
    a("C_ns:")
    for i in range(16):
        a(f"v_mul_f32 v{accQ+i}, s{T0+6}, v{accQ+i}")
    for i in range(8):
        a(f"v_cvt_pk_bf16_f32 v{P+i}, v{accQ+2*i}, v{accQ+2*i+1}")
    a("s_nop 1")
    for g in (0, 4):
        a(f"v_permlane32_swap_b32 v{P+g}, v{P+g+2}\n v_permlane32_swap_b32 v{P+g+1}, v{P+g+3}")
    a(f"s_cbranch_scc1 L_helper")

def gen_bskip(a):
    a("C_bb:")
    if OPT["skip"]:
        a(f"s_cmp_lg_u32 s{sACT}, 0\n s_cbranch_scc1 C_b0\n s_barrier\n s_barrier\n s_branch C_pub")
    else:
        a("s_branch C_b0")

def gen_publish(a):
    T, vFl = 28, 32
    sRT = sHRT
    kd, pp = OPT["kd"], OPT["pp"]
    for l in qkv_stores(80, T0 + 1)[4:]: a(l)
    a("C_pub:")
    lstamp(a, 0)
    a("s_barrier")
    a(f"""
    s_lshl_b32 s3, s{sCG}, 5
    s_add_u32 s3, s3, s{sRB}
    s_lshl_b32 s3, s3, {FS}
    s_add_u32 s13, s3, {FB}
    """)
    kv_setup(a, 0)
    a(f"""
    v_bfe_u32 v{T}, v0, 3, 1
    v_mul_u32_u24 v{T}, 3, v{T}
    v_add_u32 v{T}, s{sU0}, v{T}
    v_lshrrev_b32 v{T+3}, 3, v{T}
    v_lshlrev_b32 v{T+3}, 5, v{T+3}
    s_lshr_b32 s3, s{sRT}, 1
    v_mov_b32 v{T+1}, s3
    s_mov_b64 exec, 0xffff
    v_and_b32 v{T+1}, 7, v0
    v_lshlrev_b32 v{T+1}, 2, v{T+1}
    v_add_u32 v{T+1}, s{sR}, v{T+1}
    s_mov_b64 exec, -1
    v_add_u32 v{T+1}, v{T+1}, v{T+3}
    v_lshlrev_b32 v{T+1}, {FS}, v{T+1}
    v_add_u32 v{vFl}, {FB}, v{T+1}
    """)
    attn_setup(a, 0)
    def qload():
        a(f"""
        s_lshr_b32 s3, s{sM}, 1
        s_add_u32 m0, s3, {QST_L}
        s_sub_u32 s3, s{sOb}, {OU - QU}
        buffer_load_dwordx4 v{vL16}, {sr(sWS)}, s3 offen sc1 lds
        buffer_load_dwordx4 v{vL16}, {sr(sWS)}, s3 offen offset:1024 sc1 lds
        """)
    for b in range(9, 13):
        if b == kd:
            a("s_waitcnt vmcnt(0)")
            lstamp(a, 1)
            make_tag(a, 4)
        a("s_barrier")
        if b == kd:
            a(f"s_cmp_lg_u32 s{sW}, 0\n s_cbranch_scc1 H_nofl")
            set_flag(a, 13, T)
            a("H_nofl:")
            lstamp(a, 3)
        if b == pp:
            a(f"buffer_load_dwordx2 {vr(T+2,2)}, v{vFl}, {sr(sWS)}, 0 offen sc1")
    a(f"""
    s_waitcnt vmcnt(0)
    v_cmp_ne_u64 vcc, {sr(sTAG,2)}, {vr(T+2,2)}
    s_cmp_eq_u64 vcc, 0
    s_cselect_b32 s13, 1, 0
    s_cbranch_scc1 H_ok
    """)
    if OPT["p2"]:
        a(f"""
        buffer_load_dwordx2 {vr(T+2,2)}, v{vFl}, {sr(sWS)}, 0 offen sc1
        s_barrier
        s_waitcnt vmcnt(0)
        v_cmp_ne_u64 vcc, {sr(sTAG,2)}, {vr(T+2,2)}
        s_cmp_eq_u64 vcc, 0
        s_cbranch_scc1 H_ok
        """)
    else:
        a("s_barrier")
    if OPT["ipoll"]:
        a(f"s_cmp_lg_u32 s{sACT}, 0\n s_cbranch_scc1 H_np\n s_mov_b64 exec, 1")
        poll(a, vFl, T + 2, sleep=OPT["ipoll"])
        a("H_np:")
    poll(a, vFl, T + 2)
    a("H_ok:")
    lstamp(a, 2)
    qload()
    kv(a, 0)
    a("s_cmp_eq_u32 s13, 0\n s_cbranch_scc1 H_b13\n s_barrier\n H_b13:\n s_waitcnt vmcnt(%d)" % (8 if OPT["g5"] else 0))

vCur, vNxt, vNx2, vQa, vK0, vXw, vXr, vT = 148, 149, 150, 151, 152, 153, 156, 160
def attn_setup(a, kh):
    a(f"""
    s_and_b32 s{sK3}, s{sCG3}, {OPT["krot"]}
    s_xor_b32 s{sK3}, s{sK3}, {kh}
    s_add_u32 s{sWI}, s{sR}, {4*kh}
    s_lshl_b32 s3, s{sQB}, 2
    s_add_u32 s3, s3, s{sR}
    s_mul_i32 s3, s3, {RT}
    s_lshl_b32 s{sOb}, s{sU0}, 9
    s_add_u32 s{sOb}, s{sOb}, s3
    s_add_u32 s{sOb}, s{sOb}, {BR + OU}
    v_add_u32 v{vCur}, {pslot(0) + kh*8192}, v{vL16}
    v_add_u32 v{vNxt}, {pslot(1) + kh*8192}, v{vL16}
    v_add_u32 v{vNx2}, {pslot(2) + kh*8192}, v{vL16}
    v_add_u32 v{vK0}, {pslot(0)}, v{vL16}
    s_lshl_b32 s3, s{sR}, 11
    s_add_u32 s3, s3, {QST_L}
    v_add_u32 v{vQa}, s3, v{vL16}
    s_lshl_b32 s3, s{sR}, 10
    v_add_u32 v{vT}, s3, v{vL16}
    v_add_u32 v{vXw}, {XC1_L + kh*4096}, v{vT}
    v_add_u32 v{vXr}, {XC1_L + (1-kh)*4096}, v{vT}
    v_add_u32 v{vXw+1}, {XC2_L + kh*8192}, v{vT}
    v_add_u32 v{vXr+1}, {XC2_L + (1-kh)*8192}, v{vT}
    v_lshrrev_b32 v{vT}, 2, v{vT}
    v_add_u32 v{vXw+2}, {XC2_L + kh*8192 + 4096}, v{vT}
    v_add_u32 v{vXr+2}, {XC2_L + (1-kh)*8192 + 4096}, v{vT}
    v_lshrrev_b32 v{vT}, 4, v0
    v_lshrrev_b32 v{vT+1}, 2, v0
    v_and_b32 v{vT+1}, 3, v{vT+1}
    v_lshlrev_b32 v{vT+2}, 3, v{vT}
    v_add_u32 v{vT+2}, v{vT+2}, v{vT+1}
    v_lshlrev_b32 v{vT+2}, 7, v{vT+2}
    v_and_b32 v{vT+1}, 2, v{vT+1}
    v_and_b32 v{vT+3}, 1, v{vT}
    v_or_b32 v{vT+1}, v{vT+1}, v{vT+3}
    v_lshlrev_b32 v{vT+1}, 5, v{vT+1}
    v_add_u32 v{vT+2}, v{vT+2}, v{vT+1}
    v_and_b32 v{vT+1}, 3, v0
    v_lshlrev_b32 v{vT+1}, 3, v{vT+1}
    v_add_u32 v{vT+2}, v{vT+2}, v{vT+1}
    s_mul_i32 s3, s{sK3}, {224*128}
    v_add_u32 v{vT+4}, s3, v{vL16 if OPT["wt"] else vT+2}
    v_xor_b32 v{vT+5}, 32, v{vT+4}
    v_xor_b32 v{vT+6}, 64, v{vT+4}
    v_xor_b32 v{vT+7}, 96, v{vT+4}
    s_lshl_b32 s{sOf}, s{sRBK}, 1
    s_lshr_b32 s3, s{sR}, 1
    s_add_u32 s{sOf}, s{sOf}, s3
    s_mul_i32 s{sOf}, s{sOf}, {RT}
    s_and_b32 s3, s{sR}, 1
    s_lshl_b32 s3, s3, 8
    s_add_u32 s{sOf}, s{sOf}, s3
    s_mul_i32 s3, s{sK3}, {28*512}
    s_add_u32 s{sOf}, s{sOf}, s3
    s_add_u32 s{sOf}, s{sOf}, {BR + OU}
    v_and_b32 v{vT+1}, 15, v0
    v_lshlrev_b32 v{vT+2}, 9, v{vT}
    v_lshlrev_b32 v159, 4, v{vT+1}
    v_add_u32 v{vT+2}, v{vT+2}, v159
    s_lshl_b32 s3, s{sRBK}, 2
    s_add_u32 s3, s3, s{sR}
    s_lshl_b32 s3, s3, 4
    v_add_u32 v{vT+1}, s3, v{vT+1}
    v_mul_u32_u24 v{vT+1}, 1792, v{vT+1}
    v_lshlrev_b32 v{vT+3}, 5, v{vT+3}
    v_add_u32 v{vT+1}, v{vT+1}, v{vT+3}
    v_lshrrev_b32 v{vT+3}, 1, v{vT}
    v_lshlrev_b32 v{vT+3}, 4, v{vT+3}
    v_add_u32 v{vT+1}, v{vT+1}, v{vT+3}
    s_lshl_b32 s{sOo}, s{sCG3}, 7
    s_lshl_b32 s3, s{sK3}, 6
    s_add_u32 s{sOo}, s{sOo}, s3
    s_add_u32 s{sOo}, s{sOo}, 896
    """)
    for r in list(range(104, 120)) + list(range(64, 68)) + list(range(132, 136)):
        a(f"v_mov_b32 v{r}, 0")

def gen_attn(a):
    Q, NM, S, P, O, K, V, T = 4, 12, [28, 44], 60, 104, 120, 128, 140
    WF, OF, ACC = 4, 116, 144
    sS = T0 + 7
    a("C_attn:")
    stamp(a, 5)
    a("s_setprio 1\n s_barrier")
    stamp(a, 6)
    if OPT["rts"]: stamp(a, 3, rt=True)
    if OPT["prof"]: a("s_waitcnt lgkmcnt(0)")
    a(f"""
    ds_read_b128 {vr(Q,4)}, v{vQa}
    ds_read_b128 {vr(Q+4,4)}, v{vQa} offset:1024
    ds_read_b128 {vr(NM,4)}, v{vK0}
    ds_read_b128 {vr(NM+4,4)}, v{vK0} offset:1024
    ds_read_b128 {vr(NM+8,4)}, v{vCur}
    ds_read_b128 {vr(NM+12,4)}, v{vCur} offset:1024
    ds_read_b128 {vr(K,4)}, v{vCur} offset:2048
    ds_read_b128 {vr(K+4,4)}, v{vCur} offset:3072
    {"" if OPT["g5"] else f"ds_read_b128 {vr(V,4)}, v{vCur} offset:16384"}
    s_waitcnt lgkmcnt({7 - OPT["g5"]})
    """)
    zero_foreign(a, Q)
    a(f"""
    s_waitcnt lgkmcnt({5 - OPT['g5']})
    {MF32} {vr(S[1],16)}, {vr(NM,4)}, {vr(Q,4)}, 0
    {MF32} {vr(S[1],16)}, {vr(NM+4,4)}, {vr(Q+4,4)}, {vr(S[1],16)}
    s_waitcnt lgkmcnt({3 - OPT['g5']})
    {MF32} {vr(S[0],16)}, {vr(NM+8,4)}, {vr(Q,4)}, 0
    {MF32} {vr(S[0],16)}, {vr(NM+12,4)}, {vr(Q+4,4)}, {vr(S[0],16)}
    s_mov_b32 s{sS}, 0
    s_mov_b32 s3, {hex(f32bits(-float(OPT["delta"])))}
    s_nop 7
    """)
    s1 = S[1]
    a(f"v_max3_f32 v{T}, v{s1}, v{s1+1}, v{s1+2}")
    a(f"v_max3_f32 v{T+1}, v{s1+3}, v{s1+4}, v{s1+5}")
    for i in range(6, 14, 4):
        a(f"v_max3_f32 v{T}, v{T}, v{s1+i}, v{s1+i+1}")
        a(f"v_max3_f32 v{T+1}, v{T+1}, v{s1+i+2}, v{s1+i+3}")
    a(f"""
    v_max3_f32 v{T}, v{T}, v{s1+14}, v{s1+15}
    v_max_f32 v{T}, v{T}, v{T+1}
    v_mov_b32 v{T+1}, v{T}
    v_mov_b32 v{s1+14}, 0
    v_mov_b32 v{s1+15}, 0
    v_permlane32_swap_b32 v{T}, v{T+1}
    s_nop 1
    v_max_f32 v{T}, v{T}, v{T+1}
    v_sub_f32 v{NM}, s3, v{T}
    """)
    if OPT["g5"]:
        a(f"s_waitcnt vmcnt(0)\n s_barrier\n ds_read_b128 {vr(V,4)}, v{vCur} offset:16384")
    for i in range(16):
        a(f"v_add_f32 v{S[0]+i}, v{S[0]+i}, v{NM}")
    for i in range(1, 16):
        a(f"v_mov_b32 v{NM+i}, v{NM}")
    a("s_waitcnt lgkmcnt(0)\n s_setprio 1")
    a(".p2align 3")
    a("C_loop:")
    for i in range(4):
        cs, ns = S[i % 2], S[(i + 1) % 2]
        def ex(j): return f"v_exp_f32 v{cs+j}, v{cs+j}"
        def cv(j): return f"v_cvt_pk_bf16_f32 v{P+j}, v{cs+2*j}, v{cs+2*j+1}"
        kreg, ko = (vCur, (i + 2) * 2048) if i < 2 else (vNxt, (i - 2) * 2048)
        vreg, vo = (vCur, (i + 1) * 2048) if i < 3 else (vNxt, 0)
        a(ex(0)); a(ex(1))
        a(f"v_cvt_pk_bf16_f32 v{P+7}, v{ns+14}, v{ns+15}")
        a(ex(2))
        if i == 2:
            a("s_barrier\n s_setprio 3")
        a("s_waitcnt lgkmcnt(2)")
        a(f"{MF32} {vr(ns,16)}, {vr(K,4)}, {vr(Q,4)}, {vr(NM,16)}")
        a(f"ds_read_b128 {vr(K,4)}, v{kreg} offset:{ko}")
        a(cv(0)); a(ex(3)); a(ex(4)); a(cv(1)); a(ex(5)); a(ex(6))
        a(f"{MF32} {vr(O,16)}, {vr(V+4,4)}, {vr(P+4,4)}, {vr(O,16)}")
        a(f"ds_read_b128 {vr(V+4,4)}, v{vCur} offset:{16384 + i*2048 + 1024}")
        a(cv(2)); a(ex(7)); a(ex(8)); a(cv(3)); a(ex(9)); a("s_waitcnt lgkmcnt(2)")
        a(f"{MF32} {vr(ns,16)}, {vr(K+4,4)}, {vr(Q+4,4)}, {vr(ns,16)}")
        a(f"ds_read_b128 {vr(K+4,4)}, v{kreg} offset:{ko+1024}")
        a(ex(10)); a(ex(11)); a(cv(4)); a(ex(12)); a(ex(13)); a(cv(5))
        a(f"{MF32} {vr(O,16)}, {vr(V,4)}, {vr(P,4)}, {vr(O,16)}")
        a(f"ds_read_b128 {vr(V,4)}, v{vreg} offset:{16384 + vo}")
        a(ex(14)); a(ex(15)); a(cv(6))
        if i == 0: a("s_setprio 0\n s_add_u32 s{0}, s{0}, 1".format(sS))
        if i == 2: a("s_setprio 2\n s_nop 0")
        if i == 3:
            a(f"""
            v_swap_b32 v{vCur}, v{vNxt}
            s_setprio 1
            v_swap_b32 v{vNxt}, v{vNx2}
            s_cmp_lt_u32 s{sS}, 8
            s_cbranch_scc1 C_loop
            """)
    a(f"""
    v_cvt_pk_bf16_f32 v{P+7}, v{S[1]+14}, v{S[1]+15}
    s_waitcnt lgkmcnt(0)
    s_cmp_eq_u32 s{sODD}, 0
    {MF32} {vr(O,16)}, {vr(V+4,4)}, {vr(P+4,4)}, {vr(O,16)}
    """)
    stamp(a, 7)
    a(f"s_setprio {OPT['tp']}")
    if OPT["rts"]: stamp(a, 4, rt=True)
    X = S[0]
    a(f"""
    s_nop 10
    s_cbranch_scc1 C_le
    v_mov_b32 v{T+2}, v{O}
    s_branch C_lx
    C_le:
    v_mov_b32 v{T+2}, v{O+12}
    C_lx:
    s_cmp_eq_u32 s{sC}, 0
    s_cbranch_scc1 C_x0
    ds_write_b128 v{vXw}, {vr(O,4)}
    ds_write_b128 v{vXw+1}, {vr(O+4,4)}
    ds_write_b32 v{vXw+2}, v{T+2}
    s_waitcnt lgkmcnt(0)
    s_barrier
    """)
    for i in range(8):
        a(f"v_mov_b32 v{O+i}, v{O+8+i}")
    a(f"""
    s_branch C_x1
    C_x0:
    ds_write_b128 v{vXw}, {vr(O+8,4)}
    ds_write_b128 v{vXw+1}, {vr(O+12,4)}
    ds_write_b32 v{vXw+2}, v{T+2}
    s_waitcnt lgkmcnt(0)
    s_barrier
    C_x1:
    ds_read_b32 v{X+8}, v{vXr+2}
    ds_read_b128 {vr(X,4)}, v{vXr}
    ds_read_b128 {vr(X+4,4)}, v{vXr+1}
    s_waitcnt lgkmcnt(2)
    v_add_f32 v{T+2}, v{T+2}, v{X+8}
    """)
    bcast_l(a, T + 2, T + 2, T + 4)
    a("s_waitcnt lgkmcnt(0)")
    a(f"v_mul_f32 v{T}, 0, v{T+4}\n v_mov_b32 v{T+1}, 0x207")
    for i in range(8):
        a(f"v_add_f32 v{O+i}, v{O+i}, v{X+i}")
    for i in range(8):
        a(f"v_add_f32 v{T}, v{T}, abs(v{O+i})")
    a(f"""
    s_mov_b32 s3, {hex((127 - 100) << 23)}
    v_cmp_nge_f32 vcc, v{T}, s3
    v_cmp_class_f32 s[22:23], v{T}, v{T+1}
    s_or_b64 vcc, vcc, s[22:23]
    s_cbranch_scc1 C_slow
    C_fin:
    """)
    finalize(a, O, 8, T + 4)
    a(f"s_cmp_eq_u32 s{sC}, 0\n s_cbranch_scc0 C_st1")
    store_units(a, O, True, sOb, 0)
    a("s_branch C_st2\n C_st1:")
    store_units(a, O, False, sOb, 1024)
    a("C_st2:")
    stamp(a, 8)
    a(f"s_mov_b64 s[22:23], -1\n s_cmp_ge_u32 s{sJ}, 28\n s_cbranch_scc1 C_exit")
    def wrd(s0, s1):
        for s in range(s0, s1):
            for t in range(4):
                if OPT["wt"]:
                    a(f"ds_read_b128 {vr(WF+16*s+4*t,4)}, v{vT+4} offset:{s*4096 + t*1024}")
                    continue
                for j in range(2):
                    a(f"ds_read_b64_tr_b16 {vr(WF+16*s+4*t+2*j,2)}, v{vT+4+t} offset:{(32*s+4*j)*128}")
    wrd(0, 7)
    a(f"""
    v_mov_b32 v{vT+4}, v{vXw}
    v_mov_b32 v{vT+5}, v{vXw+1}
    v_mov_b32 v{vT+6}, v{vXr}
    v_mov_b32 v{vT+7}, v{vXr+1}
    s_waitcnt vmcnt(0)
    """)
    a(f"s_mov_b32 s{T0+11}, {SPIN}\n s_mov_b32 s{T0+5}, 0\n C_pp:\n s_mov_b32 s3, s{sOf}")
    for s in range(7):
        if s and s % 2 == 0:
            a(f"s_add_u32 s3, s3, 4096")
        a(f"buffer_load_dwordx4 {vr(OF+4*s,4)}, v{vT+2}, {sr(sWS)}, s3 offen offset:{(s%2)*2048} sc1")
    a("s_waitcnt lgkmcnt(0)")
    for s in range(7):
        a(f"s_waitcnt vmcnt({6-s})")
        f = OF + 4 * s
        for t in range(4):
            cin = "0" if s == 0 else vr(ACC + 4 * t, 4)
            a(f"{MF16} {vr(ACC+4*t,4)}, {vr(WF+16*s+4*t,4)}, {vr(f,4)}, {cin}")
            if t == 0: a(f"v_max3_u32 v3, v{f}, v{f+1}, v{f+2 if s == 0 else 3}")
            if t == 1: a(f"v_max3_u32 v3, v3, v{f+2}, v{f+3}")
    a(f"""
    v_cmp_eq_u32 vcc, -1, v3
    s_add_u32 s{T0+5}, s{T0+5}, 1
    s_sub_u32 s{T0+11}, s{T0+11}, 1
    s_cbranch_scc1 C_ppx
    s_cmp_lg_u64 vcc, 0
    s_cbranch_scc1 C_pp
    C_ppx:
    """)
    stamp(a, 9)
    if OPT["prof"]: a(f"v_writelane_b32 v1, s{T0+5}, 63")
    a(f"""
    s_cmp_eq_u32 s{sK3}, 0
    s_nop 5
    s_cbranch_scc1 C_y0
    ds_write_b128 v{vT+6}, {vr(ACC,4)}
    ds_write_b128 v{vT+7}, {vr(ACC+4,4)}
    s_waitcnt lgkmcnt(0)
    s_barrier
    """)
    for i in range(8):
        a(f"v_mov_b32 v{ACC+i}, v{ACC+8+i}")
    a(f"""
    s_branch C_y1
    C_y0:
    ds_write_b128 v{vT+6}, {vr(ACC+8,4)}
    ds_write_b128 v{vT+7}, {vr(ACC+12,4)}
    s_waitcnt lgkmcnt(0)
    s_barrier
    C_y1:
    ds_read_b128 {vr(OF,4)}, v{vT+4}
    ds_read_b128 {vr(OF+4,4)}, v{vT+5}
    s_waitcnt lgkmcnt(0)
    """)
    for i in range(8):
        a(f"v_add_f32 v{ACC+i}, v{ACC+i}, v{OF+i}")
    for i in range(4):
        a(f"v_cvt_pk_bf16_f32 v{ACC+i}, v{ACC+2*i}, v{ACC+2*i+1}")
    osc = ("", " sc1", " nt", " sc0 sc1")[OPT["outsc"]]
    a(f"""
    s_nop 1
    v_permlane16_swap_b32 v{ACC}, v{ACC+2}
    v_permlane16_swap_b32 v{ACC+1}, v{ACC+3}
    buffer_store_dwordx4 {vr(ACC,4)}, v{vT+1}, {sr(sOUT)}, s{sOo} offen{osc}
    C_exit:
    """)
    if OPT["padrt"] or OPT["padcy"]:
        if OPT["padx"] >= 0: a(f"s_cmp_lg_u32 s{sXCD}, {OPT['padx']}\n s_cbranch_scc1 C_padx")
        a(f"""
        C_pad:
        {'s_memrealtime' if OPT['padrt'] else 's_memtime'} s[98:99]
        s_waitcnt lgkmcnt(0)
        s_sub_u32 s98, s98, s96
        s_cmp_lt_u32 s98, {OPT['padrt'] or OPT['padcy']}
        s_cbranch_scc1 C_pad
        C_padx:
        """)
    dump(a)
    a("s_endpgm")
    sT, sKo, sVo = T0, T0 + 1, T0 + 2
    def kload():
        a(f"""
        s_mul_i32 s{sKo}, s{sT}, {RT}
        s_lshl_b32 s3, s{sU0}, 7
        s_add_u32 s{sVo}, s{sKo}, s3
        s_add_u32 s{sVo}, s{sVo}, {BR + VU}
        s_lshl_b32 s3, s{sU0}, 9
        s_add_u32 s{sKo}, s{sKo}, s3
        s_add_u32 s{sKo}, s{sKo}, {BR + KU}
        buffer_load_dwordx4 {vr(K,4)}, v{vL16}, {sr(sWS)}, s{sKo} offen sc1
        buffer_load_dwordx4 {vr(K+4,4)}, v{vL16}, {sr(sWS)}, s{sKo} offen offset:1024 sc1
        """)
    def qk():
        a(f"""
        s_waitcnt vmcnt(0)
        {MF32} {vr(S[0],16)}, {vr(K,4)}, {vr(Q,4)}, 0
        {MF32} {vr(S[0],16)}, {vr(K+4,4)}, {vr(Q+4,4)}, {vr(S[0],16)}
        s_nop 15
        """)
    a(f"C_slow:\n v_mov_b32 v{T}, 0xff800000\n s_mov_b32 s{sT}, 0\n C_s1:")
    kload(); qk()
    for i in range(0, 16, 2):
        a(f"v_max3_f32 v{T}, v{T}, v{S[0]+i}, v{S[0]+i+1}")
    a(f"""
    s_add_u32 s{sT}, s{sT}, 1
    s_cmp_lt_u32 s{sT}, 64
    s_cbranch_scc1 C_s1
    v_mov_b32 v{T+1}, v{T}
    s_nop 1
    v_permlane32_swap_b32 v{T}, v{T+1}
    s_nop 1
    v_max_f32 v{T}, v{T}, v{T+1}
    v_lshrrev_b32 v{T+1}, 5, v0
    v_mul_u32_u24 v{T+1}, {7168-512}, v{T+1}
    v_add_u32 v{T+1}, v{T+1}, v{vL16}
    """)
    for i in range(16):
        a(f"v_mov_b32 v{O+i}, 0")
    for i in range(8):
        a(f"v_mov_b32 v{V+i}, 0x3f803f80")
    a(f"s_mov_b32 s{sT}, 0\n C_s2:")
    kload()
    a(f"""
    s_add_u32 s3, s{sVo}, 14336
    s_mov_b64 exec, {sr(sVM,2)}
    buffer_load_dwordx4 {vr(V,4)}, v{T+1}, {sr(sWS)}, s{sVo} offen sc1
    buffer_load_dwordx4 {vr(V+4,4)}, v{T+1}, {sr(sWS)}, s3 offen sc1
    s_mov_b64 exec, -1
    """)
    qk()
    for i in range(16):
        a(f"v_sub_f32 v{S[0]+i}, v{S[0]+i}, v{T}")
    for i in range(16):
        a(f"v_exp_f32 v{S[0]+i}, v{S[0]+i}")
    a("s_nop 0")
    for i in range(8):
        a(f"v_cvt_pk_bf16_f32 v{P+i}, v{S[0]+2*i}, v{S[0]+2*i+1}")
    a(f"""
    s_nop 1
    {MF32} {vr(O,16)}, {vr(V,4)}, {vr(P,4)}, {vr(O,16)}
    {MF32} {vr(O,16)}, {vr(V+4,4)}, {vr(P+4,4)}, {vr(O,16)}
    s_add_u32 s{sT}, s{sT}, 1
    s_cmp_lt_u32 s{sT}, 64
    s_nop 15
    s_cbranch_scc1 C_s2
    """)
    bcast_l(a, O + 12, O, T + 4)
    a(f"s_cmp_eq_u32 s{sC}, 0\n s_cbranch_scc1 C_fin")
    for i in range(8):
        a(f"v_mov_b32 v{O+i}, v{O+8+i}")
    a("s_branch C_fin")

def gen_helper(a):
    AQ, AKp, AKc, AVp, AVc, O, HP, T, SP, SC = 28, 36, 44, 52, 56, 64, 80, 104, 108, 124
    sRT = sHRT
    nb = [0]
    def bar():
        k = nb[0]; nb[0] += 1
        if OPT["hst"]: lstamp(a, k)
        a("s_barrier")
        if OPT["hst"]: lstamp(a, 16 + k)
    regs = [SP + 8 + i for i in range(8)] + [SC + i for i in range(16)]
    def wo(srdn, lbase, i0, i1, tag):
        a(f"s_lshr_b32 s22, s{sM}, 2")
        for i in range(i0, i1):
            a(f"s_add_u32 m0, s22, {lbase + (i-i0)*4096}\n s_mov_b32 s{T0}, {i*32*896}")
            a.vm(f"buffer_load_dwordx4 v{vWo}, {sr(srdn)}, s{T0} offen lds", tag)
    a.q = []
    stamp(a, 5)
    a("s_setprio 3\n s_barrier")
    if OPT["g5"]: a("s_barrier")
    kv(a, 1)
    st = qkv_stores(HP, T0 + 1)
    n0 = OPT["sa0"]
    for l in st[:n0]: a.vm(l, "sa")
    a(f"""
    s_mul_i32 s{T0+10}, s{sRT}, {RT}
    s_add_u32 s{T0+10}, s{T0+10}, s{sKb}
    """)
    pf = []
    if OPT["wpf"]:
        a(f"""
        s_lshl_b32 s3, s{sJ}, 2
        s_add_u32 s3, s3, s{sR}
        s_mul_i32 s3, s3, {25*128}
        s_min_u32 s3, s3, {WO_BYTES - 25*128}
        s_add_u32 s4, s{sWoB}, s3
        s_addc_u32 s5, s{sWoB+1}, 0
        s_add_u32 s6, s{sWoA}, s3
        s_addc_u32 s7, s{sWoA+1}, 0
        """)
        pf = [f"s_load_dword s17, s[{b}:{b+1}], {i*128}" for b in (4, 6) for i in range(25)]
    def pfb(n):
        for _ in range(n):
            if pf: a(pf.pop(0))
    LA = OPT["la"]
    a(f"""
    s_lshl_b32 s16, s{T0+5}, {FS}
    s_add_u32 s16, s16, {FA}
    v_mov_b32 v{O}, -1
    v_mov_b32 v{O+1}, -1
    v_mov_b32 v{O+2}, -1
    v_mov_b32 v{O+3}, -1
    s_add_u32 s13, s{T0+10}, {BR + OU}
    """)
    def poison():
        store_units(a, O, True, 13, 0)
        store_units(a, O, False, 13, 1024)
        a.q += ["po"] * 3
    a.wait("kv1"); bar(); kv(a, 2)
    for l in st[n0:]: a.vm(l, "sa")
    if LA == 2:
        a.wait("kv2"); bar(); kv(a, 3)
    a.wait("sa")
    set_flag(a, 16, T)
    if LA == 2: poison()
    a.wait(f"kv{LA+1}"); bar(); kv(a, LA + 2)
    poll(a, vFa, T)
    a(f"""
    s_mul_i32 s{T0}, s{sRT}, {RT}
    s_cmp_eq_u32 s{sRT}, 0
    s_cselect_b32 s3, 0, {RT}
    s_sub_u32 s{T0+1}, s{T0}, s3
    s_add_u32 s{T0+2}, s{T0+10}, {KU}
    s_add_u32 s{T0+3}, s{T0+1}, s{sKb}
    s_add_u32 s{T0+3}, s{T0+3}, {KU}
    """)
    for (r, so) in ((AQ, T0 + 10), (AKc, T0 + 2), (AKp, T0 + 3)):
        a.vm(f"buffer_load_dwordx4 {vr(r,4)}, v{vL16}, {sr(sWS)}, s{so} offen sc1", "loc")
        a.vm(f"buffer_load_dwordx4 {vr(r+4,4)}, v{vL16}, {sr(sWS)}, s{so} offen offset:1024 sc1", "loc")
    a(f"""
    s_add_u32 s{T0}, s{T0}, s{sVb}
    s_add_u32 s{T0}, s{T0}, {VU}
    s_add_u32 s{T0+2}, s{T0}, 14336
    s_add_u32 s{T0+1}, s{T0+1}, s{sVb}
    s_add_u32 s{T0+1}, s{T0+1}, {VU + 14336}
    """)
    a.vm(f"buffer_load_dwordx4 {vr(AVc,4)}, v{vVs}, {sr(sWS)}, s{T0} offen sc1", "loc")
    a.vm(f"buffer_load_dwordx4 {vr(AVc+4,4)}, v{vVs}, {sr(sWS)}, s{T0+2} offen sc1", "loc")
    a.vm(f"buffer_load_dwordx4 {vr(AVp,4)}, v{vVs}, {sr(sWS)}, s{T0+1} offen sc1", "loc")
    bar(); kv(a, LA + 3)
    if LA == 1: poison()
    a.wait("loc")
    zero_foreign(a, AQ)
    a(f"""
    s_nop 0
    {MF32} {vr(SP,16)}, {vr(AKp,4)}, {vr(AQ,4)}, 0
    {MF32} {vr(SC,16)}, {vr(AKc,4)}, {vr(AQ,4)}, 0
    {MF32} {vr(SP,16)}, {vr(AKp+4,4)}, {vr(AQ+4,4)}, {vr(SP,16)}
    {MF32} {vr(SC,16)}, {vr(AKc+4,4)}, {vr(AQ+4,4)}, {vr(SC,16)}
    s_nop 11
    """)
    G = NG
    for i in range(12):
        a(f"v_bitop3_b32 v{regs[2*i]}, v{vPar}, v{regs[2*i+1]}, v{regs[2*i]} bitop3:0xca")
    for i in range(12):
        a(f"v_bitop3_b32 v{G + i%4}, v{regs[2*i]}, v{VM+i}, v{G + i%4} bitop3:0xea")
    a(f"""
    v_max3_f32 v{T}, v{G}, v{G+1}, v{G+2}
    v_max_f32 v{T}, v{T}, v{G+3}
    v_mov_b32 v{T+1}, v{T}
    s_nop 1
    v_permlane32_swap_b32 v{T}, v{T+1}
    s_nop 1
    v_max_f32 v{T}, v{T}, v{T+1}
    """)
    for g in range(4): a(f"v_sub_f32 v{G+g}, v{G+g}, v{T}")
    for g in range(4): a(f"v_exp_f32 v{G+g}, v{G+g}")
    a(f"""
    s_nop 0
    v_add_f32 v{T}, v{G}, v{G+1}
    v_add_f32 v{T+1}, v{G+2}, v{G+3}
    v_add_f32 v{T}, v{T}, v{T+1}
    v_mov_b32 v{T+1}, v{T}
    s_nop 1
    v_permlane32_swap_b32 v{T}, v{T+1}
    s_nop 1
    v_add_f32 v{T}, v{T}, v{T+1}
    v_rcp_f32 v{T}, v{T}
    s_nop 0
    """)
    for g in range(4): a(f"v_mul_f32 v{G+g}, v{G+g}, v{T}")
    for g in range(4): a(f"v_cvt_pk_bf16_f32 v{G+g}, v{G+g}, v{G+g}")
    PM = VM
    for i in range(12):
        a(f"v_bitop3_b32 v{PM+i}, v{PM+i}, v{G + i%4}, v{vHalf} bitop3:0x80")
    O2 = SP
    a(f"""
    s_nop 1
    {MF32} {vr(O2,16)}, {vr(AVp,4)}, {vr(PM,4)}, 0
    {MF32} {vr(O2,16)}, {vr(AVc,4)}, {vr(PM+4,4)}, {vr(O2,16)}
    {MF32} {vr(O2,16)}, {vr(AVc+4,4)}, {vr(PM+8,4)}, {vr(O2,16)}
    s_add_u32 s{T0+10}, s{T0+10}, {OU}
    s_nop 11
    """)
    for i in range(8):
        a(f"v_cvt_pk_bf16_f32 v{O2+i}, v{O2+2*i}, v{O2+2*i+1}")
    a("s_nop 1")
    for g in (0, 4):
        a(f"v_permlane32_swap_b32 v{O2+g}, v{O2+g+2}\n v_permlane32_swap_b32 v{O2+g+1}, v{O2+g+3}")
    store_units(a, O2, True, T0 + 10, 0)
    store_units(a, O2 + 4, False, T0 + 10, 1024)
    a.q += ["oa"] * 3
    a.wait(f"kv{LA+3}"); bar(); kv(a, LA + 4)
    a(f"""
    s_lshl_b32 s3, s{sRT}, 4
    s_add_u32 s3, s3, s{sH}
    s_lshl_b32 s3, s3, {FS}
    s_add_u32 s{T0+10}, s3, {FO}
    """)
    a.wait("oa")
    set_flag(a, T0 + 10, T)
    wo(sWoB, WOB_L, 0, 6, "wob")
    OFA, ACC, WB, T = 28, 84, 116, 160
    a(f"""
    s_and_b32 s3, s{sR}, 1
    s_lshl_b32 s{sRT}, s{sRBK}, 1
    s_add_u32 s{sRT}, s{sRT}, s3
    s_lshr_b32 s{sC}, s{sR}, 1
    s_lshl_b32 s3, s{sRT}, 1
    s_add_u32 s3, s3, s{sC}
    s_lshl_b32 s14, s3, {3+FS}
    s_add_u32 s14, s14, {FO}
    s_mul_i32 s13, s3, {RT//2}
    s_add_u32 s13, s13, {OU}
    s_lshl_b32 s{T0+10}, s{sCG3}, 7
    s_lshl_b32 s3, s{sC}, 6
    s_add_u32 s{T0+10}, s{T0+10}, s3
    s_mul_i32 s3, s{sRT}, {32*1792}
    s_add_u32 s{T0+10}, s{T0+10}, s3
    """)
    a.wait(f"kv{LA+4}"); bar(); kv(a, LA + 5)
    wo(sWoB, WOB_L + 6 * 4096, 6, 14, "wob")
    a.vm(f"buffer_load_dwordx2 {vr(T+6,2)}, v{vPo}, {sr(sWS)}, s14 offen sc1", "fl")
    def ofa(i0, i1):
        for i in range(i0, i1):
            if i and i % 4 == 0:
                a(f"s_add_u32 s13, s13, 4096")
            a.vm(f"buffer_load_dwordx4 {vr(OFA+4*i,4)}, v{vL16}, {sr(sWS)}, s13 offen offset:{(i%4)*1024} sc1", f"ofa{i}")
    a.wait("wob" if OPT["wt"] else f"kv{LA+5}"); bar()
    a.wait_all()
    a(f"""
    v_cmp_ne_u64 vcc, {sr(sTAG,2)}, {vr(T+6,2)}
    s_cmp_eq_u64 vcc, 0
    s_cbranch_scc1 H_ok2
    """)
    poll(a, vPo, T + 6, "s14")
    a("H_ok2:")
    if LA == 1:
        kv(a, 7)
        ofa(0, 8)
        a.wait("kv7"); bar()
    a(f"""
    s_lshl_b32 s3, s{sR}, 2
    s_add_u32 s3, s3, {HFL_L}
    v_mov_b32 v{T}, s3
    v_xor_b32 v{T+1}, 8, v{T}
    v_mov_b32 v{T+3}, {HFL_L}
    v_mov_b32 v{T+2}, 0
    s_mov_b64 exec, 1
    ds_write_b32 v{T}, v{T+2}
    s_mov_b64 exec, -1
    """)
    wo(sWoA, WOA_L[0], 0, 7, "woa")
    if LA == 1: ofa(8, 14)
    else: ofa(0, 9)
    a("s_waitcnt lgkmcnt(0)")
    bar()
    wo(sWoA, WOA_L[1], 7, 14, "woa")
    if LA == 2: ofa(9, 14)
    a("s_barrier")
    a(f"s_cmp_ge_u32 s{sJ}, 28\n s_cbranch_scc1 H_idle")
    a(f"s_setprio {OPT['hp']}")
    a.wait("woa")
    stamp(a, 8)
    def hflag(val, rd, lab):
        a(f"""
        v_mov_b32 v{T+2}, {val}
        s_mov_b64 exec, 1
        ds_write_b32 v{T}, v{T+2}
        s_mov_b32 s23, {SPIN * 8}
        {lab}:
        """)
        if rd == 4:
            a(f"""
            ds_read_b128 {vr(T+4,4)}, v{T+3}
            s_waitcnt lgkmcnt(0)
            v_min3_u32 v{T+4}, v{T+4}, v{T+5}, v{T+6}
            v_min_u32 v{T+4}, v{T+4}, v{T+7}
            s_nop 0
            """)
        else:
            a(f"ds_read_b32 v{T+4}, v{T+1}\n s_waitcnt lgkmcnt(0)")
        a(f"""
        v_readfirstlane_b32 s3, v{T+4}
        s_sub_u32 s23, s23, 1
        s_cbranch_scc1 {lab}x
        s_cmp_lt_u32 s3, {val}
        s_cbranch_scc1 {lab}
        {lab}x:
        s_mov_b64 exec, -1
        """)
    hflag(1, 4, "H_pv")
    NB = 4
    def rd(i):
        for c in range(2):
            for j in range(2):
                a(f"ds_read_b64_tr_b16 {vr(WB+8*(i%NB)+4*c+2*j,2)}, v{vWa+c} offset:{(16*i+4*j)*128}")
    for i in range(NB - 1): rd(i)
    for i in range(14):
        a.wait(f"ofa{i}", f" lgkmcnt({4*min(NB-2, 13-i)})")
        for c in range(2):
            cin = "0" if i == 0 else vr(ACC + 16 * c, 16)
            a(f"{MF32} {vr(ACC+16*c,16)}, {vr(WB+8*(i%NB)+4*c,4)}, {vr(OFA+4*i,4)}, {cin}")
        if i + NB - 1 < 14:
            rd(i + NB - 1)
    a(f"""
    s_cmp_eq_u32 s{sC}, 0
    s_nop 10
    s_cbranch_scc1 H_y0
    """)
    for i in range(4):
        a(f"ds_write_b128 v{vXa}, {vr(ACC+4*i,4)} offset:{i*1024}")
    a("s_branch H_y1\n H_y0:")
    for i in range(4):
        a(f"ds_write_b128 v{vXa}, {vr(ACC+16+4*i,4)} offset:{i*1024}")
    a("H_y1:\n s_waitcnt lgkmcnt(0)")
    stamp(a, 9)
    hflag(2, 1, "H_pw")
    a(f"s_cmp_eq_u32 s{sC}, 0")
    for i in range(4):
        a(f"ds_read_b128 {vr(OFA+4*i,4)}, v{vXa+1} offset:{i*1024}")
    a(f"s_waitcnt lgkmcnt(0)\n s_cbranch_scc1 H_z0")
    for i in range(16):
        a(f"v_add_f32 v{OFA+i}, v{ACC+16+i}, v{OFA+i}")
    a("s_branch H_z1\n H_z0:")
    for i in range(16):
        a(f"v_add_f32 v{OFA+i}, v{ACC+i}, v{OFA+i}")
    a("H_z1:")
    for i in range(8):
        a(f"v_cvt_pk_bf16_f32 v{OFA+i}, v{OFA+2*i}, v{OFA+2*i+1}")
    a("s_nop 1")
    for g in (0, 4):
        a(f"v_permlane32_swap_b32 v{OFA+g}, v{OFA+g+2}\n v_permlane32_swap_b32 v{OFA+g+1}, v{OFA+g+3}")
    osc = ("", " sc1", " nt", " sc0 sc1")[OPT["outsc"]]
    a(f"buffer_store_dwordx4 {vr(OFA,4)}, v{vOa}, {sr(sOUT)}, s{T0+10} offen{osc}")
    a(f"buffer_store_dwordx4 {vr(OFA+4,4)}, v{vOa}, {sr(sOUT)}, s{T0+10} offen offset:32{osc}")
    a("s_barrier")
    a("H_exit:")
    dump(a)
    a("s_endpgm")
    a(f"""
    H_idle:
    s_cmp_lg_u32 s2, 255
    s_cbranch_scc1 H_exit
    s_cmp_lg_u32 s{sW}, 4
    s_cbranch_scc1 H_exit
    v_lshlrev_b32 v{T}, {FS}, v0
    s_mov_b32 s{T0+11}, {SPIN}
    H_ep:
    """)
    for i in range(4):
        a(f"s_mov_b32 s3, {FB + (i*64 << FS)}\n buffer_load_dwordx2 {vr(OFA+2*i,2)}, v{T}, {sr(sWS)}, s3 offen sc1")
    a(f"s_waitcnt vmcnt(0)\n s_mov_b64 s[4:5], 0")
    for i in range(4):
        a(f"v_cmp_ne_u64 vcc, {sr(sTAG,2)}, {vr(OFA+2*i,2)}\n s_or_b64 s[4:5], s[4:5], vcc")
    a(f"""
    s_sub_u32 s{T0+11}, s{T0+11}, 1
    s_cbranch_scc1 H_epx
    s_cmp_lg_u64 s[4:5], 0
    s_cbranch_scc1 H_ep
    H_epx:
    v_mov_b32 v{T}, {EPOCH}
    v_mov_b32 v{T+1}, s{sTAG}
    s_mov_b64 exec, 1
    buffer_store_dword v{T+1}, v{T}, {sr(sWS)}, 0 offen sc1
    s_mov_b64 exec, -1
    s_branch H_exit
    """)

def main(out):
    a = gen()
    K = NAME + "_kernel"
    hdr = f"""; Fused QKV projection -> attention (A: dilated local window, B: full) -> output projection.
; @launch grid=(256,1,1) block=(768,1,1) lds=163840
.amdgcn_target "amdgcn-amd-amdhsa--gfx950"
.text
"""
    d = f""".section .rodata,"a"
.p2align 6
.amdhsa_kernel {K}
  .amdhsa_next_free_vgpr 168
  .amdhsa_next_free_sgpr 102
  .amdhsa_accum_offset 168
  .amdhsa_group_segment_fixed_size 0
  .amdhsa_kernarg_size 72
  .amdhsa_user_sgpr_count 2
  .amdhsa_user_sgpr_kernarg_segment_ptr 1
  .amdhsa_system_sgpr_workgroup_id_x 1
.end_amdhsa_kernel
"""
    open(out, "w").write(hdr + a.text() + d)

if __name__ == "__main__":
    for arg in sys.argv[2:]:
        k, v = arg.split("=")
        assert k in OPT
        OPT[k] = int(v)
    main(sys.argv[1])
```

```python
import sys, math, struct
NAME = "concat_heads__sliding_local_dilated__mha_block__prompt"
OPT = dict(prof=0, rot=7, prefetch=1, sleep=1, rts=0, outsc=2, wpf=0, sa0=3, hst=1, lst=1, krot=1, kd=9, apos=4, g5=0, p2=1, pads=1, delta=96, ipf=1, ipw=1, skip=1, tch=0, tpos=3, shr=1, ipoll=4, la=2, hp=3, sst=0, rmb=4, rma=2, padat=0, tp=1, wt=0, lsu=0, pp=11, padrt=0, padcy=0, padx=-1)

class Asm:
    def __init__(self):
        self.lines = []
        self.q = []
        self.uid = 0
    def __call__(self, s):
        for l in s.strip("\n").split("\n"):
            l = l.strip()
            if not l: continue
            self.lines.append(l if l.endswith(":") else "    " + l)
    def vm(self, s, tag):
        self(s); self.q.append(tag)
    def wait(self, tag, extra=""):
        if tag not in self.q:
            if extra: self(f"s_waitcnt{extra}")
            return
        idx = max(i for i, t in enumerate(self.q) if t == tag)
        n = len(self.q) - 1 - idx
        assert n <= 63
        self(f"s_waitcnt vmcnt({n}){extra}")
        self.q = self.q[idx + 1:]
    def wait_all(self, extra=""):
        self(f"s_waitcnt vmcnt(0){extra}"); self.q = []
    def lab(self, p):
        self.uid += 1
        return f"{p}_{self.uid}"
    def text(self):
        return "\n".join(self.lines) + "\n"

def vr(a, n): return f"v[{a}:{a+n-1}]"
def sr(a, n=4): return f"s[{a}:{a+n-1}]"
def f32bits(x): return struct.unpack("<I", struct.pack("<f", x))[0]
MF32 = "v_mfma_f32_32x32x16_bf16"
MF16 = "v_mfma_f32_16x16x32_bf16"

RT = 56 * 512
MAT = 64 * RT
BR = 4 * MAT
QU, KU, VU, OU = 0, MAT, 2 * MAT, 3 * MAT
FS = 7
FB = 2 * BR
FA = FB + (256 << FS)
FO = FA + (1024 << FS)
EPOCH = FO + (1024 << FS)
WS_USED = EPOCH + 0x1000
WS_OOB = 0x40000000
PROF_OFF = 0x1100000
X_BYTES, W_BYTES, WO_BYTES, OUT_BYTES = 2048 * 896, 448 * 2688, 448 * 896, 2048 * 1792
CSCALE = (28 ** -0.5) * math.log2(math.e)
DELTA = 24.0
SPIN = 1 << 18

sWS, sX, sWt, sOUT, sWoA, sWoB = 24, 28, 32, 36, 40, 44
sOo, sOf, sOb, sK3 = 48, 49, 50, 51
sW, sXCD, sJ, sRB, sCG, sACT, sH, sQB, sU0, sODD, sRBK, sCG3 = range(52, 64)
sTAG, sVM = 64, 66
T0 = 68
sR, sC, sWI = T0 + 8, T0 + 9, T0 + 10
NST = 10
def stamp(a, i, rt=False):
    if OPT["prof"]:
        assert i < NST
        a(f"{'s_memrealtime' if rt else 's_memtime'} s[{80+2*i}:{81+2*i}]")
def lstamp(a, idx):
    if OPT["prof"]:
        a(f"s_memtime s[100:101]\n s_mov_b32 m0, {idx}\n s_waitcnt lgkmcnt(0)\n v_writelane_b32 v1, s100, m0")
def dump(a):
    if not OPT["prof"]: return
    a(f"""
    s_mul_i32 s8, s2, 12
    s_add_u32 s8, s8, s{sW}
    s_lshl_b32 s8, s8, 8
    s_add_u32 s8, s8, {PROF_OFF + 0x100000}
    s_mov_b32 s{sWS+2}, 0x2000000
    s_waitcnt lgkmcnt(0) vmcnt(0)
    s_memtime s[4:5]
    s_memrealtime s[6:7]
    v_lshlrev_b32 v3, 2, v0
    buffer_store_dword v1, v3, {sr(sWS)}, s8 offen
    s_mul_i32 s8, s2, 12
    s_add_u32 s8, s8, s{sW}
    s_lshl_b32 s8, s8, 6
    s_add_u32 s8, s8, {PROF_OFF}
    s_waitcnt lgkmcnt(0) vmcnt(0)
    v_mov_b32 v1, 0
    s_mov_b64 exec, 1
    """)
    for i, s in enumerate([80 + 2 * i for i in range(NST)] + [4, 6]):
        a(f"v_mov_b32 v0, s{s}\n buffer_store_dword v0, v1, {sr(sWS)}, s8 offen offset:{4*i}\n s_nop 1")
    a("s_waitcnt vmcnt(0)")

def srd(a, d, lo, nbytes):
    nb = nbytes if isinstance(nbytes, str) else hex(nbytes)
    a(f"s_mov_b32 s{d}, s{lo}\n s_and_b32 s{d+1}, s{lo+1}, 0xffff\n s_mov_b32 s{d+2}, {nb}\n s_mov_b32 s{d+3}, 0x20000")

def poll(a, vaddr, vt, soff="0", sleep=None):
    L = a.lab("poll")
    a(f"""
    s_mov_b32 s{T0+11}, {SPIN}
    {L}:
    buffer_load_dwordx2 {vr(vt,2)}, v{vaddr}, {sr(sWS)}, {soff} offen sc1
    s_waitcnt vmcnt(0)
    v_cmp_ne_u64 vcc, {sr(sTAG,2)}, {vr(vt,2)}
    s_sub_u32 s{T0+11}, s{T0+11}, 1
    s_cbranch_scc1 {L}_x
    s_cmp_eq_u64 vcc, 0
    s_cbranch_scc1 {L}_x
    {"s_mov_b64 exec, vcc" if OPT["shr"] else ""}
    s_sleep {OPT['sleep'] if sleep is None else sleep}
    s_branch {L}
    {L}_x:
    s_mov_b64 exec, -1
    """)
    a.q = []

def set_flag(a, soff, vt):
    a(f"""
    v_mov_b32 v{vt}, s{sTAG}
    v_mov_b32 v{vt+1}, s{sTAG+1}
    s_mov_b64 exec, 1
    """)
    a.vm(f"buffer_store_dwordx2 {vr(vt,2)}, v{vL16}, {sr(sWS)}, s{soff} offen sc1", "flag")
    a("s_mov_b64 exec, -1")

def zero_foreign(a, q):
    L = a.lab("zf")
    a(f"""
    s_cmp_eq_u32 s{sODD}, 0
    s_cbranch_scc1 {L}_e
    s_mov_b32 exec_hi, 0
    v_mov_b32 v{q}, 0
    v_mov_b32 v{q+1}, 0
    s_branch {L}_x
    {L}_e:
    s_mov_b32 exec_lo, 0
    v_mov_b32 v{q+6}, 0
    v_mov_b32 v{q+7}, 0
    {L}_x:
    s_mov_b64 exec, -1
    """)

SLOT = 32768
def pslot(s): return (4, 3, 2)[s % 3] * SLOT
WOA_L = (2 * SLOT, 4 * SLOT)
WOB_L = 0
QST_L = 2 * SLOT
XC1_L = 448 * 128
XC2_L = 3 * SLOT
XHA_L = 3 * SLOT + 16384
XFI_L = 3 * SLOT
HFL_L = 2 * SLOT + 28672
vL16 = 2

def p1_role(a, bi):
    a(f"""
    s_lshr_b32 s{sRB}, s{sXCD}, 1
    s_lshl_b32 s{sRB}, s{sRB}, 3
    s_and_b32 s3, s{sJ}, 7
    s_add_u32 s{sRB}, s{sRB}, s3
    s_xor_b32 s3, s{sXCD}, {bi}
    s_and_b32 s3, s3, 1
    s_lshl_b32 s3, s3, 2
    s_lshr_b32 s{sCG}, s{sJ}, 3
    s_add_u32 s{sCG}, s{sCG}, s3
    s_cmp_lt_u32 s{sCG}, 7
    s_cselect_b32 s{sACT}, 1, 0
    """)

def roles(a):
    a(f"""
    s_lshr_b32 s{sCG3}, s{sJ}, 2
    s_min_u32 s{sCG3}, s{sCG3}, 6
    s_and_b32 s3, s{sJ}, 3
    s_lshl_b32 s{sRBK}, s{sXCD}, 2
    s_add_u32 s{sRBK}, s{sRBK}, s3
    s_lshl_b32 s{sH}, s{sXCD}, 1
    s_lshr_b32 s{sODD}, s{sJ}, 4
    s_add_u32 s{sH}, s{sH}, s{sODD}
    s_and_b32 s{sQB}, s{sJ}, 15
    s_mul_i32 s{sU0}, s{sH}, 7
    s_lshr_b32 s{sU0}, s{sU0}, 1
    s_cmp_eq_u32 s{sODD}, 0
    s_cselect_b32 s{sVM}, 0x0fffffff, 0xfffffff0
    s_mov_b32 s{sVM+1}, s{sVM}
    v_lshlrev_b32 v{vL16}, 4, v0
    """)

def gen():
    a = Asm()
    K = NAME + "_kernel"
    a.lines.append(f".globl {K}\n.p2align 8\n.type {K},@function\n{K}:")
    a(f"""
    s_load_dwordx16 s[4:19], s[0:1], 0
    s_load_dwordx2 s[20:21], s[0:1], 64
    s_cmp_ge_u32 s2, 256
    s_cbranch_scc1 L_end
    """)
    stamp(a, 0, rt=True); stamp(a, 1)
    if OPT["padrt"]: a("s_memrealtime s[96:97]")
    if OPT["padcy"]: a("s_memtime s[96:97]")
    a(f"""
    v_lshrrev_b32 v1, 6, v0
    v_and_b32 v0, 63, v0
    s_and_b32 s{sXCD}, s2, 7
    v_readfirstlane_b32 s{sW}, v1
    s_lshr_b32 s{sJ}, s2, 3
    s_nop 1
    s_and_b32 s{sR}, s{sW}, 3
    s_lshr_b32 s{sC}, s{sW}, 2
    """)
    if OPT["pads"]:
        a(f"""
        s_cmp_lt_u32 s{sW}, 2
        s_cbranch_scc1 L_gemm
        s_cmp_lt_u32 s{sW}, 4
        s_cbranch_scc1 L_pad0
        s_cmp_lt_u32 s{sW}, 6
        s_cbranch_scc1 L_pad1
        s_cmp_lt_u32 s{sW}, 8
        s_cbranch_scc1 L_pad2
        """)
    else:
        a(f"s_cmp_lt_u32 s{sW}, 8\n s_cbranch_scc1 L_gemm")
    gen_loader(a)
    gen_bskip(a)
    a("L_gemm:")
    gen_gemm(a)
    gen_publish(a)
    gen_attn(a)
    a("L_helper:")
    gen_helper(a)
    a("L_end:\n s_endpgm")
    a(".p2align 4\n L_ones:\n .long 0x3f803f80, 0x3f803f80, 0x3f803f80, 0x3f803f80")
    a("L_code_end:")
    return a

def make_tag(a, vt):
    a(f"""
    v_readfirstlane_b32 s{sTAG}, v{vt}
    s_nop 3
    s_mul_i32 s{sTAG}, s{sTAG}, 0x9e3779b1
    s_add_u32 s{sTAG}, s{sTAG}, 0x7f4a7c15
    s_not_b32 s{sTAG+1}, s{sTAG}
    """)

def finalize(a, o, n, l):
    a(f"v_rcp_f32 v{l}, v{l}\n s_nop 0")
    for i in range(n):
        a(f"v_mul_f32 v{o+i}, v{l}, v{o+i}")
    for i in range(n // 2):
        a(f"v_cvt_pk_bf16_f32 v{o+i}, v{o+2*i}, v{o+2*i+1}")
    a("s_nop 1")
    for g in range(0, n // 2, 4):
        a(f"v_permlane32_swap_b32 v{o+g}, v{o+g+2}\n v_permlane32_swap_b32 v{o+g+1}, v{o+g+3}")

def bcast_l(a, src_e, src_o, t):
    L = a.lab("bl")
    a(f"""
    s_cmp_eq_u32 s{sODD}, 0
    s_cbranch_scc1 {L}_e
    v_mov_b32 v{t}, v{src_o}
    v_mov_b32 v{t+1}, v{src_o}
    s_nop 1
    v_permlane32_swap_b32 v{t}, v{t+1}
    s_branch {L}_x
    {L}_e:
    v_mov_b32 v{t}, v{src_e}
    v_mov_b32 v{t+1}, v{src_e}
    s_nop 1
    v_permlane32_swap_b32 v{t+1}, v{t}
    {L}_x:
    s_nop 1
    """)

def store_units(a, p, first, soff, off):
    L = a.lab("su")
    full = f"buffer_store_dwordx4 {vr(p,4)}, v{vL16}, {sr(sWS)}, s{soff} offen offset:{off} sc1"
    if first:
        a(f"""
        s_cmp_eq_u32 s{sODD}, 0
        s_cbranch_scc1 {L}_f
        s_mov_b32 exec_hi, 0
        buffer_store_dwordx2 {vr(p+2,2)}, v{vL16}, {sr(sWS)}, s{soff} offen offset:{off+8} sc1
        s_not_b64 exec, exec
        {L}_f:
        {full}
        s_mov_b64 exec, -1
        """)
    else:
        a(f"""
        s_cmp_eq_u32 s{sODD}, 1
        s_cbranch_scc1 {L}_f
        s_mov_b32 exec_lo, 0
        buffer_store_dwordx2 {vr(p,2)}, v{vL16}, {sr(sWS)}, s{soff} offen offset:{off} sc1
        s_not_b64 exec, exec
        {L}_f:
        {full}
        s_mov_b64 exec, -1
        """)

def dma_lanes(a, d, t):
    a(f"""
    v_lshrrev_b32 v{t}, 3, v0
    v_and_b32 v{t+1}, 7, v0
    v_lshrrev_b32 v{t+2}, 4, v0
    s_lshl_b32 s3, s{sR}, 4
    v_add_u32 v{t}, s3, v{t}
    v_mul_u32_u24 v{d+2}, 2688, v{t}
    v_mul_u32_u24 v{t}, 896, v{t}
    v_xor_b32 v{d}, v{t+1}, v{t+2}
    v_lshlrev_b32 v{d}, 4, v{d}
    v_add_u32 v{d}, v{t}, v{d}
    v_add_u32 v{d+1}, {8*896}, v{d}
    v_xor_b32 v{d+1}, 64, v{d+1}
    v_and_b32 v{t}, 1, v{t+2}
    v_lshlrev_b32 v{t}, 2, v{t}
    v_xor_b32 v{t}, v{t}, v{t+1}
    v_lshlrev_b32 v{t}, 4, v{t}
    v_add_u32 v{d+2}, v{d+2}, v{t}
    """)
def dma_tile(a, sCH, sXb, sWb, t, px):
    a(f"""
    s_cmp_lg_u32 s{sACT}, 0
    s_cselect_b32 s{t}, {X_BYTES}, 0
    s_cselect_b32 s{t+1}, {W_BYTES}, 0
    s_mul_i32 s{sXb}, s{sRB}, {64*896}
    s_lshl_b32 s{sWb}, s{sCG}, 7
    """)
    mode = OPT["rmb"] if px == 10 else OPT["rma"]
    if mode == 0:
        a(f"""
        s_and_b32 s3, s{sCG}, 3
        s_lshl_b32 s3, s3, 1
        s_and_b32 s{sCH}, s{sRB}, 7
        s_add_u32 s{sCH}, s{sCH}, s3
        """)
    else:
        if mode == 1: a(f"s_mov_b32 s{sCH}, 0")
        if mode == 2: a(f"s_xor_b32 s{sCH}, s{sRB}, s{sCG}\n s_and_b32 s{sCH}, s{sCH}, 1\n s_mul_i32 s{sCH}, s{sCH}, 3")
        if mode == 4: a(f"s_add_u32 s{sCH}, s{sRB}, s{sCG}\n s_and_b32 s{sCH}, s{sCH}, 3\n s_lshl_b32 s{sCH}, s{sCH}, 1")
        a(f"s_add_u32 s{sCH}, s{sCH}, s{sXCD}")
    a(f"""
    s_cmp_ge_u32 s{sCH}, 7
    s_cselect_b32 s3, 7, 0
    s_sub_u32 s{sCH}, s{sCH}, s3
    """)
def dma_stage(a, d, sCH, sXb, sWb, sSl, t, fill):
    a(f"""
    s_lshl_b32 s{t}, s{sCH}, 7
    s_mov_b32 m0, s{sSl}
    s_add_u32 s{t}, s{t}, s{sXb}
    s_mul_i32 s{t+1}, s{sCH}, {64*2688}
    buffer_load_dwordx4 v{d}, {sr(sX)}, s{t} offen lds
    s_add_u32 m0, s{sSl}, 1024
    s_add_u32 s{t+1}, s{t+1}, s{sWb}
    buffer_load_dwordx4 v{d+1}, {sr(sX)}, s{t} offen lds
    """)
    fill = list(fill) + [""] * 6
    for p in (1, 2, 0):
        for i in range(2):
            a(f"s_add_u32 m0, s{sSl}, {8192 + p*8192 + i*1024}")
            a(f"s_add_u32 s{t}, s{t+1}, {p*896 + i*8*2688}")
            a(f"buffer_load_dwordx4 v{d+2}, {sr(sWt)}, s{t} offen lds")
            a(fill.pop(0))

def gen_loader(a):
    sCH, sSl, sN, sXb, sWb = 40, T0 + 7, T0 + 6, T0 + 5, T0 + 4
    a("s_setprio 3")
    def pad(i):
        if OPT["pads"]: a(f"s_cmp_lg_u32 0, 0\n L_pad{i}:\n s_cbranch_scc1 L_gemm")
    dma_lanes(a, 4, 8)
    p1_role(a, 0)
    pad(0)
    dma_tile(a, sCH, sXb, sWb, T0, 10)
    a(f"""
    s_lshl_b32 s{sSl}, s{sR}, 11
    s_mov_b32 s{sN}, 0
    """)
    stamp(a, 5)
    a("s_waitcnt lgkmcnt(0)")
    stamp(a, 6)
    srd(a, sX, 10, f"s{T0}")
    srd(a, sWt, 12, f"s{T0+1}")
    pad(1)
    stamp(a, 7)
    nxt = [f"s_add_u32 s{sCH}, s{sCH}, 1", f"s_cmp_eq_u32 s{sCH}, 7\n s_cselect_b32 s{sCH}, 0, s{sCH}"]
    def late():
        roles(a)
        attn_setup(a, 1)
        srd(a, sWS, 20, WS_USED)
        srd(a, sOUT, 16, OUT_BYTES)
        a(f"s_mov_b32 s{sC}, 1")
    if OPT["lsu"] == 0:
        dma_stage(a, 4, sCH, sXb, sWb, sSl, T0, nxt + ([f"s_cmp_lg_u32 0, 0\n L_pad2:\n s_cbranch_scc1 L_gemm"] if OPT["pads"] else []))
        lstamp(a, 0)
        if OPT["prof"]:
            a("v_writelane_b32 v1, s90, 1\n v_writelane_b32 v1, s92, 2\n v_writelane_b32 v1, s94, 3")
            if OPT["sst"]:
                a("s_waitcnt vmcnt(7)"); lstamp(a, 4); a("s_waitcnt vmcnt(0)"); lstamp(a, 5)
        a(f"s_add_u32 s{sSl}, s{sSl}, {SLOT}\n s_mov_b32 s{sN}, 1")
        late()
        if OPT["skip"]:
            a(f"""
            s_cmp_lg_u32 s{sACT}, 0
            s_cbranch_scc1 H1_loop
            s_barrier
            s_branch H1_sw
            """)
    a("H1_loop:")
    dma_stage(a, 4, sCH, sXb, sWb, sSl, T0, nxt + [f"s_add_u32 s{sN}, s{sN}, 1"])
    a(f"""
    s_add_u32 s{sSl}, s{sSl}, {SLOT}
    s_and_b32 s{sSl}, s{sSl}, {4*SLOT-1}
    """)
    if OPT["lsu"]: a(f"s_cmp_eq_u32 s{sN}, 1\n s_cbranch_scc1 H1_loop")
    a("s_waitcnt vmcnt(8)\n s_barrier")
    if OPT["prof"] and OPT["lst"]:
        a(f"s_add_u32 s3, s{sN}, 31"); lstamp(a, "s3")
    a(f"s_cmp_lg_u32 s{sN}, 7\n s_cbranch_scc1 H1_same\n H1_sw:")
    p1_role(a, 1)
    dma_tile(a, sCH, sXb, sWb, T0, 4)
    srd(a, sX, 4, f"s{T0}")
    srd(a, sWt, 6, f"s{T0+1}")
    for l in nxt: a(l)
    a(f"""
    s_lshl_b32 s{sSl}, s{sR}, 11
    s_mov_b32 s{sN}, 8
    H1_same:
    s_cmp_lt_u32 s{sN}, 14
    s_cbranch_scc1 H1_loop
    """)
    if OPT["lsu"]: late()
    a("s_waitcnt vmcnt(0)\n s_barrier")
    stamp(a, 2)
    a("s_branch C_attn")

vVs, vWo, vFa, vPo, vWa, vOa, vXa, vPar, vHalf, VM, NG, vZ = 15, 16, 17, 18, 19, 21, 22, 24, 25, 144, 156, 9
sKb, sVb, sTile, sM, sHRT = 8, 9, 10, 11, 12
def kv_setup(a, first):
    sRT = sHRT
    a(f"""
    s_lshl_b32 s{sM}, s{sR}, 12
    s_lshl_b32 s{sKb}, s{sU0}, 9
    s_lshl_b32 s{sVb}, s{sU0}, 7
    s_lshl_b32 s{sRT}, s{sQB}, 2
    s_add_u32 s{sRT}, s{sRT}, s{sR}
    s_and_b32 s{sTile}, s{sQB}, {OPT["rot"]}
    s_add_u32 s{sTile}, s{sTile}, {first}
    s_lshl_b32 s{sTile}, s{sTile}, 3
    s_lshl_b32 s3, s{sR}, 1
    s_add_u32 s{sTile}, s{sTile}, s3
    s_and_b32 s{sTile}, s{sTile}, 63
    """)
def kv(a, s):
    base = pslot(s)
    a(f"""
    s_mul_i32 s{T0}, s{sTile}, {RT}
    s_add_u32 m0, s{sM}, {base}
    s_add_u32 s22, s{T0}, s{sKb}
    s_add_u32 s22, s22, {BR + KU}
    """)
    a.vm(f"buffer_load_dwordx4 v{vL16}, {sr(sWS)}, s22 offen sc1 lds", f"kv{s}")
    a(f"s_add_u32 s23, s22, {RT - 2048}")
    a.vm(f"buffer_load_dwordx4 v{vL16}, {sr(sWS)}, s22 offen offset:1024 sc1 lds", f"kv{s}")
    a(f"s_add_u32 s{T0}, s{T0}, s{sVb}")
    a.vm(f"buffer_load_dwordx4 v{vL16}, {sr(sWS)}, s23 offen offset:2048 sc1 lds", f"kv{s}")
    a(f"s_add_u32 s{T0}, s{T0}, {BR + VU}")
    a.vm(f"buffer_load_dwordx4 v{vL16}, {sr(sWS)}, s23 offen offset:3072 sc1 lds", f"kv{s}")
    a(f"s_add_u32 m0, s{sM}, {base + 16384}\n s_mov_b64 exec, {sr(sVM,2)}")
    for i in range(4):
        a.vm(f"buffer_load_dwordx4 v{vVs}, {sr(sWS)}, s{T0} offen offset:{i*1024} sc1 lds", f"kv{s}")
        if i < 3: a(f"s_add_u32 s{T0}, s{T0}, {14336 - 1024}")
    if s in (0, 1, 2):
        a("s_not_b64 exec, exec")
        for i in range(4):
            a.vm(f"global_load_lds_dwordx4 v{vZ}, s[18:19]", f"kv{s}")
            if i < 3: a(f"s_add_u32 m0, s{sM}, {base + 16384 + (i+1)*1024}\n s_nop 0")
    a(f"""
    s_mov_b64 exec, -1
    s_add_u32 s{sTile}, s{sTile}, 8
    s_and_b32 s{sTile}, s{sTile}, 63
    """)
def helper_setup(a, part):
    T = 160; sRT = sHRT
    if part == 0:
        kv_setup(a, 1)
        a(f"""
        v_bfe_u32 v{T}, v0, 3, 1
        v_mul_u32_u24 v{T}, 3, v{T}
        v_add_u32 v{T}, s{sU0}, v{T}
        v_lshrrev_b32 v{T+3}, 2, v{T}
        v_lshlrev_b32 v{T+3}, 6, v{T+3}
        s_cmp_eq_u32 s{sRT}, 0
        s_cselect_b32 s3, 0, 1
        v_and_b32 v{T+2}, s3, v0
        v_sub_u32 v{T+2}, s{sRT}, v{T+2}
        v_add_u32 v{T+2}, v{T+2}, v{T+3}
        v_lshlrev_b32 v{T+2}, {FS}, v{T+2}
        v_add_u32 v{vFa}, {FA}, v{T+2}
        """)
    if part == 1:
        a(f"""
        v_lshrrev_b32 v{T}, 3, v0
        s_lshl_b32 s3, s{sR}, 3
        v_add_u32 v{T+1}, s3, v{T}
        v_mul_u32_u24 v{T+1}, 896, v{T+1}
        v_and_b32 v{T}, 2, v{T}
        s_and_b32 s3, s{sR}, 1
        v_or_b32 v{T}, s3, v{T}
        v_lshlrev_b32 v{T}, 1, v{T}
        v_and_b32 v{T+2}, 7, v0
        v_xor_b32 v{T}, v{T}, v{T+2}
        v_lshlrev_b32 v{T}, 4, v{T}
        v_add_u32 v{T+1}, v{T+1}, v{T}
        s_lshl_b32 s3, s{sCG3}, 7
        v_add_u32 v{vWo}, s3, v{T+1}
        v_lshlrev_b32 v{vPo}, {FS}, v{T+2}
        v_lshrrev_b32 v{T+1}, 2, v0
        v_and_b32 v{T+1}, 3, v{T+1}
        v_lshlrev_b32 v{T+2}, 3, v27
        v_add_u32 v{T+2}, v{T+2}, v{T+1}
        v_lshlrev_b32 v{T+2}, 7, v{T+2}
        v_and_b32 v{T+1}, 2, v{T+1}
        v_or_b32 v{T+1}, v{T+1}, v27
        v_bfe_u32 v{T+3}, v0, 4, 1
        v_xor_b32 v{T+1}, v{T+1}, v{T+3}
        v_lshlrev_b32 v{T+1}, 5, v{T+1}
        v_add_u32 v{T+2}, v{T+2}, v{T+1}
        v_and_b32 v{T+1}, 3, v0
        v_lshlrev_b32 v{T+1}, 3, v{T+1}
        v_add_u32 v{T+2}, v{T+2}, v{T+1}
        s_lshr_b32 s3, s{sR}, 1
        s_mul_i32 s3, s3, {WOA_L[1] - WOA_L[0]}
        s_add_u32 s3, s3, {WOA_L[0]}
        v_add_u32 v{vWa}, s3, v{T+2}
        v_xor_b32 v{vWa+1}, 64, v{vWa}
        v_mul_u32_u24 v{vOa}, 1792, v26
        v_lshlrev_b32 v{T}, 4, v27
        v_add_u32 v{vOa}, v{vOa}, v{T}
        s_add_u32 s3, s{sM}, {XHA_L}
        v_add_u32 v{vXa}, s3, v{vL16}
        v_xor_b32 v{vXa+1}, {2*4096}, v{vXa}
        """)
    if part == 2:
        a(f"""
        v_lshlrev_b32 v{T+1}, 2, v27
        v_and_b32 v{T}, 30, v0
        v_sub_u32 v{T}, v{T}, v{T+1}
        v_add_u32 v{T}, 18, v{T}
        v_mov_b32 v{T+2}, 0x5555
        v_mov_b32 v{T+3}, 0
        v_lshlrev_b64 {vr(T+2,2)}, v{T}, {vr(T+2,2)}
        s_cmp_eq_u32 s{sRT}, 0
        s_cselect_b32 s3, 0, -1
        v_and_b32 v{T+2}, s3, v{T+2}
        v_bfe_i32 v{vPar}, v0, 0, 1
        v_xor_b32 v{vHalf}, 0xffff, v{vPar}
        s_mov_b32 s3, 0xf149f2ca
        """)
        for i in range(12):
            pos = 16 + 8 * (i // 2) + 2 * (i % 2)
            a(f"v_bfe_i32 v{VM+i}, v{T+2 + pos//32}, {pos % 32}, 1")
        for g in range(4):
            a(f"v_bitop3_b32 v{NG+g}, v{VM+g}, v{VM+g+4}, v{VM+g+8} bitop3:0x01\n v_and_b32 v{NG+g}, s3, v{NG+g}")

def store_offsets(a, base, d):
    a(f"""
    s_lshl_b32 s{d+4}, s{sRB}, 1
    s_and_b32 s3, s{sR}, 1
    s_add_u32 s{d+4}, s{d+4}, s3
    s_mul_i32 s{d+3}, s{d+4}, {RT}
    s_cmp_eq_u32 s{sACT}, 0
    s_cselect_b32 s3, {WS_OOB}, 0
    s_add_u32 s{d+3}, s{d+3}, s3
    s_add_u32 s{d+3}, s{d+3}, {base}
    s_lshl_b32 s{d+2}, s{sCG}, 1
    s_lshr_b32 s3, s{sR}, 1
    s_add_u32 s{d+2}, s{d+2}, s3
    s_lshl_b32 s3, s{d+2}, 6
    s_add_u32 s{d+4}, s{d+4}, s3
    s_lshl_b32 s{d}, s{d+2}, 11
    s_add_u32 s{d}, s{d}, s{d+3}
    s_add_u32 s{d+1}, s{d}, {KU}
    s_lshl_b32 s{d+2}, s{d+2}, 9
    s_add_u32 s{d+2}, s{d+2}, s{d+3}
    s_add_u32 s{d+2}, s{d+2}, {VU}
    s_add_u32 s{d+3}, s{d+2}, 14336
    """)
def qkv_stores(p, d):
    return [f"buffer_store_dwordx4 {vr(p+16,4)}, v{vVs}, {sr(sWS)}, s{d+2} offen sc1",
            f"buffer_store_dwordx4 {vr(p+20,4)}, v{vVs}, {sr(sWS)}, s{d+3} offen sc1",
            f"buffer_store_dwordx4 {vr(p+8,4)}, v{vL16}, {sr(sWS)}, s{d+1} offen sc1",
            f"buffer_store_dwordx4 {vr(p+12,4)}, v{vL16}, {sr(sWS)}, s{d+1} offen offset:1024 sc1",
            f"buffer_store_dwordx4 {vr(p,4)}, v{vL16}, {sr(sWS)}, s{d} offen sc1",
            f"buffer_store_dwordx4 {vr(p+4,4)}, v{vL16}, {sr(sWS)}, s{d} offen offset:1024 sc1"]

def gen_gemm(a):
    vXA, vWA = 10, 14
    accQ, accK, accV = 32, 48, 64
    a(f"""
    v_and_b32 v26, 31, v0
    v_lshrrev_b32 v27, 5, v0
    v_lshrrev_b32 v28, 1, v26
    v_and_b32 v28, 7, v28
    v_xor_b32 v28, v28, v27
    v_lshlrev_b32 v28, 4, v28
    s_mul_i32 s{T0}, s{sC}, {4*SLOT}
    s_and_b32 s3, s{sW}, 1
    s_lshl_b32 s3, s3, 12
    s_add_u32 s3, s3, s{T0}
    v_lshlrev_b32 v29, 7, v26
    v_add_u32 v29, s3, v29
    v_add_u32 v{vXA}, v29, v28
    v_xor_b32 v{vXA+1}, 32, v{vXA}
    v_xor_b32 v{vXA+2}, 64, v{vXA}
    v_xor_b32 v{vXA+3}, 96, v{vXA}
    s_lshr_b32 s{T0+1}, s{sR}, 1
    v_lshrrev_b32 v28, 2, v0
    v_and_b32 v28, 3, v28
    v_lshlrev_b32 v29, 3, v27
    v_add_u32 v29, v29, v28
    v_lshlrev_b32 v29, 7, v29
    v_lshrrev_b32 v28, 1, v28
    v_xor_b32 v28, s{T0+1}, v28
    v_lshlrev_b32 v28, 6, v28
    v_add_u32 v29, v29, v28
    v_and_b32 v28, 16, v0
    v_lshlrev_b32 v28, 1, v28
    v_add_u32 v29, v29, v28
    v_and_b32 v28, 3, v0
    v_lshlrev_b32 v28, 3, v28
    v_add_u32 v29, v29, v28
    v_add_u32 v{vWA}, s{T0}, v29
    """)
    for i in range(48):
        a(f"v_mov_b32 v{accQ+i}, 0")
    roles(a)
    a(f"""
    s_mov_b32 s{T0+6}, {hex(f32bits(CSCALE))}
    v_mov_b32 v{vZ}, 0
    v_mov_b32 v{vWo}, 0
    v_mov_b32 v{vFa}, 0
    v_mov_b32 v{vPo}, 0
    v_mov_b32 v{vOa}, 0
    v_mul_u32_u24 v{vVs}, {7168-512}, v27
    v_add_u32 v{vVs}, v{vVs}, v{vL16}
    """)
    p1_role(a, f"s{sC}")
    a(f"s_cmp_eq_u32 s{sC}, 0\n s_cselect_b32 s{T0}, {BR}, 0")
    store_offsets(a, f"s{T0}", T0 + 1)
    a(f"""
    s_waitcnt lgkmcnt(0)
    """)
    srd(a, sWS, 20, WS_USED)
    a(f"""
    v_mov_b32 v4, {EPOCH}
    buffer_load_dword v4, v4, {sr(sWS)}, 0 offen sc1
    """)
    srd(a, sOUT, 16, OUT_BYTES)
    srd(a, sWoA, 8, WO_BYTES)
    srd(a, sWoB, 14, WO_BYTES)
    a(f"""
    s_getpc_b64 s[18:19]
    H_pc:
    s_add_u32 s18, s18, L_ones-H_pc
    s_addc_u32 s19, s19, 0
    s_mov_b32 s{T0+11}, {SLOT}
    s_cmp_eq_u32 s{sC}, 0
    s_cbranch_scc1 C_bb
    """)
    if OPT["prefetch"]:
        a(f"""
        s_lshl_b32 s3, s{sJ}, 2
        s_add_u32 s3, s3, s{sR}
        s_lshl_b32 s3, s3, 7
        s_min_u32 s3, s3, L_ones-C_b0-64
        s_sub_u32 s22, s18, L_ones-C_b0
        s_subb_u32 s23, s19, 0
        s_load_dword s0, s[22:23], s3
        s_add_u32 s3, s3, 64
        s_load_dword s0, s[22:23], s3
        """)
    dma_lanes(a, 5, 164)
    dma_tile(a, 14, 15, 16, 22, 4)
    srd(a, sX, 4, "s22")
    srd(a, sWt, 6, "s23")
    a(f"s_lshl_b32 s17, s{sR}, 11\n s_add_u32 s17, s17, {4*SLOT}\n s_mov_b32 s{T0+11}, 0")
    if OPT["ipf"]:
        a(f"""
        s_and_b32 s3, s2, {0xc1}
        s_cmp_lg_u32 s3, {0xc1}
        s_cbranch_scc1 C_nipf
        s_lshl_b32 s3, s{sRB}, 2
        s_add_u32 s3, s3, s{sR}
        s_mul_i32 s22, s3, 14336
        s_mul_i32 s23, s3, 9408
        s_and_b32 s23, s23, -128
        s_mov_b32 m0, s17
        """)
        if OPT["ipw"]: a("s_waitcnt vmcnt(0)")
        for i in range(14):
            a(f"buffer_load_dwordx4 v{vL16}, {sr(sX)}, s22 offen lds\n s_add_u32 s22, s22, 1024")
            if i < 10: a(f"buffer_load_dwordx4 v{vL16}, {sr(sWt)}, s23 offen lds\n s_add_u32 s23, s23, 1024")
        a("C_nipf:")
    steps = [lambda: helper_setup(a, 0), lambda: helper_setup(a, 1), lambda: helper_setup(a, 2)]
    for b in range(-1, 6):
        if b == 5 or (b >= 0 and not OPT["skip"]): a("s_barrier")
        elif b >= 0: a(f"s_and_b32 s3, s2, 0xc1\n s_cmp_eq_u32 s3, 0xc1\n s_cbranch_scc1 C_sk{b}\n s_barrier\n C_sk{b}:")
        if b == OPT["tpos"] and OPT["tch"] >= 2:
            a(f"""
            v_and_b32 v8, 7, v0
            s_mov_b32 s3, {MAT}
            v_mul_lo_u32 v8, v8, s3
            s_and_b32 s3, s{T0+1}, {WS_OOB - 1}
            s_mov_b64 exec, 0xff
            buffer_load_dword v3, v8, {sr(sWS)}, s3 offen sc1
            """)
            if OPT["tch"] >= 3:
                a(f"""
                s_mul_i32 s3, s{sRBK}, {64*1792}
                s_mov_b64 exec, 1
                buffer_load_dword v3, v8, {sr(sOUT)}, s3 offen sc1
                buffer_load_dword v3, v8, {sr(sWoA)}, 0 offen
                buffer_load_dword v3, v8, {sr(sWoB)}, 0 offen
                """)
            a("s_mov_b64 exec, -1")
        if b == 0 and OPT["tch"] == 1:
            a("s_load_dword s0, s[4:5], 0\n s_load_dword s0, s[6:7], 0")
        if b == OPT["apos"]: dma_stage(a, 5, 14, 15, 16, 17, 22, [])
        elif b == 5: a("s_waitcnt vmcnt(0) lgkmcnt(0)"); make_tag(a, 4)
        elif steps: steps.pop(0)()
    assert not steps
    a(f"""
    C_b0:
    s_mov_b32 s{T0+7}, 7
    s_branch C_w0
    C_w:
    s_barrier
    s_branch C_w1
    C_w0:
    s_barrier
    s_memrealtime s[96:97]
    s_waitcnt lgkmcnt(0)
    C_w1:
    """ if OPT["padat"] == 5 else f"""
    C_b0:
    s_mov_b32 s{T0+7}, 7
    C_w:
    s_barrier
    """)
    F = [80, 96, 112, 128]
    def rlist(ks):
        f = F[ks]
        r = [f"ds_read_b128 {vr(f,4)}, v{vXA+ks}"]
        for p in (1, 2, 0):
            for j in range(2):
                r.append(f"ds_read_b64_tr_b16 {vr(f+4+4*p+2*j,2)}, v{vWA} offset:{8192+p*8192+ks*2048+j*512}")
        return r
    def mlist(ks):
        f = F[ks]
        return [f"{MF32} {vr(accK,16)}, {vr(f+8,4)}, {vr(f,4)}, {vr(accK,16)}",
                f"{MF32} {vr(accV,16)}, {vr(f,4)}, {vr(f+12,4)}, {vr(accV,16)}",
                f"{MF32} {vr(accQ,16)}, {vr(f+4,4)}, {vr(f,4)}, {vr(accQ,16)}"]
    def step(ks, rd):
        m = mlist(ks)
        r = rlist((ks + 2) % 4) if rd else [""] * 7
        a(m[0]); a(r[0]); a(r[1]); a(r[2]); a(m[1]); a(r[3]); a(r[4]); a(m[2]); a(r[5]); a(r[6])
    for l in rlist(0) + rlist(1): a(l)
    a("C_g:")
    a("s_waitcnt lgkmcnt(7)"); step(0, True)
    a("s_waitcnt lgkmcnt(7)"); step(1, True)
    for r in range(vXA, vXA + 5):
        a(f"v_add_u32 v{r}, s{T0+11}, v{r}\n v_and_b32 v{r}, {4*SLOT-1}, v{r}")
    a(f"""
    s_mov_b32 s{T0+11}, {SLOT}
    s_sub_u32 s{T0+7}, s{T0+7}, 1
    s_cmp_le_u32 s{T0+7}, 1
    s_cbranch_scc1 C_gx
    s_waitcnt lgkmcnt(0)
    s_barrier
    """)
    step(2, True)
    step(3, True)
    a("s_branch C_g\n C_gx:")
    a("s_waitcnt lgkmcnt(7)"); step(2, False)
    a("s_waitcnt lgkmcnt(0)"); step(3, False)
    a(f"s_cmp_eq_u32 s{T0+7}, 1\n s_cbranch_scc1 C_w")
    stamp(a, 3)
    a("s_nop 8")
    P = 80
    st = qkv_stores(P, T0 + 1)
    for i in range(8):
        a(f"v_cvt_pk_bf16_f32 v{P+8+i}, v{accK+2*i}, v{accK+2*i+1}")
    for i in range(8):
        a(f"v_cvt_pk_bf16_f32 v{P+16+i}, v{accV+2*i}, v{accV+2*i+1}")
    for g in (8, 12):
        a(f"v_permlane32_swap_b32 v{P+g}, v{P+g+2}\n v_permlane32_swap_b32 v{P+g+1}, v{P+g+3}")
    a(f"s_cmp_lg_u32 s{sC}, 0\n s_cbranch_scc1 C_ns")
    for l in st[:4]: a(l)
    a("C_ns:")
    for i in range(16):
        a(f"v_mul_f32 v{accQ+i}, s{T0+6}, v{accQ+i}")
    for i in range(8):
        a(f"v_cvt_pk_bf16_f32 v{P+i}, v{accQ+2*i}, v{accQ+2*i+1}")
    a("s_nop 1")
    for g in (0, 4):
        a(f"v_permlane32_swap_b32 v{P+g}, v{P+g+2}\n v_permlane32_swap_b32 v{P+g+1}, v{P+g+3}")
    a(f"s_cbranch_scc1 L_helper")

def gen_bskip(a):
    a("C_bb:")
    if OPT["skip"]:
        a(f"s_cmp_lg_u32 s{sACT}, 0\n s_cbranch_scc1 C_b0\n s_barrier\n s_barrier\n s_branch C_pub")
    else:
        a("s_branch C_b0")

def gen_publish(a):
    T, vFl = 28, 32
    sRT = sHRT
    kd, pp = OPT["kd"], OPT["pp"]
    for l in qkv_stores(80, T0 + 1)[4:]: a(l)
    a("C_pub:")
    if OPT["padat"] == 3: a("s_memrealtime s[96:97]")
    lstamp(a, 0)
    a("s_barrier")
    a(f"""
    s_lshl_b32 s3, s{sCG}, 5
    s_add_u32 s3, s3, s{sRB}
    s_lshl_b32 s3, s3, {FS}
    s_add_u32 s13, s3, {FB}
    """)
    kv_setup(a, 0)
    a(f"""
    v_bfe_u32 v{T}, v0, 3, 1
    v_mul_u32_u24 v{T}, 3, v{T}
    v_add_u32 v{T}, s{sU0}, v{T}
    v_lshrrev_b32 v{T+3}, 3, v{T}
    v_lshlrev_b32 v{T+3}, 5, v{T+3}
    s_lshr_b32 s3, s{sRT}, 1
    v_mov_b32 v{T+1}, s3
    s_mov_b64 exec, 0xffff
    v_and_b32 v{T+1}, 7, v0
    v_lshlrev_b32 v{T+1}, 2, v{T+1}
    v_add_u32 v{T+1}, s{sR}, v{T+1}
    s_mov_b64 exec, -1
    v_add_u32 v{T+1}, v{T+1}, v{T+3}
    v_lshlrev_b32 v{T+1}, {FS}, v{T+1}
    v_add_u32 v{vFl}, {FB}, v{T+1}
    """)
    attn_setup(a, 0)
    def qload():
        a(f"""
        s_lshr_b32 s3, s{sM}, 1
        s_add_u32 m0, s3, {QST_L}
        s_sub_u32 s3, s{sOb}, {OU - QU}
        buffer_load_dwordx4 v{vL16}, {sr(sWS)}, s3 offen sc1 lds
        buffer_load_dwordx4 v{vL16}, {sr(sWS)}, s3 offen offset:1024 sc1 lds
        """)
    for b in range(9, 13):
        if b == kd:
            a("s_waitcnt vmcnt(0)")
            lstamp(a, 1)
            make_tag(a, 4)
        a("s_barrier")
        if b == kd:
            a(f"s_cmp_lg_u32 s{sW}, 0\n s_cbranch_scc1 H_nofl")
            set_flag(a, 13, T)
            a("H_nofl:")
            lstamp(a, 3)
        if b == pp:
            a(f"buffer_load_dwordx2 {vr(T+2,2)}, v{vFl}, {sr(sWS)}, 0 offen sc1")
    a(f"""
    s_waitcnt vmcnt(0)
    v_cmp_ne_u64 vcc, {sr(sTAG,2)}, {vr(T+2,2)}
    s_cmp_eq_u64 vcc, 0
    s_cselect_b32 s13, 1, 0
    s_cbranch_scc1 H_ok
    """)
    if OPT["p2"]:
        a(f"""
        buffer_load_dwordx2 {vr(T+2,2)}, v{vFl}, {sr(sWS)}, 0 offen sc1
        s_barrier
        s_waitcnt vmcnt(0)
        v_cmp_ne_u64 vcc, {sr(sTAG,2)}, {vr(T+2,2)}
        s_cmp_eq_u64 vcc, 0
        s_cbranch_scc1 H_ok
        """)
    else:
        a("s_barrier")
    if OPT["ipoll"]:
        a(f"s_cmp_lg_u32 s{sACT}, 0\n s_cbranch_scc1 H_np\n s_mov_b64 exec, 1")
        poll(a, vFl, T + 2, sleep=OPT["ipoll"])
        a("H_np:")
    poll(a, vFl, T + 2)
    a("H_ok:")
    if OPT["padat"] == 4: a("s_memrealtime s[96:97]")
    lstamp(a, 2)
    qload()
    kv(a, 0)
    a("s_cmp_eq_u32 s13, 0\n s_cbranch_scc1 H_b13\n s_barrier\n H_b13:\n s_waitcnt vmcnt(%d)" % (8 if OPT["g5"] else 0))

vCur, vNxt, vNx2, vQa, vK0, vXw, vXr, vT = 148, 149, 150, 151, 152, 153, 156, 160
def attn_setup(a, kh):
    a(f"""
    s_and_b32 s{sK3}, s{sCG3}, {OPT["krot"]}
    s_xor_b32 s{sK3}, s{sK3}, {kh}
    s_add_u32 s{sWI}, s{sR}, {4*kh}
    s_lshl_b32 s3, s{sQB}, 2
    s_add_u32 s3, s3, s{sR}
    s_mul_i32 s3, s3, {RT}
    s_lshl_b32 s{sOb}, s{sU0}, 9
    s_add_u32 s{sOb}, s{sOb}, s3
    s_add_u32 s{sOb}, s{sOb}, {BR + OU}
    v_add_u32 v{vCur}, {pslot(0) + kh*8192}, v{vL16}
    v_add_u32 v{vNxt}, {pslot(1) + kh*8192}, v{vL16}
    v_add_u32 v{vNx2}, {pslot(2) + kh*8192}, v{vL16}
    v_add_u32 v{vK0}, {pslot(0)}, v{vL16}
    s_lshl_b32 s3, s{sR}, 11
    s_add_u32 s3, s3, {QST_L}
    v_add_u32 v{vQa}, s3, v{vL16}
    s_lshl_b32 s3, s{sR}, 10
    v_add_u32 v{vT}, s3, v{vL16}
    v_add_u32 v{vXw}, {XC1_L + kh*4096}, v{vT}
    v_add_u32 v{vXr}, {XC1_L + (1-kh)*4096}, v{vT}
    v_add_u32 v{vXw+1}, {XC2_L + kh*8192}, v{vT}
    v_add_u32 v{vXr+1}, {XC2_L + (1-kh)*8192}, v{vT}
    v_lshrrev_b32 v{vT}, 2, v{vT}
    v_add_u32 v{vXw+2}, {XC2_L + kh*8192 + 4096}, v{vT}
    v_add_u32 v{vXr+2}, {XC2_L + (1-kh)*8192 + 4096}, v{vT}
    v_lshrrev_b32 v{vT}, 4, v0
    v_lshrrev_b32 v{vT+1}, 2, v0
    v_and_b32 v{vT+1}, 3, v{vT+1}
    v_lshlrev_b32 v{vT+2}, 3, v{vT}
    v_add_u32 v{vT+2}, v{vT+2}, v{vT+1}
    v_lshlrev_b32 v{vT+2}, 7, v{vT+2}
    v_and_b32 v{vT+1}, 2, v{vT+1}
    v_and_b32 v{vT+3}, 1, v{vT}
    v_or_b32 v{vT+1}, v{vT+1}, v{vT+3}
    v_lshlrev_b32 v{vT+1}, 5, v{vT+1}
    v_add_u32 v{vT+2}, v{vT+2}, v{vT+1}
    v_and_b32 v{vT+1}, 3, v0
    v_lshlrev_b32 v{vT+1}, 3, v{vT+1}
    v_add_u32 v{vT+2}, v{vT+2}, v{vT+1}
    s_mul_i32 s3, s{sK3}, {224*128}
    v_add_u32 v{vT+4}, s3, v{vL16 if OPT["wt"] else vT+2}
    v_xor_b32 v{vT+5}, 32, v{vT+4}
    v_xor_b32 v{vT+6}, 64, v{vT+4}
    v_xor_b32 v{vT+7}, 96, v{vT+4}
    s_lshl_b32 s{sOf}, s{sRBK}, 1
    s_lshr_b32 s3, s{sR}, 1
    s_add_u32 s{sOf}, s{sOf}, s3
    s_mul_i32 s{sOf}, s{sOf}, {RT}
    s_and_b32 s3, s{sR}, 1
    s_lshl_b32 s3, s3, 8
    s_add_u32 s{sOf}, s{sOf}, s3
    s_mul_i32 s3, s{sK3}, {28*512}
    s_add_u32 s{sOf}, s{sOf}, s3
    s_add_u32 s{sOf}, s{sOf}, {BR + OU}
    v_and_b32 v{vT+1}, 15, v0
    v_lshlrev_b32 v{vT+2}, 9, v{vT}
    v_lshlrev_b32 v159, 4, v{vT+1}
    v_add_u32 v{vT+2}, v{vT+2}, v159
    s_lshl_b32 s3, s{sRBK}, 2
    s_add_u32 s3, s3, s{sR}
    s_lshl_b32 s3, s3, 4
    v_add_u32 v{vT+1}, s3, v{vT+1}
    v_mul_u32_u24 v{vT+1}, 1792, v{vT+1}
    v_lshlrev_b32 v{vT+3}, 5, v{vT+3}
    v_add_u32 v{vT+1}, v{vT+1}, v{vT+3}
    v_lshrrev_b32 v{vT+3}, 1, v{vT}
    v_lshlrev_b32 v{vT+3}, 4, v{vT+3}
    v_add_u32 v{vT+1}, v{vT+1}, v{vT+3}
    s_lshl_b32 s{sOo}, s{sCG3}, 7
    s_lshl_b32 s3, s{sK3}, 6
    s_add_u32 s{sOo}, s{sOo}, s3
    s_add_u32 s{sOo}, s{sOo}, 896
    """)
    for r in list(range(104, 120)) + list(range(64, 68)) + list(range(132, 136)):
        a(f"v_mov_b32 v{r}, 0")

def gen_attn(a):
    Q, NM, S, P, O, K, V, T = 4, 12, [28, 44], 60, 104, 120, 128, 140
    WF, OF, ACC = 4, 116, 144
    sS = T0 + 7
    a("C_attn:")
    stamp(a, 5)
    a("s_setprio 1\n s_barrier")
    stamp(a, 6)
    if OPT["padat"] == 1: a("s_memrealtime s[96:97]\n s_waitcnt lgkmcnt(0)")
    if OPT["rts"]: stamp(a, 3, rt=True)
    if OPT["prof"]: a("s_waitcnt lgkmcnt(0)")
    a(f"""
    ds_read_b128 {vr(Q,4)}, v{vQa}
    ds_read_b128 {vr(Q+4,4)}, v{vQa} offset:1024
    ds_read_b128 {vr(NM,4)}, v{vK0}
    ds_read_b128 {vr(NM+4,4)}, v{vK0} offset:1024
    ds_read_b128 {vr(NM+8,4)}, v{vCur}
    ds_read_b128 {vr(NM+12,4)}, v{vCur} offset:1024
    ds_read_b128 {vr(K,4)}, v{vCur} offset:2048
    ds_read_b128 {vr(K+4,4)}, v{vCur} offset:3072
    {"" if OPT["g5"] else f"ds_read_b128 {vr(V,4)}, v{vCur} offset:16384"}
    s_waitcnt lgkmcnt({7 - OPT["g5"]})
    """)
    zero_foreign(a, Q)
    a(f"""
    s_waitcnt lgkmcnt({5 - OPT['g5']})
    {MF32} {vr(S[1],16)}, {vr(NM,4)}, {vr(Q,4)}, 0
    {MF32} {vr(S[1],16)}, {vr(NM+4,4)}, {vr(Q+4,4)}, {vr(S[1],16)}
    s_waitcnt lgkmcnt({3 - OPT['g5']})
    {MF32} {vr(S[0],16)}, {vr(NM+8,4)}, {vr(Q,4)}, 0
    {MF32} {vr(S[0],16)}, {vr(NM+12,4)}, {vr(Q+4,4)}, {vr(S[0],16)}
    s_mov_b32 s{sS}, 0
    s_mov_b32 s3, {hex(f32bits(-float(OPT["delta"])))}
    s_nop 7
    """)
    s1 = S[1]
    a(f"v_max3_f32 v{T}, v{s1}, v{s1+1}, v{s1+2}")
    a(f"v_max3_f32 v{T+1}, v{s1+3}, v{s1+4}, v{s1+5}")
    for i in range(6, 14, 4):
        a(f"v_max3_f32 v{T}, v{T}, v{s1+i}, v{s1+i+1}")
        a(f"v_max3_f32 v{T+1}, v{T+1}, v{s1+i+2}, v{s1+i+3}")
    a(f"""
    v_max3_f32 v{T}, v{T}, v{s1+14}, v{s1+15}
    v_max_f32 v{T}, v{T}, v{T+1}
    v_mov_b32 v{T+1}, v{T}
    v_mov_b32 v{s1+14}, 0
    v_mov_b32 v{s1+15}, 0
    v_permlane32_swap_b32 v{T}, v{T+1}
    s_nop 1
    v_max_f32 v{T}, v{T}, v{T+1}
    v_sub_f32 v{NM}, s3, v{T}
    """)
    if OPT["g5"]:
        a(f"s_waitcnt vmcnt(0)\n s_barrier\n ds_read_b128 {vr(V,4)}, v{vCur} offset:16384")
    for i in range(16):
        a(f"v_add_f32 v{S[0]+i}, v{S[0]+i}, v{NM}")
    for i in range(1, 16):
        a(f"v_mov_b32 v{NM+i}, v{NM}")
    a("s_waitcnt lgkmcnt(0)\n s_setprio 1")
    a(".p2align 3")
    a("C_loop:")
    for i in range(4):
        cs, ns = S[i % 2], S[(i + 1) % 2]
        def ex(j): return f"v_exp_f32 v{cs+j}, v{cs+j}"
        def cv(j): return f"v_cvt_pk_bf16_f32 v{P+j}, v{cs+2*j}, v{cs+2*j+1}"
        kreg, ko = (vCur, (i + 2) * 2048) if i < 2 else (vNxt, (i - 2) * 2048)
        vreg, vo = (vCur, (i + 1) * 2048) if i < 3 else (vNxt, 0)
        a(ex(0)); a(ex(1))
        a(f"v_cvt_pk_bf16_f32 v{P+7}, v{ns+14}, v{ns+15}")
        a(ex(2))
        if i == 2:
            a("s_barrier\n s_setprio 3")
        a("s_waitcnt lgkmcnt(2)")
        a(f"{MF32} {vr(ns,16)}, {vr(K,4)}, {vr(Q,4)}, {vr(NM,16)}")
        a(f"ds_read_b128 {vr(K,4)}, v{kreg} offset:{ko}")
        a(cv(0)); a(ex(3)); a(ex(4)); a(cv(1)); a(ex(5)); a(ex(6))
        a(f"{MF32} {vr(O,16)}, {vr(V+4,4)}, {vr(P+4,4)}, {vr(O,16)}")
        a(f"ds_read_b128 {vr(V+4,4)}, v{vCur} offset:{16384 + i*2048 + 1024}")
        a(cv(2)); a(ex(7)); a(ex(8)); a(cv(3)); a(ex(9)); a("s_waitcnt lgkmcnt(2)")
        a(f"{MF32} {vr(ns,16)}, {vr(K+4,4)}, {vr(Q+4,4)}, {vr(ns,16)}")
        a(f"ds_read_b128 {vr(K+4,4)}, v{kreg} offset:{ko+1024}")
        a(ex(10)); a(ex(11)); a(cv(4)); a(ex(12)); a(ex(13)); a(cv(5))
        a(f"{MF32} {vr(O,16)}, {vr(V,4)}, {vr(P,4)}, {vr(O,16)}")
        a(f"ds_read_b128 {vr(V,4)}, v{vreg} offset:{16384 + vo}")
        a(ex(14)); a(ex(15)); a(cv(6))
        if i == 0: a("s_setprio 0\n s_add_u32 s{0}, s{0}, 1".format(sS))
        if i == 2: a("s_setprio 2\n s_nop 0")
        if i == 3:
            a(f"""
            v_swap_b32 v{vCur}, v{vNxt}
            s_setprio 1
            v_swap_b32 v{vNxt}, v{vNx2}
            s_cmp_lt_u32 s{sS}, 8
            s_cbranch_scc1 C_loop
            """)
    a(f"""
    v_cvt_pk_bf16_f32 v{P+7}, v{S[1]+14}, v{S[1]+15}
    s_waitcnt lgkmcnt(0)
    s_cmp_eq_u32 s{sODD}, 0
    {MF32} {vr(O,16)}, {vr(V+4,4)}, {vr(P+4,4)}, {vr(O,16)}
    """)
    stamp(a, 7)
    if OPT["padat"] == 2: a("s_memrealtime s[96:97]")
    a(f"s_setprio {OPT['tp']}")
    if OPT["rts"]: stamp(a, 4, rt=True)
    X = S[0]
    a(f"""
    s_nop 10
    s_cbranch_scc1 C_le
    v_mov_b32 v{T+2}, v{O}
    s_branch C_lx
    C_le:
    v_mov_b32 v{T+2}, v{O+12}
    C_lx:
    s_cmp_eq_u32 s{sC}, 0
    s_cbranch_scc1 C_x0
    ds_write_b128 v{vXw}, {vr(O,4)}
    ds_write_b128 v{vXw+1}, {vr(O+4,4)}
    ds_write_b32 v{vXw+2}, v{T+2}
    s_waitcnt lgkmcnt(0)
    s_barrier
    """)
    for i in range(8):
        a(f"v_mov_b32 v{O+i}, v{O+8+i}")
    a(f"""
    s_branch C_x1
    C_x0:
    ds_write_b128 v{vXw}, {vr(O+8,4)}
    ds_write_b128 v{vXw+1}, {vr(O+12,4)}
    ds_write_b32 v{vXw+2}, v{T+2}
    s_waitcnt lgkmcnt(0)
    s_barrier
    C_x1:
    ds_read_b32 v{X+8}, v{vXr+2}
    ds_read_b128 {vr(X,4)}, v{vXr}
    ds_read_b128 {vr(X+4,4)}, v{vXr+1}
    s_waitcnt lgkmcnt(2)
    v_add_f32 v{T+2}, v{T+2}, v{X+8}
    """)
    bcast_l(a, T + 2, T + 2, T + 4)
    a("s_waitcnt lgkmcnt(0)")
    a(f"v_mul_f32 v{T}, 0, v{T+4}\n v_mov_b32 v{T+1}, 0x207")
    for i in range(8):
        a(f"v_add_f32 v{O+i}, v{O+i}, v{X+i}")
    for i in range(8):
        a(f"v_add_f32 v{T}, v{T}, abs(v{O+i})")
    a(f"""
    s_mov_b32 s3, {hex((127 - 100) << 23)}
    v_cmp_nge_f32 vcc, v{T}, s3
    v_cmp_class_f32 s[22:23], v{T}, v{T+1}
    s_or_b64 vcc, vcc, s[22:23]
    s_cbranch_scc1 C_slow
    C_fin:
    """)
    finalize(a, O, 8, T + 4)
    a(f"s_cmp_eq_u32 s{sC}, 0\n s_cbranch_scc0 C_st1")
    store_units(a, O, True, sOb, 0)
    a("s_branch C_st2\n C_st1:")
    store_units(a, O, False, sOb, 1024)
    a("C_st2:")
    stamp(a, 8)
    a(f"s_mov_b64 s[22:23], -1\n s_cmp_ge_u32 s{sJ}, 28\n s_cbranch_scc1 C_exit")
    def wrd(s0, s1):
        for s in range(s0, s1):
            for t in range(4):
                if OPT["wt"]:
                    a(f"ds_read_b128 {vr(WF+16*s+4*t,4)}, v{vT+4} offset:{s*4096 + t*1024}")
                    continue
                for j in range(2):
                    a(f"ds_read_b64_tr_b16 {vr(WF+16*s+4*t+2*j,2)}, v{vT+4+t} offset:{(32*s+4*j)*128}")
    wrd(0, 7)
    a(f"""
    v_mov_b32 v{vT+4}, v{vXw}
    v_mov_b32 v{vT+5}, v{vXw+1}
    v_mov_b32 v{vT+6}, v{vXr}
    v_mov_b32 v{vT+7}, v{vXr+1}
    s_waitcnt vmcnt(0)
    """)
    a(f"s_mov_b32 s{T0+11}, {SPIN}\n s_mov_b32 s{T0+5}, 0\n C_pp:\n s_mov_b32 s3, s{sOf}")
    for s in range(7):
        if s and s % 2 == 0:
            a(f"s_add_u32 s3, s3, 4096")
        a(f"buffer_load_dwordx4 {vr(OF+4*s,4)}, v{vT+2}, {sr(sWS)}, s3 offen offset:{(s%2)*2048} sc1")
    a("s_waitcnt lgkmcnt(0)")
    for s in range(7):
        a(f"s_waitcnt vmcnt({6-s})")
        f = OF + 4 * s
        for t in range(4):
            cin = "0" if s == 0 else vr(ACC + 4 * t, 4)
            a(f"{MF16} {vr(ACC+4*t,4)}, {vr(WF+16*s+4*t,4)}, {vr(f,4)}, {cin}")
            if t == 0: a(f"v_max3_u32 v3, v{f}, v{f+1}, v{f+2 if s == 0 else 3}")
            if t == 1: a(f"v_max3_u32 v3, v3, v{f+2}, v{f+3}")
    a(f"""
    v_cmp_eq_u32 vcc, -1, v3
    s_add_u32 s{T0+5}, s{T0+5}, 1
    s_sub_u32 s{T0+11}, s{T0+11}, 1
    s_cbranch_scc1 C_ppx
    s_cmp_lg_u64 vcc, 0
    s_cbranch_scc1 C_pp
    C_ppx:
    """)
    stamp(a, 9)
    if OPT["prof"]: a(f"v_writelane_b32 v1, s{T0+5}, 63")
    a(f"""
    s_cmp_eq_u32 s{sK3}, 0
    s_nop 5
    s_cbranch_scc1 C_y0
    ds_write_b128 v{vT+6}, {vr(ACC,4)}
    ds_write_b128 v{vT+7}, {vr(ACC+4,4)}
    s_waitcnt lgkmcnt(0)
    s_barrier
    """)
    for i in range(8):
        a(f"v_mov_b32 v{ACC+i}, v{ACC+8+i}")
    a(f"""
    s_branch C_y1
    C_y0:
    ds_write_b128 v{vT+6}, {vr(ACC+8,4)}
    ds_write_b128 v{vT+7}, {vr(ACC+12,4)}
    s_waitcnt lgkmcnt(0)
    s_barrier
    C_y1:
    ds_read_b128 {vr(OF,4)}, v{vT+4}
    ds_read_b128 {vr(OF+4,4)}, v{vT+5}
    s_waitcnt lgkmcnt(0)
    """)
    for i in range(8):
        a(f"v_add_f32 v{ACC+i}, v{ACC+i}, v{OF+i}")
    for i in range(4):
        a(f"v_cvt_pk_bf16_f32 v{ACC+i}, v{ACC+2*i}, v{ACC+2*i+1}")
    osc = ("", " sc1", " nt", " sc0 sc1")[OPT["outsc"]]
    a(f"""
    s_nop 1
    v_permlane16_swap_b32 v{ACC}, v{ACC+2}
    v_permlane16_swap_b32 v{ACC+1}, v{ACC+3}
    buffer_store_dwordx4 {vr(ACC,4)}, v{vT+1}, {sr(sOUT)}, s{sOo} offen{osc}
    C_exit:
    """)
    if OPT["padrt"] or OPT["padcy"]:
        if OPT["padx"] >= 0: a(f"s_cmp_lg_u32 s{sXCD}, {OPT['padx']}\n s_cbranch_scc1 C_padx")
        a(f"""
        C_pad:
        {'s_memrealtime' if OPT['padrt'] else 's_memtime'} s[98:99]
        s_waitcnt lgkmcnt(0)
        s_sub_u32 s98, s98, s96
        s_cmp_lt_u32 s98, {OPT['padrt'] or OPT['padcy']}
        s_cbranch_scc1 C_pad
        C_padx:
        """)
    dump(a)
    a("s_endpgm")
    sT, sKo, sVo = T0, T0 + 1, T0 + 2
    def kload():
        a(f"""
        s_mul_i32 s{sKo}, s{sT}, {RT}
        s_lshl_b32 s3, s{sU0}, 7
        s_add_u32 s{sVo}, s{sKo}, s3
        s_add_u32 s{sVo}, s{sVo}, {BR + VU}
        s_lshl_b32 s3, s{sU0}, 9
        s_add_u32 s{sKo}, s{sKo}, s3
        s_add_u32 s{sKo}, s{sKo}, {BR + KU}
        buffer_load_dwordx4 {vr(K,4)}, v{vL16}, {sr(sWS)}, s{sKo} offen sc1
        buffer_load_dwordx4 {vr(K+4,4)}, v{vL16}, {sr(sWS)}, s{sKo} offen offset:1024 sc1
        """)
    def qk():
        a(f"""
        s_waitcnt vmcnt(0)
        {MF32} {vr(S[0],16)}, {vr(K,4)}, {vr(Q,4)}, 0
        {MF32} {vr(S[0],16)}, {vr(K+4,4)}, {vr(Q+4,4)}, {vr(S[0],16)}
        s_nop 15
        """)
    a(f"C_slow:\n v_mov_b32 v{T}, 0xff800000\n s_mov_b32 s{sT}, 0\n C_s1:")
    kload(); qk()
    for i in range(0, 16, 2):
        a(f"v_max3_f32 v{T}, v{T}, v{S[0]+i}, v{S[0]+i+1}")
    a(f"""
    s_add_u32 s{sT}, s{sT}, 1
    s_cmp_lt_u32 s{sT}, 64
    s_cbranch_scc1 C_s1
    v_mov_b32 v{T+1}, v{T}
    s_nop 1
    v_permlane32_swap_b32 v{T}, v{T+1}
    s_nop 1
    v_max_f32 v{T}, v{T}, v{T+1}
    v_lshrrev_b32 v{T+1}, 5, v0
    v_mul_u32_u24 v{T+1}, {7168-512}, v{T+1}
    v_add_u32 v{T+1}, v{T+1}, v{vL16}
    """)
    for i in range(16):
        a(f"v_mov_b32 v{O+i}, 0")
    for i in range(8):
        a(f"v_mov_b32 v{V+i}, 0x3f803f80")
    a(f"s_mov_b32 s{sT}, 0\n C_s2:")
    kload()
    a(f"""
    s_add_u32 s3, s{sVo}, 14336
    s_mov_b64 exec, {sr(sVM,2)}
    buffer_load_dwordx4 {vr(V,4)}, v{T+1}, {sr(sWS)}, s{sVo} offen sc1
    buffer_load_dwordx4 {vr(V+4,4)}, v{T+1}, {sr(sWS)}, s3 offen sc1
    s_mov_b64 exec, -1
    """)
    qk()
    for i in range(16):
        a(f"v_sub_f32 v{S[0]+i}, v{S[0]+i}, v{T}")
    for i in range(16):
        a(f"v_exp_f32 v{S[0]+i}, v{S[0]+i}")
    a("s_nop 0")
    for i in range(8):
        a(f"v_cvt_pk_bf16_f32 v{P+i}, v{S[0]+2*i}, v{S[0]+2*i+1}")
    a(f"""
    s_nop 1
    {MF32} {vr(O,16)}, {vr(V,4)}, {vr(P,4)}, {vr(O,16)}
    {MF32} {vr(O,16)}, {vr(V+4,4)}, {vr(P+4,4)}, {vr(O,16)}
    s_add_u32 s{sT}, s{sT}, 1
    s_cmp_lt_u32 s{sT}, 64
    s_nop 15
    s_cbranch_scc1 C_s2
    """)
    bcast_l(a, O + 12, O, T + 4)
    a(f"s_cmp_eq_u32 s{sC}, 0\n s_cbranch_scc1 C_fin")
    for i in range(8):
        a(f"v_mov_b32 v{O+i}, v{O+8+i}")
    a("s_branch C_fin")

def gen_helper(a):
    AQ, AKp, AKc, AVp, AVc, O, HP, T, SP, SC = 28, 36, 44, 52, 56, 64, 80, 104, 108, 124
    sRT = sHRT
    nb = [0]
    def bar():
        k = nb[0]; nb[0] += 1
        if OPT["hst"]: lstamp(a, k)
        a("s_barrier")
        if OPT["hst"]: lstamp(a, 16 + k)
    regs = [SP + 8 + i for i in range(8)] + [SC + i for i in range(16)]
    def wo(srdn, lbase, i0, i1, tag):
        a(f"s_lshr_b32 s22, s{sM}, 2")
        for i in range(i0, i1):
            a(f"s_add_u32 m0, s22, {lbase + (i-i0)*4096}\n s_mov_b32 s{T0}, {i*32*896}")
            a.vm(f"buffer_load_dwordx4 v{vWo}, {sr(srdn)}, s{T0} offen lds", tag)
    a.q = []
    stamp(a, 5)
    a("s_setprio 3\n s_barrier")
    if OPT["g5"]: a("s_barrier")
    kv(a, 1)
    st = qkv_stores(HP, T0 + 1)
    n0 = OPT["sa0"]
    for l in st[:n0]: a.vm(l, "sa")
    a(f"""
    s_mul_i32 s{T0+10}, s{sRT}, {RT}
    s_add_u32 s{T0+10}, s{T0+10}, s{sKb}
    """)
    pf = []
    if OPT["wpf"]:
        a(f"""
        s_lshl_b32 s3, s{sJ}, 2
        s_add_u32 s3, s3, s{sR}
        s_mul_i32 s3, s3, {25*128}
        s_min_u32 s3, s3, {WO_BYTES - 25*128}
        s_add_u32 s4, s{sWoB}, s3
        s_addc_u32 s5, s{sWoB+1}, 0
        s_add_u32 s6, s{sWoA}, s3
        s_addc_u32 s7, s{sWoA+1}, 0
        """)
        pf = [f"s_load_dword s17, s[{b}:{b+1}], {i*128}" for b in (4, 6) for i in range(25)]
    def pfb(n):
        for _ in range(n):
            if pf: a(pf.pop(0))
    LA = OPT["la"]
    a(f"""
    s_lshl_b32 s16, s{T0+5}, {FS}
    s_add_u32 s16, s16, {FA}
    v_mov_b32 v{O}, -1
    v_mov_b32 v{O+1}, -1
    v_mov_b32 v{O+2}, -1
    v_mov_b32 v{O+3}, -1
    s_add_u32 s13, s{T0+10}, {BR + OU}
    """)
    def poison():
        store_units(a, O, True, 13, 0)
        store_units(a, O, False, 13, 1024)
        a.q += ["po"] * 3
    a.wait("kv1"); bar(); kv(a, 2)
    for l in st[n0:]: a.vm(l, "sa")
    if LA == 2:
        a.wait("kv2"); bar(); kv(a, 3)
    a.wait("sa")
    set_flag(a, 16, T)
    if LA == 2: poison()
    a.wait(f"kv{LA+1}"); bar(); kv(a, LA + 2)
    poll(a, vFa, T)
    a(f"""
    s_mul_i32 s{T0}, s{sRT}, {RT}
    s_cmp_eq_u32 s{sRT}, 0
    s_cselect_b32 s3, 0, {RT}
    s_sub_u32 s{T0+1}, s{T0}, s3
    s_add_u32 s{T0+2}, s{T0+10}, {KU}
    s_add_u32 s{T0+3}, s{T0+1}, s{sKb}
    s_add_u32 s{T0+3}, s{T0+3}, {KU}
    """)
    for (r, so) in ((AQ, T0 + 10), (AKc, T0 + 2), (AKp, T0 + 3)):
        a.vm(f"buffer_load_dwordx4 {vr(r,4)}, v{vL16}, {sr(sWS)}, s{so} offen sc1", "loc")
        a.vm(f"buffer_load_dwordx4 {vr(r+4,4)}, v{vL16}, {sr(sWS)}, s{so} offen offset:1024 sc1", "loc")
    a(f"""
    s_add_u32 s{T0}, s{T0}, s{sVb}
    s_add_u32 s{T0}, s{T0}, {VU}
    s_add_u32 s{T0+2}, s{T0}, 14336
    s_add_u32 s{T0+1}, s{T0+1}, s{sVb}
    s_add_u32 s{T0+1}, s{T0+1}, {VU + 14336}
    """)
    a.vm(f"buffer_load_dwordx4 {vr(AVc,4)}, v{vVs}, {sr(sWS)}, s{T0} offen sc1", "loc")
    a.vm(f"buffer_load_dwordx4 {vr(AVc+4,4)}, v{vVs}, {sr(sWS)}, s{T0+2} offen sc1", "loc")
    a.vm(f"buffer_load_dwordx4 {vr(AVp,4)}, v{vVs}, {sr(sWS)}, s{T0+1} offen sc1", "loc")
    bar(); kv(a, LA + 3)
    if LA == 1: poison()
    a.wait("loc")
    zero_foreign(a, AQ)
    a(f"""
    s_nop 0
    {MF32} {vr(SP,16)}, {vr(AKp,4)}, {vr(AQ,4)}, 0
    {MF32} {vr(SC,16)}, {vr(AKc,4)}, {vr(AQ,4)}, 0
    {MF32} {vr(SP,16)}, {vr(AKp+4,4)}, {vr(AQ+4,4)}, {vr(SP,16)}
    {MF32} {vr(SC,16)}, {vr(AKc+4,4)}, {vr(AQ+4,4)}, {vr(SC,16)}
    s_nop 11
    """)
    G = NG
    for i in range(12):
        a(f"v_bitop3_b32 v{regs[2*i]}, v{vPar}, v{regs[2*i+1]}, v{regs[2*i]} bitop3:0xca")
    for i in range(12):
        a(f"v_bitop3_b32 v{G + i%4}, v{regs[2*i]}, v{VM+i}, v{G + i%4} bitop3:0xea")
    a(f"""
    v_max3_f32 v{T}, v{G}, v{G+1}, v{G+2}
    v_max_f32 v{T}, v{T}, v{G+3}
    v_mov_b32 v{T+1}, v{T}
    s_nop 1
    v_permlane32_swap_b32 v{T}, v{T+1}
    s_nop 1
    v_max_f32 v{T}, v{T}, v{T+1}
    """)
    for g in range(4): a(f"v_sub_f32 v{G+g}, v{G+g}, v{T}")
    for g in range(4): a(f"v_exp_f32 v{G+g}, v{G+g}")
    a(f"""
    s_nop 0
    v_add_f32 v{T}, v{G}, v{G+1}
    v_add_f32 v{T+1}, v{G+2}, v{G+3}
    v_add_f32 v{T}, v{T}, v{T+1}
    v_mov_b32 v{T+1}, v{T}
    s_nop 1
    v_permlane32_swap_b32 v{T}, v{T+1}
    s_nop 1
    v_add_f32 v{T}, v{T}, v{T+1}
    v_rcp_f32 v{T}, v{T}
    s_nop 0
    """)
    for g in range(4): a(f"v_mul_f32 v{G+g}, v{G+g}, v{T}")
    for g in range(4): a(f"v_cvt_pk_bf16_f32 v{G+g}, v{G+g}, v{G+g}")
    PM = VM
    for i in range(12):
        a(f"v_bitop3_b32 v{PM+i}, v{PM+i}, v{G + i%4}, v{vHalf} bitop3:0x80")
    O2 = SP
    a(f"""
    s_nop 1
    {MF32} {vr(O2,16)}, {vr(AVp,4)}, {vr(PM,4)}, 0
    {MF32} {vr(O2,16)}, {vr(AVc,4)}, {vr(PM+4,4)}, {vr(O2,16)}
    {MF32} {vr(O2,16)}, {vr(AVc+4,4)}, {vr(PM+8,4)}, {vr(O2,16)}
    s_add_u32 s{T0+10}, s{T0+10}, {OU}
    s_nop 11
    """)
    for i in range(8):
        a(f"v_cvt_pk_bf16_f32 v{O2+i}, v{O2+2*i}, v{O2+2*i+1}")
    a("s_nop 1")
    for g in (0, 4):
        a(f"v_permlane32_swap_b32 v{O2+g}, v{O2+g+2}\n v_permlane32_swap_b32 v{O2+g+1}, v{O2+g+3}")
    store_units(a, O2, True, T0 + 10, 0)
    store_units(a, O2 + 4, False, T0 + 10, 1024)
    a.q += ["oa"] * 3
    a.wait(f"kv{LA+3}"); bar(); kv(a, LA + 4)
    a(f"""
    s_lshl_b32 s3, s{sRT}, 4
    s_add_u32 s3, s3, s{sH}
    s_lshl_b32 s3, s3, {FS}
    s_add_u32 s{T0+10}, s3, {FO}
    """)
    a.wait("oa")
    set_flag(a, T0 + 10, T)
    wo(sWoB, WOB_L, 0, 6, "wob")
    OFA, ACC, WB, T = 28, 84, 116, 160
    a(f"""
    s_and_b32 s3, s{sR}, 1
    s_lshl_b32 s{sRT}, s{sRBK}, 1
    s_add_u32 s{sRT}, s{sRT}, s3
    s_lshr_b32 s{sC}, s{sR}, 1
    s_lshl_b32 s3, s{sRT}, 1
    s_add_u32 s3, s3, s{sC}
    s_lshl_b32 s14, s3, {3+FS}
    s_add_u32 s14, s14, {FO}
    s_mul_i32 s13, s3, {RT//2}
    s_add_u32 s13, s13, {OU}
    s_lshl_b32 s{T0+10}, s{sCG3}, 7
    s_lshl_b32 s3, s{sC}, 6
    s_add_u32 s{T0+10}, s{T0+10}, s3
    s_mul_i32 s3, s{sRT}, {32*1792}
    s_add_u32 s{T0+10}, s{T0+10}, s3
    """)
    a.wait(f"kv{LA+4}"); bar(); kv(a, LA + 5)
    wo(sWoB, WOB_L + 6 * 4096, 6, 14, "wob")
    a.vm(f"buffer_load_dwordx2 {vr(T+6,2)}, v{vPo}, {sr(sWS)}, s14 offen sc1", "fl")
    def ofa(i0, i1):
        for i in range(i0, i1):
            if i and i % 4 == 0:
                a(f"s_add_u32 s13, s13, 4096")
            a.vm(f"buffer_load_dwordx4 {vr(OFA+4*i,4)}, v{vL16}, {sr(sWS)}, s13 offen offset:{(i%4)*1024} sc1", f"ofa{i}")
    a.wait("wob" if OPT["wt"] else f"kv{LA+5}"); bar()
    a.wait_all()
    a(f"""
    v_cmp_ne_u64 vcc, {sr(sTAG,2)}, {vr(T+6,2)}
    s_cmp_eq_u64 vcc, 0
    s_cbranch_scc1 H_ok2
    """)
    poll(a, vPo, T + 6, "s14")
    a("H_ok2:")
    if LA == 1:
        kv(a, 7)
        ofa(0, 8)
        a.wait("kv7"); bar()
    a(f"""
    s_lshl_b32 s3, s{sR}, 2
    s_add_u32 s3, s3, {HFL_L}
    v_mov_b32 v{T}, s3
    v_xor_b32 v{T+1}, 8, v{T}
    v_mov_b32 v{T+3}, {HFL_L}
    v_mov_b32 v{T+2}, 0
    s_mov_b64 exec, 1
    ds_write_b32 v{T}, v{T+2}
    s_mov_b64 exec, -1
    """)
    wo(sWoA, WOA_L[0], 0, 7, "woa")
    if LA == 1: ofa(8, 14)
    else: ofa(0, 9)
    a("s_waitcnt lgkmcnt(0)")
    bar()
    wo(sWoA, WOA_L[1], 7, 14, "woa")
    if LA == 2: ofa(9, 14)
    a("s_barrier")
    a(f"s_cmp_ge_u32 s{sJ}, 28\n s_cbranch_scc1 H_idle")
    a(f"s_setprio {OPT['hp']}")
    a.wait("woa")
    stamp(a, 8)
    def hflag(val, rd, lab):
        a(f"""
        v_mov_b32 v{T+2}, {val}
        s_mov_b64 exec, 1
        ds_write_b32 v{T}, v{T+2}
        s_mov_b32 s23, {SPIN * 8}
        {lab}:
        """)
        if rd == 4:
            a(f"""
            ds_read_b128 {vr(T+4,4)}, v{T+3}
            s_waitcnt lgkmcnt(0)
            v_min3_u32 v{T+4}, v{T+4}, v{T+5}, v{T+6}
            v_min_u32 v{T+4}, v{T+4}, v{T+7}
            s_nop 0
            """)
        else:
            a(f"ds_read_b32 v{T+4}, v{T+1}\n s_waitcnt lgkmcnt(0)")
        a(f"""
        v_readfirstlane_b32 s3, v{T+4}
        s_sub_u32 s23, s23, 1
        s_cbranch_scc1 {lab}x
        s_cmp_lt_u32 s3, {val}
        s_cbranch_scc1 {lab}
        {lab}x:
        s_mov_b64 exec, -1
        """)
    hflag(1, 4, "H_pv")
    NB = 4
    def rd(i):
        for c in range(2):
            for j in range(2):
                a(f"ds_read_b64_tr_b16 {vr(WB+8*(i%NB)+4*c+2*j,2)}, v{vWa+c} offset:{(16*i+4*j)*128}")
    for i in range(NB - 1): rd(i)
    for i in range(14):
        a.wait(f"ofa{i}", f" lgkmcnt({4*min(NB-2, 13-i)})")
        for c in range(2):
            cin = "0" if i == 0 else vr(ACC + 16 * c, 16)
            a(f"{MF32} {vr(ACC+16*c,16)}, {vr(WB+8*(i%NB)+4*c,4)}, {vr(OFA+4*i,4)}, {cin}")
        if i + NB - 1 < 14:
            rd(i + NB - 1)
    a(f"""
    s_cmp_eq_u32 s{sC}, 0
    s_nop 10
    s_cbranch_scc1 H_y0
    """)
    for i in range(4):
        a(f"ds_write_b128 v{vXa}, {vr(ACC+4*i,4)} offset:{i*1024}")
    a("s_branch H_y1\n H_y0:")
    for i in range(4):
        a(f"ds_write_b128 v{vXa}, {vr(ACC+16+4*i,4)} offset:{i*1024}")
    a("H_y1:\n s_waitcnt lgkmcnt(0)")
    stamp(a, 9)
    hflag(2, 1, "H_pw")
    a(f"s_cmp_eq_u32 s{sC}, 0")
    for i in range(4):
        a(f"ds_read_b128 {vr(OFA+4*i,4)}, v{vXa+1} offset:{i*1024}")
    a(f"s_waitcnt lgkmcnt(0)\n s_cbranch_scc1 H_z0")
    for i in range(16):
        a(f"v_add_f32 v{OFA+i}, v{ACC+16+i}, v{OFA+i}")
    a("s_branch H_z1\n H_z0:")
    for i in range(16):
        a(f"v_add_f32 v{OFA+i}, v{ACC+i}, v{OFA+i}")
    a("H_z1:")
    for i in range(8):
        a(f"v_cvt_pk_bf16_f32 v{OFA+i}, v{OFA+2*i}, v{OFA+2*i+1}")
    a("s_nop 1")
    for g in (0, 4):
        a(f"v_permlane32_swap_b32 v{OFA+g}, v{OFA+g+2}\n v_permlane32_swap_b32 v{OFA+g+1}, v{OFA+g+3}")
    osc = ("", " sc1", " nt", " sc0 sc1")[OPT["outsc"]]
    a(f"buffer_store_dwordx4 {vr(OFA,4)}, v{vOa}, {sr(sOUT)}, s{T0+10} offen{osc}")
    a(f"buffer_store_dwordx4 {vr(OFA+4,4)}, v{vOa}, {sr(sOUT)}, s{T0+10} offen offset:32{osc}")
    a("s_barrier")
    a("H_exit:")
    dump(a)
    a("s_endpgm")
    a(f"""
    H_idle:
    s_cmp_lg_u32 s2, 255
    s_cbranch_scc1 H_exit
    s_cmp_lg_u32 s{sW}, 4
    s_cbranch_scc1 H_exit
    v_lshlrev_b32 v{T}, {FS}, v0
    s_mov_b32 s{T0+11}, {SPIN}
    H_ep:
    """)
    for i in range(4):
        a(f"s_mov_b32 s3, {FB + (i*64 << FS)}\n buffer_load_dwordx2 {vr(OFA+2*i,2)}, v{T}, {sr(sWS)}, s3 offen sc1")
    a(f"s_waitcnt vmcnt(0)\n s_mov_b64 s[4:5], 0")
    for i in range(4):
        a(f"v_cmp_ne_u64 vcc, {sr(sTAG,2)}, {vr(OFA+2*i,2)}\n s_or_b64 s[4:5], s[4:5], vcc")
    a(f"""
    s_sub_u32 s{T0+11}, s{T0+11}, 1
    s_cbranch_scc1 H_epx
    s_cmp_lg_u64 s[4:5], 0
    s_cbranch_scc1 H_ep
    H_epx:
    v_mov_b32 v{T}, {EPOCH}
    v_mov_b32 v{T+1}, s{sTAG}
    s_mov_b64 exec, 1
    buffer_store_dword v{T+1}, v{T}, {sr(sWS)}, 0 offen sc1
    s_mov_b64 exec, -1
    s_branch H_exit
    """)

def main(out):
    a = gen()
    K = NAME + "_kernel"
    hdr = f"""; Fused QKV projection -> attention (A: dilated local window, B: full) -> output projection.
; @launch grid=(256,1,1) block=(768,1,1) lds=163840
.amdgcn_target "amdgcn-amd-amdhsa--gfx950"
.text
"""
    d = f""".section .rodata,"a"
.p2align 6
.amdhsa_kernel {K}
  .amdhsa_next_free_vgpr 168
  .amdhsa_next_free_sgpr 102
  .amdhsa_accum_offset 168
  .amdhsa_group_segment_fixed_size 0
  .amdhsa_kernarg_size 72
  .amdhsa_user_sgpr_count 2
  .amdhsa_user_sgpr_kernarg_segment_ptr 1
  .amdhsa_system_sgpr_workgroup_id_x 1
.end_amdhsa_kernel
"""
    open(out, "w").write(hdr + a.text() + d)

if __name__ == "__main__":
    for arg in sys.argv[2:]:
        k, v = arg.split("=")
        assert k in OPT
        OPT[k] = int(v)
    main(sys.argv[1])
```

```python
import sys, math, struct
NAME = "concat_heads__sliding_local_dilated__mha_block__prompt"
OPT = dict(prof=0, rot=7, prefetch=1, sleep=1, rts=0, outsc=2, wpf=0, sa0=3, hst=1, lst=1, krot=1, kd=9, apos=4, g5=0, p2=1, pads=1, delta=96, ipf=1, ipw=1, skip=1, tch=0, tpos=3, shr=1, ipoll=4, la=2, hp=3, sst=0, rmb=4, rma=2, padat=0, tp=1, wt=0, lsu=0, pp=11, padrt=0, padcy=0, padx=-1)

class Asm:
    def __init__(self):
        self.lines = []
        self.q = []
        self.uid = 0
    def __call__(self, s):
        for l in s.strip("\n").split("\n"):
            l = l.strip()
            if not l: continue
            self.lines.append(l if l.endswith(":") else "    " + l)
    def vm(self, s, tag):
        self(s); self.q.append(tag)
    def wait(self, tag, extra=""):
        if tag not in self.q:
            if extra: self(f"s_waitcnt{extra}")
            return
        idx = max(i for i, t in enumerate(self.q) if t == tag)
        n = len(self.q) - 1 - idx
        assert n <= 63
        self(f"s_waitcnt vmcnt({n}){extra}")
        self.q = self.q[idx + 1:]
    def wait_all(self, extra=""):
        self(f"s_waitcnt vmcnt(0){extra}"); self.q = []
    def lab(self, p):
        self.uid += 1
        return f"{p}_{self.uid}"
    def text(self):
        return "\n".join(self.lines) + "\n"

def vr(a, n): return f"v[{a}:{a+n-1}]"
def sr(a, n=4): return f"s[{a}:{a+n-1}]"
def f32bits(x): return struct.unpack("<I", struct.pack("<f", x))[0]
MF32 = "v_mfma_f32_32x32x16_bf16"
MF16 = "v_mfma_f32_16x16x32_bf16"

RT = 56 * 512
MAT = 64 * RT
BR = 4 * MAT
QU, KU, VU, OU = 0, MAT, 2 * MAT, 3 * MAT
FS = 7
FB = 2 * BR
FA = FB + (256 << FS)
FO = FA + (1024 << FS)
EPOCH = FO + (1024 << FS)
WS_USED = EPOCH + 0x1000
WS_OOB = 0x40000000
PROF_OFF = 0x1100000
X_BYTES, W_BYTES, WO_BYTES, OUT_BYTES = 2048 * 896, 448 * 2688, 448 * 896, 2048 * 1792
CSCALE = (28 ** -0.5) * math.log2(math.e)
DELTA = 24.0
SPIN = 1 << 18

sWS, sX, sWt, sOUT, sWoA, sWoB = 24, 28, 32, 36, 40, 44
sOo, sOf, sOb, sK3 = 48, 49, 50, 51
sW, sXCD, sJ, sRB, sCG, sACT, sH, sQB, sU0, sODD, sRBK, sCG3 = range(52, 64)
sTAG, sVM = 64, 66
T0 = 68
sR, sC, sWI = T0 + 8, T0 + 9, T0 + 10
NST = 10
def stamp(a, i, rt=False):
    if OPT["prof"]:
        assert i < NST
        a(f"{'s_memrealtime' if rt else 's_memtime'} s[{80+2*i}:{81+2*i}]")
def lstamp(a, idx):
    if OPT["prof"]:
        a(f"s_memtime s[100:101]\n s_mov_b32 m0, {idx}\n s_waitcnt lgkmcnt(0)\n v_writelane_b32 v1, s100, m0")
def dump(a):
    if not OPT["prof"]: return
    a(f"""
    s_mul_i32 s8, s2, 12
    s_add_u32 s8, s8, s{sW}
    s_lshl_b32 s8, s8, 8
    s_add_u32 s8, s8, {PROF_OFF + 0x100000}
    s_mov_b32 s{sWS+2}, 0x2000000
    s_waitcnt lgkmcnt(0) vmcnt(0)
    s_memtime s[4:5]
    s_memrealtime s[6:7]
    v_lshlrev_b32 v3, 2, v0
    buffer_store_dword v1, v3, {sr(sWS)}, s8 offen
    s_mul_i32 s8, s2, 12
    s_add_u32 s8, s8, s{sW}
    s_lshl_b32 s8, s8, 6
    s_add_u32 s8, s8, {PROF_OFF}
    s_waitcnt lgkmcnt(0) vmcnt(0)
    v_mov_b32 v1, 0
    s_mov_b64 exec, 1
    """)
    for i, s in enumerate([80 + 2 * i for i in range(NST)] + [4, 6]):
        a(f"v_mov_b32 v0, s{s}\n buffer_store_dword v0, v1, {sr(sWS)}, s8 offen offset:{4*i}\n s_nop 1")
    a("s_waitcnt vmcnt(0)")

def srd(a, d, lo, nbytes):
    nb = nbytes if isinstance(nbytes, str) else hex(nbytes)
    a(f"s_mov_b32 s{d}, s{lo}\n s_and_b32 s{d+1}, s{lo+1}, 0xffff\n s_mov_b32 s{d+2}, {nb}\n s_mov_b32 s{d+3}, 0x20000")

def poll(a, vaddr, vt, soff="0", sleep=None):
    L = a.lab("poll")
    a(f"""
    s_mov_b32 s{T0+11}, {SPIN}
    {L}:
    buffer_load_dwordx2 {vr(vt,2)}, v{vaddr}, {sr(sWS)}, {soff} offen sc1
    s_waitcnt vmcnt(0)
    v_cmp_ne_u64 vcc, {sr(sTAG,2)}, {vr(vt,2)}
    s_sub_u32 s{T0+11}, s{T0+11}, 1
    s_cbranch_scc1 {L}_x
    s_cmp_eq_u64 vcc, 0
    s_cbranch_scc1 {L}_x
    {"s_mov_b64 exec, vcc" if OPT["shr"] else ""}
    s_sleep {OPT['sleep'] if sleep is None else sleep}
    s_branch {L}
    {L}_x:
    s_mov_b64 exec, -1
    """)
    a.q = []

def set_flag(a, soff, vt):
    a(f"""
    v_mov_b32 v{vt}, s{sTAG}
    v_mov_b32 v{vt+1}, s{sTAG+1}
    s_mov_b64 exec, 1
    """)
    a.vm(f"buffer_store_dwordx2 {vr(vt,2)}, v{vL16}, {sr(sWS)}, s{soff} offen sc1", "flag")
    a("s_mov_b64 exec, -1")

def zero_foreign(a, q):
    L = a.lab("zf")
    a(f"""
    s_cmp_eq_u32 s{sODD}, 0
    s_cbranch_scc1 {L}_e
    s_mov_b32 exec_hi, 0
    v_mov_b32 v{q}, 0
    v_mov_b32 v{q+1}, 0
    s_branch {L}_x
    {L}_e:
    s_mov_b32 exec_lo, 0
    v_mov_b32 v{q+6}, 0
    v_mov_b32 v{q+7}, 0
    {L}_x:
    s_mov_b64 exec, -1
    """)

SLOT = 32768
def pslot(s): return (4, 3, 2)[s % 3] * SLOT
WOA_L = (2 * SLOT, 4 * SLOT)
WOB_L = 0
QST_L = 2 * SLOT
XC1_L = 448 * 128
XC2_L = 3 * SLOT
XHA_L = 3 * SLOT + 16384
XFI_L = 3 * SLOT
HFL_L = 2 * SLOT + 28672
vL16 = 2

def p1_role(a, bi):
    a(f"""
    s_lshr_b32 s{sRB}, s{sXCD}, 1
    s_lshl_b32 s{sRB}, s{sRB}, 3
    s_and_b32 s3, s{sJ}, 7
    s_add_u32 s{sRB}, s{sRB}, s3
    s_xor_b32 s3, s{sXCD}, {bi}
    s_and_b32 s3, s3, 1
    s_lshl_b32 s3, s3, 2
    s_lshr_b32 s{sCG}, s{sJ}, 3
    s_add_u32 s{sCG}, s{sCG}, s3
    s_cmp_lt_u32 s{sCG}, 7
    s_cselect_b32 s{sACT}, 1, 0
    """)

def roles(a):
    a(f"""
    s_lshr_b32 s{sCG3}, s{sJ}, 2
    s_min_u32 s{sCG3}, s{sCG3}, 6
    s_and_b32 s3, s{sJ}, 3
    s_lshl_b32 s{sRBK}, s{sXCD}, 2
    s_add_u32 s{sRBK}, s{sRBK}, s3
    s_lshl_b32 s{sH}, s{sXCD}, 1
    s_lshr_b32 s{sODD}, s{sJ}, 4
    s_add_u32 s{sH}, s{sH}, s{sODD}
    s_and_b32 s{sQB}, s{sJ}, 15
    s_mul_i32 s{sU0}, s{sH}, 7
    s_lshr_b32 s{sU0}, s{sU0}, 1
    s_cmp_eq_u32 s{sODD}, 0
    s_cselect_b32 s{sVM}, 0x0fffffff, 0xfffffff0
    s_mov_b32 s{sVM+1}, s{sVM}
    v_lshlrev_b32 v{vL16}, 4, v0
    """)

def gen():
    a = Asm()
    K = NAME + "_kernel"
    a.lines.append(f".globl {K}\n.p2align 8\n.type {K},@function\n{K}:")
    a(f"""
    s_load_dwordx16 s[4:19], s[0:1], 0
    s_load_dwordx2 s[20:21], s[0:1], 64
    s_cmp_ge_u32 s2, 256
    s_cbranch_scc1 L_end
    """)
    stamp(a, 0, rt=True); stamp(a, 1)
    if OPT["padrt"]: a("s_memrealtime s[96:97]")
    if OPT["padcy"]: a("s_memtime s[96:97]")
    a(f"""
    v_lshrrev_b32 v1, 6, v0
    v_and_b32 v0, 63, v0
    s_and_b32 s{sXCD}, s2, 7
    v_readfirstlane_b32 s{sW}, v1
    s_lshr_b32 s{sJ}, s2, 3
    s_nop 1
    s_and_b32 s{sR}, s{sW}, 3
    s_lshr_b32 s{sC}, s{sW}, 2
    """)
    if OPT["pads"]:
        a(f"""
        s_cmp_lt_u32 s{sW}, 2
        s_cbranch_scc1 L_gemm
        s_cmp_lt_u32 s{sW}, 4
        s_cbranch_scc1 L_pad0
        s_cmp_lt_u32 s{sW}, 6
        s_cbranch_scc1 L_pad1
        s_cmp_lt_u32 s{sW}, 8
        s_cbranch_scc1 L_pad2
        """)
    else:
        a(f"s_cmp_lt_u32 s{sW}, 8\n s_cbranch_scc1 L_gemm")
    gen_loader(a)
    gen_bskip(a)
    a("L_gemm:")
    gen_gemm(a)
    gen_publish(a)
    gen_attn(a)
    a("L_helper:")
    gen_helper(a)
    a("L_end:\n s_endpgm")
    a(".p2align 4\n L_ones:\n .long 0x3f803f80, 0x3f803f80, 0x3f803f80, 0x3f803f80")
    a("L_code_end:")
    return a

def make_tag(a, vt):
    a(f"""
    v_readfirstlane_b32 s{sTAG}, v{vt}
    s_nop 3
    s_mul_i32 s{sTAG}, s{sTAG}, 0x9e3779b1
    s_add_u32 s{sTAG}, s{sTAG}, 0x7f4a7c15
    s_not_b32 s{sTAG+1}, s{sTAG}
    """)

def finalize(a, o, n, l):
    a(f"v_rcp_f32 v{l}, v{l}\n s_nop 0")
    for i in range(n):
        a(f"v_mul_f32 v{o+i}, v{l}, v{o+i}")
    for i in range(n // 2):
        a(f"v_cvt_pk_bf16_f32 v{o+i}, v{o+2*i}, v{o+2*i+1}")
    a("s_nop 1")
    for g in range(0, n // 2, 4):
        a(f"v_permlane32_swap_b32 v{o+g}, v{o+g+2}\n v_permlane32_swap_b32 v{o+g+1}, v{o+g+3}")

def bcast_l(a, src_e, src_o, t):
    L = a.lab("bl")
    a(f"""
    s_cmp_eq_u32 s{sODD}, 0
    s_cbranch_scc1 {L}_e
    v_mov_b32 v{t}, v{src_o}
    v_mov_b32 v{t+1}, v{src_o}
    s_nop 1
    v_permlane32_swap_b32 v{t}, v{t+1}
    s_branch {L}_x
    {L}_e:
    v_mov_b32 v{t}, v{src_e}
    v_mov_b32 v{t+1}, v{src_e}
    s_nop 1
    v_permlane32_swap_b32 v{t+1}, v{t}
    {L}_x:
    s_nop 1
    """)

def store_units(a, p, first, soff, off):
    L = a.lab("su")
    full = f"buffer_store_dwordx4 {vr(p,4)}, v{vL16}, {sr(sWS)}, s{soff} offen offset:{off} sc1"
    if first:
        a(f"""
        s_cmp_eq_u32 s{sODD}, 0
        s_cbranch_scc1 {L}_f
        s_mov_b32 exec_hi, 0
        buffer_store_dwordx2 {vr(p+2,2)}, v{vL16}, {sr(sWS)}, s{soff} offen offset:{off+8} sc1
        s_not_b64 exec, exec
        {L}_f:
        {full}
        s_mov_b64 exec, -1
        """)
    else:
        a(f"""
        s_cmp_eq_u32 s{sODD}, 1
        s_cbranch_scc1 {L}_f
        s_mov_b32 exec_lo, 0
        buffer_store_dwordx2 {vr(p,2)}, v{vL16}, {sr(sWS)}, s{soff} offen offset:{off} sc1
        s_not_b64 exec, exec
        {L}_f:
        {full}
        s_mov_b64 exec, -1
        """)

def dma_lanes(a, d, t):
    a(f"""
    v_lshrrev_b32 v{t}, 3, v0
    v_and_b32 v{t+1}, 7, v0
    v_lshrrev_b32 v{t+2}, 4, v0
    s_lshl_b32 s3, s{sR}, 4
    v_add_u32 v{t}, s3, v{t}
    v_mul_u32_u24 v{d+2}, 2688, v{t}
    v_mul_u32_u24 v{t}, 896, v{t}
    v_xor_b32 v{d}, v{t+1}, v{t+2}
    v_lshlrev_b32 v{d}, 4, v{d}
    v_add_u32 v{d}, v{t}, v{d}
    v_add_u32 v{d+1}, {8*896}, v{d}
    v_xor_b32 v{d+1}, 64, v{d+1}
    v_and_b32 v{t}, 1, v{t+2}
    v_lshlrev_b32 v{t}, 2, v{t}
    v_xor_b32 v{t}, v{t}, v{t+1}
    v_lshlrev_b32 v{t}, 4, v{t}
    v_add_u32 v{d+2}, v{d+2}, v{t}
    """)
def dma_tile(a, sCH, sXb, sWb, t, px):
    a(f"""
    s_cmp_lg_u32 s{sACT}, 0
    s_cselect_b32 s{t}, {X_BYTES}, 0
    s_cselect_b32 s{t+1}, {W_BYTES}, 0
    s_mul_i32 s{sXb}, s{sRB}, {64*896}
    s_lshl_b32 s{sWb}, s{sCG}, 7
    """)
    mode = OPT["rmb"] if px == 10 else OPT["rma"]
    if mode == 0:
        a(f"""
        s_and_b32 s3, s{sCG}, 3
        s_lshl_b32 s3, s3, 1
        s_and_b32 s{sCH}, s{sRB}, 7
        s_add_u32 s{sCH}, s{sCH}, s3
        """)
    else:
        if mode == 1: a(f"s_mov_b32 s{sCH}, 0")
        if mode == 2: a(f"s_xor_b32 s{sCH}, s{sRB}, s{sCG}\n s_and_b32 s{sCH}, s{sCH}, 1\n s_mul_i32 s{sCH}, s{sCH}, 3")
        if mode == 4: a(f"s_add_u32 s{sCH}, s{sRB}, s{sCG}\n s_and_b32 s{sCH}, s{sCH}, 3\n s_lshl_b32 s{sCH}, s{sCH}, 1")
        a(f"s_add_u32 s{sCH}, s{sCH}, s{sXCD}")
    a(f"""
    s_cmp_ge_u32 s{sCH}, 7
    s_cselect_b32 s3, 7, 0
    s_sub_u32 s{sCH}, s{sCH}, s3
    """)
def dma_stage(a, d, sCH, sXb, sWb, sSl, t, fill):
    a(f"""
    s_lshl_b32 s{t}, s{sCH}, 7
    s_mov_b32 m0, s{sSl}
    s_add_u32 s{t}, s{t}, s{sXb}
    s_mul_i32 s{t+1}, s{sCH}, {64*2688}
    buffer_load_dwordx4 v{d}, {sr(sX)}, s{t} offen lds
    s_add_u32 m0, s{sSl}, 1024
    s_add_u32 s{t+1}, s{t+1}, s{sWb}
    buffer_load_dwordx4 v{d+1}, {sr(sX)}, s{t} offen lds
    """)
    fill = list(fill) + [""] * 6
    for p in (1, 2, 0):
        for i in range(2):
            a(f"s_add_u32 m0, s{sSl}, {8192 + p*8192 + i*1024}")
            a(f"s_add_u32 s{t}, s{t+1}, {p*896 + i*8*2688}")
            a(f"buffer_load_dwordx4 v{d+2}, {sr(sWt)}, s{t} offen lds")
            a(fill.pop(0))

def gen_loader(a):
    sCH, sSl, sN, sXb, sWb = 40, T0 + 7, T0 + 6, T0 + 5, T0 + 4
    a("s_setprio 3")
    def pad(i):
        if OPT["pads"]: a(f"s_cmp_lg_u32 0, 0\n L_pad{i}:\n s_cbranch_scc1 L_gemm")
    dma_lanes(a, 4, 8)
    p1_role(a, 0)
    pad(0)
    dma_tile(a, sCH, sXb, sWb, T0, 10)
    a(f"""
    s_lshl_b32 s{sSl}, s{sR}, 11
    s_mov_b32 s{sN}, 0
    """)
    stamp(a, 5)
    a("s_waitcnt lgkmcnt(0)")
    stamp(a, 6)
    srd(a, sX, 10, f"s{T0}")
    srd(a, sWt, 12, f"s{T0+1}")
    pad(1)
    stamp(a, 7)
    nxt = [f"s_add_u32 s{sCH}, s{sCH}, 1", f"s_cmp_eq_u32 s{sCH}, 7\n s_cselect_b32 s{sCH}, 0, s{sCH}"]
    def late():
        roles(a)
        attn_setup(a, 1)
        srd(a, sWS, 20, WS_USED)
        srd(a, sOUT, 16, OUT_BYTES)
        a(f"s_mov_b32 s{sC}, 1")
    if OPT["lsu"] == 0:
        dma_stage(a, 4, sCH, sXb, sWb, sSl, T0, nxt + ([f"s_cmp_lg_u32 0, 0\n L_pad2:\n s_cbranch_scc1 L_gemm"] if OPT["pads"] else []))
        lstamp(a, 0)
        if OPT["prof"]:
            a("v_writelane_b32 v1, s90, 1\n v_writelane_b32 v1, s92, 2\n v_writelane_b32 v1, s94, 3")
            if OPT["sst"]:
                a("s_waitcnt vmcnt(7)"); lstamp(a, 4); a("s_waitcnt vmcnt(0)"); lstamp(a, 5)
        a(f"s_add_u32 s{sSl}, s{sSl}, {SLOT}\n s_mov_b32 s{sN}, 1")
        late()
        if OPT["skip"]:
            a(f"""
            s_cmp_lg_u32 s{sACT}, 0
            s_cbranch_scc1 H1_loop
            s_barrier
            s_branch H1_sw
            """)
    a("H1_loop:")
    dma_stage(a, 4, sCH, sXb, sWb, sSl, T0, nxt + [f"s_add_u32 s{sN}, s{sN}, 1"])
    a(f"""
    s_add_u32 s{sSl}, s{sSl}, {SLOT}
    s_and_b32 s{sSl}, s{sSl}, {4*SLOT-1}
    """)
    if OPT["lsu"]: a(f"s_cmp_eq_u32 s{sN}, 1\n s_cbranch_scc1 H1_loop")
    a("s_waitcnt vmcnt(8)\n s_barrier")
    if OPT["prof"] and OPT["lst"]:
        a(f"s_add_u32 s3, s{sN}, 31"); lstamp(a, "s3")
    a(f"s_cmp_lg_u32 s{sN}, 7\n s_cbranch_scc1 H1_same\n H1_sw:")
    p1_role(a, 1)
    dma_tile(a, sCH, sXb, sWb, T0, 4)
    srd(a, sX, 4, f"s{T0}")
    srd(a, sWt, 6, f"s{T0+1}")
    for l in nxt: a(l)
    a(f"""
    s_lshl_b32 s{sSl}, s{sR}, 11
    s_mov_b32 s{sN}, 8
    H1_same:
    s_cmp_lt_u32 s{sN}, 14
    s_cbranch_scc1 H1_loop
    """)
    if OPT["lsu"]: late()
    a("s_waitcnt vmcnt(0)")
    if OPT["padat"] == 7: a("s_memrealtime s[96:97]")
    a("s_barrier")
    stamp(a, 2)
    a("s_branch C_attn")

vVs, vWo, vFa, vPo, vWa, vOa, vXa, vPar, vHalf, VM, NG, vZ = 15, 16, 17, 18, 19, 21, 22, 24, 25, 144, 156, 9
sKb, sVb, sTile, sM, sHRT = 8, 9, 10, 11, 12
def kv_setup(a, first):
    sRT = sHRT
    a(f"""
    s_lshl_b32 s{sM}, s{sR}, 12
    s_lshl_b32 s{sKb}, s{sU0}, 9
    s_lshl_b32 s{sVb}, s{sU0}, 7
    s_lshl_b32 s{sRT}, s{sQB}, 2
    s_add_u32 s{sRT}, s{sRT}, s{sR}
    s_and_b32 s{sTile}, s{sQB}, {OPT["rot"]}
    s_add_u32 s{sTile}, s{sTile}, {first}
    s_lshl_b32 s{sTile}, s{sTile}, 3
    s_lshl_b32 s3, s{sR}, 1
    s_add_u32 s{sTile}, s{sTile}, s3
    s_and_b32 s{sTile}, s{sTile}, 63
    """)
def kv(a, s):
    base = pslot(s)
    a(f"""
    s_mul_i32 s{T0}, s{sTile}, {RT}
    s_add_u32 m0, s{sM}, {base}
    s_add_u32 s22, s{T0}, s{sKb}
    s_add_u32 s22, s22, {BR + KU}
    """)
    a.vm(f"buffer_load_dwordx4 v{vL16}, {sr(sWS)}, s22 offen sc1 lds", f"kv{s}")
    a(f"s_add_u32 s23, s22, {RT - 2048}")
    a.vm(f"buffer_load_dwordx4 v{vL16}, {sr(sWS)}, s22 offen offset:1024 sc1 lds", f"kv{s}")
    a(f"s_add_u32 s{T0}, s{T0}, s{sVb}")
    a.vm(f"buffer_load_dwordx4 v{vL16}, {sr(sWS)}, s23 offen offset:2048 sc1 lds", f"kv{s}")
    a(f"s_add_u32 s{T0}, s{T0}, {BR + VU}")
    a.vm(f"buffer_load_dwordx4 v{vL16}, {sr(sWS)}, s23 offen offset:3072 sc1 lds", f"kv{s}")
    a(f"s_add_u32 m0, s{sM}, {base + 16384}\n s_mov_b64 exec, {sr(sVM,2)}")
    for i in range(4):
        a.vm(f"buffer_load_dwordx4 v{vVs}, {sr(sWS)}, s{T0} offen offset:{i*1024} sc1 lds", f"kv{s}")
        if i < 3: a(f"s_add_u32 s{T0}, s{T0}, {14336 - 1024}")
    if s in (0, 1, 2):
        a("s_not_b64 exec, exec")
        for i in range(4):
            a.vm(f"global_load_lds_dwordx4 v{vZ}, s[18:19]", f"kv{s}")
            if i < 3: a(f"s_add_u32 m0, s{sM}, {base + 16384 + (i+1)*1024}\n s_nop 0")
    a(f"""
    s_mov_b64 exec, -1
    s_add_u32 s{sTile}, s{sTile}, 8
    s_and_b32 s{sTile}, s{sTile}, 63
    """)
def helper_setup(a, part):
    T = 160; sRT = sHRT
    if part == 0:
        kv_setup(a, 1)
        a(f"""
        v_bfe_u32 v{T}, v0, 3, 1
        v_mul_u32_u24 v{T}, 3, v{T}
        v_add_u32 v{T}, s{sU0}, v{T}
        v_lshrrev_b32 v{T+3}, 2, v{T}
        v_lshlrev_b32 v{T+3}, 6, v{T+3}
        s_cmp_eq_u32 s{sRT}, 0
        s_cselect_b32 s3, 0, 1
        v_and_b32 v{T+2}, s3, v0
        v_sub_u32 v{T+2}, s{sRT}, v{T+2}
        v_add_u32 v{T+2}, v{T+2}, v{T+3}
        v_lshlrev_b32 v{T+2}, {FS}, v{T+2}
        v_add_u32 v{vFa}, {FA}, v{T+2}
        """)
    if part == 1:
        a(f"""
        v_lshrrev_b32 v{T}, 3, v0
        s_lshl_b32 s3, s{sR}, 3
        v_add_u32 v{T+1}, s3, v{T}
        v_mul_u32_u24 v{T+1}, 896, v{T+1}
        v_and_b32 v{T}, 2, v{T}
        s_and_b32 s3, s{sR}, 1
        v_or_b32 v{T}, s3, v{T}
        v_lshlrev_b32 v{T}, 1, v{T}
        v_and_b32 v{T+2}, 7, v0
        v_xor_b32 v{T}, v{T}, v{T+2}
        v_lshlrev_b32 v{T}, 4, v{T}
        v_add_u32 v{T+1}, v{T+1}, v{T}
        s_lshl_b32 s3, s{sCG3}, 7
        v_add_u32 v{vWo}, s3, v{T+1}
        v_lshlrev_b32 v{vPo}, {FS}, v{T+2}
        v_lshrrev_b32 v{T+1}, 2, v0
        v_and_b32 v{T+1}, 3, v{T+1}
        v_lshlrev_b32 v{T+2}, 3, v27
        v_add_u32 v{T+2}, v{T+2}, v{T+1}
        v_lshlrev_b32 v{T+2}, 7, v{T+2}
        v_and_b32 v{T+1}, 2, v{T+1}
        v_or_b32 v{T+1}, v{T+1}, v27
        v_bfe_u32 v{T+3}, v0, 4, 1
        v_xor_b32 v{T+1}, v{T+1}, v{T+3}
        v_lshlrev_b32 v{T+1}, 5, v{T+1}
        v_add_u32 v{T+2}, v{T+2}, v{T+1}
        v_and_b32 v{T+1}, 3, v0
        v_lshlrev_b32 v{T+1}, 3, v{T+1}
        v_add_u32 v{T+2}, v{T+2}, v{T+1}
        s_lshr_b32 s3, s{sR}, 1
        s_mul_i32 s3, s3, {WOA_L[1] - WOA_L[0]}
        s_add_u32 s3, s3, {WOA_L[0]}
        v_add_u32 v{vWa}, s3, v{T+2}
        v_xor_b32 v{vWa+1}, 64, v{vWa}
        v_mul_u32_u24 v{vOa}, 1792, v26
        v_lshlrev_b32 v{T}, 4, v27
        v_add_u32 v{vOa}, v{vOa}, v{T}
        s_add_u32 s3, s{sM}, {XHA_L}
        v_add_u32 v{vXa}, s3, v{vL16}
        v_xor_b32 v{vXa+1}, {2*4096}, v{vXa}
        """)
    if part == 2:
        a(f"""
        v_lshlrev_b32 v{T+1}, 2, v27
        v_and_b32 v{T}, 30, v0
        v_sub_u32 v{T}, v{T}, v{T+1}
        v_add_u32 v{T}, 18, v{T}
        v_mov_b32 v{T+2}, 0x5555
        v_mov_b32 v{T+3}, 0
        v_lshlrev_b64 {vr(T+2,2)}, v{T}, {vr(T+2,2)}
        s_cmp_eq_u32 s{sRT}, 0
        s_cselect_b32 s3, 0, -1
        v_and_b32 v{T+2}, s3, v{T+2}
        v_bfe_i32 v{vPar}, v0, 0, 1
        v_xor_b32 v{vHalf}, 0xffff, v{vPar}
        s_mov_b32 s3, 0xf149f2ca
        """)
        for i in range(12):
            pos = 16 + 8 * (i // 2) + 2 * (i % 2)
            a(f"v_bfe_i32 v{VM+i}, v{T+2 + pos//32}, {pos % 32}, 1")
        for g in range(4):
            a(f"v_bitop3_b32 v{NG+g}, v{VM+g}, v{VM+g+4}, v{VM+g+8} bitop3:0x01\n v_and_b32 v{NG+g}, s3, v{NG+g}")

def store_offsets(a, base, d):
    a(f"""
    s_lshl_b32 s{d+4}, s{sRB}, 1
    s_and_b32 s3, s{sR}, 1
    s_add_u32 s{d+4}, s{d+4}, s3
    s_mul_i32 s{d+3}, s{d+4}, {RT}
    s_cmp_eq_u32 s{sACT}, 0
    s_cselect_b32 s3, {WS_OOB}, 0
    s_add_u32 s{d+3}, s{d+3}, s3
    s_add_u32 s{d+3}, s{d+3}, {base}
    s_lshl_b32 s{d+2}, s{sCG}, 1
    s_lshr_b32 s3, s{sR}, 1
    s_add_u32 s{d+2}, s{d+2}, s3
    s_lshl_b32 s3, s{d+2}, 6
    s_add_u32 s{d+4}, s{d+4}, s3
    s_lshl_b32 s{d}, s{d+2}, 11
    s_add_u32 s{d}, s{d}, s{d+3}
    s_add_u32 s{d+1}, s{d}, {KU}
    s_lshl_b32 s{d+2}, s{d+2}, 9
    s_add_u32 s{d+2}, s{d+2}, s{d+3}
    s_add_u32 s{d+2}, s{d+2}, {VU}
    s_add_u32 s{d+3}, s{d+2}, 14336
    """)
def qkv_stores(p, d):
    return [f"buffer_store_dwordx4 {vr(p+16,4)}, v{vVs}, {sr(sWS)}, s{d+2} offen sc1",
            f"buffer_store_dwordx4 {vr(p+20,4)}, v{vVs}, {sr(sWS)}, s{d+3} offen sc1",
            f"buffer_store_dwordx4 {vr(p+8,4)}, v{vL16}, {sr(sWS)}, s{d+1} offen sc1",
            f"buffer_store_dwordx4 {vr(p+12,4)}, v{vL16}, {sr(sWS)}, s{d+1} offen offset:1024 sc1",
            f"buffer_store_dwordx4 {vr(p,4)}, v{vL16}, {sr(sWS)}, s{d} offen sc1",
            f"buffer_store_dwordx4 {vr(p+4,4)}, v{vL16}, {sr(sWS)}, s{d} offen offset:1024 sc1"]

def gen_gemm(a):
    vXA, vWA = 10, 14
    accQ, accK, accV = 32, 48, 64
    a(f"""
    v_and_b32 v26, 31, v0
    v_lshrrev_b32 v27, 5, v0
    v_lshrrev_b32 v28, 1, v26
    v_and_b32 v28, 7, v28
    v_xor_b32 v28, v28, v27
    v_lshlrev_b32 v28, 4, v28
    s_mul_i32 s{T0}, s{sC}, {4*SLOT}
    s_and_b32 s3, s{sW}, 1
    s_lshl_b32 s3, s3, 12
    s_add_u32 s3, s3, s{T0}
    v_lshlrev_b32 v29, 7, v26
    v_add_u32 v29, s3, v29
    v_add_u32 v{vXA}, v29, v28
    v_xor_b32 v{vXA+1}, 32, v{vXA}
    v_xor_b32 v{vXA+2}, 64, v{vXA}
    v_xor_b32 v{vXA+3}, 96, v{vXA}
    s_lshr_b32 s{T0+1}, s{sR}, 1
    v_lshrrev_b32 v28, 2, v0
    v_and_b32 v28, 3, v28
    v_lshlrev_b32 v29, 3, v27
    v_add_u32 v29, v29, v28
    v_lshlrev_b32 v29, 7, v29
    v_lshrrev_b32 v28, 1, v28
    v_xor_b32 v28, s{T0+1}, v28
    v_lshlrev_b32 v28, 6, v28
    v_add_u32 v29, v29, v28
    v_and_b32 v28, 16, v0
    v_lshlrev_b32 v28, 1, v28
    v_add_u32 v29, v29, v28
    v_and_b32 v28, 3, v0
    v_lshlrev_b32 v28, 3, v28
    v_add_u32 v29, v29, v28
    v_add_u32 v{vWA}, s{T0}, v29
    """)
    for i in range(48):
        a(f"v_mov_b32 v{accQ+i}, 0")
    roles(a)
    a(f"""
    s_mov_b32 s{T0+6}, {hex(f32bits(CSCALE))}
    v_mov_b32 v{vZ}, 0
    v_mov_b32 v{vWo}, 0
    v_mov_b32 v{vFa}, 0
    v_mov_b32 v{vPo}, 0
    v_mov_b32 v{vOa}, 0
    v_mul_u32_u24 v{vVs}, {7168-512}, v27
    v_add_u32 v{vVs}, v{vVs}, v{vL16}
    """)
    p1_role(a, f"s{sC}")
    a(f"s_cmp_eq_u32 s{sC}, 0\n s_cselect_b32 s{T0}, {BR}, 0")
    store_offsets(a, f"s{T0}", T0 + 1)
    a(f"""
    s_waitcnt lgkmcnt(0)
    """)
    srd(a, sWS, 20, WS_USED)
    a(f"""
    v_mov_b32 v4, {EPOCH}
    buffer_load_dword v4, v4, {sr(sWS)}, 0 offen sc1
    """)
    srd(a, sOUT, 16, OUT_BYTES)
    srd(a, sWoA, 8, WO_BYTES)
    srd(a, sWoB, 14, WO_BYTES)
    a(f"""
    s_getpc_b64 s[18:19]
    H_pc:
    s_add_u32 s18, s18, L_ones-H_pc
    s_addc_u32 s19, s19, 0
    s_mov_b32 s{T0+11}, {SLOT}
    s_cmp_eq_u32 s{sC}, 0
    s_cbranch_scc1 C_bb
    """)
    if OPT["prefetch"]:
        a(f"""
        s_lshl_b32 s3, s{sJ}, 2
        s_add_u32 s3, s3, s{sR}
        s_lshl_b32 s3, s3, 7
        s_min_u32 s3, s3, L_ones-C_b0-64
        s_sub_u32 s22, s18, L_ones-C_b0
        s_subb_u32 s23, s19, 0
        s_load_dword s0, s[22:23], s3
        s_add_u32 s3, s3, 64
        s_load_dword s0, s[22:23], s3
        """)
    dma_lanes(a, 5, 164)
    dma_tile(a, 14, 15, 16, 22, 4)
    srd(a, sX, 4, "s22")
    srd(a, sWt, 6, "s23")
    a(f"s_lshl_b32 s17, s{sR}, 11\n s_add_u32 s17, s17, {4*SLOT}\n s_mov_b32 s{T0+11}, 0")
    if OPT["ipf"]:
        a(f"""
        s_and_b32 s3, s2, {0xc1}
        s_cmp_lg_u32 s3, {0xc1}
        s_cbranch_scc1 C_nipf
        s_lshl_b32 s3, s{sRB}, 2
        s_add_u32 s3, s3, s{sR}
        s_mul_i32 s22, s3, 14336
        s_mul_i32 s23, s3, 9408
        s_and_b32 s23, s23, -128
        s_mov_b32 m0, s17
        """)
        if OPT["ipw"]: a("s_waitcnt vmcnt(0)")
        for i in range(14):
            a(f"buffer_load_dwordx4 v{vL16}, {sr(sX)}, s22 offen lds\n s_add_u32 s22, s22, 1024")
            if i < 10: a(f"buffer_load_dwordx4 v{vL16}, {sr(sWt)}, s23 offen lds\n s_add_u32 s23, s23, 1024")
        a("C_nipf:")
    steps = [lambda: helper_setup(a, 0), lambda: helper_setup(a, 1), lambda: helper_setup(a, 2)]
    for b in range(-1, 6):
        if b == 5 or (b >= 0 and not OPT["skip"]): a("s_barrier")
        elif b >= 0: a(f"s_and_b32 s3, s2, 0xc1\n s_cmp_eq_u32 s3, 0xc1\n s_cbranch_scc1 C_sk{b}\n s_barrier\n C_sk{b}:")
        if b == OPT["tpos"] and OPT["tch"] >= 2:
            a(f"""
            v_and_b32 v8, 7, v0
            s_mov_b32 s3, {MAT}
            v_mul_lo_u32 v8, v8, s3
            s_and_b32 s3, s{T0+1}, {WS_OOB - 1}
            s_mov_b64 exec, 0xff
            buffer_load_dword v3, v8, {sr(sWS)}, s3 offen sc1
            """)
            if OPT["tch"] >= 3:
                a(f"""
                s_mul_i32 s3, s{sRBK}, {64*1792}
                s_mov_b64 exec, 1
                buffer_load_dword v3, v8, {sr(sOUT)}, s3 offen sc1
                buffer_load_dword v3, v8, {sr(sWoA)}, 0 offen
                buffer_load_dword v3, v8, {sr(sWoB)}, 0 offen
                """)
            a("s_mov_b64 exec, -1")
        if b == 0 and OPT["tch"] == 1:
            a("s_load_dword s0, s[4:5], 0\n s_load_dword s0, s[6:7], 0")
        if b == OPT["apos"]: dma_stage(a, 5, 14, 15, 16, 17, 22, [])
        elif b == 5: a("s_waitcnt vmcnt(0) lgkmcnt(0)"); make_tag(a, 4)
        elif steps: steps.pop(0)()
    assert not steps
    a(f"""
    C_b0:
    s_mov_b32 s{T0+7}, 7
    s_branch C_w0
    C_w:
    s_barrier
    s_branch C_w1
    C_w0:
    s_barrier
    s_memrealtime s[96:97]
    s_waitcnt lgkmcnt(0)
    C_w1:
    """ if OPT["padat"] == 5 else f"""
    C_b0:
    s_mov_b32 s{T0+7}, 7
    C_w:
    s_barrier
    """)
    F = [80, 96, 112, 128]
    def rlist(ks):
        f = F[ks]
        r = [f"ds_read_b128 {vr(f,4)}, v{vXA+ks}"]
        for p in (1, 2, 0):
            for j in range(2):
                r.append(f"ds_read_b64_tr_b16 {vr(f+4+4*p+2*j,2)}, v{vWA} offset:{8192+p*8192+ks*2048+j*512}")
        return r
    def mlist(ks):
        f = F[ks]
        return [f"{MF32} {vr(accK,16)}, {vr(f+8,4)}, {vr(f,4)}, {vr(accK,16)}",
                f"{MF32} {vr(accV,16)}, {vr(f,4)}, {vr(f+12,4)}, {vr(accV,16)}",
                f"{MF32} {vr(accQ,16)}, {vr(f+4,4)}, {vr(f,4)}, {vr(accQ,16)}"]
    def step(ks, rd):
        m = mlist(ks)
        r = rlist((ks + 2) % 4) if rd else [""] * 7
        a(m[0]); a(r[0]); a(r[1]); a(r[2]); a(m[1]); a(r[3]); a(r[4]); a(m[2]); a(r[5]); a(r[6])
    for l in rlist(0) + rlist(1): a(l)
    a("C_g:")
    a("s_waitcnt lgkmcnt(7)"); step(0, True)
    a("s_waitcnt lgkmcnt(7)"); step(1, True)
    for r in range(vXA, vXA + 5):
        a(f"v_add_u32 v{r}, s{T0+11}, v{r}\n v_and_b32 v{r}, {4*SLOT-1}, v{r}")
    a(f"""
    s_mov_b32 s{T0+11}, {SLOT}
    s_sub_u32 s{T0+7}, s{T0+7}, 1
    s_cmp_le_u32 s{T0+7}, 1
    s_cbranch_scc1 C_gx
    s_waitcnt lgkmcnt(0)
    s_barrier
    """)
    step(2, True)
    step(3, True)
    a("s_branch C_g\n C_gx:")
    a("s_waitcnt lgkmcnt(7)"); step(2, False)
    a("s_waitcnt lgkmcnt(0)"); step(3, False)
    a(f"s_cmp_eq_u32 s{T0+7}, 1\n s_cbranch_scc1 C_w")
    stamp(a, 3)
    a("s_nop 8")
    P = 80
    st = qkv_stores(P, T0 + 1)
    for i in range(8):
        a(f"v_cvt_pk_bf16_f32 v{P+8+i}, v{accK+2*i}, v{accK+2*i+1}")
    for i in range(8):
        a(f"v_cvt_pk_bf16_f32 v{P+16+i}, v{accV+2*i}, v{accV+2*i+1}")
    for g in (8, 12):
        a(f"v_permlane32_swap_b32 v{P+g}, v{P+g+2}\n v_permlane32_swap_b32 v{P+g+1}, v{P+g+3}")
    a(f"s_cmp_lg_u32 s{sC}, 0\n s_cbranch_scc1 C_ns")
    for l in st[:4]: a(l)
    a("C_ns:")
    for i in range(16):
        a(f"v_mul_f32 v{accQ+i}, s{T0+6}, v{accQ+i}")
    for i in range(8):
        a(f"v_cvt_pk_bf16_f32 v{P+i}, v{accQ+2*i}, v{accQ+2*i+1}")
    a("s_nop 1")
    for g in (0, 4):
        a(f"v_permlane32_swap_b32 v{P+g}, v{P+g+2}\n v_permlane32_swap_b32 v{P+g+1}, v{P+g+3}")
    a(f"s_cbranch_scc1 L_helper")

def gen_bskip(a):
    a("C_bb:")
    if OPT["skip"]:
        a(f"s_cmp_lg_u32 s{sACT}, 0\n s_cbranch_scc1 C_b0\n s_barrier\n s_barrier\n s_branch C_pub")
    else:
        a("s_branch C_b0")

def gen_publish(a):
    T, vFl = 28, 32
    sRT = sHRT
    kd, pp = OPT["kd"], OPT["pp"]
    for l in qkv_stores(80, T0 + 1)[4:]: a(l)
    a("C_pub:")
    if OPT["padat"] == 3: a("s_memrealtime s[96:97]")
    lstamp(a, 0)
    a("s_barrier")
    a(f"""
    s_lshl_b32 s3, s{sCG}, 5
    s_add_u32 s3, s3, s{sRB}
    s_lshl_b32 s3, s3, {FS}
    s_add_u32 s13, s3, {FB}
    """)
    kv_setup(a, 0)
    a(f"""
    v_bfe_u32 v{T}, v0, 3, 1
    v_mul_u32_u24 v{T}, 3, v{T}
    v_add_u32 v{T}, s{sU0}, v{T}
    v_lshrrev_b32 v{T+3}, 3, v{T}
    v_lshlrev_b32 v{T+3}, 5, v{T+3}
    s_lshr_b32 s3, s{sRT}, 1
    v_mov_b32 v{T+1}, s3
    s_mov_b64 exec, 0xffff
    v_and_b32 v{T+1}, 7, v0
    v_lshlrev_b32 v{T+1}, 2, v{T+1}
    v_add_u32 v{T+1}, s{sR}, v{T+1}
    s_mov_b64 exec, -1
    v_add_u32 v{T+1}, v{T+1}, v{T+3}
    v_lshlrev_b32 v{T+1}, {FS}, v{T+1}
    v_add_u32 v{vFl}, {FB}, v{T+1}
    """)
    attn_setup(a, 0)
    def qload():
        a(f"""
        s_lshr_b32 s3, s{sM}, 1
        s_add_u32 m0, s3, {QST_L}
        s_sub_u32 s3, s{sOb}, {OU - QU}
        buffer_load_dwordx4 v{vL16}, {sr(sWS)}, s3 offen sc1 lds
        buffer_load_dwordx4 v{vL16}, {sr(sWS)}, s3 offen offset:1024 sc1 lds
        """)
    for b in range(9, 13):
        if b == kd:
            a("s_waitcnt vmcnt(0)")
            lstamp(a, 1)
            if OPT["padat"] == 6: a("s_memrealtime s[96:97]")
            make_tag(a, 4)
        a("s_barrier")
        if b == kd:
            a(f"s_cmp_lg_u32 s{sW}, 0\n s_cbranch_scc1 H_nofl")
            set_flag(a, 13, T)
            a("H_nofl:")
            lstamp(a, 3)
        if b == pp:
            a(f"buffer_load_dwordx2 {vr(T+2,2)}, v{vFl}, {sr(sWS)}, 0 offen sc1")
    a(f"""
    s_waitcnt vmcnt(0)
    v_cmp_ne_u64 vcc, {sr(sTAG,2)}, {vr(T+2,2)}
    s_cmp_eq_u64 vcc, 0
    s_cselect_b32 s13, 1, 0
    s_cbranch_scc1 H_ok
    """)
    if OPT["p2"]:
        a(f"""
        buffer_load_dwordx2 {vr(T+2,2)}, v{vFl}, {sr(sWS)}, 0 offen sc1
        s_barrier
        s_waitcnt vmcnt(0)
        v_cmp_ne_u64 vcc, {sr(sTAG,2)}, {vr(T+2,2)}
        s_cmp_eq_u64 vcc, 0
        s_cbranch_scc1 H_ok
        """)
    else:
        a("s_barrier")
    if OPT["ipoll"]:
        a(f"s_cmp_lg_u32 s{sACT}, 0\n s_cbranch_scc1 H_np\n s_mov_b64 exec, 1")
        poll(a, vFl, T + 2, sleep=OPT["ipoll"])
        a("H_np:")
    poll(a, vFl, T + 2)
    a("H_ok:")
    if OPT["padat"] == 4: a("s_memrealtime s[96:97]")
    lstamp(a, 2)
    qload()
    kv(a, 0)
    a("s_cmp_eq_u32 s13, 0\n s_cbranch_scc1 H_b13\n s_barrier\n H_b13:\n s_waitcnt vmcnt(%d)" % (8 if OPT["g5"] else 0))

vCur, vNxt, vNx2, vQa, vK0, vXw, vXr, vT = 148, 149, 150, 151, 152, 153, 156, 160
def attn_setup(a, kh):
    a(f"""
    s_and_b32 s{sK3}, s{sCG3}, {OPT["krot"]}
    s_xor_b32 s{sK3}, s{sK3}, {kh}
    s_add_u32 s{sWI}, s{sR}, {4*kh}
    s_lshl_b32 s3, s{sQB}, 2
    s_add_u32 s3, s3, s{sR}
    s_mul_i32 s3, s3, {RT}
    s_lshl_b32 s{sOb}, s{sU0}, 9
    s_add_u32 s{sOb}, s{sOb}, s3
    s_add_u32 s{sOb}, s{sOb}, {BR + OU}
    v_add_u32 v{vCur}, {pslot(0) + kh*8192}, v{vL16}
    v_add_u32 v{vNxt}, {pslot(1) + kh*8192}, v{vL16}
    v_add_u32 v{vNx2}, {pslot(2) + kh*8192}, v{vL16}
    v_add_u32 v{vK0}, {pslot(0)}, v{vL16}
    s_lshl_b32 s3, s{sR}, 11
    s_add_u32 s3, s3, {QST_L}
    v_add_u32 v{vQa}, s3, v{vL16}
    s_lshl_b32 s3, s{sR}, 10
    v_add_u32 v{vT}, s3, v{vL16}
    v_add_u32 v{vXw}, {XC1_L + kh*4096}, v{vT}
    v_add_u32 v{vXr}, {XC1_L + (1-kh)*4096}, v{vT}
    v_add_u32 v{vXw+1}, {XC2_L + kh*8192}, v{vT}
    v_add_u32 v{vXr+1}, {XC2_L + (1-kh)*8192}, v{vT}
    v_lshrrev_b32 v{vT}, 2, v{vT}
    v_add_u32 v{vXw+2}, {XC2_L + kh*8192 + 4096}, v{vT}
    v_add_u32 v{vXr+2}, {XC2_L + (1-kh)*8192 + 4096}, v{vT}
    v_lshrrev_b32 v{vT}, 4, v0
    v_lshrrev_b32 v{vT+1}, 2, v0
    v_and_b32 v{vT+1}, 3, v{vT+1}
    v_lshlrev_b32 v{vT+2}, 3, v{vT}
    v_add_u32 v{vT+2}, v{vT+2}, v{vT+1}
    v_lshlrev_b32 v{vT+2}, 7, v{vT+2}
    v_and_b32 v{vT+1}, 2, v{vT+1}
    v_and_b32 v{vT+3}, 1, v{vT}
    v_or_b32 v{vT+1}, v{vT+1}, v{vT+3}
    v_lshlrev_b32 v{vT+1}, 5, v{vT+1}
    v_add_u32 v{vT+2}, v{vT+2}, v{vT+1}
    v_and_b32 v{vT+1}, 3, v0
    v_lshlrev_b32 v{vT+1}, 3, v{vT+1}
    v_add_u32 v{vT+2}, v{vT+2}, v{vT+1}
    s_mul_i32 s3, s{sK3}, {224*128}
    v_add_u32 v{vT+4}, s3, v{vL16 if OPT["wt"] else vT+2}
    v_xor_b32 v{vT+5}, 32, v{vT+4}
    v_xor_b32 v{vT+6}, 64, v{vT+4}
    v_xor_b32 v{vT+7}, 96, v{vT+4}
    s_lshl_b32 s{sOf}, s{sRBK}, 1
    s_lshr_b32 s3, s{sR}, 1
    s_add_u32 s{sOf}, s{sOf}, s3
    s_mul_i32 s{sOf}, s{sOf}, {RT}
    s_and_b32 s3, s{sR}, 1
    s_lshl_b32 s3, s3, 8
    s_add_u32 s{sOf}, s{sOf}, s3
    s_mul_i32 s3, s{sK3}, {28*512}
    s_add_u32 s{sOf}, s{sOf}, s3
    s_add_u32 s{sOf}, s{sOf}, {BR + OU}
    v_and_b32 v{vT+1}, 15, v0
    v_lshlrev_b32 v{vT+2}, 9, v{vT}
    v_lshlrev_b32 v159, 4, v{vT+1}
    v_add_u32 v{vT+2}, v{vT+2}, v159
    s_lshl_b32 s3, s{sRBK}, 2
    s_add_u32 s3, s3, s{sR}
    s_lshl_b32 s3, s3, 4
    v_add_u32 v{vT+1}, s3, v{vT+1}
    v_mul_u32_u24 v{vT+1}, 1792, v{vT+1}
    v_lshlrev_b32 v{vT+3}, 5, v{vT+3}
    v_add_u32 v{vT+1}, v{vT+1}, v{vT+3}
    v_lshrrev_b32 v{vT+3}, 1, v{vT}
    v_lshlrev_b32 v{vT+3}, 4, v{vT+3}
    v_add_u32 v{vT+1}, v{vT+1}, v{vT+3}
    s_lshl_b32 s{sOo}, s{sCG3}, 7
    s_lshl_b32 s3, s{sK3}, 6
    s_add_u32 s{sOo}, s{sOo}, s3
    s_add_u32 s{sOo}, s{sOo}, 896
    """)
    for r in list(range(104, 120)) + list(range(64, 68)) + list(range(132, 136)):
        a(f"v_mov_b32 v{r}, 0")

def gen_attn(a):
    Q, NM, S, P, O, K, V, T = 4, 12, [28, 44], 60, 104, 120, 128, 140
    WF, OF, ACC = 4, 116, 144
    sS = T0 + 7
    a("C_attn:")
    stamp(a, 5)
    a("s_setprio 1\n s_barrier")
    stamp(a, 6)
    if OPT["padat"] == 1: a("s_memrealtime s[96:97]\n s_waitcnt lgkmcnt(0)")
    if OPT["rts"]: stamp(a, 3, rt=True)
    if OPT["prof"]: a("s_waitcnt lgkmcnt(0)")
    a(f"""
    ds_read_b128 {vr(Q,4)}, v{vQa}
    ds_read_b128 {vr(Q+4,4)}, v{vQa} offset:1024
    ds_read_b128 {vr(NM,4)}, v{vK0}
    ds_read_b128 {vr(NM+4,4)}, v{vK0} offset:1024
    ds_read_b128 {vr(NM+8,4)}, v{vCur}
    ds_read_b128 {vr(NM+12,4)}, v{vCur} offset:1024
    ds_read_b128 {vr(K,4)}, v{vCur} offset:2048
    ds_read_b128 {vr(K+4,4)}, v{vCur} offset:3072
    {"" if OPT["g5"] else f"ds_read_b128 {vr(V,4)}, v{vCur} offset:16384"}
    s_waitcnt lgkmcnt({7 - OPT["g5"]})
    """)
    zero_foreign(a, Q)
    a(f"""
    s_waitcnt lgkmcnt({5 - OPT['g5']})
    {MF32} {vr(S[1],16)}, {vr(NM,4)}, {vr(Q,4)}, 0
    {MF32} {vr(S[1],16)}, {vr(NM+4,4)}, {vr(Q+4,4)}, {vr(S[1],16)}
    s_waitcnt lgkmcnt({3 - OPT['g5']})
    {MF32} {vr(S[0],16)}, {vr(NM+8,4)}, {vr(Q,4)}, 0
    {MF32} {vr(S[0],16)}, {vr(NM+12,4)}, {vr(Q+4,4)}, {vr(S[0],16)}
    s_mov_b32 s{sS}, 0
    s_mov_b32 s3, {hex(f32bits(-float(OPT["delta"])))}
    s_nop 7
    """)
    s1 = S[1]
    a(f"v_max3_f32 v{T}, v{s1}, v{s1+1}, v{s1+2}")
    a(f"v_max3_f32 v{T+1}, v{s1+3}, v{s1+4}, v{s1+5}")
    for i in range(6, 14, 4):
        a(f"v_max3_f32 v{T}, v{T}, v{s1+i}, v{s1+i+1}")
        a(f"v_max3_f32 v{T+1}, v{T+1}, v{s1+i+2}, v{s1+i+3}")
    a(f"""
    v_max3_f32 v{T}, v{T}, v{s1+14}, v{s1+15}
    v_max_f32 v{T}, v{T}, v{T+1}
    v_mov_b32 v{T+1}, v{T}
    v_mov_b32 v{s1+14}, 0
    v_mov_b32 v{s1+15}, 0
    v_permlane32_swap_b32 v{T}, v{T+1}
    s_nop 1
    v_max_f32 v{T}, v{T}, v{T+1}
    v_sub_f32 v{NM}, s3, v{T}
    """)
    if OPT["g5"]:
        a(f"s_waitcnt vmcnt(0)\n s_barrier\n ds_read_b128 {vr(V,4)}, v{vCur} offset:16384")
    for i in range(16):
        a(f"v_add_f32 v{S[0]+i}, v{S[0]+i}, v{NM}")
    for i in range(1, 16):
        a(f"v_mov_b32 v{NM+i}, v{NM}")
    a("s_waitcnt lgkmcnt(0)\n s_setprio 1")
    a(".p2align 3")
    a("C_loop:")
    for i in range(4):
        cs, ns = S[i % 2], S[(i + 1) % 2]
        def ex(j): return f"v_exp_f32 v{cs+j}, v{cs+j}"
        def cv(j): return f"v_cvt_pk_bf16_f32 v{P+j}, v{cs+2*j}, v{cs+2*j+1}"
        kreg, ko = (vCur, (i + 2) * 2048) if i < 2 else (vNxt, (i - 2) * 2048)
        vreg, vo = (vCur, (i + 1) * 2048) if i < 3 else (vNxt, 0)
        a(ex(0)); a(ex(1))
        a(f"v_cvt_pk_bf16_f32 v{P+7}, v{ns+14}, v{ns+15}")
        a(ex(2))
        if i == 2:
            a("s_barrier\n s_setprio 3")
        a("s_waitcnt lgkmcnt(2)")
        a(f"{MF32} {vr(ns,16)}, {vr(K,4)}, {vr(Q,4)}, {vr(NM,16)}")
        a(f"ds_read_b128 {vr(K,4)}, v{kreg} offset:{ko}")
        a(cv(0)); a(ex(3)); a(ex(4)); a(cv(1)); a(ex(5)); a(ex(6))
        a(f"{MF32} {vr(O,16)}, {vr(V+4,4)}, {vr(P+4,4)}, {vr(O,16)}")
        a(f"ds_read_b128 {vr(V+4,4)}, v{vCur} offset:{16384 + i*2048 + 1024}")
        a(cv(2)); a(ex(7)); a(ex(8)); a(cv(3)); a(ex(9)); a("s_waitcnt lgkmcnt(2)")
        a(f"{MF32} {vr(ns,16)}, {vr(K+4,4)}, {vr(Q+4,4)}, {vr(ns,16)}")
        a(f"ds_read_b128 {vr(K+4,4)}, v{kreg} offset:{ko+1024}")
        a(ex(10)); a(ex(11)); a(cv(4)); a(ex(12)); a(ex(13)); a(cv(5))
        a(f"{MF32} {vr(O,16)}, {vr(V,4)}, {vr(P,4)}, {vr(O,16)}")
        a(f"ds_read_b128 {vr(V,4)}, v{vreg} offset:{16384 + vo}")
        a(ex(14)); a(ex(15)); a(cv(6))
        if i == 0: a("s_setprio 0\n s_add_u32 s{0}, s{0}, 1".format(sS))
        if i == 2: a("s_setprio 2\n s_nop 0")
        if i == 3:
            a(f"""
            v_swap_b32 v{vCur}, v{vNxt}
            s_setprio 1
            v_swap_b32 v{vNxt}, v{vNx2}
            s_cmp_lt_u32 s{sS}, 8
            s_cbranch_scc1 C_loop
            """)
    a(f"""
    v_cvt_pk_bf16_f32 v{P+7}, v{S[1]+14}, v{S[1]+15}
    s_waitcnt lgkmcnt(0)
    s_cmp_eq_u32 s{sODD}, 0
    {MF32} {vr(O,16)}, {vr(V+4,4)}, {vr(P+4,4)}, {vr(O,16)}
    """)
    stamp(a, 7)
    if OPT["padat"] == 2: a("s_memrealtime s[96:97]")
    a(f"s_setprio {OPT['tp']}")
    if OPT["rts"]: stamp(a, 4, rt=True)
    X = S[0]
    a(f"""
    s_nop 10
    s_cbranch_scc1 C_le
    v_mov_b32 v{T+2}, v{O}
    s_branch C_lx
    C_le:
    v_mov_b32 v{T+2}, v{O+12}
    C_lx:
    s_cmp_eq_u32 s{sC}, 0
    s_cbranch_scc1 C_x0
    ds_write_b128 v{vXw}, {vr(O,4)}
    ds_write_b128 v{vXw+1}, {vr(O+4,4)}
    ds_write_b32 v{vXw+2}, v{T+2}
    s_waitcnt lgkmcnt(0)
    s_barrier
    """)
    for i in range(8):
        a(f"v_mov_b32 v{O+i}, v{O+8+i}")
    a(f"""
    s_branch C_x1
    C_x0:
    ds_write_b128 v{vXw}, {vr(O+8,4)}
    ds_write_b128 v{vXw+1}, {vr(O+12,4)}
    ds_write_b32 v{vXw+2}, v{T+2}
    s_waitcnt lgkmcnt(0)
    s_barrier
    C_x1:
    ds_read_b32 v{X+8}, v{vXr+2}
    ds_read_b128 {vr(X,4)}, v{vXr}
    ds_read_b128 {vr(X+4,4)}, v{vXr+1}
    s_waitcnt lgkmcnt(2)
    v_add_f32 v{T+2}, v{T+2}, v{X+8}
    """)
    bcast_l(a, T + 2, T + 2, T + 4)
    a("s_waitcnt lgkmcnt(0)")
    a(f"v_mul_f32 v{T}, 0, v{T+4}\n v_mov_b32 v{T+1}, 0x207")
    for i in range(8):
        a(f"v_add_f32 v{O+i}, v{O+i}, v{X+i}")
    for i in range(8):
        a(f"v_add_f32 v{T}, v{T}, abs(v{O+i})")
    a(f"""
    s_mov_b32 s3, {hex((127 - 100) << 23)}
    v_cmp_nge_f32 vcc, v{T}, s3
    v_cmp_class_f32 s[22:23], v{T}, v{T+1}
    s_or_b64 vcc, vcc, s[22:23]
    s_cbranch_scc1 C_slow
    C_fin:
    """)
    finalize(a, O, 8, T + 4)
    a(f"s_cmp_eq_u32 s{sC}, 0\n s_cbranch_scc0 C_st1")
    store_units(a, O, True, sOb, 0)
    a("s_branch C_st2\n C_st1:")
    store_units(a, O, False, sOb, 1024)
    a("C_st2:")
    if OPT["padat"] == 8: a("s_memrealtime s[96:97]")
    stamp(a, 8)
    a(f"s_mov_b64 s[22:23], -1\n s_cmp_ge_u32 s{sJ}, 28\n s_cbranch_scc1 C_exit")
    def wrd(s0, s1):
        for s in range(s0, s1):
            for t in range(4):
                if OPT["wt"]:
                    a(f"ds_read_b128 {vr(WF+16*s+4*t,4)}, v{vT+4} offset:{s*4096 + t*1024}")
                    continue
                for j in range(2):
                    a(f"ds_read_b64_tr_b16 {vr(WF+16*s+4*t+2*j,2)}, v{vT+4+t} offset:{(32*s+4*j)*128}")
    wrd(0, 7)
    a(f"""
    v_mov_b32 v{vT+4}, v{vXw}
    v_mov_b32 v{vT+5}, v{vXw+1}
    v_mov_b32 v{vT+6}, v{vXr}
    v_mov_b32 v{vT+7}, v{vXr+1}
    s_waitcnt vmcnt(0)
    """)
    a(f"s_mov_b32 s{T0+11}, {SPIN}\n s_mov_b32 s{T0+5}, 0\n C_pp:\n s_mov_b32 s3, s{sOf}")
    for s in range(7):
        if s and s % 2 == 0:
            a(f"s_add_u32 s3, s3, 4096")
        a(f"buffer_load_dwordx4 {vr(OF+4*s,4)}, v{vT+2}, {sr(sWS)}, s3 offen offset:{(s%2)*2048} sc1")
    a("s_waitcnt lgkmcnt(0)")
    for s in range(7):
        a(f"s_waitcnt vmcnt({6-s})")
        f = OF + 4 * s
        for t in range(4):
            cin = "0" if s == 0 else vr(ACC + 4 * t, 4)
            a(f"{MF16} {vr(ACC+4*t,4)}, {vr(WF+16*s+4*t,4)}, {vr(f,4)}, {cin}")
            if t == 0: a(f"v_max3_u32 v3, v{f}, v{f+1}, v{f+2 if s == 0 else 3}")
            if t == 1: a(f"v_max3_u32 v3, v3, v{f+2}, v{f+3}")
    a(f"""
    v_cmp_eq_u32 vcc, -1, v3
    s_add_u32 s{T0+5}, s{T0+5}, 1
    s_sub_u32 s{T0+11}, s{T0+11}, 1
    s_cbranch_scc1 C_ppx
    s_cmp_lg_u64 vcc, 0
    s_cbranch_scc1 C_pp
    C_ppx:
    """)
    stamp(a, 9)
    if OPT["padat"] == 9: a("s_memrealtime s[96:97]")
    if OPT["prof"]: a(f"v_writelane_b32 v1, s{T0+5}, 63")
    a(f"""
    s_cmp_eq_u32 s{sK3}, 0
    s_nop 5
    s_cbranch_scc1 C_y0
    ds_write_b128 v{vT+6}, {vr(ACC,4)}
    ds_write_b128 v{vT+7}, {vr(ACC+4,4)}
    s_waitcnt lgkmcnt(0)
    s_barrier
    """)
    for i in range(8):
        a(f"v_mov_b32 v{ACC+i}, v{ACC+8+i}")
    a(f"""
    s_branch C_y1
    C_y0:
    ds_write_b128 v{vT+6}, {vr(ACC+8,4)}
    ds_write_b128 v{vT+7}, {vr(ACC+12,4)}
    s_waitcnt lgkmcnt(0)
    s_barrier
    C_y1:
    ds_read_b128 {vr(OF,4)}, v{vT+4}
    ds_read_b128 {vr(OF+4,4)}, v{vT+5}
    s_waitcnt lgkmcnt(0)
    """)
    for i in range(8):
        a(f"v_add_f32 v{ACC+i}, v{ACC+i}, v{OF+i}")
    for i in range(4):
        a(f"v_cvt_pk_bf16_f32 v{ACC+i}, v{ACC+2*i}, v{ACC+2*i+1}")
    osc = ("", " sc1", " nt", " sc0 sc1")[OPT["outsc"]]
    a(f"""
    s_nop 1
    v_permlane16_swap_b32 v{ACC}, v{ACC+2}
    v_permlane16_swap_b32 v{ACC+1}, v{ACC+3}
    buffer_store_dwordx4 {vr(ACC,4)}, v{vT+1}, {sr(sOUT)}, s{sOo} offen{osc}
    C_exit:
    """)
    if OPT["padrt"] or OPT["padcy"]:
        if OPT["padx"] >= 0: a(f"s_cmp_lg_u32 s{sXCD}, {OPT['padx']}\n s_cbranch_scc1 C_padx")
        a(f"""
        C_pad:
        {'s_memrealtime' if OPT['padrt'] else 's_memtime'} s[98:99]
        s_waitcnt lgkmcnt(0)
        s_sub_u32 s98, s98, s96
        s_cmp_lt_u32 s98, {OPT['padrt'] or OPT['padcy']}
        s_cbranch_scc1 C_pad
        C_padx:
        """)
    dump(a)
    a("s_endpgm")
    sT, sKo, sVo = T0, T0 + 1, T0 + 2
    def kload():
        a(f"""
        s_mul_i32 s{sKo}, s{sT}, {RT}
        s_lshl_b32 s3, s{sU0}, 7
        s_add_u32 s{sVo}, s{sKo}, s3
        s_add_u32 s{sVo}, s{sVo}, {BR + VU}
        s_lshl_b32 s3, s{sU0}, 9
        s_add_u32 s{sKo}, s{sKo}, s3
        s_add_u32 s{sKo}, s{sKo}, {BR + KU}
        buffer_load_dwordx4 {vr(K,4)}, v{vL16}, {sr(sWS)}, s{sKo} offen sc1
        buffer_load_dwordx4 {vr(K+4,4)}, v{vL16}, {sr(sWS)}, s{sKo} offen offset:1024 sc1
        """)
    def qk():
        a(f"""
        s_waitcnt vmcnt(0)
        {MF32} {vr(S[0],16)}, {vr(K,4)}, {vr(Q,4)}, 0
        {MF32} {vr(S[0],16)}, {vr(K+4,4)}, {vr(Q+4,4)}, {vr(S[0],16)}
        s_nop 15
        """)
    a(f"C_slow:\n v_mov_b32 v{T}, 0xff800000\n s_mov_b32 s{sT}, 0\n C_s1:")
    kload(); qk()
    for i in range(0, 16, 2):
        a(f"v_max3_f32 v{T}, v{T}, v{S[0]+i}, v{S[0]+i+1}")
    a(f"""
    s_add_u32 s{sT}, s{sT}, 1
    s_cmp_lt_u32 s{sT}, 64
    s_cbranch_scc1 C_s1
    v_mov_b32 v{T+1}, v{T}
    s_nop 1
    v_permlane32_swap_b32 v{T}, v{T+1}
    s_nop 1
    v_max_f32 v{T}, v{T}, v{T+1}
    v_lshrrev_b32 v{T+1}, 5, v0
    v_mul_u32_u24 v{T+1}, {7168-512}, v{T+1}
    v_add_u32 v{T+1}, v{T+1}, v{vL16}
    """)
    for i in range(16):
        a(f"v_mov_b32 v{O+i}, 0")
    for i in range(8):
        a(f"v_mov_b32 v{V+i}, 0x3f803f80")
    a(f"s_mov_b32 s{sT}, 0\n C_s2:")
    kload()
    a(f"""
    s_add_u32 s3, s{sVo}, 14336
    s_mov_b64 exec, {sr(sVM,2)}
    buffer_load_dwordx4 {vr(V,4)}, v{T+1}, {sr(sWS)}, s{sVo} offen sc1
    buffer_load_dwordx4 {vr(V+4,4)}, v{T+1}, {sr(sWS)}, s3 offen sc1
    s_mov_b64 exec, -1
    """)
    qk()
    for i in range(16):
        a(f"v_sub_f32 v{S[0]+i}, v{S[0]+i}, v{T}")
    for i in range(16):
        a(f"v_exp_f32 v{S[0]+i}, v{S[0]+i}")
    a("s_nop 0")
    for i in range(8):
        a(f"v_cvt_pk_bf16_f32 v{P+i}, v{S[0]+2*i}, v{S[0]+2*i+1}")
    a(f"""
    s_nop 1
    {MF32} {vr(O,16)}, {vr(V,4)}, {vr(P,4)}, {vr(O,16)}
    {MF32} {vr(O,16)}, {vr(V+4,4)}, {vr(P+4,4)}, {vr(O,16)}
    s_add_u32 s{sT}, s{sT}, 1
    s_cmp_lt_u32 s{sT}, 64
    s_nop 15
    s_cbranch_scc1 C_s2
    """)
    bcast_l(a, O + 12, O, T + 4)
    a(f"s_cmp_eq_u32 s{sC}, 0\n s_cbranch_scc1 C_fin")
    for i in range(8):
        a(f"v_mov_b32 v{O+i}, v{O+8+i}")
    a("s_branch C_fin")

def gen_helper(a):
    AQ, AKp, AKc, AVp, AVc, O, HP, T, SP, SC = 28, 36, 44, 52, 56, 64, 80, 104, 108, 124
    sRT = sHRT
    nb = [0]
    def bar():
        k = nb[0]; nb[0] += 1
        if OPT["hst"]: lstamp(a, k)
        a("s_barrier")
        if OPT["hst"]: lstamp(a, 16 + k)
    regs = [SP + 8 + i for i in range(8)] + [SC + i for i in range(16)]
    def wo(srdn, lbase, i0, i1, tag):
        a(f"s_lshr_b32 s22, s{sM}, 2")
        for i in range(i0, i1):
            a(f"s_add_u32 m0, s22, {lbase + (i-i0)*4096}\n s_mov_b32 s{T0}, {i*32*896}")
            a.vm(f"buffer_load_dwordx4 v{vWo}, {sr(srdn)}, s{T0} offen lds", tag)
    a.q = []
    stamp(a, 5)
    a("s_setprio 3\n s_barrier")
    if OPT["g5"]: a("s_barrier")
    kv(a, 1)
    st = qkv_stores(HP, T0 + 1)
    n0 = OPT["sa0"]
    for l in st[:n0]: a.vm(l, "sa")
    a(f"""
    s_mul_i32 s{T0+10}, s{sRT}, {RT}
    s_add_u32 s{T0+10}, s{T0+10}, s{sKb}
    """)
    pf = []
    if OPT["wpf"]:
        a(f"""
        s_lshl_b32 s3, s{sJ}, 2
        s_add_u32 s3, s3, s{sR}
        s_mul_i32 s3, s3, {25*128}
        s_min_u32 s3, s3, {WO_BYTES - 25*128}
        s_add_u32 s4, s{sWoB}, s3
        s_addc_u32 s5, s{sWoB+1}, 0
        s_add_u32 s6, s{sWoA}, s3
        s_addc_u32 s7, s{sWoA+1}, 0
        """)
        pf = [f"s_load_dword s17, s[{b}:{b+1}], {i*128}" for b in (4, 6) for i in range(25)]
    def pfb(n):
        for _ in range(n):
            if pf: a(pf.pop(0))
    LA = OPT["la"]
    a(f"""
    s_lshl_b32 s16, s{T0+5}, {FS}
    s_add_u32 s16, s16, {FA}
    v_mov_b32 v{O}, -1
    v_mov_b32 v{O+1}, -1
    v_mov_b32 v{O+2}, -1
    v_mov_b32 v{O+3}, -1
    s_add_u32 s13, s{T0+10}, {BR + OU}
    """)
    def poison():
        store_units(a, O, True, 13, 0)
        store_units(a, O, False, 13, 1024)
        a.q += ["po"] * 3
    a.wait("kv1"); bar(); kv(a, 2)
    for l in st[n0:]: a.vm(l, "sa")
    if LA == 2:
        a.wait("kv2"); bar(); kv(a, 3)
    a.wait("sa")
    set_flag(a, 16, T)
    if LA == 2: poison()
    a.wait(f"kv{LA+1}"); bar(); kv(a, LA + 2)
    poll(a, vFa, T)
    a(f"""
    s_mul_i32 s{T0}, s{sRT}, {RT}
    s_cmp_eq_u32 s{sRT}, 0
    s_cselect_b32 s3, 0, {RT}
    s_sub_u32 s{T0+1}, s{T0}, s3
    s_add_u32 s{T0+2}, s{T0+10}, {KU}
    s_add_u32 s{T0+3}, s{T0+1}, s{sKb}
    s_add_u32 s{T0+3}, s{T0+3}, {KU}
    """)
    for (r, so) in ((AQ, T0 + 10), (AKc, T0 + 2), (AKp, T0 + 3)):
        a.vm(f"buffer_load_dwordx4 {vr(r,4)}, v{vL16}, {sr(sWS)}, s{so} offen sc1", "loc")
        a.vm(f"buffer_load_dwordx4 {vr(r+4,4)}, v{vL16}, {sr(sWS)}, s{so} offen offset:1024 sc1", "loc")
    a(f"""
    s_add_u32 s{T0}, s{T0}, s{sVb}
    s_add_u32 s{T0}, s{T0}, {VU}
    s_add_u32 s{T0+2}, s{T0}, 14336
    s_add_u32 s{T0+1}, s{T0+1}, s{sVb}
    s_add_u32 s{T0+1}, s{T0+1}, {VU + 14336}
    """)
    a.vm(f"buffer_load_dwordx4 {vr(AVc,4)}, v{vVs}, {sr(sWS)}, s{T0} offen sc1", "loc")
    a.vm(f"buffer_load_dwordx4 {vr(AVc+4,4)}, v{vVs}, {sr(sWS)}, s{T0+2} offen sc1", "loc")
    a.vm(f"buffer_load_dwordx4 {vr(AVp,4)}, v{vVs}, {sr(sWS)}, s{T0+1} offen sc1", "loc")
    bar(); kv(a, LA + 3)
    if LA == 1: poison()
    a.wait("loc")
    zero_foreign(a, AQ)
    a(f"""
    s_nop 0
    {MF32} {vr(SP,16)}, {vr(AKp,4)}, {vr(AQ,4)}, 0
    {MF32} {vr(SC,16)}, {vr(AKc,4)}, {vr(AQ,4)}, 0
    {MF32} {vr(SP,16)}, {vr(AKp+4,4)}, {vr(AQ+4,4)}, {vr(SP,16)}
    {MF32} {vr(SC,16)}, {vr(AKc+4,4)}, {vr(AQ+4,4)}, {vr(SC,16)}
    s_nop 11
    """)
    G = NG
    for i in range(12):
        a(f"v_bitop3_b32 v{regs[2*i]}, v{vPar}, v{regs[2*i+1]}, v{regs[2*i]} bitop3:0xca")
    for i in range(12):
        a(f"v_bitop3_b32 v{G + i%4}, v{regs[2*i]}, v{VM+i}, v{G + i%4} bitop3:0xea")
    a(f"""
    v_max3_f32 v{T}, v{G}, v{G+1}, v{G+2}
    v_max_f32 v{T}, v{T}, v{G+3}
    v_mov_b32 v{T+1}, v{T}
    s_nop 1
    v_permlane32_swap_b32 v{T}, v{T+1}
    s_nop 1
    v_max_f32 v{T}, v{T}, v{T+1}
    """)
    for g in range(4): a(f"v_sub_f32 v{G+g}, v{G+g}, v{T}")
    for g in range(4): a(f"v_exp_f32 v{G+g}, v{G+g}")
    a(f"""
    s_nop 0
    v_add_f32 v{T}, v{G}, v{G+1}
    v_add_f32 v{T+1}, v{G+2}, v{G+3}
    v_add_f32 v{T}, v{T}, v{T+1}
    v_mov_b32 v{T+1}, v{T}
    s_nop 1
    v_permlane32_swap_b32 v{T}, v{T+1}
    s_nop 1
    v_add_f32 v{T}, v{T}, v{T+1}
    v_rcp_f32 v{T}, v{T}
    s_nop 0
    """)
    for g in range(4): a(f"v_mul_f32 v{G+g}, v{G+g}, v{T}")
    for g in range(4): a(f"v_cvt_pk_bf16_f32 v{G+g}, v{G+g}, v{G+g}")
    PM = VM
    for i in range(12):
        a(f"v_bitop3_b32 v{PM+i}, v{PM+i}, v{G + i%4}, v{vHalf} bitop3:0x80")
    O2 = SP
    a(f"""
    s_nop 1
    {MF32} {vr(O2,16)}, {vr(AVp,4)}, {vr(PM,4)}, 0
    {MF32} {vr(O2,16)}, {vr(AVc,4)}, {vr(PM+4,4)}, {vr(O2,16)}
    {MF32} {vr(O2,16)}, {vr(AVc+4,4)}, {vr(PM+8,4)}, {vr(O2,16)}
    s_add_u32 s{T0+10}, s{T0+10}, {OU}
    s_nop 11
    """)
    for i in range(8):
        a(f"v_cvt_pk_bf16_f32 v{O2+i}, v{O2+2*i}, v{O2+2*i+1}")
    a("s_nop 1")
    for g in (0, 4):
        a(f"v_permlane32_swap_b32 v{O2+g}, v{O2+g+2}\n v_permlane32_swap_b32 v{O2+g+1}, v{O2+g+3}")
    store_units(a, O2, True, T0 + 10, 0)
    store_units(a, O2 + 4, False, T0 + 10, 1024)
    a.q += ["oa"] * 3
    a.wait(f"kv{LA+3}"); bar(); kv(a, LA + 4)
    a(f"""
    s_lshl_b32 s3, s{sRT}, 4
    s_add_u32 s3, s3, s{sH}
    s_lshl_b32 s3, s3, {FS}
    s_add_u32 s{T0+10}, s3, {FO}
    """)
    a.wait("oa")
    set_flag(a, T0 + 10, T)
    wo(sWoB, WOB_L, 0, 6, "wob")
    OFA, ACC, WB, T = 28, 84, 116, 160
    a(f"""
    s_and_b32 s3, s{sR}, 1
    s_lshl_b32 s{sRT}, s{sRBK}, 1
    s_add_u32 s{sRT}, s{sRT}, s3
    s_lshr_b32 s{sC}, s{sR}, 1
    s_lshl_b32 s3, s{sRT}, 1
    s_add_u32 s3, s3, s{sC}
    s_lshl_b32 s14, s3, {3+FS}
    s_add_u32 s14, s14, {FO}
    s_mul_i32 s13, s3, {RT//2}
    s_add_u32 s13, s13, {OU}
    s_lshl_b32 s{T0+10}, s{sCG3}, 7
    s_lshl_b32 s3, s{sC}, 6
    s_add_u32 s{T0+10}, s{T0+10}, s3
    s_mul_i32 s3, s{sRT}, {32*1792}
    s_add_u32 s{T0+10}, s{T0+10}, s3
    """)
    a.wait(f"kv{LA+4}"); bar(); kv(a, LA + 5)
    wo(sWoB, WOB_L + 6 * 4096, 6, 14, "wob")
    a.vm(f"buffer_load_dwordx2 {vr(T+6,2)}, v{vPo}, {sr(sWS)}, s14 offen sc1", "fl")
    def ofa(i0, i1):
        for i in range(i0, i1):
            if i and i % 4 == 0:
                a(f"s_add_u32 s13, s13, 4096")
            a.vm(f"buffer_load_dwordx4 {vr(OFA+4*i,4)}, v{vL16}, {sr(sWS)}, s13 offen offset:{(i%4)*1024} sc1", f"ofa{i}")
    a.wait("wob" if OPT["wt"] else f"kv{LA+5}"); bar()
    a.wait_all()
    a(f"""
    v_cmp_ne_u64 vcc, {sr(sTAG,2)}, {vr(T+6,2)}
    s_cmp_eq_u64 vcc, 0
    s_cbranch_scc1 H_ok2
    """)
    poll(a, vPo, T + 6, "s14")
    a("H_ok2:")
    if LA == 1:
        kv(a, 7)
        ofa(0, 8)
        a.wait("kv7"); bar()
    a(f"""
    s_lshl_b32 s3, s{sR}, 2
    s_add_u32 s3, s3, {HFL_L}
    v_mov_b32 v{T}, s3
    v_xor_b32 v{T+1}, 8, v{T}
    v_mov_b32 v{T+3}, {HFL_L}
    v_mov_b32 v{T+2}, 0
    s_mov_b64 exec, 1
    ds_write_b32 v{T}, v{T+2}
    s_mov_b64 exec, -1
    """)
    wo(sWoA, WOA_L[0], 0, 7, "woa")
    if LA == 1: ofa(8, 14)
    else: ofa(0, 9)
    a("s_waitcnt lgkmcnt(0)")
    bar()
    wo(sWoA, WOA_L[1], 7, 14, "woa")
    if LA == 2: ofa(9, 14)
    a("s_barrier")
    a(f"s_cmp_ge_u32 s{sJ}, 28\n s_cbranch_scc1 H_idle")
    a(f"s_setprio {OPT['hp']}")
    a.wait("woa")
    stamp(a, 8)
    def hflag(val, rd, lab):
        a(f"""
        v_mov_b32 v{T+2}, {val}
        s_mov_b64 exec, 1
        ds_write_b32 v{T}, v{T+2}
        s_mov_b32 s23, {SPIN * 8}
        {lab}:
        """)
        if rd == 4:
            a(f"""
            ds_read_b128 {vr(T+4,4)}, v{T+3}
            s_waitcnt lgkmcnt(0)
            v_min3_u32 v{T+4}, v{T+4}, v{T+5}, v{T+6}
            v_min_u32 v{T+4}, v{T+4}, v{T+7}
            s_nop 0
            """)
        else:
            a(f"ds_read_b32 v{T+4}, v{T+1}\n s_waitcnt lgkmcnt(0)")
        a(f"""
        v_readfirstlane_b32 s3, v{T+4}
        s_sub_u32 s23, s23, 1
        s_cbranch_scc1 {lab}x
        s_cmp_lt_u32 s3, {val}
        s_cbranch_scc1 {lab}
        {lab}x:
        s_mov_b64 exec, -1
        """)
    hflag(1, 4, "H_pv")
    NB = 4
    def rd(i):
        for c in range(2):
            for j in range(2):
                a(f"ds_read_b64_tr_b16 {vr(WB+8*(i%NB)+4*c+2*j,2)}, v{vWa+c} offset:{(16*i+4*j)*128}")
    for i in range(NB - 1): rd(i)
    for i in range(14):
        a.wait(f"ofa{i}", f" lgkmcnt({4*min(NB-2, 13-i)})")
        for c in range(2):
            cin = "0" if i == 0 else vr(ACC + 16 * c, 16)
            a(f"{MF32} {vr(ACC+16*c,16)}, {vr(WB+8*(i%NB)+4*c,4)}, {vr(OFA+4*i,4)}, {cin}")
        if i + NB - 1 < 14:
            rd(i + NB - 1)
    a(f"""
    s_cmp_eq_u32 s{sC}, 0
    s_nop 10
    s_cbranch_scc1 H_y0
    """)
    for i in range(4):
        a(f"ds_write_b128 v{vXa}, {vr(ACC+4*i,4)} offset:{i*1024}")
    a("s_branch H_y1\n H_y0:")
    for i in range(4):
        a(f"ds_write_b128 v{vXa}, {vr(ACC+16+4*i,4)} offset:{i*1024}")
    a("H_y1:\n s_waitcnt lgkmcnt(0)")
    stamp(a, 9)
    hflag(2, 1, "H_pw")
    a(f"s_cmp_eq_u32 s{sC}, 0")
    for i in range(4):
        a(f"ds_read_b128 {vr(OFA+4*i,4)}, v{vXa+1} offset:{i*1024}")
    a(f"s_waitcnt lgkmcnt(0)\n s_cbranch_scc1 H_z0")
    for i in range(16):
        a(f"v_add_f32 v{OFA+i}, v{ACC+16+i}, v{OFA+i}")
    a("s_branch H_z1\n H_z0:")
    for i in range(16):
        a(f"v_add_f32 v{OFA+i}, v{ACC+i}, v{OFA+i}")
    a("H_z1:")
    for i in range(8):
        a(f"v_cvt_pk_bf16_f32 v{OFA+i}, v{OFA+2*i}, v{OFA+2*i+1}")
    a("s_nop 1")
    for g in (0, 4):
        a(f"v_permlane32_swap_b32 v{OFA+g}, v{OFA+g+2}\n v_permlane32_swap_b32 v{OFA+g+1}, v{OFA+g+3}")
    osc = ("", " sc1", " nt", " sc0 sc1")[OPT["outsc"]]
    a(f"buffer_store_dwordx4 {vr(OFA,4)}, v{vOa}, {sr(sOUT)}, s{T0+10} offen{osc}")
    a(f"buffer_store_dwordx4 {vr(OFA+4,4)}, v{vOa}, {sr(sOUT)}, s{T0+10} offen offset:32{osc}")
    a("s_barrier")
    a("H_exit:")
    dump(a)
    a("s_endpgm")
    a(f"""
    H_idle:
    s_cmp_lg_u32 s2, 255
    s_cbranch_scc1 H_exit
    s_cmp_lg_u32 s{sW}, 4
    s_cbranch_scc1 H_exit
    v_lshlrev_b32 v{T}, {FS}, v0
    s_mov_b32 s{T0+11}, {SPIN}
    H_ep:
    """)
    for i in range(4):
        a(f"s_mov_b32 s3, {FB + (i*64 << FS)}\n buffer_load_dwordx2 {vr(OFA+2*i,2)}, v{T}, {sr(sWS)}, s3 offen sc1")
    a(f"s_waitcnt vmcnt(0)\n s_mov_b64 s[4:5], 0")
    for i in range(4):
        a(f"v_cmp_ne_u64 vcc, {sr(sTAG,2)}, {vr(OFA+2*i,2)}\n s_or_b64 s[4:5], s[4:5], vcc")
    a(f"""
    s_sub_u32 s{T0+11}, s{T0+11}, 1
    s_cbranch_scc1 H_epx
    s_cmp_lg_u64 s[4:5], 0
    s_cbranch_scc1 H_ep
    H_epx:
    v_mov_b32 v{T}, {EPOCH}
    v_mov_b32 v{T+1}, s{sTAG}
    s_mov_b64 exec, 1
    buffer_store_dword v{T+1}, v{T}, {sr(sWS)}, 0 offen sc1
    s_mov_b64 exec, -1
    s_branch H_exit
    """)

def main(out):
    a = gen()
    K = NAME + "_kernel"
    hdr = f"""; Fused QKV projection -> attention (A: dilated local window, B: full) -> output projection.
; @launch grid=(256,1,1) block=(768,1,1) lds=163840
.amdgcn_target "amdgcn-amd-amdhsa--gfx950"
.text
"""
    d = f""".section .rodata,"a"
.p2align 6
.amdhsa_kernel {K}
  .amdhsa_next_free_vgpr 168
  .amdhsa_next_free_sgpr 102
  .amdhsa_accum_offset 168
  .amdhsa_group_segment_fixed_size 0
  .amdhsa_kernarg_size 72
  .amdhsa_user_sgpr_count 2
  .amdhsa_user_sgpr_kernarg_segment_ptr 1
  .amdhsa_system_sgpr_workgroup_id_x 1
.end_amdhsa_kernel
"""
    open(out, "w").write(hdr + a.text() + d)

if __name__ == "__main__":
    for arg in sys.argv[2:]:
        k, v = arg.split("=")
        assert k in OPT
        OPT[k] = int(v)
    main(sys.argv[1])
```

```python
import sys, math, struct
NAME = "concat_heads__sliding_local_dilated__mha_block__prompt"
OPT = dict(prof=0, rot=7, prefetch=1, sleep=1, rts=0, outsc=2, wpf=0, sa0=3, hst=1, lst=1, krot=1, kd=9, apos=4, g5=0, p2=1, pads=1, delta=96, ipf=1, ipw=1, skip=1, tch=0, tpos=3, shr=1, ipoll=4, la=2, hp=3, sst=0, rmb=4, rma=2, padat=0, mg=1, tp=1, wt=0, lsu=0, pp=10, padrt=0, padcy=0, padx=-1)

class Asm:
    def __init__(self):
        self.lines = []
        self.q = []
        self.uid = 0
    def __call__(self, s):
        for l in s.strip("\n").split("\n"):
            l = l.strip()
            if not l: continue
            self.lines.append(l if l.endswith(":") else "    " + l)
    def vm(self, s, tag):
        self(s); self.q.append(tag)
    def wait(self, tag, extra=""):
        if tag not in self.q:
            if extra: self(f"s_waitcnt{extra}")
            return
        idx = max(i for i, t in enumerate(self.q) if t == tag)
        n = len(self.q) - 1 - idx
        assert n <= 63
        self(f"s_waitcnt vmcnt({n}){extra}")
        self.q = self.q[idx + 1:]
    def wait_all(self, extra=""):
        self(f"s_waitcnt vmcnt(0){extra}"); self.q = []
    def lab(self, p):
        self.uid += 1
        return f"{p}_{self.uid}"
    def text(self):
        return "\n".join(self.lines) + "\n"

def vr(a, n): return f"v[{a}:{a+n-1}]"
def sr(a, n=4): return f"s[{a}:{a+n-1}]"
def f32bits(x): return struct.unpack("<I", struct.pack("<f", x))[0]
MF32 = "v_mfma_f32_32x32x16_bf16"
MF16 = "v_mfma_f32_16x16x32_bf16"

RT = 56 * 512
MAT = 64 * RT
BR = 4 * MAT
QU, KU, VU, OU = 0, MAT, 2 * MAT, 3 * MAT
FS = 7
FB = 2 * BR
FA = FB + (256 << FS)
FO = FA + (1024 << FS)
EPOCH = FO + (1024 << FS)
WS_USED = EPOCH + 0x1000
WS_OOB = 0x40000000
PROF_OFF = 0x1100000
X_BYTES, W_BYTES, WO_BYTES, OUT_BYTES = 2048 * 896, 448 * 2688, 448 * 896, 2048 * 1792
CSCALE = (28 ** -0.5) * math.log2(math.e)
DELTA = 24.0
SPIN = 1 << 18

sWS, sX, sWt, sOUT, sWoA, sWoB = 24, 28, 32, 36, 40, 44
sOo, sOf, sOb, sK3 = 48, 49, 50, 51
sW, sXCD, sJ, sRB, sCG, sACT, sH, sQB, sU0, sODD, sRBK, sCG3 = range(52, 64)
sTAG, sVM = 64, 66
T0 = 68
sR, sC, sWI = T0 + 8, T0 + 9, T0 + 10
NST = 10
def stamp(a, i, rt=False):
    if OPT["prof"]:
        assert i < NST
        a(f"{'s_memrealtime' if rt else 's_memtime'} s[{80+2*i}:{81+2*i}]")
def lstamp(a, idx):
    if OPT["prof"]:
        a(f"s_memtime s[100:101]\n s_mov_b32 m0, {idx}\n s_waitcnt lgkmcnt(0)\n v_writelane_b32 v1, s100, m0")
def dump(a):
    if not OPT["prof"]: return
    a(f"""
    s_mul_i32 s8, s2, 12
    s_add_u32 s8, s8, s{sW}
    s_lshl_b32 s8, s8, 8
    s_add_u32 s8, s8, {PROF_OFF + 0x100000}
    s_mov_b32 s{sWS+2}, 0x2000000
    s_waitcnt lgkmcnt(0) vmcnt(0)
    s_memtime s[4:5]
    s_memrealtime s[6:7]
    v_lshlrev_b32 v3, 2, v0
    buffer_store_dword v1, v3, {sr(sWS)}, s8 offen
    s_mul_i32 s8, s2, 12
    s_add_u32 s8, s8, s{sW}
    s_lshl_b32 s8, s8, 6
    s_add_u32 s8, s8, {PROF_OFF}
    s_waitcnt lgkmcnt(0) vmcnt(0)
    v_mov_b32 v1, 0
    s_mov_b64 exec, 1
    """)
    for i, s in enumerate([80 + 2 * i for i in range(NST)] + [4, 6]):
        a(f"v_mov_b32 v0, s{s}\n buffer_store_dword v0, v1, {sr(sWS)}, s8 offen offset:{4*i}\n s_nop 1")
    a("s_waitcnt vmcnt(0)")

def srd(a, d, lo, nbytes):
    nb = nbytes if isinstance(nbytes, str) else hex(nbytes)
    a(f"s_mov_b32 s{d}, s{lo}\n s_and_b32 s{d+1}, s{lo+1}, 0xffff\n s_mov_b32 s{d+2}, {nb}\n s_mov_b32 s{d+3}, 0x20000")

def poll(a, vaddr, vt, soff="0", sleep=None):
    L = a.lab("poll")
    a(f"""
    s_mov_b32 s{T0+11}, {SPIN}
    {L}:
    buffer_load_dwordx2 {vr(vt,2)}, v{vaddr}, {sr(sWS)}, {soff} offen sc1
    s_waitcnt vmcnt(0)
    v_cmp_ne_u64 vcc, {sr(sTAG,2)}, {vr(vt,2)}
    s_sub_u32 s{T0+11}, s{T0+11}, 1
    s_cbranch_scc1 {L}_x
    s_cmp_eq_u64 vcc, 0
    s_cbranch_scc1 {L}_x
    {"s_mov_b64 exec, vcc" if OPT["shr"] else ""}
    s_sleep {OPT['sleep'] if sleep is None else sleep}
    s_branch {L}
    {L}_x:
    s_mov_b64 exec, -1
    """)
    a.q = []

def set_flag(a, soff, vt):
    a(f"""
    v_mov_b32 v{vt}, s{sTAG}
    v_mov_b32 v{vt+1}, s{sTAG+1}
    s_mov_b64 exec, 1
    """)
    a.vm(f"buffer_store_dwordx2 {vr(vt,2)}, v{vL16}, {sr(sWS)}, s{soff} offen sc1", "flag")
    a("s_mov_b64 exec, -1")

def zero_foreign(a, q):
    L = a.lab("zf")
    a(f"""
    s_cmp_eq_u32 s{sODD}, 0
    s_cbranch_scc1 {L}_e
    s_mov_b32 exec_hi, 0
    v_mov_b32 v{q}, 0
    v_mov_b32 v{q+1}, 0
    s_branch {L}_x
    {L}_e:
    s_mov_b32 exec_lo, 0
    v_mov_b32 v{q+6}, 0
    v_mov_b32 v{q+7}, 0
    {L}_x:
    s_mov_b64 exec, -1
    """)

SLOT = 32768
def pslot(s): return (4, 3, 2)[s % 3] * SLOT
WOA_L = (2 * SLOT, 4 * SLOT)
WOB_L = 0
QST_L = 2 * SLOT
XC1_L = 448 * 128
XC2_L = 3 * SLOT
XHA_L = 3 * SLOT + 16384
XFI_L = 3 * SLOT
HFL_L = 2 * SLOT + 28672
vL16 = 2

def p1_role(a, bi):
    a(f"""
    s_lshr_b32 s{sRB}, s{sXCD}, 1
    s_lshl_b32 s{sRB}, s{sRB}, 3
    s_and_b32 s3, s{sJ}, 7
    s_add_u32 s{sRB}, s{sRB}, s3
    s_xor_b32 s3, s{sXCD}, {bi}
    s_and_b32 s3, s3, 1
    s_lshl_b32 s3, s3, 2
    s_lshr_b32 s{sCG}, s{sJ}, 3
    s_add_u32 s{sCG}, s{sCG}, s3
    s_cmp_lt_u32 s{sCG}, 7
    s_cselect_b32 s{sACT}, 1, 0
    """)

def roles(a):
    a(f"""
    s_lshr_b32 s{sCG3}, s{sJ}, 2
    s_min_u32 s{sCG3}, s{sCG3}, 6
    s_and_b32 s3, s{sJ}, 3
    s_lshl_b32 s{sRBK}, s{sXCD}, 2
    s_add_u32 s{sRBK}, s{sRBK}, s3
    s_lshl_b32 s{sH}, s{sXCD}, 1
    s_lshr_b32 s{sODD}, s{sJ}, 4
    s_add_u32 s{sH}, s{sH}, s{sODD}
    s_and_b32 s{sQB}, s{sJ}, 15
    s_mul_i32 s{sU0}, s{sH}, 7
    s_lshr_b32 s{sU0}, s{sU0}, 1
    s_cmp_eq_u32 s{sODD}, 0
    s_cselect_b32 s{sVM}, 0x0fffffff, 0xfffffff0
    s_mov_b32 s{sVM+1}, s{sVM}
    v_lshlrev_b32 v{vL16}, 4, v0
    """)

def gen():
    a = Asm()
    K = NAME + "_kernel"
    a.lines.append(f".globl {K}\n.p2align 8\n.type {K},@function\n{K}:")
    a(f"""
    s_load_dwordx16 s[4:19], s[0:1], 0
    s_load_dwordx2 s[20:21], s[0:1], 64
    s_cmp_ge_u32 s2, 256
    s_cbranch_scc1 L_end
    """)
    stamp(a, 0, rt=True); stamp(a, 1)
    if OPT["padrt"]: a("s_memrealtime s[96:97]")
    if OPT["padcy"]: a("s_memtime s[96:97]")
    a(f"""
    v_lshrrev_b32 v1, 6, v0
    v_and_b32 v0, 63, v0
    s_and_b32 s{sXCD}, s2, 7
    v_readfirstlane_b32 s{sW}, v1
    s_lshr_b32 s{sJ}, s2, 3
    s_nop 1
    s_and_b32 s{sR}, s{sW}, 3
    s_lshr_b32 s{sC}, s{sW}, 2
    """)
    if OPT["pads"]:
        a(f"""
        s_cmp_lt_u32 s{sW}, 2
        s_cbranch_scc1 L_gemm
        s_cmp_lt_u32 s{sW}, 4
        s_cbranch_scc1 L_pad0
        s_cmp_lt_u32 s{sW}, 6
        s_cbranch_scc1 L_pad1
        s_cmp_lt_u32 s{sW}, 8
        s_cbranch_scc1 L_pad2
        """)
    else:
        a(f"s_cmp_lt_u32 s{sW}, 8\n s_cbranch_scc1 L_gemm")
    gen_loader(a)
    gen_bskip(a)
    a("L_gemm:")
    gen_gemm(a)
    gen_publish(a)
    gen_attn(a)
    a("L_helper:")
    gen_helper(a)
    a("L_end:\n s_endpgm")
    a(".p2align 4\n L_ones:\n .long 0x3f803f80, 0x3f803f80, 0x3f803f80, 0x3f803f80")
    a("L_code_end:")
    return a

def make_tag(a, vt):
    a(f"""
    v_readfirstlane_b32 s{sTAG}, v{vt}
    s_nop 3
    s_mul_i32 s{sTAG}, s{sTAG}, 0x9e3779b1
    s_add_u32 s{sTAG}, s{sTAG}, 0x7f4a7c15
    s_not_b32 s{sTAG+1}, s{sTAG}
    """)

def finalize(a, o, n, l):
    a(f"v_rcp_f32 v{l}, v{l}\n s_nop 0")
    for i in range(n):
        a(f"v_mul_f32 v{o+i}, v{l}, v{o+i}")
    for i in range(n // 2):
        a(f"v_cvt_pk_bf16_f32 v{o+i}, v{o+2*i}, v{o+2*i+1}")
    a("s_nop 1")
    for g in range(0, n // 2, 4):
        a(f"v_permlane32_swap_b32 v{o+g}, v{o+g+2}\n v_permlane32_swap_b32 v{o+g+1}, v{o+g+3}")

def bcast_l(a, src_e, src_o, t):
    L = a.lab("bl")
    a(f"""
    s_cmp_eq_u32 s{sODD}, 0
    s_cbranch_scc1 {L}_e
    v_mov_b32 v{t}, v{src_o}
    v_mov_b32 v{t+1}, v{src_o}
    s_nop 1
    v_permlane32_swap_b32 v{t}, v{t+1}
    s_branch {L}_x
    {L}_e:
    v_mov_b32 v{t}, v{src_e}
    v_mov_b32 v{t+1}, v{src_e}
    s_nop 1
    v_permlane32_swap_b32 v{t+1}, v{t}
    {L}_x:
    s_nop 1
    """)

def store_units(a, p, first, soff, off):
    L = a.lab("su")
    full = f"buffer_store_dwordx4 {vr(p,4)}, v{vL16}, {sr(sWS)}, s{soff} offen offset:{off} sc1"
    if first:
        a(f"""
        s_cmp_eq_u32 s{sODD}, 0
        s_cbranch_scc1 {L}_f
        s_mov_b32 exec_hi, 0
        buffer_store_dwordx2 {vr(p+2,2)}, v{vL16}, {sr(sWS)}, s{soff} offen offset:{off+8} sc1
        s_not_b64 exec, exec
        {L}_f:
        {full}
        s_mov_b64 exec, -1
        """)
    else:
        a(f"""
        s_cmp_eq_u32 s{sODD}, 1
        s_cbranch_scc1 {L}_f
        s_mov_b32 exec_lo, 0
        buffer_store_dwordx2 {vr(p,2)}, v{vL16}, {sr(sWS)}, s{soff} offen offset:{off} sc1
        s_not_b64 exec, exec
        {L}_f:
        {full}
        s_mov_b64 exec, -1
        """)

def dma_lanes(a, d, t):
    a(f"""
    v_lshrrev_b32 v{t}, 3, v0
    v_and_b32 v{t+1}, 7, v0
    v_lshrrev_b32 v{t+2}, 4, v0
    s_lshl_b32 s3, s{sR}, 4
    v_add_u32 v{t}, s3, v{t}
    v_mul_u32_u24 v{d+2}, 2688, v{t}
    v_mul_u32_u24 v{t}, 896, v{t}
    v_xor_b32 v{d}, v{t+1}, v{t+2}
    v_lshlrev_b32 v{d}, 4, v{d}
    v_add_u32 v{d}, v{t}, v{d}
    v_add_u32 v{d+1}, {8*896}, v{d}
    v_xor_b32 v{d+1}, 64, v{d+1}
    v_and_b32 v{t}, 1, v{t+2}
    v_lshlrev_b32 v{t}, 2, v{t}
    v_xor_b32 v{t}, v{t}, v{t+1}
    v_lshlrev_b32 v{t}, 4, v{t}
    v_add_u32 v{d+2}, v{d+2}, v{t}
    """)
def dma_tile(a, sCH, sXb, sWb, t, px):
    a(f"""
    s_cmp_lg_u32 s{sACT}, 0
    s_cselect_b32 s{t}, {X_BYTES}, 0
    s_cselect_b32 s{t+1}, {W_BYTES}, 0
    s_mul_i32 s{sXb}, s{sRB}, {64*896}
    s_lshl_b32 s{sWb}, s{sCG}, 7
    """)
    mode = OPT["rmb"] if px == 10 else OPT["rma"]
    if mode == 0:
        a(f"""
        s_and_b32 s3, s{sCG}, 3
        s_lshl_b32 s3, s3, 1
        s_and_b32 s{sCH}, s{sRB}, 7
        s_add_u32 s{sCH}, s{sCH}, s3
        """)
    else:
        if mode == 1: a(f"s_mov_b32 s{sCH}, 0")
        if mode == 2: a(f"s_xor_b32 s{sCH}, s{sRB}, s{sCG}\n s_and_b32 s{sCH}, s{sCH}, 1\n s_mul_i32 s{sCH}, s{sCH}, 3")
        if mode == 4: a(f"s_add_u32 s{sCH}, s{sRB}, s{sCG}\n s_and_b32 s{sCH}, s{sCH}, 3\n s_lshl_b32 s{sCH}, s{sCH}, 1")
        a(f"s_add_u32 s{sCH}, s{sCH}, s{sXCD}")
    a(f"""
    s_cmp_ge_u32 s{sCH}, 7
    s_cselect_b32 s3, 7, 0
    s_sub_u32 s{sCH}, s{sCH}, s3
    """)
def dma_stage(a, d, sCH, sXb, sWb, sSl, t, fill):
    a(f"""
    s_lshl_b32 s{t}, s{sCH}, 7
    s_mov_b32 m0, s{sSl}
    s_add_u32 s{t}, s{t}, s{sXb}
    s_mul_i32 s{t+1}, s{sCH}, {64*2688}
    buffer_load_dwordx4 v{d}, {sr(sX)}, s{t} offen lds
    s_add_u32 m0, s{sSl}, 1024
    s_add_u32 s{t+1}, s{t+1}, s{sWb}
    buffer_load_dwordx4 v{d+1}, {sr(sX)}, s{t} offen lds
    """)
    fill = list(fill) + [""] * 6
    for p in (1, 2, 0):
        for i in range(2):
            a(f"s_add_u32 m0, s{sSl}, {8192 + p*8192 + i*1024}")
            a(f"s_add_u32 s{t}, s{t+1}, {p*896 + i*8*2688}")
            a(f"buffer_load_dwordx4 v{d+2}, {sr(sWt)}, s{t} offen lds")
            a(fill.pop(0))

def gen_loader(a):
    sCH, sSl, sN, sXb, sWb = 40, T0 + 7, T0 + 6, T0 + 5, T0 + 4
    a("s_setprio 3")
    def pad(i):
        if OPT["pads"]: a(f"s_cmp_lg_u32 0, 0\n L_pad{i}:\n s_cbranch_scc1 L_gemm")
    dma_lanes(a, 4, 8)
    p1_role(a, 0)
    pad(0)
    dma_tile(a, sCH, sXb, sWb, T0, 10)
    a(f"""
    s_lshl_b32 s{sSl}, s{sR}, 11
    s_mov_b32 s{sN}, 0
    """)
    stamp(a, 5)
    a("s_waitcnt lgkmcnt(0)")
    stamp(a, 6)
    srd(a, sX, 10, f"s{T0}")
    srd(a, sWt, 12, f"s{T0+1}")
    pad(1)
    stamp(a, 7)
    nxt = [f"s_add_u32 s{sCH}, s{sCH}, 1", f"s_cmp_eq_u32 s{sCH}, 7\n s_cselect_b32 s{sCH}, 0, s{sCH}"]
    def late():
        roles(a)
        attn_setup(a, 1)
        srd(a, sWS, 20, WS_USED)
        srd(a, sOUT, 16, OUT_BYTES)
        a(f"s_mov_b32 s{sC}, 1")
    if OPT["lsu"] == 0:
        dma_stage(a, 4, sCH, sXb, sWb, sSl, T0, nxt + ([f"s_cmp_lg_u32 0, 0\n L_pad2:\n s_cbranch_scc1 L_gemm"] if OPT["pads"] else []))
        lstamp(a, 0)
        if OPT["prof"]:
            a("v_writelane_b32 v1, s90, 1\n v_writelane_b32 v1, s92, 2\n v_writelane_b32 v1, s94, 3")
            if OPT["sst"]:
                a("s_waitcnt vmcnt(7)"); lstamp(a, 4); a("s_waitcnt vmcnt(0)"); lstamp(a, 5)
        a(f"s_add_u32 s{sSl}, s{sSl}, {SLOT}\n s_mov_b32 s{sN}, 1")
        late()
        if OPT["skip"]:
            a(f"""
            s_cmp_lg_u32 s{sACT}, 0
            s_cbranch_scc1 H1_loop
            s_barrier
            s_branch H1_sw
            """)
    a("H1_loop:")
    dma_stage(a, 4, sCH, sXb, sWb, sSl, T0, nxt + [f"s_add_u32 s{sN}, s{sN}, 1"])
    a(f"""
    s_add_u32 s{sSl}, s{sSl}, {SLOT}
    s_and_b32 s{sSl}, s{sSl}, {4*SLOT-1}
    """)
    if OPT["lsu"]: a(f"s_cmp_eq_u32 s{sN}, 1\n s_cbranch_scc1 H1_loop")
    a("s_waitcnt vmcnt(8)\n s_barrier")
    if OPT["prof"] and OPT["lst"]:
        a(f"s_add_u32 s3, s{sN}, 31"); lstamp(a, "s3")
    a(f"s_cmp_lg_u32 s{sN}, 7\n s_cbranch_scc1 H1_same\n H1_sw:")
    p1_role(a, 1)
    dma_tile(a, sCH, sXb, sWb, T0, 4)
    srd(a, sX, 4, f"s{T0}")
    srd(a, sWt, 6, f"s{T0+1}")
    for l in nxt: a(l)
    a(f"""
    s_lshl_b32 s{sSl}, s{sR}, 11
    s_mov_b32 s{sN}, 8
    H1_same:
    s_cmp_lt_u32 s{sN}, 14
    s_cbranch_scc1 H1_loop
    """)
    if OPT["lsu"]: late()
    a("s_waitcnt vmcnt(0)")
    if OPT["padat"] == 7: a("s_memrealtime s[96:97]")
    if not OPT["mg"]: a("s_barrier")
    stamp(a, 2)
    a("s_branch C_attn")

vVs, vWo, vFa, vPo, vWa, vOa, vXa, vPar, vHalf, VM, NG, vZ = 15, 16, 17, 18, 19, 21, 22, 24, 25, 144, 156, 9
sKb, sVb, sTile, sM, sHRT = 8, 9, 10, 11, 12
def kv_setup(a, first):
    sRT = sHRT
    a(f"""
    s_lshl_b32 s{sM}, s{sR}, 12
    s_lshl_b32 s{sKb}, s{sU0}, 9
    s_lshl_b32 s{sVb}, s{sU0}, 7
    s_lshl_b32 s{sRT}, s{sQB}, 2
    s_add_u32 s{sRT}, s{sRT}, s{sR}
    s_and_b32 s{sTile}, s{sQB}, {OPT["rot"]}
    s_add_u32 s{sTile}, s{sTile}, {first}
    s_lshl_b32 s{sTile}, s{sTile}, 3
    s_lshl_b32 s3, s{sR}, 1
    s_add_u32 s{sTile}, s{sTile}, s3
    s_and_b32 s{sTile}, s{sTile}, 63
    """)
def kv(a, s):
    base = pslot(s)
    a(f"""
    s_mul_i32 s{T0}, s{sTile}, {RT}
    s_add_u32 m0, s{sM}, {base}
    s_add_u32 s22, s{T0}, s{sKb}
    s_add_u32 s22, s22, {BR + KU}
    """)
    a.vm(f"buffer_load_dwordx4 v{vL16}, {sr(sWS)}, s22 offen sc1 lds", f"kv{s}")
    a(f"s_add_u32 s23, s22, {RT - 2048}")
    a.vm(f"buffer_load_dwordx4 v{vL16}, {sr(sWS)}, s22 offen offset:1024 sc1 lds", f"kv{s}")
    a(f"s_add_u32 s{T0}, s{T0}, s{sVb}")
    a.vm(f"buffer_load_dwordx4 v{vL16}, {sr(sWS)}, s23 offen offset:2048 sc1 lds", f"kv{s}")
    a(f"s_add_u32 s{T0}, s{T0}, {BR + VU}")
    a.vm(f"buffer_load_dwordx4 v{vL16}, {sr(sWS)}, s23 offen offset:3072 sc1 lds", f"kv{s}")
    a(f"s_add_u32 m0, s{sM}, {base + 16384}\n s_mov_b64 exec, {sr(sVM,2)}")
    for i in range(4):
        a.vm(f"buffer_load_dwordx4 v{vVs}, {sr(sWS)}, s{T0} offen offset:{i*1024} sc1 lds", f"kv{s}")
        if i < 3: a(f"s_add_u32 s{T0}, s{T0}, {14336 - 1024}")
    if s in (0, 1, 2):
        a("s_not_b64 exec, exec")
        for i in range(4):
            a.vm(f"global_load_lds_dwordx4 v{vZ}, s[18:19]", f"kv{s}")
            if i < 3: a(f"s_add_u32 m0, s{sM}, {base + 16384 + (i+1)*1024}\n s_nop 0")
    a(f"""
    s_mov_b64 exec, -1
    s_add_u32 s{sTile}, s{sTile}, 8
    s_and_b32 s{sTile}, s{sTile}, 63
    """)
def helper_setup(a, part):
    T = 160; sRT = sHRT
    if part == 0:
        kv_setup(a, 1)
        a(f"""
        v_bfe_u32 v{T}, v0, 3, 1
        v_mul_u32_u24 v{T}, 3, v{T}
        v_add_u32 v{T}, s{sU0}, v{T}
        v_lshrrev_b32 v{T+3}, 2, v{T}
        v_lshlrev_b32 v{T+3}, 6, v{T+3}
        s_cmp_eq_u32 s{sRT}, 0
        s_cselect_b32 s3, 0, 1
        v_and_b32 v{T+2}, s3, v0
        v_sub_u32 v{T+2}, s{sRT}, v{T+2}
        v_add_u32 v{T+2}, v{T+2}, v{T+3}
        v_lshlrev_b32 v{T+2}, {FS}, v{T+2}
        v_add_u32 v{vFa}, {FA}, v{T+2}
        """)
    if part == 1:
        a(f"""
        v_lshrrev_b32 v{T}, 3, v0
        s_lshl_b32 s3, s{sR}, 3
        v_add_u32 v{T+1}, s3, v{T}
        v_mul_u32_u24 v{T+1}, 896, v{T+1}
        v_and_b32 v{T}, 2, v{T}
        s_and_b32 s3, s{sR}, 1
        v_or_b32 v{T}, s3, v{T}
        v_lshlrev_b32 v{T}, 1, v{T}
        v_and_b32 v{T+2}, 7, v0
        v_xor_b32 v{T}, v{T}, v{T+2}
        v_lshlrev_b32 v{T}, 4, v{T}
        v_add_u32 v{T+1}, v{T+1}, v{T}
        s_lshl_b32 s3, s{sCG3}, 7
        v_add_u32 v{vWo}, s3, v{T+1}
        v_lshlrev_b32 v{vPo}, {FS}, v{T+2}
        v_lshrrev_b32 v{T+1}, 2, v0
        v_and_b32 v{T+1}, 3, v{T+1}
        v_lshlrev_b32 v{T+2}, 3, v27
        v_add_u32 v{T+2}, v{T+2}, v{T+1}
        v_lshlrev_b32 v{T+2}, 7, v{T+2}
        v_and_b32 v{T+1}, 2, v{T+1}
        v_or_b32 v{T+1}, v{T+1}, v27
        v_bfe_u32 v{T+3}, v0, 4, 1
        v_xor_b32 v{T+1}, v{T+1}, v{T+3}
        v_lshlrev_b32 v{T+1}, 5, v{T+1}
        v_add_u32 v{T+2}, v{T+2}, v{T+1}
        v_and_b32 v{T+1}, 3, v0
        v_lshlrev_b32 v{T+1}, 3, v{T+1}
        v_add_u32 v{T+2}, v{T+2}, v{T+1}
        s_lshr_b32 s3, s{sR}, 1
        s_mul_i32 s3, s3, {WOA_L[1] - WOA_L[0]}
        s_add_u32 s3, s3, {WOA_L[0]}
        v_add_u32 v{vWa}, s3, v{T+2}
        v_xor_b32 v{vWa+1}, 64, v{vWa}
        v_mul_u32_u24 v{vOa}, 1792, v26
        v_lshlrev_b32 v{T}, 4, v27
        v_add_u32 v{vOa}, v{vOa}, v{T}
        s_add_u32 s3, s{sM}, {XHA_L}
        v_add_u32 v{vXa}, s3, v{vL16}
        v_xor_b32 v{vXa+1}, {2*4096}, v{vXa}
        """)
    if part == 2:
        a(f"""
        v_lshlrev_b32 v{T+1}, 2, v27
        v_and_b32 v{T}, 30, v0
        v_sub_u32 v{T}, v{T}, v{T+1}
        v_add_u32 v{T}, 18, v{T}
        v_mov_b32 v{T+2}, 0x5555
        v_mov_b32 v{T+3}, 0
        v_lshlrev_b64 {vr(T+2,2)}, v{T}, {vr(T+2,2)}
        s_cmp_eq_u32 s{sRT}, 0
        s_cselect_b32 s3, 0, -1
        v_and_b32 v{T+2}, s3, v{T+2}
        v_bfe_i32 v{vPar}, v0, 0, 1
        v_xor_b32 v{vHalf}, 0xffff, v{vPar}
        s_mov_b32 s3, 0xf149f2ca
        """)
        for i in range(12):
            pos = 16 + 8 * (i // 2) + 2 * (i % 2)
            a(f"v_bfe_i32 v{VM+i}, v{T+2 + pos//32}, {pos % 32}, 1")
        for g in range(4):
            a(f"v_bitop3_b32 v{NG+g}, v{VM+g}, v{VM+g+4}, v{VM+g+8} bitop3:0x01\n v_and_b32 v{NG+g}, s3, v{NG+g}")

def store_offsets(a, base, d):
    a(f"""
    s_lshl_b32 s{d+4}, s{sRB}, 1
    s_and_b32 s3, s{sR}, 1
    s_add_u32 s{d+4}, s{d+4}, s3
    s_mul_i32 s{d+3}, s{d+4}, {RT}
    s_cmp_eq_u32 s{sACT}, 0
    s_cselect_b32 s3, {WS_OOB}, 0
    s_add_u32 s{d+3}, s{d+3}, s3
    s_add_u32 s{d+3}, s{d+3}, {base}
    s_lshl_b32 s{d+2}, s{sCG}, 1
    s_lshr_b32 s3, s{sR}, 1
    s_add_u32 s{d+2}, s{d+2}, s3
    s_lshl_b32 s3, s{d+2}, 6
    s_add_u32 s{d+4}, s{d+4}, s3
    s_lshl_b32 s{d}, s{d+2}, 11
    s_add_u32 s{d}, s{d}, s{d+3}
    s_add_u32 s{d+1}, s{d}, {KU}
    s_lshl_b32 s{d+2}, s{d+2}, 9
    s_add_u32 s{d+2}, s{d+2}, s{d+3}
    s_add_u32 s{d+2}, s{d+2}, {VU}
    s_add_u32 s{d+3}, s{d+2}, 14336
    """)
def qkv_stores(p, d):
    return [f"buffer_store_dwordx4 {vr(p+16,4)}, v{vVs}, {sr(sWS)}, s{d+2} offen sc1",
            f"buffer_store_dwordx4 {vr(p+20,4)}, v{vVs}, {sr(sWS)}, s{d+3} offen sc1",
            f"buffer_store_dwordx4 {vr(p+8,4)}, v{vL16}, {sr(sWS)}, s{d+1} offen sc1",
            f"buffer_store_dwordx4 {vr(p+12,4)}, v{vL16}, {sr(sWS)}, s{d+1} offen offset:1024 sc1",
            f"buffer_store_dwordx4 {vr(p,4)}, v{vL16}, {sr(sWS)}, s{d} offen sc1",
            f"buffer_store_dwordx4 {vr(p+4,4)}, v{vL16}, {sr(sWS)}, s{d} offen offset:1024 sc1"]

def gen_gemm(a):
    vXA, vWA = 10, 14
    accQ, accK, accV = 32, 48, 64
    a(f"""
    v_and_b32 v26, 31, v0
    v_lshrrev_b32 v27, 5, v0
    v_lshrrev_b32 v28, 1, v26
    v_and_b32 v28, 7, v28
    v_xor_b32 v28, v28, v27
    v_lshlrev_b32 v28, 4, v28
    s_mul_i32 s{T0}, s{sC}, {4*SLOT}
    s_and_b32 s3, s{sW}, 1
    s_lshl_b32 s3, s3, 12
    s_add_u32 s3, s3, s{T0}
    v_lshlrev_b32 v29, 7, v26
    v_add_u32 v29, s3, v29
    v_add_u32 v{vXA}, v29, v28
    v_xor_b32 v{vXA+1}, 32, v{vXA}
    v_xor_b32 v{vXA+2}, 64, v{vXA}
    v_xor_b32 v{vXA+3}, 96, v{vXA}
    s_lshr_b32 s{T0+1}, s{sR}, 1
    v_lshrrev_b32 v28, 2, v0
    v_and_b32 v28, 3, v28
    v_lshlrev_b32 v29, 3, v27
    v_add_u32 v29, v29, v28
    v_lshlrev_b32 v29, 7, v29
    v_lshrrev_b32 v28, 1, v28
    v_xor_b32 v28, s{T0+1}, v28
    v_lshlrev_b32 v28, 6, v28
    v_add_u32 v29, v29, v28
    v_and_b32 v28, 16, v0
    v_lshlrev_b32 v28, 1, v28
    v_add_u32 v29, v29, v28
    v_and_b32 v28, 3, v0
    v_lshlrev_b32 v28, 3, v28
    v_add_u32 v29, v29, v28
    v_add_u32 v{vWA}, s{T0}, v29
    """)
    for i in range(48):
        a(f"v_mov_b32 v{accQ+i}, 0")
    roles(a)
    a(f"""
    s_mov_b32 s{T0+6}, {hex(f32bits(CSCALE))}
    v_mov_b32 v{vZ}, 0
    v_mov_b32 v{vWo}, 0
    v_mov_b32 v{vFa}, 0
    v_mov_b32 v{vPo}, 0
    v_mov_b32 v{vOa}, 0
    v_mul_u32_u24 v{vVs}, {7168-512}, v27
    v_add_u32 v{vVs}, v{vVs}, v{vL16}
    """)
    p1_role(a, f"s{sC}")
    a(f"s_cmp_eq_u32 s{sC}, 0\n s_cselect_b32 s{T0}, {BR}, 0")
    store_offsets(a, f"s{T0}", T0 + 1)
    a(f"""
    s_waitcnt lgkmcnt(0)
    """)
    srd(a, sWS, 20, WS_USED)
    a(f"""
    v_mov_b32 v4, {EPOCH}
    buffer_load_dword v4, v4, {sr(sWS)}, 0 offen sc1
    """)
    srd(a, sOUT, 16, OUT_BYTES)
    srd(a, sWoA, 8, WO_BYTES)
    srd(a, sWoB, 14, WO_BYTES)
    a(f"""
    s_getpc_b64 s[18:19]
    H_pc:
    s_add_u32 s18, s18, L_ones-H_pc
    s_addc_u32 s19, s19, 0
    s_mov_b32 s{T0+11}, {SLOT}
    s_cmp_eq_u32 s{sC}, 0
    s_cbranch_scc1 C_bb
    """)
    if OPT["prefetch"]:
        a(f"""
        s_lshl_b32 s3, s{sJ}, 2
        s_add_u32 s3, s3, s{sR}
        s_lshl_b32 s3, s3, 7
        s_min_u32 s3, s3, L_ones-C_b0-64
        s_sub_u32 s22, s18, L_ones-C_b0
        s_subb_u32 s23, s19, 0
        s_load_dword s0, s[22:23], s3
        s_add_u32 s3, s3, 64
        s_load_dword s0, s[22:23], s3
        """)
    dma_lanes(a, 5, 164)
    dma_tile(a, 14, 15, 16, 22, 4)
    srd(a, sX, 4, "s22")
    srd(a, sWt, 6, "s23")
    a(f"s_lshl_b32 s17, s{sR}, 11\n s_add_u32 s17, s17, {4*SLOT}\n s_mov_b32 s{T0+11}, 0")
    if OPT["ipf"]:
        a(f"""
        s_and_b32 s3, s2, {0xc1}
        s_cmp_lg_u32 s3, {0xc1}
        s_cbranch_scc1 C_nipf
        s_lshl_b32 s3, s{sRB}, 2
        s_add_u32 s3, s3, s{sR}
        s_mul_i32 s22, s3, 14336
        s_mul_i32 s23, s3, 9408
        s_and_b32 s23, s23, -128
        s_mov_b32 m0, s17
        """)
        if OPT["ipw"]: a("s_waitcnt vmcnt(0)")
        for i in range(14):
            a(f"buffer_load_dwordx4 v{vL16}, {sr(sX)}, s22 offen lds\n s_add_u32 s22, s22, 1024")
            if i < 10: a(f"buffer_load_dwordx4 v{vL16}, {sr(sWt)}, s23 offen lds\n s_add_u32 s23, s23, 1024")
        a("C_nipf:")
    steps = [lambda: helper_setup(a, 0), lambda: helper_setup(a, 1), lambda: helper_setup(a, 2)]
    for b in range(-1, 6):
        if b == 5 or (b >= 0 and not OPT["skip"]): a("s_barrier")
        elif b >= 0: a(f"s_and_b32 s3, s2, 0xc1\n s_cmp_eq_u32 s3, 0xc1\n s_cbranch_scc1 C_sk{b}\n s_barrier\n C_sk{b}:")
        if b == OPT["tpos"] and OPT["tch"] >= 2:
            a(f"""
            v_and_b32 v8, 7, v0
            s_mov_b32 s3, {MAT}
            v_mul_lo_u32 v8, v8, s3
            s_and_b32 s3, s{T0+1}, {WS_OOB - 1}
            s_mov_b64 exec, 0xff
            buffer_load_dword v3, v8, {sr(sWS)}, s3 offen sc1
            """)
            if OPT["tch"] >= 3:
                a(f"""
                s_mul_i32 s3, s{sRBK}, {64*1792}
                s_mov_b64 exec, 1
                buffer_load_dword v3, v8, {sr(sOUT)}, s3 offen sc1
                buffer_load_dword v3, v8, {sr(sWoA)}, 0 offen
                buffer_load_dword v3, v8, {sr(sWoB)}, 0 offen
                """)
            a("s_mov_b64 exec, -1")
        if b == 0 and OPT["tch"] == 1:
            a("s_load_dword s0, s[4:5], 0\n s_load_dword s0, s[6:7], 0")
        if b == OPT["apos"]: dma_stage(a, 5, 14, 15, 16, 17, 22, [])
        elif b == 5: a("s_waitcnt vmcnt(0) lgkmcnt(0)"); make_tag(a, 4)
        elif steps: steps.pop(0)()
    assert not steps
    a(f"""
    C_b0:
    s_mov_b32 s{T0+7}, 7
    s_branch C_w0
    C_w:
    s_barrier
    s_branch C_w1
    C_w0:
    s_barrier
    s_memrealtime s[96:97]
    s_waitcnt lgkmcnt(0)
    C_w1:
    """ if OPT["padat"] == 5 else f"""
    C_b0:
    s_mov_b32 s{T0+7}, 7
    C_w:
    s_barrier
    """)
    F = [80, 96, 112, 128]
    def rlist(ks):
        f = F[ks]
        r = [f"ds_read_b128 {vr(f,4)}, v{vXA+ks}"]
        for p in (1, 2, 0):
            for j in range(2):
                r.append(f"ds_read_b64_tr_b16 {vr(f+4+4*p+2*j,2)}, v{vWA} offset:{8192+p*8192+ks*2048+j*512}")
        return r
    def mlist(ks):
        f = F[ks]
        return [f"{MF32} {vr(accK,16)}, {vr(f+8,4)}, {vr(f,4)}, {vr(accK,16)}",
                f"{MF32} {vr(accV,16)}, {vr(f,4)}, {vr(f+12,4)}, {vr(accV,16)}",
                f"{MF32} {vr(accQ,16)}, {vr(f+4,4)}, {vr(f,4)}, {vr(accQ,16)}"]
    def step(ks, rd):
        m = mlist(ks)
        r = rlist((ks + 2) % 4) if rd else [""] * 7
        a(m[0]); a(r[0]); a(r[1]); a(r[2]); a(m[1]); a(r[3]); a(r[4]); a(m[2]); a(r[5]); a(r[6])
    for l in rlist(0) + rlist(1): a(l)
    if OPT["mg"]: a(f"s_cmp_eq_u32 s{T0+7}, s{sC}\n s_cbranch_scc1 H_kv1")
    a("C_g:")
    a("s_waitcnt lgkmcnt(7)"); step(0, True)
    a("s_waitcnt lgkmcnt(7)"); step(1, True)
    for r in range(vXA, vXA + 5):
        a(f"v_add_u32 v{r}, s{T0+11}, v{r}\n v_and_b32 v{r}, {4*SLOT-1}, v{r}")
    a(f"""
    s_mov_b32 s{T0+11}, {SLOT}
    s_sub_u32 s{T0+7}, s{T0+7}, 1
    s_cmp_le_u32 s{T0+7}, 1
    s_cbranch_scc1 C_gx
    s_waitcnt lgkmcnt(0)
    s_barrier
    """)
    step(2, True)
    step(3, True)
    a("s_branch C_g\n C_gx:")
    a("s_waitcnt lgkmcnt(7)"); step(2, False)
    a("s_waitcnt lgkmcnt(0)"); step(3, False)
    a(f"s_cmp_eq_u32 s{T0+7}, 1\n s_cbranch_scc1 C_w")
    stamp(a, 3)
    a("s_nop 8")
    P = 80
    st = qkv_stores(P, T0 + 1)
    for i in range(8):
        a(f"v_cvt_pk_bf16_f32 v{P+8+i}, v{accK+2*i}, v{accK+2*i+1}")
    for i in range(8):
        a(f"v_cvt_pk_bf16_f32 v{P+16+i}, v{accV+2*i}, v{accV+2*i+1}")
    for g in (8, 12):
        a(f"v_permlane32_swap_b32 v{P+g}, v{P+g+2}\n v_permlane32_swap_b32 v{P+g+1}, v{P+g+3}")
    a(f"s_cmp_lg_u32 s{sC}, 0\n s_cbranch_scc1 C_ns")
    for l in st[:4]: a(l)
    a("C_ns:")
    for i in range(16):
        a(f"v_mul_f32 v{accQ+i}, s{T0+6}, v{accQ+i}")
    for i in range(8):
        a(f"v_cvt_pk_bf16_f32 v{P+i}, v{accQ+2*i}, v{accQ+2*i+1}")
    a("s_nop 1")
    for g in (0, 4):
        a(f"v_permlane32_swap_b32 v{P+g}, v{P+g+2}\n v_permlane32_swap_b32 v{P+g+1}, v{P+g+3}")
    a(f"s_cbranch_scc1 L_helper")

def gen_bskip(a):
    a("C_bb:")
    if OPT["skip"]:
        a(f"s_cmp_lg_u32 s{sACT}, 0\n s_cbranch_scc1 C_b0\n s_barrier\n s_barrier\n s_branch C_pub")
    else:
        a("s_branch C_b0")

def gen_publish(a):
    T, vFl = 28, 32
    sRT = sHRT
    kd, pp = OPT["kd"], OPT["pp"]
    for l in qkv_stores(80, T0 + 1)[4:]: a(l)
    a("C_pub:")
    if OPT["padat"] == 3: a("s_memrealtime s[96:97]")
    lstamp(a, 0)
    a("s_barrier")
    a(f"""
    s_lshl_b32 s3, s{sCG}, 5
    s_add_u32 s3, s3, s{sRB}
    s_lshl_b32 s3, s3, {FS}
    s_add_u32 s13, s3, {FB}
    """)
    kv_setup(a, 0)
    a(f"""
    v_bfe_u32 v{T}, v0, 3, 1
    v_mul_u32_u24 v{T}, 3, v{T}
    v_add_u32 v{T}, s{sU0}, v{T}
    v_lshrrev_b32 v{T+3}, 3, v{T}
    v_lshlrev_b32 v{T+3}, 5, v{T+3}
    s_lshr_b32 s3, s{sRT}, 1
    v_mov_b32 v{T+1}, s3
    s_mov_b64 exec, 0xffff
    v_and_b32 v{T+1}, 7, v0
    v_lshlrev_b32 v{T+1}, 2, v{T+1}
    v_add_u32 v{T+1}, s{sR}, v{T+1}
    s_mov_b64 exec, -1
    v_add_u32 v{T+1}, v{T+1}, v{T+3}
    v_lshlrev_b32 v{T+1}, {FS}, v{T+1}
    v_add_u32 v{vFl}, {FB}, v{T+1}
    """)
    attn_setup(a, 0)
    def qload():
        a(f"""
        s_lshr_b32 s3, s{sM}, 1
        s_add_u32 m0, s3, {QST_L}
        s_sub_u32 s3, s{sOb}, {OU - QU}
        buffer_load_dwordx4 v{vL16}, {sr(sWS)}, s3 offen sc1 lds
        buffer_load_dwordx4 v{vL16}, {sr(sWS)}, s3 offen offset:1024 sc1 lds
        """)
    last = 12 if OPT["mg"] else 13
    pl = f"buffer_load_dwordx2 {vr(T+2,2)}, v{vFl}, {sr(sWS)}, 0 offen sc1"
    for b in range(9, last + 1):
        if b == kd:
            a("s_waitcnt vmcnt(0)")
            lstamp(a, 1)
            if OPT["padat"] == 6: a("s_memrealtime s[96:97]")
            make_tag(a, 4)
        a("s_barrier")
        if b == kd:
            a(f"s_cmp_lg_u32 s{sW}, 0\n s_cbranch_scc1 H_nofl")
            set_flag(a, 13, T)
            a("H_nofl:")
            lstamp(a, 3)
        if b > pp:
            a(f"""
            s_mov_b32 s13, {last - b}
            s_waitcnt vmcnt(0)
            v_cmp_ne_u64 vcc, {sr(sTAG,2)}, {vr(T+2,2)}
            s_cmp_eq_u64 vcc, 0
            s_cbranch_scc1 H_ok
            """)
        if pp <= b < last: a(pl)
    assert 10 <= pp < last
    if OPT["ipoll"]:
        a(f"s_cmp_lg_u32 s{sACT}, 0\n s_cbranch_scc1 H_np\n s_mov_b64 exec, 1")
        poll(a, vFl, T + 2, sleep=OPT["ipoll"])
        a("H_np:")
    poll(a, vFl, T + 2)
    a("H_ok:")
    if OPT["padat"] == 4: a("s_memrealtime s[96:97]")
    lstamp(a, 2)
    qload()
    kv(a, 0)
    a("""
    H_rb:
    s_sub_u32 s13, s13, 1
    s_cbranch_scc1 H_b13
    s_barrier
    s_branch H_rb
    H_b13:
    s_waitcnt vmcnt(0)
    """)

vCur, vNxt, vNx2, vQa, vK0, vXw, vXr, vT = 148, 149, 150, 151, 152, 153, 156, 160
def attn_setup(a, kh):
    a(f"""
    s_and_b32 s{sK3}, s{sCG3}, {OPT["krot"]}
    s_xor_b32 s{sK3}, s{sK3}, {kh}
    s_add_u32 s{sWI}, s{sR}, {4*kh}
    s_lshl_b32 s3, s{sQB}, 2
    s_add_u32 s3, s3, s{sR}
    s_mul_i32 s3, s3, {RT}
    s_lshl_b32 s{sOb}, s{sU0}, 9
    s_add_u32 s{sOb}, s{sOb}, s3
    s_add_u32 s{sOb}, s{sOb}, {BR + OU}
    v_add_u32 v{vCur}, {pslot(0) + kh*8192}, v{vL16}
    v_add_u32 v{vNxt}, {pslot(1) + kh*8192}, v{vL16}
    v_add_u32 v{vNx2}, {pslot(2) + kh*8192}, v{vL16}
    v_add_u32 v{vK0}, {pslot(0)}, v{vL16}
    s_lshl_b32 s3, s{sR}, 11
    s_add_u32 s3, s3, {QST_L}
    v_add_u32 v{vQa}, s3, v{vL16}
    s_lshl_b32 s3, s{sR}, 10
    v_add_u32 v{vT}, s3, v{vL16}
    v_add_u32 v{vXw}, {XC1_L + kh*4096}, v{vT}
    v_add_u32 v{vXr}, {XC1_L + (1-kh)*4096}, v{vT}
    v_add_u32 v{vXw+1}, {XC2_L + kh*8192}, v{vT}
    v_add_u32 v{vXr+1}, {XC2_L + (1-kh)*8192}, v{vT}
    v_lshrrev_b32 v{vT}, 2, v{vT}
    v_add_u32 v{vXw+2}, {XC2_L + kh*8192 + 4096}, v{vT}
    v_add_u32 v{vXr+2}, {XC2_L + (1-kh)*8192 + 4096}, v{vT}
    v_lshrrev_b32 v{vT}, 4, v0
    v_lshrrev_b32 v{vT+1}, 2, v0
    v_and_b32 v{vT+1}, 3, v{vT+1}
    v_lshlrev_b32 v{vT+2}, 3, v{vT}
    v_add_u32 v{vT+2}, v{vT+2}, v{vT+1}
    v_lshlrev_b32 v{vT+2}, 7, v{vT+2}
    v_and_b32 v{vT+1}, 2, v{vT+1}
    v_and_b32 v{vT+3}, 1, v{vT}
    v_or_b32 v{vT+1}, v{vT+1}, v{vT+3}
    v_lshlrev_b32 v{vT+1}, 5, v{vT+1}
    v_add_u32 v{vT+2}, v{vT+2}, v{vT+1}
    v_and_b32 v{vT+1}, 3, v0
    v_lshlrev_b32 v{vT+1}, 3, v{vT+1}
    v_add_u32 v{vT+2}, v{vT+2}, v{vT+1}
    s_mul_i32 s3, s{sK3}, {224*128}
    v_add_u32 v{vT+4}, s3, v{vL16 if OPT["wt"] else vT+2}
    v_xor_b32 v{vT+5}, 32, v{vT+4}
    v_xor_b32 v{vT+6}, 64, v{vT+4}
    v_xor_b32 v{vT+7}, 96, v{vT+4}
    s_lshl_b32 s{sOf}, s{sRBK}, 1
    s_lshr_b32 s3, s{sR}, 1
    s_add_u32 s{sOf}, s{sOf}, s3
    s_mul_i32 s{sOf}, s{sOf}, {RT}
    s_and_b32 s3, s{sR}, 1
    s_lshl_b32 s3, s3, 8
    s_add_u32 s{sOf}, s{sOf}, s3
    s_mul_i32 s3, s{sK3}, {28*512}
    s_add_u32 s{sOf}, s{sOf}, s3
    s_add_u32 s{sOf}, s{sOf}, {BR + OU}
    v_and_b32 v{vT+1}, 15, v0
    v_lshlrev_b32 v{vT+2}, 9, v{vT}
    v_lshlrev_b32 v159, 4, v{vT+1}
    v_add_u32 v{vT+2}, v{vT+2}, v159
    s_lshl_b32 s3, s{sRBK}, 2
    s_add_u32 s3, s3, s{sR}
    s_lshl_b32 s3, s3, 4
    v_add_u32 v{vT+1}, s3, v{vT+1}
    v_mul_u32_u24 v{vT+1}, 1792, v{vT+1}
    v_lshlrev_b32 v{vT+3}, 5, v{vT+3}
    v_add_u32 v{vT+1}, v{vT+1}, v{vT+3}
    v_lshrrev_b32 v{vT+3}, 1, v{vT}
    v_lshlrev_b32 v{vT+3}, 4, v{vT+3}
    v_add_u32 v{vT+1}, v{vT+1}, v{vT+3}
    s_lshl_b32 s{sOo}, s{sCG3}, 7
    s_lshl_b32 s3, s{sK3}, 6
    s_add_u32 s{sOo}, s{sOo}, s3
    s_add_u32 s{sOo}, s{sOo}, 896
    """)
    for r in list(range(104, 120)) + list(range(64, 68)) + list(range(132, 136)):
        a(f"v_mov_b32 v{r}, 0")

def gen_attn(a):
    Q, NM, S, P, O, K, V, T = 4, 12, [28, 44], 60, 104, 120, 128, 140
    WF, OF, ACC = 4, 116, 144
    sS = T0 + 7
    a("C_attn:")
    stamp(a, 5)
    a("s_setprio 1\n s_barrier")
    stamp(a, 6)
    if OPT["padat"] == 1: a("s_memrealtime s[96:97]\n s_waitcnt lgkmcnt(0)")
    if OPT["rts"]: stamp(a, 3, rt=True)
    if OPT["prof"]: a("s_waitcnt lgkmcnt(0)")
    a(f"""
    ds_read_b128 {vr(Q,4)}, v{vQa}
    ds_read_b128 {vr(Q+4,4)}, v{vQa} offset:1024
    ds_read_b128 {vr(NM,4)}, v{vK0}
    ds_read_b128 {vr(NM+4,4)}, v{vK0} offset:1024
    ds_read_b128 {vr(NM+8,4)}, v{vCur}
    ds_read_b128 {vr(NM+12,4)}, v{vCur} offset:1024
    ds_read_b128 {vr(K,4)}, v{vCur} offset:2048
    ds_read_b128 {vr(K+4,4)}, v{vCur} offset:3072
    {"" if OPT["g5"] else f"ds_read_b128 {vr(V,4)}, v{vCur} offset:16384"}
    s_waitcnt lgkmcnt({7 - OPT["g5"]})
    """)
    zero_foreign(a, Q)
    a(f"""
    s_waitcnt lgkmcnt({5 - OPT['g5']})
    {MF32} {vr(S[1],16)}, {vr(NM,4)}, {vr(Q,4)}, 0
    {MF32} {vr(S[1],16)}, {vr(NM+4,4)}, {vr(Q+4,4)}, {vr(S[1],16)}
    s_waitcnt lgkmcnt({3 - OPT['g5']})
    {MF32} {vr(S[0],16)}, {vr(NM+8,4)}, {vr(Q,4)}, 0
    {MF32} {vr(S[0],16)}, {vr(NM+12,4)}, {vr(Q+4,4)}, {vr(S[0],16)}
    s_mov_b32 s{sS}, 0
    s_mov_b32 s3, {hex(f32bits(-float(OPT["delta"])))}
    s_nop 7
    """)
    s1 = S[1]
    a(f"v_max3_f32 v{T}, v{s1}, v{s1+1}, v{s1+2}")
    a(f"v_max3_f32 v{T+1}, v{s1+3}, v{s1+4}, v{s1+5}")
    for i in range(6, 14, 4):
        a(f"v_max3_f32 v{T}, v{T}, v{s1+i}, v{s1+i+1}")
        a(f"v_max3_f32 v{T+1}, v{T+1}, v{s1+i+2}, v{s1+i+3}")
    a(f"""
    v_max3_f32 v{T}, v{T}, v{s1+14}, v{s1+15}
    v_max_f32 v{T}, v{T}, v{T+1}
    v_mov_b32 v{T+1}, v{T}
    v_mov_b32 v{s1+14}, 0
    v_mov_b32 v{s1+15}, 0
    v_permlane32_swap_b32 v{T}, v{T+1}
    s_nop 1
    v_max_f32 v{T}, v{T}, v{T+1}
    v_sub_f32 v{NM}, s3, v{T}
    """)
    if OPT["g5"]:
        a(f"s_waitcnt vmcnt(0)\n s_barrier\n ds_read_b128 {vr(V,4)}, v{vCur} offset:16384")
    for i in range(16):
        a(f"v_add_f32 v{S[0]+i}, v{S[0]+i}, v{NM}")
    for i in range(1, 16):
        a(f"v_mov_b32 v{NM+i}, v{NM}")
    a("s_waitcnt lgkmcnt(0)\n s_setprio 1")
    a(".p2align 3")
    a("C_loop:")
    for i in range(4):
        cs, ns = S[i % 2], S[(i + 1) % 2]
        def ex(j): return f"v_exp_f32 v{cs+j}, v{cs+j}"
        def cv(j): return f"v_cvt_pk_bf16_f32 v{P+j}, v{cs+2*j}, v{cs+2*j+1}"
        kreg, ko = (vCur, (i + 2) * 2048) if i < 2 else (vNxt, (i - 2) * 2048)
        vreg, vo = (vCur, (i + 1) * 2048) if i < 3 else (vNxt, 0)
        a(ex(0)); a(ex(1))
        a(f"v_cvt_pk_bf16_f32 v{P+7}, v{ns+14}, v{ns+15}")
        a(ex(2))
        if i == 2:
            a("s_barrier\n s_setprio 3")
        a("s_waitcnt lgkmcnt(2)")
        a(f"{MF32} {vr(ns,16)}, {vr(K,4)}, {vr(Q,4)}, {vr(NM,16)}")
        a(f"ds_read_b128 {vr(K,4)}, v{kreg} offset:{ko}")
        a(cv(0)); a(ex(3)); a(ex(4)); a(cv(1)); a(ex(5)); a(ex(6))
        a(f"{MF32} {vr(O,16)}, {vr(V+4,4)}, {vr(P+4,4)}, {vr(O,16)}")
        a(f"ds_read_b128 {vr(V+4,4)}, v{vCur} offset:{16384 + i*2048 + 1024}")
        a(cv(2)); a(ex(7)); a(ex(8)); a(cv(3)); a(ex(9)); a("s_waitcnt lgkmcnt(2)")
        a(f"{MF32} {vr(ns,16)}, {vr(K+4,4)}, {vr(Q+4,4)}, {vr(ns,16)}")
        a(f"ds_read_b128 {vr(K+4,4)}, v{kreg} offset:{ko+1024}")
        a(ex(10)); a(ex(11)); a(cv(4)); a(ex(12)); a(ex(13)); a(cv(5))
        a(f"{MF32} {vr(O,16)}, {vr(V,4)}, {vr(P,4)}, {vr(O,16)}")
        a(f"ds_read_b128 {vr(V,4)}, v{vreg} offset:{16384 + vo}")
        a(ex(14)); a(ex(15)); a(cv(6))
        if i == 0: a("s_setprio 0\n s_add_u32 s{0}, s{0}, 1".format(sS))
        if i == 2: a("s_setprio 2\n s_nop 0")
        if i == 3:
            a(f"""
            v_swap_b32 v{vCur}, v{vNxt}
            s_setprio 1
            v_swap_b32 v{vNxt}, v{vNx2}
            s_cmp_lt_u32 s{sS}, 8
            s_cbranch_scc1 C_loop
            """)
    a(f"""
    v_cvt_pk_bf16_f32 v{P+7}, v{S[1]+14}, v{S[1]+15}
    s_waitcnt lgkmcnt(0)
    s_cmp_eq_u32 s{sODD}, 0
    {MF32} {vr(O,16)}, {vr(V+4,4)}, {vr(P+4,4)}, {vr(O,16)}
    """)
    stamp(a, 7)
    if OPT["padat"] == 2: a("s_memrealtime s[96:97]")
    a(f"s_setprio {OPT['tp']}")
    if OPT["rts"]: stamp(a, 4, rt=True)
    X = S[0]
    a(f"""
    s_nop 10
    s_cbranch_scc1 C_le
    v_mov_b32 v{T+2}, v{O}
    s_branch C_lx
    C_le:
    v_mov_b32 v{T+2}, v{O+12}
    C_lx:
    s_cmp_eq_u32 s{sC}, 0
    s_cbranch_scc1 C_x0
    ds_write_b128 v{vXw}, {vr(O,4)}
    ds_write_b128 v{vXw+1}, {vr(O+4,4)}
    ds_write_b32 v{vXw+2}, v{T+2}
    s_waitcnt lgkmcnt(0)
    s_barrier
    """)
    for i in range(8):
        a(f"v_mov_b32 v{O+i}, v{O+8+i}")
    a(f"""
    s_branch C_x1
    C_x0:
    ds_write_b128 v{vXw}, {vr(O+8,4)}
    ds_write_b128 v{vXw+1}, {vr(O+12,4)}
    ds_write_b32 v{vXw+2}, v{T+2}
    s_waitcnt lgkmcnt(0)
    s_barrier
    C_x1:
    ds_read_b32 v{X+8}, v{vXr+2}
    ds_read_b128 {vr(X,4)}, v{vXr}
    ds_read_b128 {vr(X+4,4)}, v{vXr+1}
    s_waitcnt lgkmcnt(2)
    v_add_f32 v{T+2}, v{T+2}, v{X+8}
    """)
    bcast_l(a, T + 2, T + 2, T + 4)
    a("s_waitcnt lgkmcnt(0)")
    a(f"v_mul_f32 v{T}, 0, v{T+4}\n v_mov_b32 v{T+1}, 0x207")
    for i in range(8):
        a(f"v_add_f32 v{O+i}, v{O+i}, v{X+i}")
    for i in range(8):
        a(f"v_add_f32 v{T}, v{T}, abs(v{O+i})")
    a(f"""
    s_mov_b32 s3, {hex((127 - 100) << 23)}
    v_cmp_nge_f32 vcc, v{T}, s3
    v_cmp_class_f32 s[22:23], v{T}, v{T+1}
    s_or_b64 vcc, vcc, s[22:23]
    s_cbranch_scc1 C_slow
    C_fin:
    """)
    finalize(a, O, 8, T + 4)
    a(f"s_cmp_eq_u32 s{sC}, 0\n s_cbranch_scc0 C_st1")
    store_units(a, O, True, sOb, 0)
    a("s_branch C_st2\n C_st1:")
    store_units(a, O, False, sOb, 1024)
    a("C_st2:")
    if OPT["padat"] == 8: a("s_memrealtime s[96:97]")
    stamp(a, 8)
    a(f"s_mov_b64 s[22:23], -1\n s_cmp_ge_u32 s{sJ}, 28\n s_cbranch_scc1 C_exit")
    def wrd(s0, s1):
        for s in range(s0, s1):
            for t in range(4):
                if OPT["wt"]:
                    a(f"ds_read_b128 {vr(WF+16*s+4*t,4)}, v{vT+4} offset:{s*4096 + t*1024}")
                    continue
                for j in range(2):
                    a(f"ds_read_b64_tr_b16 {vr(WF+16*s+4*t+2*j,2)}, v{vT+4+t} offset:{(32*s+4*j)*128}")
    wrd(0, 7)
    a(f"""
    v_mov_b32 v{vT+4}, v{vXw}
    v_mov_b32 v{vT+5}, v{vXw+1}
    v_mov_b32 v{vT+6}, v{vXr}
    v_mov_b32 v{vT+7}, v{vXr+1}
    s_waitcnt vmcnt(0)
    """)
    a(f"s_mov_b32 s{T0+11}, {SPIN}\n s_mov_b32 s{T0+5}, 0\n C_pp:\n s_mov_b32 s3, s{sOf}")
    for s in range(7):
        if s and s % 2 == 0:
            a(f"s_add_u32 s3, s3, 4096")
        a(f"buffer_load_dwordx4 {vr(OF+4*s,4)}, v{vT+2}, {sr(sWS)}, s3 offen offset:{(s%2)*2048} sc1")
    a("s_waitcnt lgkmcnt(0)")
    for s in range(7):
        a(f"s_waitcnt vmcnt({6-s})")
        f = OF + 4 * s
        for t in range(4):
            cin = "0" if s == 0 else vr(ACC + 4 * t, 4)
            a(f"{MF16} {vr(ACC+4*t,4)}, {vr(WF+16*s+4*t,4)}, {vr(f,4)}, {cin}")
            if t == 0: a(f"v_max3_u32 v3, v{f}, v{f+1}, v{f+2 if s == 0 else 3}")
            if t == 1: a(f"v_max3_u32 v3, v3, v{f+2}, v{f+3}")
    a(f"""
    v_cmp_eq_u32 vcc, -1, v3
    s_add_u32 s{T0+5}, s{T0+5}, 1
    s_sub_u32 s{T0+11}, s{T0+11}, 1
    s_cbranch_scc1 C_ppx
    s_cmp_lg_u64 vcc, 0
    s_cbranch_scc1 C_pp
    C_ppx:
    """)
    stamp(a, 9)
    if OPT["padat"] == 9: a("s_memrealtime s[96:97]")
    if OPT["prof"]: a(f"v_writelane_b32 v1, s{T0+5}, 63")
    a(f"""
    s_cmp_eq_u32 s{sK3}, 0
    s_nop 5
    s_cbranch_scc1 C_y0
    ds_write_b128 v{vT+6}, {vr(ACC,4)}
    ds_write_b128 v{vT+7}, {vr(ACC+4,4)}
    s_waitcnt lgkmcnt(0)
    s_barrier
    """)
    for i in range(8):
        a(f"v_mov_b32 v{ACC+i}, v{ACC+8+i}")
    a(f"""
    s_branch C_y1
    C_y0:
    ds_write_b128 v{vT+6}, {vr(ACC+8,4)}
    ds_write_b128 v{vT+7}, {vr(ACC+12,4)}
    s_waitcnt lgkmcnt(0)
    s_barrier
    C_y1:
    ds_read_b128 {vr(OF,4)}, v{vT+4}
    ds_read_b128 {vr(OF+4,4)}, v{vT+5}
    s_waitcnt lgkmcnt(0)
    """)
    for i in range(8):
        a(f"v_add_f32 v{ACC+i}, v{ACC+i}, v{OF+i}")
    for i in range(4):
        a(f"v_cvt_pk_bf16_f32 v{ACC+i}, v{ACC+2*i}, v{ACC+2*i+1}")
    osc = ("", " sc1", " nt", " sc0 sc1")[OPT["outsc"]]
    a(f"""
    s_nop 1
    v_permlane16_swap_b32 v{ACC}, v{ACC+2}
    v_permlane16_swap_b32 v{ACC+1}, v{ACC+3}
    buffer_store_dwordx4 {vr(ACC,4)}, v{vT+1}, {sr(sOUT)}, s{sOo} offen{osc}
    C_exit:
    """)
    if OPT["padrt"] or OPT["padcy"]:
        if OPT["padx"] >= 0: a(f"s_cmp_lg_u32 s{sXCD}, {OPT['padx']}\n s_cbranch_scc1 C_padx")
        a(f"""
        C_pad:
        {'s_memrealtime' if OPT['padrt'] else 's_memtime'} s[98:99]
        s_waitcnt lgkmcnt(0)
        s_sub_u32 s98, s98, s96
        s_cmp_lt_u32 s98, {OPT['padrt'] or OPT['padcy']}
        s_cbranch_scc1 C_pad
        C_padx:
        """)
    dump(a)
    a("s_endpgm")
    sT, sKo, sVo = T0, T0 + 1, T0 + 2
    def kload():
        a(f"""
        s_mul_i32 s{sKo}, s{sT}, {RT}
        s_lshl_b32 s3, s{sU0}, 7
        s_add_u32 s{sVo}, s{sKo}, s3
        s_add_u32 s{sVo}, s{sVo}, {BR + VU}
        s_lshl_b32 s3, s{sU0}, 9
        s_add_u32 s{sKo}, s{sKo}, s3
        s_add_u32 s{sKo}, s{sKo}, {BR + KU}
        buffer_load_dwordx4 {vr(K,4)}, v{vL16}, {sr(sWS)}, s{sKo} offen sc1
        buffer_load_dwordx4 {vr(K+4,4)}, v{vL16}, {sr(sWS)}, s{sKo} offen offset:1024 sc1
        """)
    def qk():
        a(f"""
        s_waitcnt vmcnt(0)
        {MF32} {vr(S[0],16)}, {vr(K,4)}, {vr(Q,4)}, 0
        {MF32} {vr(S[0],16)}, {vr(K+4,4)}, {vr(Q+4,4)}, {vr(S[0],16)}
        s_nop 15
        """)
    a(f"C_slow:\n v_mov_b32 v{T}, 0xff800000\n s_mov_b32 s{sT}, 0\n C_s1:")
    kload(); qk()
    for i in range(0, 16, 2):
        a(f"v_max3_f32 v{T}, v{T}, v{S[0]+i}, v{S[0]+i+1}")
    a(f"""
    s_add_u32 s{sT}, s{sT}, 1
    s_cmp_lt_u32 s{sT}, 64
    s_cbranch_scc1 C_s1
    v_mov_b32 v{T+1}, v{T}
    s_nop 1
    v_permlane32_swap_b32 v{T}, v{T+1}
    s_nop 1
    v_max_f32 v{T}, v{T}, v{T+1}
    v_lshrrev_b32 v{T+1}, 5, v0
    v_mul_u32_u24 v{T+1}, {7168-512}, v{T+1}
    v_add_u32 v{T+1}, v{T+1}, v{vL16}
    """)
    for i in range(16):
        a(f"v_mov_b32 v{O+i}, 0")
    for i in range(8):
        a(f"v_mov_b32 v{V+i}, 0x3f803f80")
    a(f"s_mov_b32 s{sT}, 0\n C_s2:")
    kload()
    a(f"""
    s_add_u32 s3, s{sVo}, 14336
    s_mov_b64 exec, {sr(sVM,2)}
    buffer_load_dwordx4 {vr(V,4)}, v{T+1}, {sr(sWS)}, s{sVo} offen sc1
    buffer_load_dwordx4 {vr(V+4,4)}, v{T+1}, {sr(sWS)}, s3 offen sc1
    s_mov_b64 exec, -1
    """)
    qk()
    for i in range(16):
        a(f"v_sub_f32 v{S[0]+i}, v{S[0]+i}, v{T}")
    for i in range(16):
        a(f"v_exp_f32 v{S[0]+i}, v{S[0]+i}")
    a("s_nop 0")
    for i in range(8):
        a(f"v_cvt_pk_bf16_f32 v{P+i}, v{S[0]+2*i}, v{S[0]+2*i+1}")
    a(f"""
    s_nop 1
    {MF32} {vr(O,16)}, {vr(V,4)}, {vr(P,4)}, {vr(O,16)}
    {MF32} {vr(O,16)}, {vr(V+4,4)}, {vr(P+4,4)}, {vr(O,16)}
    s_add_u32 s{sT}, s{sT}, 1
    s_cmp_lt_u32 s{sT}, 64
    s_nop 15
    s_cbranch_scc1 C_s2
    """)
    bcast_l(a, O + 12, O, T + 4)
    a(f"s_cmp_eq_u32 s{sC}, 0\n s_cbranch_scc1 C_fin")
    for i in range(8):
        a(f"v_mov_b32 v{O+i}, v{O+8+i}")
    a("s_branch C_fin")

def gen_helper(a):
    AQ, AKp, AKc, AVp, AVc, O, HP, T, SP, SC = 28, 36, 44, 52, 56, 64, 80, 104, 108, 124
    sRT = sHRT
    nb = [0]
    def bar():
        k = nb[0]; nb[0] += 1
        if OPT["hst"]: lstamp(a, k)
        a("s_barrier")
        if OPT["hst"]: lstamp(a, 16 + k)
    regs = [SP + 8 + i for i in range(8)] + [SC + i for i in range(16)]
    def wo(srdn, lbase, i0, i1, tag):
        a(f"s_lshr_b32 s22, s{sM}, 2")
        for i in range(i0, i1):
            a(f"s_add_u32 m0, s22, {lbase + (i-i0)*4096}\n s_mov_b32 s{T0}, {i*32*896}")
            a.vm(f"buffer_load_dwordx4 v{vWo}, {sr(srdn)}, s{T0} offen lds", tag)
    a.q = []
    stamp(a, 5)
    if OPT["mg"]:
        a.q = ["kv1"] * 12
    else:
        a("s_setprio 3\n s_barrier")
        kv(a, 1)
    st = qkv_stores(HP, T0 + 1)
    n0 = OPT["sa0"]
    for l in st[:n0]: a.vm(l, "sa")
    a(f"""
    s_mul_i32 s{T0+10}, s{sRT}, {RT}
    s_add_u32 s{T0+10}, s{T0+10}, s{sKb}
    """)
    pf = []
    if OPT["wpf"]:
        a(f"""
        s_lshl_b32 s3, s{sJ}, 2
        s_add_u32 s3, s3, s{sR}
        s_mul_i32 s3, s3, {25*128}
        s_min_u32 s3, s3, {WO_BYTES - 25*128}
        s_add_u32 s4, s{sWoB}, s3
        s_addc_u32 s5, s{sWoB+1}, 0
        s_add_u32 s6, s{sWoA}, s3
        s_addc_u32 s7, s{sWoA+1}, 0
        """)
        pf = [f"s_load_dword s17, s[{b}:{b+1}], {i*128}" for b in (4, 6) for i in range(25)]
    def pfb(n):
        for _ in range(n):
            if pf: a(pf.pop(0))
    LA = OPT["la"]
    a(f"""
    s_lshl_b32 s16, s{T0+5}, {FS}
    s_add_u32 s16, s16, {FA}
    v_mov_b32 v{O}, -1
    v_mov_b32 v{O+1}, -1
    v_mov_b32 v{O+2}, -1
    v_mov_b32 v{O+3}, -1
    s_add_u32 s13, s{T0+10}, {BR + OU}
    """)
    def poison():
        store_units(a, O, True, 13, 0)
        store_units(a, O, False, 13, 1024)
        a.q += ["po"] * 3
    a.wait("kv1"); bar(); kv(a, 2)
    for l in st[n0:]: a.vm(l, "sa")
    if LA == 2:
        a.wait("kv2"); bar(); kv(a, 3)
    a.wait("sa")
    set_flag(a, 16, T)
    if LA == 2: poison()
    a.wait(f"kv{LA+1}"); bar(); kv(a, LA + 2)
    poll(a, vFa, T)
    a(f"""
    s_mul_i32 s{T0}, s{sRT}, {RT}
    s_cmp_eq_u32 s{sRT}, 0
    s_cselect_b32 s3, 0, {RT}
    s_sub_u32 s{T0+1}, s{T0}, s3
    s_add_u32 s{T0+2}, s{T0+10}, {KU}
    s_add_u32 s{T0+3}, s{T0+1}, s{sKb}
    s_add_u32 s{T0+3}, s{T0+3}, {KU}
    """)
    for (r, so) in ((AQ, T0 + 10), (AKc, T0 + 2), (AKp, T0 + 3)):
        a.vm(f"buffer_load_dwordx4 {vr(r,4)}, v{vL16}, {sr(sWS)}, s{so} offen sc1", "loc")
        a.vm(f"buffer_load_dwordx4 {vr(r+4,4)}, v{vL16}, {sr(sWS)}, s{so} offen offset:1024 sc1", "loc")
    a(f"""
    s_add_u32 s{T0}, s{T0}, s{sVb}
    s_add_u32 s{T0}, s{T0}, {VU}
    s_add_u32 s{T0+2}, s{T0}, 14336
    s_add_u32 s{T0+1}, s{T0+1}, s{sVb}
    s_add_u32 s{T0+1}, s{T0+1}, {VU + 14336}
    """)
    a.vm(f"buffer_load_dwordx4 {vr(AVc,4)}, v{vVs}, {sr(sWS)}, s{T0} offen sc1", "loc")
    a.vm(f"buffer_load_dwordx4 {vr(AVc+4,4)}, v{vVs}, {sr(sWS)}, s{T0+2} offen sc1", "loc")
    a.vm(f"buffer_load_dwordx4 {vr(AVp,4)}, v{vVs}, {sr(sWS)}, s{T0+1} offen sc1", "loc")
    bar(); kv(a, LA + 3)
    if LA == 1: poison()
    a.wait("loc")
    zero_foreign(a, AQ)
    a(f"""
    s_nop 0
    {MF32} {vr(SP,16)}, {vr(AKp,4)}, {vr(AQ,4)}, 0
    {MF32} {vr(SC,16)}, {vr(AKc,4)}, {vr(AQ,4)}, 0
    {MF32} {vr(SP,16)}, {vr(AKp+4,4)}, {vr(AQ+4,4)}, {vr(SP,16)}
    {MF32} {vr(SC,16)}, {vr(AKc+4,4)}, {vr(AQ+4,4)}, {vr(SC,16)}
    s_nop 11
    """)
    G = NG
    for i in range(12):
        a(f"v_bitop3_b32 v{regs[2*i]}, v{vPar}, v{regs[2*i+1]}, v{regs[2*i]} bitop3:0xca")
    for i in range(12):
        a(f"v_bitop3_b32 v{G + i%4}, v{regs[2*i]}, v{VM+i}, v{G + i%4} bitop3:0xea")
    a(f"""
    v_max3_f32 v{T}, v{G}, v{G+1}, v{G+2}
    v_max_f32 v{T}, v{T}, v{G+3}
    v_mov_b32 v{T+1}, v{T}
    s_nop 1
    v_permlane32_swap_b32 v{T}, v{T+1}
    s_nop 1
    v_max_f32 v{T}, v{T}, v{T+1}
    """)
    for g in range(4): a(f"v_sub_f32 v{G+g}, v{G+g}, v{T}")
    for g in range(4): a(f"v_exp_f32 v{G+g}, v{G+g}")
    a(f"""
    s_nop 0
    v_add_f32 v{T}, v{G}, v{G+1}
    v_add_f32 v{T+1}, v{G+2}, v{G+3}
    v_add_f32 v{T}, v{T}, v{T+1}
    v_mov_b32 v{T+1}, v{T}
    s_nop 1
    v_permlane32_swap_b32 v{T}, v{T+1}
    s_nop 1
    v_add_f32 v{T}, v{T}, v{T+1}
    v_rcp_f32 v{T}, v{T}
    s_nop 0
    """)
    for g in range(4): a(f"v_mul_f32 v{G+g}, v{G+g}, v{T}")
    for g in range(4): a(f"v_cvt_pk_bf16_f32 v{G+g}, v{G+g}, v{G+g}")
    PM = VM
    for i in range(12):
        a(f"v_bitop3_b32 v{PM+i}, v{PM+i}, v{G + i%4}, v{vHalf} bitop3:0x80")
    O2 = SP
    a(f"""
    s_nop 1
    {MF32} {vr(O2,16)}, {vr(AVp,4)}, {vr(PM,4)}, 0
    {MF32} {vr(O2,16)}, {vr(AVc,4)}, {vr(PM+4,4)}, {vr(O2,16)}
    {MF32} {vr(O2,16)}, {vr(AVc+4,4)}, {vr(PM+8,4)}, {vr(O2,16)}
    s_add_u32 s{T0+10}, s{T0+10}, {OU}
    s_nop 11
    """)
    for i in range(8):
        a(f"v_cvt_pk_bf16_f32 v{O2+i}, v{O2+2*i}, v{O2+2*i+1}")
    a("s_nop 1")
    for g in (0, 4):
        a(f"v_permlane32_swap_b32 v{O2+g}, v{O2+g+2}\n v_permlane32_swap_b32 v{O2+g+1}, v{O2+g+3}")
    store_units(a, O2, True, T0 + 10, 0)
    store_units(a, O2 + 4, False, T0 + 10, 1024)
    a.q += ["oa"] * 3
    a.wait(f"kv{LA+3}"); bar(); kv(a, LA + 4)
    a(f"""
    s_lshl_b32 s3, s{sRT}, 4
    s_add_u32 s3, s3, s{sH}
    s_lshl_b32 s3, s3, {FS}
    s_add_u32 s{T0+10}, s3, {FO}
    """)
    a.wait("oa")
    set_flag(a, T0 + 10, T)
    wo(sWoB, WOB_L, 0, 6, "wob")
    OFA, ACC, WB, T = 28, 84, 116, 160
    a(f"""
    s_and_b32 s3, s{sR}, 1
    s_lshl_b32 s{sRT}, s{sRBK}, 1
    s_add_u32 s{sRT}, s{sRT}, s3
    s_lshr_b32 s{sC}, s{sR}, 1
    s_lshl_b32 s3, s{sRT}, 1
    s_add_u32 s3, s3, s{sC}
    s_lshl_b32 s14, s3, {3+FS}
    s_add_u32 s14, s14, {FO}
    s_mul_i32 s13, s3, {RT//2}
    s_add_u32 s13, s13, {OU}
    s_lshl_b32 s{T0+10}, s{sCG3}, 7
    s_lshl_b32 s3, s{sC}, 6
    s_add_u32 s{T0+10}, s{T0+10}, s3
    s_mul_i32 s3, s{sRT}, {32*1792}
    s_add_u32 s{T0+10}, s{T0+10}, s3
    """)
    a.wait(f"kv{LA+4}"); bar(); kv(a, LA + 5)
    wo(sWoB, WOB_L + 6 * 4096, 6, 14, "wob")
    a.vm(f"buffer_load_dwordx2 {vr(T+6,2)}, v{vPo}, {sr(sWS)}, s14 offen sc1", "fl")
    def ofa(i0, i1):
        for i in range(i0, i1):
            if i and i % 4 == 0:
                a(f"s_add_u32 s13, s13, 4096")
            a.vm(f"buffer_load_dwordx4 {vr(OFA+4*i,4)}, v{vL16}, {sr(sWS)}, s13 offen offset:{(i%4)*1024} sc1", f"ofa{i}")
    a.wait("wob" if OPT["wt"] else f"kv{LA+5}"); bar()
    a.wait_all()
    a(f"""
    v_cmp_ne_u64 vcc, {sr(sTAG,2)}, {vr(T+6,2)}
    s_cmp_eq_u64 vcc, 0
    s_cbranch_scc1 H_ok2
    """)
    poll(a, vPo, T + 6, "s14")
    a("H_ok2:")
    if LA == 1:
        kv(a, 7)
        ofa(0, 8)
        a.wait("kv7"); bar()
    a(f"""
    s_lshl_b32 s3, s{sR}, 2
    s_add_u32 s3, s3, {HFL_L}
    v_mov_b32 v{T}, s3
    v_xor_b32 v{T+1}, 8, v{T}
    v_mov_b32 v{T+3}, {HFL_L}
    v_mov_b32 v{T+2}, 0
    s_mov_b64 exec, 1
    ds_write_b32 v{T}, v{T+2}
    s_mov_b64 exec, -1
    """)
    wo(sWoA, WOA_L[0], 0, 7, "woa")
    if LA == 1: ofa(8, 14)
    else: ofa(0, 9)
    a("s_waitcnt lgkmcnt(0)")
    bar()
    wo(sWoA, WOA_L[1], 7, 14, "woa")
    if LA == 2: ofa(9, 14)
    a("s_barrier")
    a(f"s_cmp_ge_u32 s{sJ}, 28\n s_cbranch_scc1 H_idle")
    a(f"s_setprio {OPT['hp']}")
    a.wait("woa")
    stamp(a, 8)
    def hflag(val, rd, lab):
        a(f"""
        v_mov_b32 v{T+2}, {val}
        s_mov_b64 exec, 1
        ds_write_b32 v{T}, v{T+2}
        s_mov_b32 s23, {SPIN * 8}
        {lab}:
        """)
        if rd == 4:
            a(f"""
            ds_read_b128 {vr(T+4,4)}, v{T+3}
            s_waitcnt lgkmcnt(0)
            v_min3_u32 v{T+4}, v{T+4}, v{T+5}, v{T+6}
            v_min_u32 v{T+4}, v{T+4}, v{T+7}
            s_nop 0
            """)
        else:
            a(f"ds_read_b32 v{T+4}, v{T+1}\n s_waitcnt lgkmcnt(0)")
        a(f"""
        v_readfirstlane_b32 s3, v{T+4}
        s_sub_u32 s23, s23, 1
        s_cbranch_scc1 {lab}x
        s_cmp_lt_u32 s3, {val}
        s_cbranch_scc1 {lab}
        {lab}x:
        s_mov_b64 exec, -1
        """)
    hflag(1, 4, "H_pv")
    NB = 4
    def rd(i):
        for c in range(2):
            for j in range(2):
                a(f"ds_read_b64_tr_b16 {vr(WB+8*(i%NB)+4*c+2*j,2)}, v{vWa+c} offset:{(16*i+4*j)*128}")
    for i in range(NB - 1): rd(i)
    for i in range(14):
        a.wait(f"ofa{i}", f" lgkmcnt({4*min(NB-2, 13-i)})")
        for c in range(2):
            cin = "0" if i == 0 else vr(ACC + 16 * c, 16)
            a(f"{MF32} {vr(ACC+16*c,16)}, {vr(WB+8*(i%NB)+4*c,4)}, {vr(OFA+4*i,4)}, {cin}")
        if i + NB - 1 < 14:
            rd(i + NB - 1)
    a(f"""
    s_cmp_eq_u32 s{sC}, 0
    s_nop 10
    s_cbranch_scc1 H_y0
    """)
    for i in range(4):
        a(f"ds_write_b128 v{vXa}, {vr(ACC+4*i,4)} offset:{i*1024}")
    a("s_branch H_y1\n H_y0:")
    for i in range(4):
        a(f"ds_write_b128 v{vXa}, {vr(ACC+16+4*i,4)} offset:{i*1024}")
    a("H_y1:\n s_waitcnt lgkmcnt(0)")
    stamp(a, 9)
    hflag(2, 1, "H_pw")
    a(f"s_cmp_eq_u32 s{sC}, 0")
    for i in range(4):
        a(f"ds_read_b128 {vr(OFA+4*i,4)}, v{vXa+1} offset:{i*1024}")
    a(f"s_waitcnt lgkmcnt(0)\n s_cbranch_scc1 H_z0")
    for i in range(16):
        a(f"v_add_f32 v{OFA+i}, v{ACC+16+i}, v{OFA+i}")
    a("s_branch H_z1\n H_z0:")
    for i in range(16):
        a(f"v_add_f32 v{OFA+i}, v{ACC+i}, v{OFA+i}")
    a("H_z1:")
    for i in range(8):
        a(f"v_cvt_pk_bf16_f32 v{OFA+i}, v{OFA+2*i}, v{OFA+2*i+1}")
    a("s_nop 1")
    for g in (0, 4):
        a(f"v_permlane32_swap_b32 v{OFA+g}, v{OFA+g+2}\n v_permlane32_swap_b32 v{OFA+g+1}, v{OFA+g+3}")
    osc = ("", " sc1", " nt", " sc0 sc1")[OPT["outsc"]]
    a(f"buffer_store_dwordx4 {vr(OFA,4)}, v{vOa}, {sr(sOUT)}, s{T0+10} offen{osc}")
    a(f"buffer_store_dwordx4 {vr(OFA+4,4)}, v{vOa}, {sr(sOUT)}, s{T0+10} offen offset:32{osc}")
    a("s_barrier")
    a("H_exit:")
    dump(a)
    a("s_endpgm")
    a(f"""
    H_idle:
    s_cmp_lg_u32 s2, 255
    s_cbranch_scc1 H_exit
    s_cmp_lg_u32 s{sW}, 4
    s_cbranch_scc1 H_exit
    v_lshlrev_b32 v{T}, {FS}, v0
    s_mov_b32 s{T0+11}, {SPIN}
    H_ep:
    """)
    for i in range(4):
        a(f"s_mov_b32 s3, {FB + (i*64 << FS)}\n buffer_load_dwordx2 {vr(OFA+2*i,2)}, v{T}, {sr(sWS)}, s3 offen sc1")
    a(f"s_waitcnt vmcnt(0)\n s_mov_b64 s[4:5], 0")
    for i in range(4):
        a(f"v_cmp_ne_u64 vcc, {sr(sTAG,2)}, {vr(OFA+2*i,2)}\n s_or_b64 s[4:5], s[4:5], vcc")
    a(f"""
    s_sub_u32 s{T0+11}, s{T0+11}, 1
    s_cbranch_scc1 H_epx
    s_cmp_lg_u64 s[4:5], 0
    s_cbranch_scc1 H_ep
    H_epx:
    v_mov_b32 v{T}, {EPOCH}
    v_mov_b32 v{T+1}, s{sTAG}
    s_mov_b64 exec, 1
    buffer_store_dword v{T+1}, v{T}, {sr(sWS)}, 0 offen sc1
    s_mov_b64 exec, -1
    s_branch H_exit
    """)
    if OPT["mg"]:
        a("H_kv1:\n s_setprio 3")
        kv(a, 1)
        a("s_branch C_g")

def main(out):
    a = gen()
    K = NAME + "_kernel"
    hdr = f"""; Fused QKV projection -> attention (A: dilated local window, B: full) -> output projection.
; @launch grid=(256,1,1) block=(768,1,1) lds=163840
.amdgcn_target "amdgcn-amd-amdhsa--gfx950"
.text
"""
    d = f""".section .rodata,"a"
.p2align 6
.amdhsa_kernel {K}
  .amdhsa_next_free_vgpr 168
  .amdhsa_next_free_sgpr 102
  .amdhsa_accum_offset 168
  .amdhsa_group_segment_fixed_size 0
  .amdhsa_kernarg_size 72
  .amdhsa_user_sgpr_count 2
  .amdhsa_user_sgpr_kernarg_segment_ptr 1
  .amdhsa_system_sgpr_workgroup_id_x 1
.end_amdhsa_kernel
"""
    open(out, "w").write(hdr + a.text() + d)

if __name__ == "__main__":
    for arg in sys.argv[2:]:
        k, v = arg.split("=")
        assert k in OPT
        OPT[k] = int(v)
    main(sys.argv[1])
```

```python
import sys, math, struct
NAME = "concat_heads__sliding_local_dilated__mha_block__prompt"
OPT = dict(prof=0, rot=7, prefetch=1, sleep=1, rts=0, outsc=2, wpf=0, sa0=3, hst=1, lst=1, krot=1, kd=9, apos=4, g5=0, p2=1, pads=1, delta=96, ipf=1, ipw=1, skip=1, tch=0, tpos=3, shr=1, ipoll=4, la=2, hp=3, sst=0, rmb=4, rma=2, padat=0, mg=0, sch=0, noa7=0, fullst=0, epad=1, wf=5, tp=1, wt=0, lsu=0, pp=11, padrt=0, padcy=0, padx=-1)

class Asm:
    def __init__(self):
        self.lines = []
        self.q = []
        self.uid = 0
    def __call__(self, s):
        for l in s.strip("\n").split("\n"):
            l = l.strip()
            if not l: continue
            self.lines.append(l if l.endswith(":") else "    " + l)
    def vm(self, s, tag):
        self(s); self.q.append(tag)
    def wait(self, tag, extra=""):
        if tag not in self.q:
            if extra: self(f"s_waitcnt{extra}")
            return
        idx = max(i for i, t in enumerate(self.q) if t == tag)
        n = len(self.q) - 1 - idx
        assert n <= 63
        self(f"s_waitcnt vmcnt({n}){extra}")
        self.q = self.q[idx + 1:]
    def wait_all(self, extra=""):
        self(f"s_waitcnt vmcnt(0){extra}"); self.q = []
    def lab(self, p):
        self.uid += 1
        return f"{p}_{self.uid}"
    def text(self):
        return "\n".join(self.lines) + "\n"

def vr(a, n): return f"v[{a}:{a+n-1}]"
def sr(a, n=4): return f"s[{a}:{a+n-1}]"
def f32bits(x): return struct.unpack("<I", struct.pack("<f", x))[0]
MF32 = "v_mfma_f32_32x32x16_bf16"
MF16 = "v_mfma_f32_16x16x32_bf16"

RT = 56 * 512
MAT = 64 * RT
BR = 4 * MAT
QU, KU, VU, OU = 0, MAT, 2 * MAT, 3 * MAT
FS = 7
FB = 2 * BR
FA = FB + (256 << FS)
FO = FA + (1024 << FS)
EPOCH = FO + (1024 << FS)
WS_USED = EPOCH + 0x1000
WS_OOB = 0x40000000
PROF_OFF = 0x1100000
X_BYTES, W_BYTES, WO_BYTES, OUT_BYTES = 2048 * 896, 448 * 2688, 448 * 896, 2048 * 1792
CSCALE = (28 ** -0.5) * math.log2(math.e)
DELTA = 24.0
SPIN = 1 << 18

sWS, sX, sWt, sOUT, sWoA, sWoB = 24, 28, 32, 36, 40, 44
sOo, sOf, sOb, sK3 = 48, 49, 50, 51
sW, sXCD, sJ, sRB, sCG, sACT, sH, sQB, sU0, sODD, sRBK, sCG3 = range(52, 64)
sTAG, sVM = 64, 66
T0 = 68
sR, sC, sWI = T0 + 8, T0 + 9, T0 + 10
NST = 10
def stamp(a, i, rt=False):
    if OPT["prof"]:
        assert i < NST
        a(f"{'s_memrealtime' if rt else 's_memtime'} s[{80+2*i}:{81+2*i}]")
def lstamp(a, idx):
    if OPT["prof"]:
        a(f"s_memtime s[100:101]\n s_mov_b32 m0, {idx}\n s_waitcnt lgkmcnt(0)\n v_writelane_b32 v1, s100, m0")
def dump(a):
    if not OPT["prof"]: return
    a(f"""
    s_mul_i32 s8, s2, 12
    s_add_u32 s8, s8, s{sW}
    s_lshl_b32 s8, s8, 8
    s_add_u32 s8, s8, {PROF_OFF + 0x100000}
    s_mov_b32 s{sWS+2}, 0x2000000
    s_waitcnt lgkmcnt(0) vmcnt(0)
    s_memtime s[4:5]
    s_memrealtime s[6:7]
    v_lshlrev_b32 v3, 2, v0
    buffer_store_dword v1, v3, {sr(sWS)}, s8 offen
    s_mul_i32 s8, s2, 12
    s_add_u32 s8, s8, s{sW}
    s_lshl_b32 s8, s8, 6
    s_add_u32 s8, s8, {PROF_OFF}
    s_waitcnt lgkmcnt(0) vmcnt(0)
    v_mov_b32 v1, 0
    s_mov_b64 exec, 1
    """)
    for i, s in enumerate([80 + 2 * i for i in range(NST)] + [4, 6]):
        a(f"v_mov_b32 v0, s{s}\n buffer_store_dword v0, v1, {sr(sWS)}, s8 offen offset:{4*i}\n s_nop 1")
    a("s_waitcnt vmcnt(0)")

def srd(a, d, lo, nbytes):
    nb = nbytes if isinstance(nbytes, str) else hex(nbytes)
    a(f"s_mov_b32 s{d}, s{lo}\n s_and_b32 s{d+1}, s{lo+1}, 0xffff\n s_mov_b32 s{d+2}, {nb}\n s_mov_b32 s{d+3}, 0x20000")

def poll(a, vaddr, vt, soff="0", sleep=None):
    L = a.lab("poll")
    a(f"""
    s_mov_b32 s{T0+11}, {SPIN}
    {L}:
    buffer_load_dwordx2 {vr(vt,2)}, v{vaddr}, {sr(sWS)}, {soff} offen sc1
    s_waitcnt vmcnt(0)
    v_cmp_ne_u64 vcc, {sr(sTAG,2)}, {vr(vt,2)}
    s_sub_u32 s{T0+11}, s{T0+11}, 1
    s_cbranch_scc1 {L}_x
    s_cmp_eq_u64 vcc, 0
    s_cbranch_scc1 {L}_x
    {"s_mov_b64 exec, vcc" if OPT["shr"] else ""}
    s_sleep {OPT['sleep'] if sleep is None else sleep}
    s_branch {L}
    {L}_x:
    s_mov_b64 exec, -1
    """)
    a.q = []

def set_flag(a, soff, vt):
    a(f"""
    v_mov_b32 v{vt}, s{sTAG}
    v_mov_b32 v{vt+1}, s{sTAG+1}
    s_mov_b64 exec, 1
    """)
    a.vm(f"buffer_store_dwordx2 {vr(vt,2)}, v{vL16}, {sr(sWS)}, s{soff} offen sc1", "flag")
    a("s_mov_b64 exec, -1")

def zero_foreign(a, q):
    L = a.lab("zf")
    a(f"""
    s_cmp_eq_u32 s{sODD}, 0
    s_cbranch_scc1 {L}_e
    s_mov_b32 exec_hi, 0
    v_mov_b32 v{q}, 0
    v_mov_b32 v{q+1}, 0
    s_branch {L}_x
    {L}_e:
    s_mov_b32 exec_lo, 0
    v_mov_b32 v{q+6}, 0
    v_mov_b32 v{q+7}, 0
    {L}_x:
    s_mov_b64 exec, -1
    """)

SLOT = 32768
def pslot(s): return (4, 3, 2)[s % 3] * SLOT
WOA_L = (2 * SLOT, 4 * SLOT)
WOB_L = 0
QST_L = 2 * SLOT
XC1_L = 448 * 128
XC2_L = 3 * SLOT
XHA_L = 3 * SLOT + 16384
XFI_L = 3 * SLOT
HFL_L = 2 * SLOT + 28672
vL16 = 2

def p1_role(a, bi):
    a(f"""
    s_lshr_b32 s{sRB}, s{sXCD}, 1
    s_lshl_b32 s{sRB}, s{sRB}, 3
    s_and_b32 s3, s{sJ}, 7
    s_add_u32 s{sRB}, s{sRB}, s3
    s_xor_b32 s3, s{sXCD}, {bi}
    s_and_b32 s3, s3, 1
    s_lshl_b32 s3, s3, 2
    s_lshr_b32 s{sCG}, s{sJ}, 3
    s_add_u32 s{sCG}, s{sCG}, s3
    s_cmp_lt_u32 s{sCG}, 7
    s_cselect_b32 s{sACT}, 1, 0
    """)

def roles(a):
    a(f"""
    s_lshr_b32 s{sCG3}, s{sJ}, 2
    s_min_u32 s{sCG3}, s{sCG3}, 6
    s_and_b32 s3, s{sJ}, 3
    s_lshl_b32 s{sRBK}, s{sXCD}, 2
    s_add_u32 s{sRBK}, s{sRBK}, s3
    s_lshl_b32 s{sH}, s{sXCD}, 1
    s_lshr_b32 s{sODD}, s{sJ}, 4
    s_add_u32 s{sH}, s{sH}, s{sODD}
    s_and_b32 s{sQB}, s{sJ}, 15
    s_mul_i32 s{sU0}, s{sH}, 7
    s_lshr_b32 s{sU0}, s{sU0}, 1
    s_cmp_eq_u32 s{sODD}, 0
    s_cselect_b32 s{sVM}, 0x0fffffff, 0xfffffff0
    s_mov_b32 s{sVM+1}, s{sVM}
    v_lshlrev_b32 v{vL16}, 4, v0
    """)

def gen():
    a = Asm()
    K = NAME + "_kernel"
    a.lines.append(f".globl {K}\n.p2align 8\n.type {K},@function\n{K}:")
    a(f"""
    s_load_dwordx16 s[4:19], s[0:1], 0
    s_load_dwordx2 s[20:21], s[0:1], 64
    s_cmp_ge_u32 s2, 256
    s_cbranch_scc1 L_end
    """)
    stamp(a, 0, rt=True); stamp(a, 1)
    if OPT["padrt"]: a("s_memrealtime s[96:97]")
    if OPT["padcy"]: a("s_memtime s[96:97]")
    a(f"""
    v_lshrrev_b32 v1, 6, v0
    v_and_b32 v0, 63, v0
    s_and_b32 s{sXCD}, s2, 7
    v_readfirstlane_b32 s{sW}, v1
    s_lshr_b32 s{sJ}, s2, 3
    s_nop 1
    s_and_b32 s{sR}, s{sW}, 3
    s_lshr_b32 s{sC}, s{sW}, 2
    """)
    if OPT["pads"]:
        a(f"""
        s_cmp_lt_u32 s{sW}, 2
        s_cbranch_scc1 L_gemm
        s_cmp_lt_u32 s{sW}, 4
        s_cbranch_scc1 L_pad0
        s_cmp_lt_u32 s{sW}, 6
        s_cbranch_scc1 L_pad1
        s_cmp_lt_u32 s{sW}, 8
        s_cbranch_scc1 L_pad2
        """)
    else:
        a(f"s_cmp_lt_u32 s{sW}, 8\n s_cbranch_scc1 L_gemm")
    gen_loader(a)
    gen_bskip(a)
    a("L_gemm:")
    gen_gemm(a)
    gen_publish(a)
    gen_attn(a)
    a("L_helper:")
    gen_helper(a)
    a("L_end:\n s_endpgm")
    a(".p2align 4\n L_ones:\n .long 0x3f803f80, 0x3f803f80, 0x3f803f80, 0x3f803f80")
    a("L_code_end:")
    return a

def make_tag(a, vt):
    a(f"""
    v_readfirstlane_b32 s{sTAG}, v{vt}
    s_nop 3
    s_mul_i32 s{sTAG}, s{sTAG}, 0x9e3779b1
    s_add_u32 s{sTAG}, s{sTAG}, 0x7f4a7c15
    s_not_b32 s{sTAG+1}, s{sTAG}
    """)

def finalize(a, o, n, l):
    a(f"v_rcp_f32 v{l}, v{l}\n s_nop 0")
    for i in range(n):
        a(f"v_mul_f32 v{o+i}, v{l}, v{o+i}")
    for i in range(n // 2):
        a(f"v_cvt_pk_bf16_f32 v{o+i}, v{o+2*i}, v{o+2*i+1}")
    a("s_nop 1")
    for g in range(0, n // 2, 4):
        a(f"v_permlane32_swap_b32 v{o+g}, v{o+g+2}\n v_permlane32_swap_b32 v{o+g+1}, v{o+g+3}")

def bcast_l(a, src_e, src_o, t):
    L = a.lab("bl")
    a(f"""
    s_cmp_eq_u32 s{sODD}, 0
    s_cbranch_scc1 {L}_e
    v_mov_b32 v{t}, v{src_o}
    v_mov_b32 v{t+1}, v{src_o}
    s_nop 1
    v_permlane32_swap_b32 v{t}, v{t+1}
    s_branch {L}_x
    {L}_e:
    v_mov_b32 v{t}, v{src_e}
    v_mov_b32 v{t+1}, v{src_e}
    s_nop 1
    v_permlane32_swap_b32 v{t+1}, v{t}
    {L}_x:
    s_nop 1
    """)

def store_units(a, p, first, soff, off):
    L = a.lab("su")
    full = f"buffer_store_dwordx4 {vr(p,4)}, v{vL16}, {sr(sWS)}, s{soff} offen offset:{off} sc1"
    if OPT["fullst"] and soff == sOb:
        a(full); return
    if first:
        a(f"""
        s_cmp_eq_u32 s{sODD}, 0
        s_cbranch_scc1 {L}_f
        s_mov_b32 exec_hi, 0
        buffer_store_dwordx2 {vr(p+2,2)}, v{vL16}, {sr(sWS)}, s{soff} offen offset:{off+8} sc1
        s_not_b64 exec, exec
        {L}_f:
        {full}
        s_mov_b64 exec, -1
        """)
    else:
        a(f"""
        s_cmp_eq_u32 s{sODD}, 1
        s_cbranch_scc1 {L}_f
        s_mov_b32 exec_lo, 0
        buffer_store_dwordx2 {vr(p,2)}, v{vL16}, {sr(sWS)}, s{soff} offen offset:{off} sc1
        s_not_b64 exec, exec
        {L}_f:
        {full}
        s_mov_b64 exec, -1
        """)

def dma_lanes(a, d, t):
    a(f"""
    v_lshrrev_b32 v{t}, 3, v0
    v_and_b32 v{t+1}, 7, v0
    v_lshrrev_b32 v{t+2}, 4, v0
    s_lshl_b32 s3, s{sR}, 4
    v_add_u32 v{t}, s3, v{t}
    v_mul_u32_u24 v{d+2}, 2688, v{t}
    v_mul_u32_u24 v{t}, 896, v{t}
    v_xor_b32 v{d}, v{t+1}, v{t+2}
    v_lshlrev_b32 v{d}, 4, v{d}
    v_add_u32 v{d}, v{t}, v{d}
    v_add_u32 v{d+1}, {8*896}, v{d}
    v_xor_b32 v{d+1}, 64, v{d+1}
    v_and_b32 v{t}, 1, v{t+2}
    v_lshlrev_b32 v{t}, 2, v{t}
    v_xor_b32 v{t}, v{t}, v{t+1}
    v_lshlrev_b32 v{t}, 4, v{t}
    v_add_u32 v{d+2}, v{d+2}, v{t}
    """)
def dma_tile(a, sCH, sXb, sWb, t, px):
    a(f"""
    s_cmp_lg_u32 s{sACT}, 0
    s_cselect_b32 s{t}, {X_BYTES}, 0
    s_cselect_b32 s{t+1}, {W_BYTES}, 0
    s_mul_i32 s{sXb}, s{sRB}, {64*896}
    s_lshl_b32 s{sWb}, s{sCG}, 7
    """)
    mode = OPT["rmb"] if px == 10 else OPT["rma"]
    if mode == 0:
        a(f"""
        s_and_b32 s3, s{sCG}, 3
        s_lshl_b32 s3, s3, 1
        s_and_b32 s{sCH}, s{sRB}, 7
        s_add_u32 s{sCH}, s{sCH}, s3
        """)
    else:
        if mode == 1: a(f"s_mov_b32 s{sCH}, 0")
        if mode == 2: a(f"s_xor_b32 s{sCH}, s{sRB}, s{sCG}\n s_and_b32 s{sCH}, s{sCH}, 1\n s_mul_i32 s{sCH}, s{sCH}, 3")
        if mode == 4: a(f"s_add_u32 s{sCH}, s{sRB}, s{sCG}\n s_and_b32 s{sCH}, s{sCH}, 3\n s_lshl_b32 s{sCH}, s{sCH}, 1")
        a(f"s_add_u32 s{sCH}, s{sCH}, s{sXCD}")
    a(f"""
    s_cmp_ge_u32 s{sCH}, 7
    s_cselect_b32 s3, 7, 0
    s_sub_u32 s{sCH}, s{sCH}, s3
    """)
def dma_stage(a, d, sCH, sXb, sWb, sSl, t, fill):
    a(f"""
    s_lshl_b32 s{t}, s{sCH}, 7
    s_mov_b32 m0, s{sSl}
    s_add_u32 s{t}, s{t}, s{sXb}
    s_mul_i32 s{t+1}, s{sCH}, {64*2688}
    buffer_load_dwordx4 v{d}, {sr(sX)}, s{t} offen lds
    s_add_u32 m0, s{sSl}, 1024
    s_add_u32 s{t+1}, s{t+1}, s{sWb}
    buffer_load_dwordx4 v{d+1}, {sr(sX)}, s{t} offen lds
    """)
    fill = list(fill) + [""] * 6
    for p in (1, 2, 0):
        for i in range(2):
            a(f"s_add_u32 m0, s{sSl}, {8192 + p*8192 + i*1024}")
            a(f"s_add_u32 s{t}, s{t+1}, {p*896 + i*8*2688}")
            a(f"buffer_load_dwordx4 v{d+2}, {sr(sWt)}, s{t} offen lds")
            a(fill.pop(0))

def gen_loader(a):
    sCH, sSl, sN, sXb, sWb = 40, T0 + 7, T0 + 6, T0 + 5, T0 + 4
    a("s_setprio 3")
    def pad(i):
        if OPT["pads"]: a(f"s_cmp_lg_u32 0, 0\n L_pad{i}:\n s_cbranch_scc1 L_gemm")
    dma_lanes(a, 4, 8)
    p1_role(a, 0)
    pad(0)
    dma_tile(a, sCH, sXb, sWb, T0, 10)
    a(f"""
    s_lshl_b32 s{sSl}, s{sR}, 11
    s_mov_b32 s{sN}, 0
    """)
    stamp(a, 5)
    a("s_waitcnt lgkmcnt(0)")
    stamp(a, 6)
    srd(a, sX, 10, f"s{T0}")
    srd(a, sWt, 12, f"s{T0+1}")
    pad(1)
    stamp(a, 7)
    nxt = [f"s_add_u32 s{sCH}, s{sCH}, 1", f"s_cmp_eq_u32 s{sCH}, 7\n s_cselect_b32 s{sCH}, 0, s{sCH}"]
    def late():
        roles(a)
        attn_setup(a, 1)
        srd(a, sWS, 20, WS_USED)
        srd(a, sOUT, 16, OUT_BYTES)
        a(f"s_mov_b32 s{sC}, 1")
    if OPT["lsu"] == 0:
        dma_stage(a, 4, sCH, sXb, sWb, sSl, T0, nxt + ([f"s_cmp_lg_u32 0, 0\n L_pad2:\n s_cbranch_scc1 L_gemm"] if OPT["pads"] else []))
        lstamp(a, 0)
        if OPT["prof"]:
            a("v_writelane_b32 v1, s90, 1\n v_writelane_b32 v1, s92, 2\n v_writelane_b32 v1, s94, 3")
            if OPT["sst"]:
                a("s_waitcnt vmcnt(7)"); lstamp(a, 4); a("s_waitcnt vmcnt(0)"); lstamp(a, 5)
        a(f"s_add_u32 s{sSl}, s{sSl}, {SLOT}\n s_mov_b32 s{sN}, 1")
        late()
        if OPT["skip"]:
            a(f"""
            s_cmp_lg_u32 s{sACT}, 0
            s_cbranch_scc1 H1_loop
            s_barrier
            s_branch H1_sw
            """)
    a("H1_loop:")
    dma_stage(a, 4, sCH, sXb, sWb, sSl, T0, nxt + [f"s_add_u32 s{sN}, s{sN}, 1"])
    a(f"""
    s_add_u32 s{sSl}, s{sSl}, {SLOT}
    s_and_b32 s{sSl}, s{sSl}, {4*SLOT-1}
    """)
    if OPT["lsu"]: a(f"s_cmp_eq_u32 s{sN}, 1\n s_cbranch_scc1 H1_loop")
    a("s_waitcnt vmcnt(8)\n s_barrier")
    if OPT["prof"] and OPT["lst"]:
        a(f"s_add_u32 s3, s{sN}, 31"); lstamp(a, "s3")
    a(f"s_cmp_lg_u32 s{sN}, 7\n s_cbranch_scc1 H1_same\n H1_sw:")
    p1_role(a, 1)
    dma_tile(a, sCH, sXb, sWb, T0, 4)
    srd(a, sX, 4, f"s{T0}")
    srd(a, sWt, 6, f"s{T0+1}")
    for l in nxt: a(l)
    a(f"""
    s_lshl_b32 s{sSl}, s{sR}, 11
    s_mov_b32 s{sN}, 8
    H1_same:
    s_cmp_lt_u32 s{sN}, 14
    s_cbranch_scc1 H1_loop
    """)
    if OPT["lsu"]: late()
    a("s_waitcnt vmcnt(0)")
    if OPT["padat"] == 7: a("s_memrealtime s[96:97]")
    if OPT["mg"] != 1: a("s_barrier")
    stamp(a, 2)
    a("s_branch C_attn")

vVs, vWo, vFa, vPo, vWa, vOa, vXa, vPar, vHalf, VM, NG, vZ = 15, 16, 17, 18, 19, 21, 22, 24, 25, 144, 156, 9
sKb, sVb, sTile, sM, sHRT = 8, 9, 10, 11, 12
def kv_setup(a, first):
    sRT = sHRT
    a(f"""
    s_lshl_b32 s{sM}, s{sR}, 12
    s_lshl_b32 s{sKb}, s{sU0}, 9
    s_lshl_b32 s{sVb}, s{sU0}, 7
    s_lshl_b32 s{sRT}, s{sQB}, 2
    s_add_u32 s{sRT}, s{sRT}, s{sR}
    s_and_b32 s{sTile}, s{sQB}, {OPT["rot"]}
    s_add_u32 s{sTile}, s{sTile}, {first}
    s_lshl_b32 s{sTile}, s{sTile}, 3
    s_lshl_b32 s3, s{sR}, 1
    s_add_u32 s{sTile}, s{sTile}, s3
    s_and_b32 s{sTile}, s{sTile}, 63
    """)
def kv(a, s):
    base = pslot(s)
    a(f"""
    s_mul_i32 s{T0}, s{sTile}, {RT}
    s_add_u32 m0, s{sM}, {base}
    s_add_u32 s22, s{T0}, s{sKb}
    s_add_u32 s22, s22, {BR + KU}
    """)
    a.vm(f"buffer_load_dwordx4 v{vL16}, {sr(sWS)}, s22 offen sc1 lds", f"kv{s}")
    a(f"s_add_u32 s23, s22, {RT - 2048}")
    a.vm(f"buffer_load_dwordx4 v{vL16}, {sr(sWS)}, s22 offen offset:1024 sc1 lds", f"kv{s}")
    a(f"s_add_u32 s{T0}, s{T0}, s{sVb}")
    a.vm(f"buffer_load_dwordx4 v{vL16}, {sr(sWS)}, s23 offen offset:2048 sc1 lds", f"kv{s}")
    a(f"s_add_u32 s{T0}, s{T0}, {BR + VU}")
    a.vm(f"buffer_load_dwordx4 v{vL16}, {sr(sWS)}, s23 offen offset:3072 sc1 lds", f"kv{s}")
    a(f"s_add_u32 m0, s{sM}, {base + 16384}\n s_mov_b64 exec, {sr(sVM,2)}")
    for i in range(4):
        a.vm(f"buffer_load_dwordx4 v{vVs}, {sr(sWS)}, s{T0} offen offset:{i*1024} sc1 lds", f"kv{s}")
        if i < 3: a(f"s_add_u32 s{T0}, s{T0}, {14336 - 1024}")
    if s in ((1, 2) if OPT["epad"] else (0, 1, 2)):
        a("s_not_b64 exec, exec")
        for i in range(4):
            a.vm(f"global_load_lds_dwordx4 v{vZ}, s[18:19]", f"kv{s}")
            if i < 3: a(f"s_add_u32 m0, s{sM}, {base + 16384 + (i+1)*1024}\n s_nop 0")
    a(f"""
    s_mov_b64 exec, -1
    s_add_u32 s{sTile}, s{sTile}, 8
    s_and_b32 s{sTile}, s{sTile}, 63
    """)
def helper_setup(a, part):
    T = 160; sRT = sHRT
    if part == 0:
        kv_setup(a, 1)
        a(f"""
        v_bfe_u32 v{T}, v0, 3, 1
        v_mul_u32_u24 v{T}, 3, v{T}
        v_add_u32 v{T}, s{sU0}, v{T}
        v_lshrrev_b32 v{T+3}, 2, v{T}
        v_lshlrev_b32 v{T+3}, 6, v{T+3}
        s_cmp_eq_u32 s{sRT}, 0
        s_cselect_b32 s3, 0, 1
        v_and_b32 v{T+2}, s3, v0
        v_sub_u32 v{T+2}, s{sRT}, v{T+2}
        v_add_u32 v{T+2}, v{T+2}, v{T+3}
        v_lshlrev_b32 v{T+2}, {FS}, v{T+2}
        v_add_u32 v{vFa}, {FA}, v{T+2}
        """)
    if part == 1:
        a(f"""
        v_lshrrev_b32 v{T}, 3, v0
        s_lshl_b32 s3, s{sR}, 3
        v_add_u32 v{T+1}, s3, v{T}
        v_mul_u32_u24 v{T+1}, 896, v{T+1}
        v_and_b32 v{T}, 2, v{T}
        s_and_b32 s3, s{sR}, 1
        v_or_b32 v{T}, s3, v{T}
        v_lshlrev_b32 v{T}, 1, v{T}
        v_and_b32 v{T+2}, 7, v0
        v_xor_b32 v{T}, v{T}, v{T+2}
        v_lshlrev_b32 v{T}, 4, v{T}
        v_add_u32 v{T+1}, v{T+1}, v{T}
        s_lshl_b32 s3, s{sCG3}, 7
        v_add_u32 v{vWo}, s3, v{T+1}
        v_lshlrev_b32 v{vPo}, {FS}, v{T+2}
        v_lshrrev_b32 v{T+1}, 2, v0
        v_and_b32 v{T+1}, 3, v{T+1}
        v_lshlrev_b32 v{T+2}, 3, v27
        v_add_u32 v{T+2}, v{T+2}, v{T+1}
        v_lshlrev_b32 v{T+2}, 7, v{T+2}
        v_and_b32 v{T+1}, 2, v{T+1}
        v_or_b32 v{T+1}, v{T+1}, v27
        v_bfe_u32 v{T+3}, v0, 4, 1
        v_xor_b32 v{T+1}, v{T+1}, v{T+3}
        v_lshlrev_b32 v{T+1}, 5, v{T+1}
        v_add_u32 v{T+2}, v{T+2}, v{T+1}
        v_and_b32 v{T+1}, 3, v0
        v_lshlrev_b32 v{T+1}, 3, v{T+1}
        v_add_u32 v{T+2}, v{T+2}, v{T+1}
        s_lshr_b32 s3, s{sR}, 1
        s_mul_i32 s3, s3, {WOA_L[1] - WOA_L[0]}
        s_add_u32 s3, s3, {WOA_L[0]}
        v_add_u32 v{vWa}, s3, v{T+2}
        v_xor_b32 v{vWa+1}, 64, v{vWa}
        v_mul_u32_u24 v{vOa}, 1792, v26
        v_lshlrev_b32 v{T}, 4, v27
        v_add_u32 v{vOa}, v{vOa}, v{T}
        s_add_u32 s3, s{sM}, {XHA_L}
        v_add_u32 v{vXa}, s3, v{vL16}
        v_xor_b32 v{vXa+1}, {2*4096}, v{vXa}
        """)
    if part == 2:
        a(f"""
        v_lshlrev_b32 v{T+1}, 2, v27
        v_and_b32 v{T}, 30, v0
        v_sub_u32 v{T}, v{T}, v{T+1}
        v_add_u32 v{T}, 18, v{T}
        v_mov_b32 v{T+2}, 0x5555
        v_mov_b32 v{T+3}, 0
        v_lshlrev_b64 {vr(T+2,2)}, v{T}, {vr(T+2,2)}
        s_cmp_eq_u32 s{sRT}, 0
        s_cselect_b32 s3, 0, -1
        v_and_b32 v{T+2}, s3, v{T+2}
        v_bfe_i32 v{vPar}, v0, 0, 1
        v_xor_b32 v{vHalf}, 0xffff, v{vPar}
        s_mov_b32 s3, 0xf149f2ca
        """)
        for i in range(12):
            pos = 16 + 8 * (i // 2) + 2 * (i % 2)
            a(f"v_bfe_i32 v{VM+i}, v{T+2 + pos//32}, {pos % 32}, 1")
        for g in range(4):
            a(f"v_bitop3_b32 v{NG+g}, v{VM+g}, v{VM+g+4}, v{VM+g+8} bitop3:0x01\n v_and_b32 v{NG+g}, s3, v{NG+g}")

def store_offsets(a, base, d):
    a(f"""
    s_lshl_b32 s{d+4}, s{sRB}, 1
    s_and_b32 s3, s{sR}, 1
    s_add_u32 s{d+4}, s{d+4}, s3
    s_mul_i32 s{d+3}, s{d+4}, {RT}
    s_cmp_eq_u32 s{sACT}, 0
    s_cselect_b32 s3, {WS_OOB}, 0
    s_add_u32 s{d+3}, s{d+3}, s3
    s_add_u32 s{d+3}, s{d+3}, {base}
    s_lshl_b32 s{d+2}, s{sCG}, 1
    s_lshr_b32 s3, s{sR}, 1
    s_add_u32 s{d+2}, s{d+2}, s3
    s_lshl_b32 s3, s{d+2}, 6
    s_add_u32 s{d+4}, s{d+4}, s3
    s_lshl_b32 s{d}, s{d+2}, 11
    s_add_u32 s{d}, s{d}, s{d+3}
    s_add_u32 s{d+1}, s{d}, {KU}
    s_lshl_b32 s{d+2}, s{d+2}, 9
    s_add_u32 s{d+2}, s{d+2}, s{d+3}
    s_add_u32 s{d+2}, s{d+2}, {VU}
    s_add_u32 s{d+3}, s{d+2}, 14336
    """)
def qkv_stores(p, d):
    return [f"buffer_store_dwordx4 {vr(p+16,4)}, v{vVs}, {sr(sWS)}, s{d+2} offen sc1",
            f"buffer_store_dwordx4 {vr(p+20,4)}, v{vVs}, {sr(sWS)}, s{d+3} offen sc1",
            f"buffer_store_dwordx4 {vr(p+8,4)}, v{vL16}, {sr(sWS)}, s{d+1} offen sc1",
            f"buffer_store_dwordx4 {vr(p+12,4)}, v{vL16}, {sr(sWS)}, s{d+1} offen offset:1024 sc1",
            f"buffer_store_dwordx4 {vr(p,4)}, v{vL16}, {sr(sWS)}, s{d} offen sc1",
            f"buffer_store_dwordx4 {vr(p+4,4)}, v{vL16}, {sr(sWS)}, s{d} offen offset:1024 sc1"]

def gen_gemm(a):
    vXA, vWA = 10, 14
    accQ, accK, accV = 32, 48, 64
    a(f"""
    v_and_b32 v26, 31, v0
    v_lshrrev_b32 v27, 5, v0
    v_lshrrev_b32 v28, 1, v26
    v_and_b32 v28, 7, v28
    v_xor_b32 v28, v28, v27
    v_lshlrev_b32 v28, 4, v28
    s_mul_i32 s{T0}, s{sC}, {4*SLOT}
    s_and_b32 s3, s{sW}, 1
    s_lshl_b32 s3, s3, 12
    s_add_u32 s3, s3, s{T0}
    v_lshlrev_b32 v29, 7, v26
    v_add_u32 v29, s3, v29
    v_add_u32 v{vXA}, v29, v28
    v_xor_b32 v{vXA+1}, 32, v{vXA}
    v_xor_b32 v{vXA+2}, 64, v{vXA}
    v_xor_b32 v{vXA+3}, 96, v{vXA}
    s_lshr_b32 s{T0+1}, s{sR}, 1
    v_lshrrev_b32 v28, 2, v0
    v_and_b32 v28, 3, v28
    v_lshlrev_b32 v29, 3, v27
    v_add_u32 v29, v29, v28
    v_lshlrev_b32 v29, 7, v29
    v_lshrrev_b32 v28, 1, v28
    v_xor_b32 v28, s{T0+1}, v28
    v_lshlrev_b32 v28, 6, v28
    v_add_u32 v29, v29, v28
    v_and_b32 v28, 16, v0
    v_lshlrev_b32 v28, 1, v28
    v_add_u32 v29, v29, v28
    v_and_b32 v28, 3, v0
    v_lshlrev_b32 v28, 3, v28
    v_add_u32 v29, v29, v28
    v_add_u32 v{vWA}, s{T0}, v29
    """)
    for i in range(48):
        a(f"v_mov_b32 v{accQ+i}, 0")
    roles(a)
    a(f"""
    s_mov_b32 s{T0+6}, {hex(f32bits(CSCALE))}
    v_mov_b32 v{vZ}, 0
    v_mov_b32 v{vWo}, 0
    v_mov_b32 v{vFa}, 0
    v_mov_b32 v{vPo}, 0
    v_mov_b32 v{vOa}, 0
    v_mul_u32_u24 v{vVs}, {7168-512}, v27
    v_add_u32 v{vVs}, v{vVs}, v{vL16}
    """)
    p1_role(a, f"s{sC}")
    a(f"s_cmp_eq_u32 s{sC}, 0\n s_cselect_b32 s{T0}, {BR}, 0")
    store_offsets(a, f"s{T0}", T0 + 1)
    a(f"""
    s_waitcnt lgkmcnt(0)
    """)
    srd(a, sWS, 20, WS_USED)
    a(f"""
    v_mov_b32 v4, {EPOCH}
    buffer_load_dword v4, v4, {sr(sWS)}, 0 offen sc1
    """)
    srd(a, sOUT, 16, OUT_BYTES)
    srd(a, sWoA, 8, WO_BYTES)
    srd(a, sWoB, 14, WO_BYTES)
    a(f"""
    s_getpc_b64 s[18:19]
    H_pc:
    s_add_u32 s18, s18, L_ones-H_pc
    s_addc_u32 s19, s19, 0
    s_mov_b32 s{T0+11}, {SLOT}
    s_cmp_eq_u32 s{sC}, 0
    s_cbranch_scc1 C_bb
    """)
    if OPT["prefetch"]:
        a(f"""
        s_lshl_b32 s3, s{sJ}, 2
        s_add_u32 s3, s3, s{sR}
        s_lshl_b32 s3, s3, 7
        s_min_u32 s3, s3, L_ones-C_b0-64
        s_sub_u32 s22, s18, L_ones-C_b0
        s_subb_u32 s23, s19, 0
        s_load_dword s0, s[22:23], s3
        s_add_u32 s3, s3, 64
        s_load_dword s0, s[22:23], s3
        """)
    dma_lanes(a, 5, 164)
    dma_tile(a, 14, 15, 16, 22, 4)
    srd(a, sX, 4, "s22")
    srd(a, sWt, 6, "s23")
    a(f"s_lshl_b32 s17, s{sR}, 11\n s_add_u32 s17, s17, {4*SLOT}\n s_mov_b32 s{T0+11}, 0")
    if OPT["ipf"]:
        a(f"""
        s_and_b32 s3, s2, {0xc1}
        s_cmp_lg_u32 s3, {0xc1}
        s_cbranch_scc1 C_nipf
        s_lshl_b32 s3, s{sRB}, 2
        s_add_u32 s3, s3, s{sR}
        s_mul_i32 s22, s3, 14336
        s_mul_i32 s23, s3, 9408
        s_and_b32 s23, s23, -128
        s_mov_b32 m0, s17
        """)
        if OPT["ipw"]: a("s_waitcnt vmcnt(0)")
        for i in range(14):
            a(f"buffer_load_dwordx4 v{vL16}, {sr(sX)}, s22 offen lds\n s_add_u32 s22, s22, 1024")
            if i < 10: a(f"buffer_load_dwordx4 v{vL16}, {sr(sWt)}, s23 offen lds\n s_add_u32 s23, s23, 1024")
        a("C_nipf:")
    steps = [lambda: helper_setup(a, 0), lambda: helper_setup(a, 1), lambda: helper_setup(a, 2)]
    for b in range(-1, 6):
        if b == 5 or (b >= 0 and not OPT["skip"]): a("s_barrier")
        elif b >= 0: a(f"s_and_b32 s3, s2, 0xc1\n s_cmp_eq_u32 s3, 0xc1\n s_cbranch_scc1 C_sk{b}\n s_barrier\n C_sk{b}:")
        if b == OPT["tpos"] and OPT["tch"] >= 2:
            a(f"""
            v_and_b32 v8, 7, v0
            s_mov_b32 s3, {MAT}
            v_mul_lo_u32 v8, v8, s3
            s_and_b32 s3, s{T0+1}, {WS_OOB - 1}
            s_mov_b64 exec, 0xff
            buffer_load_dword v3, v8, {sr(sWS)}, s3 offen sc1
            """)
            if OPT["tch"] >= 3:
                a(f"""
                s_mul_i32 s3, s{sRBK}, {64*1792}
                s_mov_b64 exec, 1
                buffer_load_dword v3, v8, {sr(sOUT)}, s3 offen sc1
                buffer_load_dword v3, v8, {sr(sWoA)}, 0 offen
                buffer_load_dword v3, v8, {sr(sWoB)}, 0 offen
                """)
            a("s_mov_b64 exec, -1")
        if b == 0 and OPT["tch"] == 1:
            a("s_load_dword s0, s[4:5], 0\n s_load_dword s0, s[6:7], 0")
        if b == OPT["apos"]:
            if not OPT["noa7"]: dma_stage(a, 5, 14, 15, 16, 17, 22, [])
        elif b == 5: a("s_waitcnt vmcnt(0) lgkmcnt(0)"); make_tag(a, 4)
        elif steps: steps.pop(0)()
    assert not steps
    a(f"""
    C_b0:
    s_mov_b32 s{T0+7}, 7
    s_branch C_w0
    C_w:
    s_barrier
    s_branch C_w1
    C_w0:
    s_barrier
    s_memrealtime s[96:97]
    s_waitcnt lgkmcnt(0)
    C_w1:
    """ if OPT["padat"] == 5 else f"""
    C_b0:
    s_mov_b32 s{T0+7}, 7
    C_w:
    s_barrier
    """)
    F = [80, 96, 112, 128]
    def rlist(ks):
        f = F[ks]
        r = [f"ds_read_b128 {vr(f,4)}, v{vXA+ks}"]
        for p in (1, 2, 0):
            for j in range(2):
                r.append(f"ds_read_b64_tr_b16 {vr(f+4+4*p+2*j,2)}, v{vWA} offset:{8192+p*8192+ks*2048+j*512}")
        return r
    def mlist(ks):
        f = F[ks]
        return [f"{MF32} {vr(accK,16)}, {vr(f+8,4)}, {vr(f,4)}, {vr(accK,16)}",
                f"{MF32} {vr(accV,16)}, {vr(f,4)}, {vr(f+12,4)}, {vr(accV,16)}",
                f"{MF32} {vr(accQ,16)}, {vr(f+4,4)}, {vr(f,4)}, {vr(accQ,16)}"]
    def step(ks, rd):
        m = mlist(ks)
        r = rlist((ks + 2) % 4) if rd else [""] * 7
        a(m[0]); a(r[0]); a(r[1]); a(r[2]); a(m[1]); a(r[3]); a(r[4]); a(m[2]); a(r[5]); a(r[6])
    for l in rlist(0) + rlist(1): a(l)
    if OPT["mg"] == 1: a(f"s_cmp_eq_u32 s{T0+7}, s{sC}\n s_cbranch_scc1 H_kv1")
    a("C_g:")
    a("s_waitcnt lgkmcnt(7)"); step(0, True)
    a("s_waitcnt lgkmcnt(7)"); step(1, True)
    for r in range(vXA, vXA + 5):
        a(f"v_add_u32 v{r}, s{T0+11}, v{r}\n v_and_b32 v{r}, {4*SLOT-1}, v{r}")
    a(f"""
    s_mov_b32 s{T0+11}, {SLOT}
    s_sub_u32 s{T0+7}, s{T0+7}, 1
    s_cmp_le_u32 s{T0+7}, 1
    s_cbranch_scc1 C_gx
    s_waitcnt lgkmcnt(0)
    s_barrier
    """)
    step(2, True)
    step(3, True)
    a("s_branch C_g\n C_gx:")
    a("s_waitcnt lgkmcnt(7)"); step(2, False)
    a("s_waitcnt lgkmcnt(0)"); step(3, False)
    a(f"s_cmp_eq_u32 s{T0+7}, 1\n s_cbranch_scc1 C_w")
    stamp(a, 3)
    if OPT["mg"] == 2: a(f"s_cmp_lg_u32 s{sC}, 0\n s_cbranch_scc1 H_kv1\n s_nop 6\n C_cv:")
    else: a("s_nop 8")
    P = 80
    st = qkv_stores(P, T0 + 1)
    for i in range(8):
        a(f"v_cvt_pk_bf16_f32 v{P+8+i}, v{accK+2*i}, v{accK+2*i+1}")
    for i in range(8):
        a(f"v_cvt_pk_bf16_f32 v{P+16+i}, v{accV+2*i}, v{accV+2*i+1}")
    for g in (8, 12):
        a(f"v_permlane32_swap_b32 v{P+g}, v{P+g+2}\n v_permlane32_swap_b32 v{P+g+1}, v{P+g+3}")
    a(f"s_cmp_lg_u32 s{sC}, 0\n s_cbranch_scc1 C_ns")
    for l in st[:4]: a(l)
    a("C_ns:")
    for i in range(16):
        a(f"v_mul_f32 v{accQ+i}, s{T0+6}, v{accQ+i}")
    for i in range(8):
        a(f"v_cvt_pk_bf16_f32 v{P+i}, v{accQ+2*i}, v{accQ+2*i+1}")
    a("s_nop 1")
    for g in (0, 4):
        a(f"v_permlane32_swap_b32 v{P+g}, v{P+g+2}\n v_permlane32_swap_b32 v{P+g+1}, v{P+g+3}")
    a(f"s_cbranch_scc1 L_helper")

def gen_bskip(a):
    a("C_bb:")
    if OPT["skip"]:
        a(f"s_cmp_lg_u32 s{sACT}, 0\n s_cbranch_scc1 C_b0\n s_barrier\n s_barrier\n s_branch C_pub")
    else:
        a("s_branch C_b0")

def gen_publish(a):
    T, vFl = 28, 32
    sRT = sHRT
    kd, pp = OPT["kd"], OPT["pp"]
    for l in qkv_stores(80, T0 + 1)[4:]: a(l)
    a("C_pub:")
    if OPT["padat"] == 3: a("s_memrealtime s[96:97]")
    lstamp(a, 0)
    a("s_barrier")
    a(f"""
    s_lshl_b32 s3, s{sCG}, 5
    s_add_u32 s3, s3, s{sRB}
    s_lshl_b32 s3, s3, {FS}
    s_add_u32 s13, s3, {FB}
    """)
    kv_setup(a, 0)
    a(f"""
    v_bfe_u32 v{T}, v0, 3, 1
    v_mul_u32_u24 v{T}, 3, v{T}
    v_add_u32 v{T}, s{sU0}, v{T}
    v_lshrrev_b32 v{T+3}, 3, v{T}
    v_lshlrev_b32 v{T+3}, 5, v{T+3}
    s_lshr_b32 s3, s{sRT}, 1
    v_mov_b32 v{T+1}, s3
    s_mov_b64 exec, 0xffff
    v_and_b32 v{T+1}, 7, v0
    v_lshlrev_b32 v{T+1}, 2, v{T+1}
    v_add_u32 v{T+1}, s{sR}, v{T+1}
    s_mov_b64 exec, -1
    v_add_u32 v{T+1}, v{T+1}, v{T+3}
    v_lshlrev_b32 v{T+1}, {FS}, v{T+1}
    v_add_u32 v{vFl}, {FB}, v{T+1}
    """)
    attn_setup(a, 0)
    def qload():
        a(f"""
        s_lshr_b32 s3, s{sM}, 1
        s_add_u32 m0, s3, {QST_L}
        s_sub_u32 s3, s{sOb}, {OU - QU}
        buffer_load_dwordx4 v{vL16}, {sr(sWS)}, s3 offen sc1 lds
        buffer_load_dwordx4 v{vL16}, {sr(sWS)}, s3 offen offset:1024 sc1 lds
        """)
    last = 12 if OPT["mg"] == 1 else 13
    pl = f"buffer_load_dwordx2 {vr(T+2,2)}, v{vFl}, {sr(sWS)}, 0 offen sc1"
    for b in range(9, last + 1):
        if b == kd:
            a("s_waitcnt vmcnt(0)")
            lstamp(a, 1)
            if OPT["padat"] == 6: a("s_memrealtime s[96:97]")
            make_tag(a, 4)
        a("s_barrier")
        if b == kd:
            a(f"s_cmp_lg_u32 s{sW}, 0\n s_cbranch_scc1 H_nofl")
            set_flag(a, 13, T)
            a("H_nofl:")
            lstamp(a, 3)
            if OPT["epad"]:
                a(f"s_not_b64 exec, {sr(sVM,2)}")
                for i in range(4):
                    a(f"s_add_u32 m0, s{sM}, {pslot(0) + 16384 + i*1024}\n s_nop 0\n global_load_lds_dwordx4 v{vZ}, s[18:19]")
                a("s_mov_b64 exec, -1")
        if b > pp:
            a(f"""
            s_mov_b32 s13, {last - b}
            s_waitcnt vmcnt(0)
            v_cmp_ne_u64 vcc, {sr(sTAG,2)}, {vr(T+2,2)}
            s_cmp_eq_u64 vcc, 0
            s_cbranch_scc1 H_ok
            """)
        if pp <= b < last: a(pl)
    assert 10 <= pp < last
    if OPT["ipoll"]:
        a(f"s_cmp_lg_u32 s{sACT}, 0\n s_cbranch_scc1 H_np\n s_mov_b64 exec, 1")
        poll(a, vFl, T + 2, sleep=OPT["ipoll"])
        a("H_np:")
    poll(a, vFl, T + 2)
    a("H_ok:")
    if OPT["padat"] == 4: a("s_memrealtime s[96:97]")
    lstamp(a, 2)
    qload()
    kv(a, 0)
    a("""
    H_rb:
    s_sub_u32 s13, s13, 1
    s_cbranch_scc1 H_b13
    s_barrier
    s_branch H_rb
    H_b13:
    s_waitcnt vmcnt(0)
    """)

vCur, vNxt, vNx2, vQa, vK0, vXw, vXr, vT = 148, 149, 150, 151, 152, 153, 156, 160
def attn_setup(a, kh):
    a(f"""
    s_and_b32 s{sK3}, s{sCG3}, {OPT["krot"]}
    s_xor_b32 s{sK3}, s{sK3}, {kh}
    s_add_u32 s{sWI}, s{sR}, {4*kh}
    s_lshl_b32 s3, s{sQB}, 2
    s_add_u32 s3, s3, s{sR}
    s_mul_i32 s3, s3, {RT}
    s_lshl_b32 s{sOb}, s{sU0}, 9
    s_add_u32 s{sOb}, s{sOb}, s3
    s_add_u32 s{sOb}, s{sOb}, {BR + OU}
    v_add_u32 v{vCur}, {pslot(0) + kh*8192}, v{vL16}
    v_add_u32 v{vNxt}, {pslot(1) + kh*8192}, v{vL16}
    v_add_u32 v{vNx2}, {pslot(2) + kh*8192}, v{vL16}
    v_add_u32 v{vK0}, {pslot(0)}, v{vL16}
    s_lshl_b32 s3, s{sR}, 11
    s_add_u32 s3, s3, {QST_L}
    v_add_u32 v{vQa}, s3, v{vL16}
    s_lshl_b32 s3, s{sR}, 10
    v_add_u32 v{vT}, s3, v{vL16}
    v_add_u32 v{vXw}, {XC1_L + kh*4096}, v{vT}
    v_add_u32 v{vXr}, {XC1_L + (1-kh)*4096}, v{vT}
    v_add_u32 v{vXw+1}, {XC2_L + kh*8192}, v{vT}
    v_add_u32 v{vXr+1}, {XC2_L + (1-kh)*8192}, v{vT}
    v_lshrrev_b32 v{vT}, 2, v{vT}
    v_add_u32 v{vXw+2}, {XC2_L + kh*8192 + 4096}, v{vT}
    v_add_u32 v{vXr+2}, {XC2_L + (1-kh)*8192 + 4096}, v{vT}
    v_lshrrev_b32 v{vT}, 4, v0
    v_lshrrev_b32 v{vT+1}, 2, v0
    v_and_b32 v{vT+1}, 3, v{vT+1}
    v_lshlrev_b32 v{vT+2}, 3, v{vT}
    v_add_u32 v{vT+2}, v{vT+2}, v{vT+1}
    v_lshlrev_b32 v{vT+2}, 7, v{vT+2}
    v_and_b32 v{vT+1}, 2, v{vT+1}
    v_and_b32 v{vT+3}, 1, v{vT}
    v_or_b32 v{vT+1}, v{vT+1}, v{vT+3}
    v_lshlrev_b32 v{vT+1}, 5, v{vT+1}
    v_add_u32 v{vT+2}, v{vT+2}, v{vT+1}
    v_and_b32 v{vT+1}, 3, v0
    v_lshlrev_b32 v{vT+1}, 3, v{vT+1}
    v_add_u32 v{vT+2}, v{vT+2}, v{vT+1}
    s_mul_i32 s3, s{sK3}, {224*128}
    v_add_u32 v{vT+4}, s3, v{vL16 if OPT["wt"] else vT+2}
    v_xor_b32 v{vT+5}, 32, v{vT+4}
    v_xor_b32 v{vT+6}, 64, v{vT+4}
    v_xor_b32 v{vT+7}, 96, v{vT+4}
    s_lshl_b32 s{sOf}, s{sRBK}, 1
    s_lshr_b32 s3, s{sR}, 1
    s_add_u32 s{sOf}, s{sOf}, s3
    s_mul_i32 s{sOf}, s{sOf}, {RT}
    s_and_b32 s3, s{sR}, 1
    s_lshl_b32 s3, s3, 8
    s_add_u32 s{sOf}, s{sOf}, s3
    s_mul_i32 s3, s{sK3}, {28*512}
    s_add_u32 s{sOf}, s{sOf}, s3
    s_add_u32 s{sOf}, s{sOf}, {BR + OU}
    v_and_b32 v{vT+1}, 15, v0
    v_lshlrev_b32 v{vT+2}, 9, v{vT}
    v_lshlrev_b32 v159, 4, v{vT+1}
    v_add_u32 v{vT+2}, v{vT+2}, v159
    s_lshl_b32 s3, s{sRBK}, 2
    s_add_u32 s3, s3, s{sR}
    s_lshl_b32 s3, s3, 4
    v_add_u32 v{vT+1}, s3, v{vT+1}
    v_mul_u32_u24 v{vT+1}, 1792, v{vT+1}
    v_lshlrev_b32 v{vT+3}, 5, v{vT+3}
    v_add_u32 v{vT+1}, v{vT+1}, v{vT+3}
    v_lshrrev_b32 v{vT+3}, 1, v{vT}
    v_lshlrev_b32 v{vT+3}, 4, v{vT+3}
    v_add_u32 v{vT+1}, v{vT+1}, v{vT+3}
    s_lshl_b32 s{sOo}, s{sCG3}, 7
    s_lshl_b32 s3, s{sK3}, 6
    s_add_u32 s{sOo}, s{sOo}, s3
    s_add_u32 s{sOo}, s{sOo}, 896
    """)
    for r in list(range(104, 120)) + list(range(64, 68)) + list(range(132, 136)):
        a(f"v_mov_b32 v{r}, 0")

def gen_attn(a):
    Q, NM, S, P, O, K, V, T = 4, 12, [28, 44], 60, 104, 120, 128, 140
    WF, OF, ACC = 4, 116, 144
    sS = T0 + 7
    a("C_attn:")
    stamp(a, 5)
    a("s_setprio 1\n s_barrier")
    stamp(a, 6)
    if OPT["padat"] == 1: a("s_memrealtime s[96:97]\n s_waitcnt lgkmcnt(0)")
    if OPT["rts"]: stamp(a, 3, rt=True)
    if OPT["prof"]: a("s_waitcnt lgkmcnt(0)")
    a(f"""
    ds_read_b128 {vr(Q,4)}, v{vQa}
    ds_read_b128 {vr(Q+4,4)}, v{vQa} offset:1024
    ds_read_b128 {vr(NM,4)}, v{vK0}
    ds_read_b128 {vr(NM+4,4)}, v{vK0} offset:1024
    ds_read_b128 {vr(NM+8,4)}, v{vCur}
    ds_read_b128 {vr(NM+12,4)}, v{vCur} offset:1024
    ds_read_b128 {vr(K,4)}, v{vCur} offset:2048
    ds_read_b128 {vr(K+4,4)}, v{vCur} offset:3072
    {"" if OPT["g5"] else f"ds_read_b128 {vr(V,4)}, v{vCur} offset:16384"}
    s_waitcnt lgkmcnt({7 - OPT["g5"]})
    """)
    zero_foreign(a, Q)
    a(f"""
    s_waitcnt lgkmcnt({5 - OPT['g5']})
    {MF32} {vr(S[1],16)}, {vr(NM,4)}, {vr(Q,4)}, 0
    {MF32} {vr(S[1],16)}, {vr(NM+4,4)}, {vr(Q+4,4)}, {vr(S[1],16)}
    s_waitcnt lgkmcnt({3 - OPT['g5']})
    {MF32} {vr(S[0],16)}, {vr(NM+8,4)}, {vr(Q,4)}, 0
    {MF32} {vr(S[0],16)}, {vr(NM+12,4)}, {vr(Q+4,4)}, {vr(S[0],16)}
    s_mov_b32 s{sS}, 0
    s_mov_b32 s3, {hex(f32bits(-float(OPT["delta"])))}
    s_nop 7
    """)
    s1 = S[1]
    a(f"v_max3_f32 v{T}, v{s1}, v{s1+1}, v{s1+2}")
    a(f"v_max3_f32 v{T+1}, v{s1+3}, v{s1+4}, v{s1+5}")
    for i in range(6, 14, 4):
        a(f"v_max3_f32 v{T}, v{T}, v{s1+i}, v{s1+i+1}")
        a(f"v_max3_f32 v{T+1}, v{T+1}, v{s1+i+2}, v{s1+i+3}")
    a(f"""
    v_max3_f32 v{T}, v{T}, v{s1+14}, v{s1+15}
    v_max_f32 v{T}, v{T}, v{T+1}
    v_mov_b32 v{T+1}, v{T}
    v_mov_b32 v{s1+14}, 0
    v_mov_b32 v{s1+15}, 0
    v_permlane32_swap_b32 v{T}, v{T+1}
    s_nop 1
    v_max_f32 v{T}, v{T}, v{T+1}
    v_sub_f32 v{NM}, s3, v{T}
    """)
    if OPT["g5"]:
        a(f"s_waitcnt vmcnt(0)\n s_barrier\n ds_read_b128 {vr(V,4)}, v{vCur} offset:16384")
    for i in range(16):
        a(f"v_add_f32 v{S[0]+i}, v{S[0]+i}, v{NM}")
    for i in range(1, 16):
        a(f"v_mov_b32 v{NM+i}, v{NM}")
    a("s_waitcnt lgkmcnt(0)\n s_setprio 1")
    a(".p2align 3")
    a("C_loop:")
    for i in range(4):
        cs, ns = S[i % 2], S[(i + 1) % 2]
        def ex(j): return f"v_exp_f32 v{cs+j}, v{cs+j}"
        def cv(j): return f"v_cvt_pk_bf16_f32 v{P+j}, v{cs+2*j}, v{cs+2*j+1}"
        kreg, ko = (vCur, (i + 2) * 2048) if i < 2 else (vNxt, (i - 2) * 2048)
        vreg, vo = (vCur, (i + 1) * 2048) if i < 3 else (vNxt, 0)
        a(ex(0)); a(ex(1))
        a(f"v_cvt_pk_bf16_f32 v{P+7}, v{ns+14}, v{ns+15}")
        a(ex(2))
        if i == 2:
            a("s_barrier\n s_setprio 3")
        a("s_waitcnt lgkmcnt(2)")
        a(f"{MF32} {vr(ns,16)}, {vr(K,4)}, {vr(Q,4)}, {vr(NM,16)}")
        a(f"ds_read_b128 {vr(K,4)}, v{kreg} offset:{ko}")
        a(cv(0)); a(ex(3)); a(ex(4)); a(cv(1)); a(ex(5)); a(ex(6))
        a(f"{MF32} {vr(O,16)}, {vr(V+4,4)}, {vr(P+4,4)}, {vr(O,16)}")
        a(f"ds_read_b128 {vr(V+4,4)}, v{vCur} offset:{16384 + i*2048 + 1024}")
        a(cv(2)); a(ex(7)); a(ex(8)); a(cv(3)); a(ex(9)); a("s_waitcnt lgkmcnt(2)")
        a(f"{MF32} {vr(ns,16)}, {vr(K+4,4)}, {vr(Q+4,4)}, {vr(ns,16)}")
        a(f"ds_read_b128 {vr(K+4,4)}, v{kreg} offset:{ko+1024}")
        a(ex(10)); a(ex(11)); a(cv(4)); a(ex(12)); a(ex(13)); a(cv(5))
        a(f"{MF32} {vr(O,16)}, {vr(V,4)}, {vr(P,4)}, {vr(O,16)}")
        a(f"ds_read_b128 {vr(V,4)}, v{vreg} offset:{16384 + vo}")
        a(ex(14)); a(ex(15)); a(cv(6))
        if i == 0: a("s_setprio 0\n s_add_u32 s{0}, s{0}, 1".format(sS))
        if i == 2: a("s_setprio 2\n s_nop 0")
        if i == 3:
            a(f"""
            v_swap_b32 v{vCur}, v{vNxt}
            s_setprio 1
            v_swap_b32 v{vNxt}, v{vNx2}
            s_cmp_lt_u32 s{sS}, 8
            s_cbranch_scc1 C_loop
            """)
    a(f"""
    v_cvt_pk_bf16_f32 v{P+7}, v{S[1]+14}, v{S[1]+15}
    s_waitcnt lgkmcnt(0)
    s_cmp_eq_u32 s{sODD}, 0
    {MF32} {vr(O,16)}, {vr(V+4,4)}, {vr(P+4,4)}, {vr(O,16)}
    """)
    stamp(a, 7)
    if OPT["padat"] == 2: a("s_memrealtime s[96:97]")
    a(f"s_setprio {OPT['tp']}")
    if OPT["rts"]: stamp(a, 4, rt=True)
    X = S[0]
    a(f"""
    s_nop 10
    s_cbranch_scc1 C_le
    v_mov_b32 v{T+2}, v{O}
    s_branch C_lx
    C_le:
    v_mov_b32 v{T+2}, v{O+12}
    C_lx:
    s_cmp_eq_u32 s{sC}, 0
    s_cbranch_scc1 C_x0
    ds_write_b128 v{vXw}, {vr(O,4)}
    ds_write_b128 v{vXw+1}, {vr(O+4,4)}
    ds_write_b32 v{vXw+2}, v{T+2}
    s_waitcnt lgkmcnt(0)
    s_barrier
    """)
    for i in range(8):
        a(f"v_mov_b32 v{O+i}, v{O+8+i}")
    a(f"""
    s_branch C_x1
    C_x0:
    ds_write_b128 v{vXw}, {vr(O+8,4)}
    ds_write_b128 v{vXw+1}, {vr(O+12,4)}
    ds_write_b32 v{vXw+2}, v{T+2}
    s_waitcnt lgkmcnt(0)
    s_barrier
    C_x1:
    ds_read_b32 v{X+8}, v{vXr+2}
    ds_read_b128 {vr(X,4)}, v{vXr}
    ds_read_b128 {vr(X+4,4)}, v{vXr+1}
    s_waitcnt lgkmcnt(2)
    v_add_f32 v{T+2}, v{T+2}, v{X+8}
    """)
    bcast_l(a, T + 2, T + 2, T + 4)
    a("s_waitcnt lgkmcnt(0)")
    a(f"v_mul_f32 v{T}, 0, v{T+4}\n v_mov_b32 v{T+1}, 0x207")
    for i in range(8):
        a(f"v_add_f32 v{O+i}, v{O+i}, v{X+i}")
    for i in range(8):
        a(f"v_add_f32 v{T}, v{T}, abs(v{O+i})")
    a(f"""
    s_mov_b32 s3, {hex((127 - 100) << 23)}
    v_cmp_nge_f32 vcc, v{T}, s3
    v_cmp_class_f32 s[22:23], v{T}, v{T+1}
    s_or_b64 vcc, vcc, s[22:23]
    s_cbranch_scc1 C_slow
    C_fin:
    """)
    finalize(a, O, 8, T + 4)
    a(f"s_cmp_eq_u32 s{sC}, 0\n s_cbranch_scc0 C_st1")
    store_units(a, O, True, sOb, 0)
    a("s_branch C_st2\n C_st1:")
    store_units(a, O, False, sOb, 1024)
    a("C_st2:")
    if OPT["padat"] == 8: a("s_memrealtime s[96:97]")
    stamp(a, 8)
    a(f"s_mov_b64 s[22:23], -1\n s_cmp_ge_u32 s{sJ}, 28\n s_cbranch_scc1 C_exit")
    def wrd(s0, s1):
        for s in range(s0, s1):
            for t in range(4):
                if OPT["wt"]:
                    a(f"ds_read_b128 {vr(WF+16*s+4*t,4)}, v{vT+4} offset:{s*4096 + t*1024}")
                    continue
                for j in range(2):
                    a(f"ds_read_b64_tr_b16 {vr(WF+16*s+4*t+2*j,2)}, v{vT+4+t} offset:{(32*s+4*j)*128}")
    def oloads():
        a(f"s_mov_b32 s3, s{sOf}")
        for s in range(7):
            if s and s % 2 == 0:
                a(f"s_add_u32 s3, s3, 4096")
            a(f"buffer_load_dwordx4 {vr(OF+4*s,4)}, v{vT+2}, {sr(sWS)}, s3 offen offset:{(s%2)*2048} sc1")
    wrd(0, OPT["wf"])
    a(f"s_mov_b32 s{T0+11}, {SPIN}\n s_mov_b32 s{T0+5}, 0\n s_waitcnt vmcnt(0)")
    stamp(a, 2)
    oloads()
    wrd(OPT["wf"], 7)
    a(f"""
    v_mov_b32 v{vT+4}, v{vXw}
    v_mov_b32 v{vT+5}, v{vXw+1}
    v_mov_b32 v{vT+6}, v{vXr}
    v_mov_b32 v{vT+7}, v{vXr+1}
    s_waitcnt lgkmcnt(0)
    C_pp:
    """)
    for s in range(7):
        a(f"s_waitcnt vmcnt({6-s})")
        f = OF + 4 * s
        for t in range(4):
            cin = "0" if s == 0 else vr(ACC + 4 * t, 4)
            a(f"{MF16} {vr(ACC+4*t,4)}, {vr(WF+16*s+4*t,4)}, {vr(f,4)}, {cin}")
            if t == 0: a(f"v_max3_u32 v3, v{f}, v{f+1}, v{f+2 if s == 0 else 3}")
            if t == 1: a(f"v_max3_u32 v3, v3, v{f+2}, v{f+3}")
    a(f"""
    v_cmp_eq_u32 vcc, -1, v3
    s_add_u32 s{T0+5}, s{T0+5}, 1
    s_cmp_lg_u64 vcc, 0
    s_cbranch_scc1 C_again
    C_ppx:
    """)
    stamp(a, 9)
    if OPT["padat"] == 9: a("s_memrealtime s[96:97]")
    if OPT["prof"]: a(f"v_writelane_b32 v1, s{T0+5}, 63")
    a(f"""
    s_cmp_eq_u32 s{sK3}, 0
    s_nop 5
    s_cbranch_scc1 C_y0
    ds_write_b128 v{vT+6}, {vr(ACC,4)}
    ds_write_b128 v{vT+7}, {vr(ACC+4,4)}
    s_waitcnt lgkmcnt(0)
    s_barrier
    """)
    for i in range(8):
        a(f"v_mov_b32 v{ACC+i}, v{ACC+8+i}")
    a(f"""
    s_branch C_y1
    C_y0:
    ds_write_b128 v{vT+6}, {vr(ACC+8,4)}
    ds_write_b128 v{vT+7}, {vr(ACC+12,4)}
    s_waitcnt lgkmcnt(0)
    s_barrier
    C_y1:
    ds_read_b128 {vr(OF,4)}, v{vT+4}
    ds_read_b128 {vr(OF+4,4)}, v{vT+5}
    s_waitcnt lgkmcnt(0)
    """)
    for i in range(8):
        a(f"v_add_f32 v{ACC+i}, v{ACC+i}, v{OF+i}")
    for i in range(4):
        a(f"v_cvt_pk_bf16_f32 v{ACC+i}, v{ACC+2*i}, v{ACC+2*i+1}")
    osc = ("", " sc1", " nt", " sc0 sc1")[OPT["outsc"]]
    a(f"""
    s_nop 1
    v_permlane16_swap_b32 v{ACC}, v{ACC+2}
    v_permlane16_swap_b32 v{ACC+1}, v{ACC+3}
    buffer_store_dwordx4 {vr(ACC,4)}, v{vT+1}, {sr(sOUT)}, s{sOo} offen{osc}
    C_exit:
    """)
    if OPT["padrt"] or OPT["padcy"]:
        if OPT["padx"] >= 0: a(f"s_cmp_lg_u32 s{sXCD}, {OPT['padx']}\n s_cbranch_scc1 C_padx")
        a(f"""
        C_pad:
        {'s_memrealtime' if OPT['padrt'] else 's_memtime'} s[98:99]
        s_waitcnt lgkmcnt(0)
        s_sub_u32 s98, s98, s96
        s_cmp_lt_u32 s98, {OPT['padrt'] or OPT['padcy']}
        s_cbranch_scc1 C_pad
        C_padx:
        """)
    dump(a)
    a("s_endpgm")
    a(f"C_again:\n s_sub_u32 s{T0+11}, s{T0+11}, 1\n s_cbranch_scc1 C_ppx")
    oloads()
    a("s_branch C_pp")
    sT, sKo, sVo = T0, T0 + 1, T0 + 2
    def kload():
        a(f"""
        s_mul_i32 s{sKo}, s{sT}, {RT}
        s_lshl_b32 s3, s{sU0}, 7
        s_add_u32 s{sVo}, s{sKo}, s3
        s_add_u32 s{sVo}, s{sVo}, {BR + VU}
        s_lshl_b32 s3, s{sU0}, 9
        s_add_u32 s{sKo}, s{sKo}, s3
        s_add_u32 s{sKo}, s{sKo}, {BR + KU}
        buffer_load_dwordx4 {vr(K,4)}, v{vL16}, {sr(sWS)}, s{sKo} offen sc1
        buffer_load_dwordx4 {vr(K+4,4)}, v{vL16}, {sr(sWS)}, s{sKo} offen offset:1024 sc1
        """)
    def qk():
        a(f"""
        s_waitcnt vmcnt(0)
        {MF32} {vr(S[0],16)}, {vr(K,4)}, {vr(Q,4)}, 0
        {MF32} {vr(S[0],16)}, {vr(K+4,4)}, {vr(Q+4,4)}, {vr(S[0],16)}
        s_nop 15
        """)
    a(f"C_slow:\n v_mov_b32 v{T}, 0xff800000\n s_mov_b32 s{sT}, 0\n C_s1:")
    kload(); qk()
    for i in range(0, 16, 2):
        a(f"v_max3_f32 v{T}, v{T}, v{S[0]+i}, v{S[0]+i+1}")
    a(f"""
    s_add_u32 s{sT}, s{sT}, 1
    s_cmp_lt_u32 s{sT}, 64
    s_cbranch_scc1 C_s1
    v_mov_b32 v{T+1}, v{T}
    s_nop 1
    v_permlane32_swap_b32 v{T}, v{T+1}
    s_nop 1
    v_max_f32 v{T}, v{T}, v{T+1}
    v_lshrrev_b32 v{T+1}, 5, v0
    v_mul_u32_u24 v{T+1}, {7168-512}, v{T+1}
    v_add_u32 v{T+1}, v{T+1}, v{vL16}
    """)
    for i in range(16):
        a(f"v_mov_b32 v{O+i}, 0")
    for i in range(8):
        a(f"v_mov_b32 v{V+i}, 0x3f803f80")
    a(f"s_mov_b32 s{sT}, 0\n C_s2:")
    kload()
    a(f"""
    s_add_u32 s3, s{sVo}, 14336
    s_mov_b64 exec, {sr(sVM,2)}
    buffer_load_dwordx4 {vr(V,4)}, v{T+1}, {sr(sWS)}, s{sVo} offen sc1
    buffer_load_dwordx4 {vr(V+4,4)}, v{T+1}, {sr(sWS)}, s3 offen sc1
    s_mov_b64 exec, -1
    """)
    qk()
    for i in range(16):
        a(f"v_sub_f32 v{S[0]+i}, v{S[0]+i}, v{T}")
    for i in range(16):
        a(f"v_exp_f32 v{S[0]+i}, v{S[0]+i}")
    a("s_nop 0")
    for i in range(8):
        a(f"v_cvt_pk_bf16_f32 v{P+i}, v{S[0]+2*i}, v{S[0]+2*i+1}")
    a(f"""
    s_nop 1
    {MF32} {vr(O,16)}, {vr(V,4)}, {vr(P,4)}, {vr(O,16)}
    {MF32} {vr(O,16)}, {vr(V+4,4)}, {vr(P+4,4)}, {vr(O,16)}
    s_add_u32 s{sT}, s{sT}, 1
    s_cmp_lt_u32 s{sT}, 64
    s_nop 15
    s_cbranch_scc1 C_s2
    """)
    bcast_l(a, O + 12, O, T + 4)
    a(f"s_cmp_eq_u32 s{sC}, 0\n s_cbranch_scc1 C_fin")
    for i in range(8):
        a(f"v_mov_b32 v{O+i}, v{O+8+i}")
    a("s_branch C_fin")

def gen_helper(a):
    AQ, AKp, AKc, AVp, AVc, O, HP, T, SP, SC = 28, 36, 44, 52, 56, 64, 80, 104, 108, 124
    sRT = sHRT
    nb = [0]
    def bar():
        k = nb[0]; nb[0] += 1
        if OPT["hst"]: lstamp(a, k)
        a("s_barrier")
        if OPT["hst"]: lstamp(a, 16 + k)
    regs = [SP + 8 + i for i in range(8)] + [SC + i for i in range(16)]
    def wo(srdn, lbase, i0, i1, tag):
        a(f"s_lshr_b32 s22, s{sM}, 2")
        for i in range(i0, i1):
            a(f"s_add_u32 m0, s22, {lbase + (i-i0)*4096}\n s_mov_b32 s{T0}, {i*32*896}")
            a.vm(f"buffer_load_dwordx4 v{vWo}, {sr(srdn)}, s{T0} offen lds", tag)
    a.q = []
    stamp(a, 5)
    if OPT["mg"]:
        a.q = ["kv1"] * 12
    else:
        a("s_setprio 3\n s_barrier")
        kv(a, 1)
    st = qkv_stores(HP, T0 + 1)
    n0 = OPT["sa0"]
    for l in st[:n0]: a.vm(l, "sa")
    a(f"""
    s_mul_i32 s{T0+10}, s{sRT}, {RT}
    s_add_u32 s{T0+10}, s{T0+10}, s{sKb}
    """)
    pf = []
    if OPT["wpf"]:
        a(f"""
        s_lshl_b32 s3, s{sJ}, 2
        s_add_u32 s3, s3, s{sR}
        s_mul_i32 s3, s3, {25*128}
        s_min_u32 s3, s3, {WO_BYTES - 25*128}
        s_add_u32 s4, s{sWoB}, s3
        s_addc_u32 s5, s{sWoB+1}, 0
        s_add_u32 s6, s{sWoA}, s3
        s_addc_u32 s7, s{sWoA+1}, 0
        """)
        pf = [f"s_load_dword s17, s[{b}:{b+1}], {i*128}" for b in (4, 6) for i in range(25)]
    def pfb(n):
        for _ in range(n):
            if pf: a(pf.pop(0))
    LA = OPT["la"]
    a(f"""
    s_lshl_b32 s16, s{T0+5}, {FS}
    s_add_u32 s16, s16, {FA}
    v_mov_b32 v{O}, -1
    v_mov_b32 v{O+1}, -1
    v_mov_b32 v{O+2}, -1
    v_mov_b32 v{O+3}, -1
    s_add_u32 s13, s{T0+10}, {BR + OU}
    """)
    def poison():
        store_units(a, O, True, 13, 0)
        store_units(a, O, False, 13, 1024)
        a.q += ["po"] * 3
    a.wait("kv1"); bar(); kv(a, 2)
    for l in st[n0:]: a.vm(l, "sa")
    if LA == 2:
        a.wait("kv2"); bar(); kv(a, 3)
    a.wait("sa")
    set_flag(a, 16, T)
    if LA == 2: poison()
    S1 = OPT["sch"]
    def look(va, vt, so, lab, k):
        a.vm(f"buffer_load_dwordx2 {vr(vt,2)}, v{va}, {sr(sWS)}, {so} offen sc1", "fl")
        kv(a, k)
        a.wait("fl")
        a(f"v_cmp_ne_u64 vcc, {sr(sTAG,2)}, {vr(vt,2)}\n s_cmp_eq_u64 vcc, 0\n s_cbranch_scc1 {lab}")
        q = list(a.q)
        poll(a, va, vt, so)
        a.q = q
        a(f"{lab}:")
    if S1:
        assert LA == 2
        wo(sWoB, WOB_L, 0, 6, "wob")
        a.wait("kv3"); bar()
        look(vFa, T, "0", "H_ok1", 4)
    else:
        a.wait(f"kv{LA+1}"); bar(); kv(a, LA + 2)
        poll(a, vFa, T)
    a(f"""
    s_mul_i32 s{T0}, s{sRT}, {RT}
    s_cmp_eq_u32 s{sRT}, 0
    s_cselect_b32 s3, 0, {RT}
    s_sub_u32 s{T0+1}, s{T0}, s3
    s_add_u32 s{T0+2}, s{T0+10}, {KU}
    s_add_u32 s{T0+3}, s{T0+1}, s{sKb}
    s_add_u32 s{T0+3}, s{T0+3}, {KU}
    """)
    for (r, so) in ((AQ, T0 + 10), (AKc, T0 + 2), (AKp, T0 + 3)):
        a.vm(f"buffer_load_dwordx4 {vr(r,4)}, v{vL16}, {sr(sWS)}, s{so} offen sc1", "loc")
        a.vm(f"buffer_load_dwordx4 {vr(r+4,4)}, v{vL16}, {sr(sWS)}, s{so} offen offset:1024 sc1", "loc")
    a(f"""
    s_add_u32 s{T0}, s{T0}, s{sVb}
    s_add_u32 s{T0}, s{T0}, {VU}
    s_add_u32 s{T0+2}, s{T0}, 14336
    s_add_u32 s{T0+1}, s{T0+1}, s{sVb}
    s_add_u32 s{T0+1}, s{T0+1}, {VU + 14336}
    """)
    a.vm(f"buffer_load_dwordx4 {vr(AVc,4)}, v{vVs}, {sr(sWS)}, s{T0} offen sc1", "loc")
    a.vm(f"buffer_load_dwordx4 {vr(AVc+4,4)}, v{vVs}, {sr(sWS)}, s{T0+2} offen sc1", "loc")
    a.vm(f"buffer_load_dwordx4 {vr(AVp,4)}, v{vVs}, {sr(sWS)}, s{T0+1} offen sc1", "loc")
    a.wait(f"kv{LA+2}"); bar(); kv(a, LA + 3)
    if LA == 1: poison()
    a.wait("loc")
    zero_foreign(a, AQ)
    a(f"""
    s_nop 0
    {MF32} {vr(SP,16)}, {vr(AKp,4)}, {vr(AQ,4)}, 0
    {MF32} {vr(SC,16)}, {vr(AKc,4)}, {vr(AQ,4)}, 0
    {MF32} {vr(SP,16)}, {vr(AKp+4,4)}, {vr(AQ+4,4)}, {vr(SP,16)}
    {MF32} {vr(SC,16)}, {vr(AKc+4,4)}, {vr(AQ+4,4)}, {vr(SC,16)}
    s_nop 11
    """)
    G = NG
    for i in range(12):
        a(f"v_bitop3_b32 v{regs[2*i]}, v{vPar}, v{regs[2*i+1]}, v{regs[2*i]} bitop3:0xca")
    for i in range(12):
        a(f"v_bitop3_b32 v{G + i%4}, v{regs[2*i]}, v{VM+i}, v{G + i%4} bitop3:0xea")
    a(f"""
    v_max3_f32 v{T}, v{G}, v{G+1}, v{G+2}
    v_max_f32 v{T}, v{T}, v{G+3}
    v_mov_b32 v{T+1}, v{T}
    s_nop 1
    v_permlane32_swap_b32 v{T}, v{T+1}
    s_nop 1
    v_max_f32 v{T}, v{T}, v{T+1}
    """)
    for g in range(4): a(f"v_sub_f32 v{G+g}, v{G+g}, v{T}")
    for g in range(4): a(f"v_exp_f32 v{G+g}, v{G+g}")
    a(f"""
    s_nop 0
    v_add_f32 v{T}, v{G}, v{G+1}
    v_add_f32 v{T+1}, v{G+2}, v{G+3}
    v_add_f32 v{T}, v{T}, v{T+1}
    v_mov_b32 v{T+1}, v{T}
    s_nop 1
    v_permlane32_swap_b32 v{T}, v{T+1}
    s_nop 1
    v_add_f32 v{T}, v{T}, v{T+1}
    v_rcp_f32 v{T}, v{T}
    s_nop 0
    """)
    for g in range(4): a(f"v_mul_f32 v{G+g}, v{G+g}, v{T}")
    for g in range(4): a(f"v_cvt_pk_bf16_f32 v{G+g}, v{G+g}, v{G+g}")
    PM = VM
    for i in range(12):
        a(f"v_bitop3_b32 v{PM+i}, v{PM+i}, v{G + i%4}, v{vHalf} bitop3:0x80")
    O2 = SP
    a(f"""
    s_nop 1
    {MF32} {vr(O2,16)}, {vr(AVp,4)}, {vr(PM,4)}, 0
    {MF32} {vr(O2,16)}, {vr(AVc,4)}, {vr(PM+4,4)}, {vr(O2,16)}
    {MF32} {vr(O2,16)}, {vr(AVc+4,4)}, {vr(PM+8,4)}, {vr(O2,16)}
    s_add_u32 s{T0+10}, s{T0+10}, {OU}
    s_nop 11
    """)
    for i in range(8):
        a(f"v_cvt_pk_bf16_f32 v{O2+i}, v{O2+2*i}, v{O2+2*i+1}")
    a("s_nop 1")
    for g in (0, 4):
        a(f"v_permlane32_swap_b32 v{O2+g}, v{O2+g+2}\n v_permlane32_swap_b32 v{O2+g+1}, v{O2+g+3}")
    store_units(a, O2, True, T0 + 10, 0)
    store_units(a, O2 + 4, False, T0 + 10, 1024)
    a.q += ["oa"] * 3
    a.wait(f"kv{LA+3}"); bar(); kv(a, LA + 4)
    a(f"""
    s_lshl_b32 s3, s{sRT}, 4
    s_add_u32 s3, s3, s{sH}
    s_lshl_b32 s3, s3, {FS}
    s_add_u32 s{T0+10}, s3, {FO}
    """)
    a.wait("oa")
    set_flag(a, T0 + 10, T)
    if S1: wo(sWoB, WOB_L + 6 * 4096, 6, 14, "wob")
    else: wo(sWoB, WOB_L, 0, 6, "wob")
    OFA, ACC, WB, T = 28, 84, 116, 160
    a(f"""
    s_and_b32 s3, s{sR}, 1
    s_lshl_b32 s{sRT}, s{sRBK}, 1
    s_add_u32 s{sRT}, s{sRT}, s3
    s_lshr_b32 s{sC}, s{sR}, 1
    s_lshl_b32 s3, s{sRT}, 1
    s_add_u32 s3, s3, s{sC}
    s_lshl_b32 s14, s3, {3+FS}
    s_add_u32 s14, s14, {FO}
    s_mul_i32 s13, s3, {RT//2}
    s_add_u32 s13, s13, {OU}
    s_lshl_b32 s{T0+10}, s{sCG3}, 7
    s_lshl_b32 s3, s{sC}, 6
    s_add_u32 s{T0+10}, s{T0+10}, s3
    s_mul_i32 s3, s{sRT}, {32*1792}
    s_add_u32 s{T0+10}, s{T0+10}, s3
    """)
    if not S1:
        a.wait(f"kv{LA+4}"); bar(); kv(a, LA + 5)
        wo(sWoB, WOB_L + 6 * 4096, 6, 14, "wob")
        a.vm(f"buffer_load_dwordx2 {vr(T+6,2)}, v{vPo}, {sr(sWS)}, s14 offen sc1", "fl")
    def ofa(i0, i1):
        for i in range(i0, i1):
            if i and i % 4 == 0:
                a(f"s_add_u32 s13, s13, 4096")
            a.vm(f"buffer_load_dwordx4 {vr(OFA+4*i,4)}, v{vL16}, {sr(sWS)}, s13 offen offset:{(i%4)*1024} sc1", f"ofa{i}")
    if S1:
        a.wait("kv6"); bar()
        look(vPo, T + 6, "s14", "H_ok2", 7)
        ofa(0, 7)
        a.wait("kv7"); bar()
    else:
        a.wait(f"kv{LA+5}"); bar()
        a.wait_all()
        a(f"""
        v_cmp_ne_u64 vcc, {sr(sTAG,2)}, {vr(T+6,2)}
        s_cmp_eq_u64 vcc, 0
        s_cbranch_scc1 H_ok2
        """)
        poll(a, vPo, T + 6, "s14")
        a("H_ok2:")
        if LA == 1:
            kv(a, 7)
            ofa(0, 8)
            a.wait("kv7"); bar()
    a(f"""
    s_lshl_b32 s3, s{sR}, 2
    s_add_u32 s3, s3, {HFL_L}
    v_mov_b32 v{T}, s3
    v_xor_b32 v{T+1}, 8, v{T}
    v_mov_b32 v{T+3}, {HFL_L}
    v_mov_b32 v{T+2}, 0
    s_mov_b64 exec, 1
    ds_write_b32 v{T}, v{T+2}
    s_mov_b64 exec, -1
    """)
    wo(sWoA, WOA_L[0], 0, 7, "woa")
    if S1: ofa(7, 14)
    elif LA == 1: ofa(8, 14)
    else: ofa(0, 9)
    a("s_waitcnt lgkmcnt(0)")
    bar()
    wo(sWoA, WOA_L[1], 7, 14, "woa")
    if LA == 2 and not S1: ofa(9, 14)
    a("s_barrier")
    a(f"s_cmp_ge_u32 s{sJ}, 28\n s_cbranch_scc1 H_idle")
    a(f"s_setprio {OPT['hp']}")
    a.wait("woa")
    stamp(a, 8)
    def hflag(val, rd, lab):
        a(f"""
        v_mov_b32 v{T+2}, {val}
        s_mov_b64 exec, 1
        ds_write_b32 v{T}, v{T+2}
        s_mov_b32 s23, {SPIN * 8}
        {lab}:
        """)
        if rd == 4:
            a(f"""
            ds_read_b128 {vr(T+4,4)}, v{T+3}
            s_waitcnt lgkmcnt(0)
            v_min3_u32 v{T+4}, v{T+4}, v{T+5}, v{T+6}
            v_min_u32 v{T+4}, v{T+4}, v{T+7}
            s_nop 0
            """)
        else:
            a(f"ds_read_b32 v{T+4}, v{T+1}\n s_waitcnt lgkmcnt(0)")
        a(f"""
        v_readfirstlane_b32 s3, v{T+4}
        s_sub_u32 s23, s23, 1
        s_cbranch_scc1 {lab}x
        s_cmp_lt_u32 s3, {val}
        s_cbranch_scc1 {lab}
        {lab}x:
        s_mov_b64 exec, -1
        """)
    hflag(1, 4, "H_pv")
    NB = 4
    def rd(i):
        for c in range(2):
            for j in range(2):
                a(f"ds_read_b64_tr_b16 {vr(WB+8*(i%NB)+4*c+2*j,2)}, v{vWa+c} offset:{(16*i+4*j)*128}")
    for i in range(NB - 1): rd(i)
    for i in range(14):
        a.wait(f"ofa{i}", f" lgkmcnt({4*min(NB-2, 13-i)})")
        for c in range(2):
            cin = "0" if i == 0 else vr(ACC + 16 * c, 16)
            a(f"{MF32} {vr(ACC+16*c,16)}, {vr(WB+8*(i%NB)+4*c,4)}, {vr(OFA+4*i,4)}, {cin}")
        if i + NB - 1 < 14:
            rd(i + NB - 1)
    a(f"""
    s_cmp_eq_u32 s{sC}, 0
    s_nop 10
    s_cbranch_scc1 H_y0
    """)
    for i in range(4):
        a(f"ds_write_b128 v{vXa}, {vr(ACC+4*i,4)} offset:{i*1024}")
    a("s_branch H_y1\n H_y0:")
    for i in range(4):
        a(f"ds_write_b128 v{vXa}, {vr(ACC+16+4*i,4)} offset:{i*1024}")
    a("H_y1:\n s_waitcnt lgkmcnt(0)")
    stamp(a, 9)
    hflag(2, 1, "H_pw")
    a(f"s_cmp_eq_u32 s{sC}, 0")
    for i in range(4):
        a(f"ds_read_b128 {vr(OFA+4*i,4)}, v{vXa+1} offset:{i*1024}")
    a(f"s_waitcnt lgkmcnt(0)\n s_cbranch_scc1 H_z0")
    for i in range(16):
        a(f"v_add_f32 v{OFA+i}, v{ACC+16+i}, v{OFA+i}")
    a("s_branch H_z1\n H_z0:")
    for i in range(16):
        a(f"v_add_f32 v{OFA+i}, v{ACC+i}, v{OFA+i}")
    a("H_z1:")
    for i in range(8):
        a(f"v_cvt_pk_bf16_f32 v{OFA+i}, v{OFA+2*i}, v{OFA+2*i+1}")
    a("s_nop 1")
    for g in (0, 4):
        a(f"v_permlane32_swap_b32 v{OFA+g}, v{OFA+g+2}\n v_permlane32_swap_b32 v{OFA+g+1}, v{OFA+g+3}")
    osc = ("", " sc1", " nt", " sc0 sc1")[OPT["outsc"]]
    a(f"buffer_store_dwordx4 {vr(OFA,4)}, v{vOa}, {sr(sOUT)}, s{T0+10} offen{osc}")
    a(f"buffer_store_dwordx4 {vr(OFA+4,4)}, v{vOa}, {sr(sOUT)}, s{T0+10} offen offset:32{osc}")
    a("s_barrier")
    a("H_exit:")
    dump(a)
    a("s_endpgm")
    a(f"""
    H_idle:
    s_cmp_lg_u32 s2, 255
    s_cbranch_scc1 H_exit
    s_cmp_lg_u32 s{sW}, 4
    s_cbranch_scc1 H_exit
    v_lshlrev_b32 v{T}, {FS}, v0
    s_mov_b32 s{T0+11}, {SPIN}
    H_ep:
    """)
    for i in range(4):
        a(f"s_mov_b32 s3, {FB + (i*64 << FS)}\n buffer_load_dwordx2 {vr(OFA+2*i,2)}, v{T}, {sr(sWS)}, s3 offen sc1")
    a(f"s_waitcnt vmcnt(0)\n s_mov_b64 s[4:5], 0")
    for i in range(4):
        a(f"v_cmp_ne_u64 vcc, {sr(sTAG,2)}, {vr(OFA+2*i,2)}\n s_or_b64 s[4:5], s[4:5], vcc")
    a(f"""
    s_sub_u32 s{T0+11}, s{T0+11}, 1
    s_cbranch_scc1 H_epx
    s_cmp_lg_u64 s[4:5], 0
    s_cbranch_scc1 H_ep
    H_epx:
    v_mov_b32 v{T}, {EPOCH}
    v_mov_b32 v{T+1}, s{sTAG}
    s_mov_b64 exec, 1
    buffer_store_dword v{T+1}, v{T}, {sr(sWS)}, 0 offen sc1
    s_mov_b64 exec, -1
    s_branch H_exit
    """)
    if OPT["mg"]:
        a("H_kv1:\n s_setprio 3")
        if OPT["mg"] == 2: a("s_barrier")
        kv(a, 1)
        a("s_branch C_g" if OPT["mg"] == 1 else "s_branch C_cv")

def main(out):
    a = gen()
    K = NAME + "_kernel"
    hdr = f"""; Fused QKV projection -> attention (A: dilated local window, B: full) -> output projection.
; @launch grid=(256,1,1) block=(768,1,1) lds=163840
.amdgcn_target "amdgcn-amd-amdhsa--gfx950"
.text
"""
    d = f""".section .rodata,"a"
.p2align 6
.amdhsa_kernel {K}
  .amdhsa_next_free_vgpr 168
  .amdhsa_next_free_sgpr 102
  .amdhsa_accum_offset 168
  .amdhsa_group_segment_fixed_size 0
  .amdhsa_kernarg_size 72
  .amdhsa_user_sgpr_count 2
  .amdhsa_user_sgpr_kernarg_segment_ptr 1
  .amdhsa_system_sgpr_workgroup_id_x 1
.end_amdhsa_kernel
"""
    open(out, "w").write(hdr + a.text() + d)

if __name__ == "__main__":
    for arg in sys.argv[2:]:
        k, v = arg.split("=")
        assert k in OPT
        OPT[k] = int(v)
    main(sys.argv[1])
```
